```python
import torch

def _softmax(x, axis=-1):
    return torch.softmax(x, dim=axis)
def _gelu(x):
    return torch.nn.functional.gelu(x, approximate="tanh")
def _silu(x):
    return torch.nn.functional.silu(x)
def _sigmoid(x):
    return torch.sigmoid(x)
def _layernorm(x, axis=-1, eps=1e-5):
    m = x.mean(dim=axis, keepdim=True)
    v = x.var(dim=axis, keepdim=True, unbiased=False)
    return (x - m) / torch.sqrt(v + eps)
def _scatter_add(tgt, idx, src, axis=0):
    return tgt.clone().index_add_(axis, idx, src)
def _segment_sum(src, seg, n):
    out = torch.zeros((n,) + src.shape[1:], dtype=src.dtype)
    return out.index_add_(0, seg, src)
def _pad(x, pw):
    flat = tuple(v for pair in reversed(pw) for v in pair)
    return torch.nn.functional.pad(x, flat)

kernel_name = 'sequential_preLN__sliding_block_cached__dense_activation_relu__decode'

def setup_inputs():

    _w = (lambda a: (lambda t: t.to(torch.bfloat16) if t.is_floating_point() else t)(torch.as_tensor(a)))
    def _A_setup():
        B, Sq, D = 8, 1, 640
        Hq, Hkv, Sk, Dh = 32, 32, 4096, 128
        assert Hq % Hkv == 0, (Hq, Hkv)
        return {
            "x": _w((lambda *s: torch.randn(*s, dtype=torch.bfloat16) * 0.05)(B, Sq, D)),
            "k_cache": _w((lambda *s: torch.randn(*s, dtype=torch.bfloat16) * 3.2)(B, Hkv, Sk, Dh)),
            "v_cache": _w((lambda *s: torch.randn(*s, dtype=torch.bfloat16) * 0.4)(B, Hkv, Sk, Dh)),
            "wq": _w((lambda *s: torch.randn(*s, dtype=torch.bfloat16) * 3.2)(D, Hq * Dh) * (D ** -0.5)),
            "wo": _w((lambda *s: torch.randn(*s, dtype=torch.bfloat16) * 0.4)(Hq * Dh, D) * ((Hq * Dh) ** -0.5)),
        }
    _A_in = _A_setup()

    def _B_setup():
        B, S, D, Dff = 8, 1, 640, 1728
        return {
            "x": _w((lambda *s: torch.randn(*s, dtype=torch.bfloat16) * 0.05)(B, S, D)),
            "w1": _w((lambda *s: torch.randn(*s, dtype=torch.bfloat16) * 0.05)(D, Dff)),
            "w2": _w((lambda *s: torch.randn(*s, dtype=torch.bfloat16) * 0.05)(Dff, D)),
        }
    _B_in = _B_setup()

    return {
        "A_x": _A_in["x"],
        "A_k_cache": _A_in["k_cache"],
        "A_v_cache": _A_in["v_cache"],
        "A_wq": _A_in["wq"],
        "A_wo": _A_in["wo"],
        "B_x": _B_in["x"],
        "B_w1": _B_in["w1"],
        "B_w2": _B_in["w2"],
    }

def reference(A_x, A_k_cache, A_v_cache, A_wq, A_wo, B_x, B_w1, B_w2):
    def _A_ref(x, k_cache, v_cache, wq, wo):
        B, Sq, D = x.shape
        Hq, Dh = 32, 128
        Hkv, Sk = k_cache.shape[1], k_cache.shape[2]
        W = min(4096, max(256, Sk // 4))
        rep = Hq // Hkv
        q = (lambda x, *d: x.permute(*d))((x @ wq).reshape(B, Sq, Hq, Dh), 0, 2, 1, 3)
        k = (lambda x, n, axis: torch.repeat_interleave(x, n, dim=axis))(k_cache[:, :, Sk - W:, :], rep, axis=1)
        v = (lambda x, n, axis: torch.repeat_interleave(x, n, dim=axis))(v_cache[:, :, Sk - W:, :], rep, axis=1)
        scores = torch.einsum("bhqd,bhkd->bhqk", q, k) * (Dh ** -0.5)
        p = _softmax(scores, axis=-1)
        o = torch.einsum("bhqk,bhkd->bhqd", p, v)
        return (lambda x, *d: x.permute(*d))(o, 0, 2, 1, 3).reshape(B, Sq, Hq * Dh) @ wo

    def _B_ref(x, w1, w2):
        h = torch.einsum("bsd,df->bsf", x, w1)
        zero = torch.zeros_like(h)
        h = torch.maximum(h, zero)
        return torch.einsum("bsf,fd->bsd", h, w2)

    x = A_x
    h = x + _A_ref(_layernorm(x, axis=-1), A_k_cache, A_v_cache, A_wq, A_wo)
    h2 = h + _B_ref(_layernorm(h, axis=-1), B_w1, B_w2)
    return h2
```

```python
import re

TRANS = ("v_exp_f32", "v_log_f32", "v_rcp_f32", "v_rsq_f32", "v_sqrt_f32", "v_sin_f32", "v_cos_f32")

def _regs(tok):
    tok = tok.strip()
    tok = tok.lstrip("-")
    m = re.match(r"^abs\((.*)\)$", tok)
    if m:
        tok = m.group(1)
    tok = tok.strip("|")
    m = re.match(r"^([vsa])(\d+)$", tok)
    if m:
        return {(m.group(1), int(m.group(2)))}
    m = re.match(r"^([vsa])\[(\d+):(\d+)\]$", tok)
    if m:
        return {(m.group(1), k) for k in range(int(m.group(2)), int(m.group(3)) + 1)}
    if tok in ("vcc", "vcc_lo", "vcc_hi"):
        return {("vcc", 0)}
    if tok == "m0":
        return {("m0", 0)}
    if tok in ("exec", "exec_lo", "exec_hi"):
        return {("exec", 0)}
    return set()

def split_ops(s):
    out, depth, cur = [], 0, ""
    for ch in s:
        if ch in "[(":
            depth += 1
        if ch in "])":
            depth -= 1
        if ch == "," and depth == 0:
            out.append(cur.strip()); cur = ""
        else:
            cur += ch
    if cur.strip():
        out.append(cur.strip())
    return out

class Ins:
    def __init__(self, text):
        self.text = text
        t = text.split(";")[0].strip()
        parts = t.split(None, 1)
        self.mn = parts[0]
        rest = parts[1] if len(parts) > 1 else ""
        ops = split_ops(rest)
        self.mods = ""
        if ops:
            last = ops[-1].split(None, 1)
            ops[-1] = last[0]
            self.mods = last[1] if len(last) > 1 else ""
        self.ops = ops
        mn = self.mn
        self.cls = "other"
        self.w, self.r = set(), set()
        self.srcc = set()
        self.ab = set()
        self.data = set()
        self.dpp = ("_dpp" in mn) or any(k in t for k in ("row_", "quad_perm"))
        if mn.startswith("v_mfma"):
            self.cls = "mfma"
            self.w = _regs(ops[0]); self.ab = _regs(ops[1]) | _regs(ops[2]); self.srcc = _regs(ops[3])
            self.r = self.ab | self.srcc
            self.passes = 8 if "32x32" in mn else 4
        elif mn.startswith("v_"):
            self.cls = "valu"
            if mn.startswith("v_cmp"):
                self.w = _regs(ops[0]); srcs = ops[1:]
            elif mn.startswith("v_readlane") or mn.startswith("v_readfirstlane"):
                self.w = _regs(ops[0]); srcs = ops[1:]
            elif "_co_" in mn:
                self.w = _regs(ops[0]) | _regs(ops[1]); srcs = ops[2:]
            elif mn.startswith("v_permlane") and "swap" in mn:
                self.w = _regs(ops[0]) | _regs(ops[1]); srcs = ops
            else:
                self.w = _regs(ops[0]); srcs = ops[1:]
            for o in srcs:
                self.r |= _regs(o)
            if mn.startswith("v_fmac") or mn.startswith("v_dot2c") or self.dpp or mn.startswith("v_writelane"):
                self.r |= _regs(ops[0])
            if mn.startswith("v_dot"):
                self.srcc = _regs(ops[0]) if mn.startswith("v_dot2c") else _regs(ops[3])
                self.ab = _regs(ops[1]) | _regs(ops[2])
        elif mn.startswith("buffer_") or mn.startswith("global_"):
            self.cls = "vmem"
            lds = (" lds" in " " + self.mods) or ("_lds_" in mn)
            self.lds = lds
            if mn in ("buffer_inv", "buffer_wbl2"):
                pass
            elif "load" in mn and not lds:
                self.w = _regs(ops[0])
                for o in ops[1:]: self.r |= _regs(o)
            elif "load" in mn:
                for o in ops: self.r |= _regs(o)
                self.r |= {("m0", 0)}
            else:
                for o in ops: self.r |= _regs(o)
                if mn.startswith("buffer_"):
                    self.data = _regs(ops[0])
                    if "atomic" in mn and "sc0" in self.mods: self.w = _regs(ops[0])
                else:
                    if "atomic" in mn and "sc0" in self.mods:
                        self.w = _regs(ops[0]); self.data = _regs(ops[2])
                    else:
                        self.data = _regs(ops[1])
        elif mn.startswith("ds_"):
            self.cls = "ds"
            if "read" in mn or "permute" in mn or "swizzle" in mn:
                self.w = _regs(ops[0])
                for o in ops[1:]: self.r |= _regs(o)
            else:
                for o in ops: self.r |= _regs(o)
        elif mn.startswith("s_load") or mn.startswith("s_mem") or mn.startswith("s_buffer_load"):
            self.cls = "smem"
            self.w = _regs(ops[0])
            for o in ops[1:]: self.r |= _regs(o)
        elif mn.startswith("s_"):
            self.cls = "salu"
            if mn.startswith("s_cmp") or mn.startswith("s_cbranch") or mn in ("s_branch", "s_waitcnt", "s_barrier", "s_nop", "s_endpgm", "s_sleep", "s_setprio"):
                for o in ops: self.r |= _regs(o)
            else:
                if ops: self.w = _regs(ops[0])
                for o in ops[1:]: self.r |= _regs(o)
                if "saveexec" in mn: self.w |= {("exec", 0)}
        self.states = 1
        if mn == "s_nop":
            self.states = int(ops[0], 0) + 1

def need(p, c):
    n = 0
    vw = {x for x in p.w if x[0] in "va"}
    sw = {x for x in p.w if x[0] in ("s", "vcc")}
    if p.cls == "valu":
        if c.cls == "valu" and c.dpp and (vw & c.r): n = max(n, 2)
        if c.cls == "valu" and (c.mn.startswith("v_readlane") or c.mn.startswith("v_readfirstlane")) and (vw & c.r): n = max(n, 1)
        if c.cls == "valu" and c.mn.startswith("v_permlane") and (vw & c.r): n = max(n, 2)
        if c.cls == "mfma" and (vw & c.r): n = max(n, 2)
        if sw:
            cr = set(c.r)
            if c.cls == "valu" and (c.mn.startswith("v_cndmask") or "addc" in c.mn or "subb" in c.mn) and len(c.ops) <= 3: cr |= {("vcc", 0)}
            if c.cls == "valu" and (sw & cr):
                n = max(n, 4 if ("lane" in c.mn) else 2)
            if c.cls == "vmem" and (sw & cr): n = max(n, 5)
            if c.cls == "salu" and (sw & cr): n = max(n, 1)
            if c.cls == "salu" and ("vcc", 0) in sw and "vcc" in c.mn: n = max(n, 5)
        if p.mn in TRANS or any(p.mn.startswith(t) for t in TRANS):
            if (vw & c.r): n = max(n, 1)
        if p.mn.startswith("v_dot"):
            if c.mn == p.mn and (vw & c.srcc) and not (vw & c.ab):
                pass
            elif (vw & (c.r | c.w)): n = max(n, 3)
        if "sdwa" in p.mn or "op_sel" in p.mods:
            if c.cls == "valu" and (vw & (c.r | c.w)): n = max(n, 1)
    if p.cls == "mfma":
        big = 12 if p.passes == 8 else 8
        if c.cls == "mfma":
            if vw & c.ab: n = max(n, big)
            if vw & c.srcc:
                if not (vw == c.srcc and c.passes == p.passes): n = max(n, big - 2)
            elif vw & c.w: n = max(n, big - 2)
        elif c.cls in ("valu", "vmem", "ds"):
            if vw & (c.r | c.w): n = max(n, big)
        if c.cls == "valu" and (p.srcc & c.w): n = max(n, 7 if p.passes == 8 else 3)
    if p.cls == "salu" and ("m0", 0) in p.w and c.cls == "vmem" and getattr(c, "lds", False): n = max(n, 1)
    if p.cls == "vmem" and len(p.data) >= 3:
        if p.data & c.w: n = max(n, 2 if c.cls in ("valu", "mfma") else 1)
    return n

class Asm:
    def __init__(self):
        self.lines = []
    def __call__(self, text):
        for ln in text.strip("\n").split("\n"):
            s = ln.strip()
            if not s: continue
            if s.startswith(";") or s.endswith(":") or s.startswith("."):
                self.lines.append(s)
            else:
                self.lines.append(Ins(s))
    def render(self):
        out, hist = [], []
        nops = 0
        for it in self.lines:
            if isinstance(it, str):
                out.append(it if it.endswith(":") else "  " + it)
                continue
            dist, req = 0, 0
            for p in reversed(hist):
                k = need(p, it) - dist
                if k > req: req = k
                dist += p.states
                if dist >= 24: break
            while req > 0:
                k = min(req, 16)
                nop = Ins("s_nop %d" % (k - 1))
                out.append("  " + nop.text); hist.append(nop); req -= k; nops += 1
            out.append("  " + it.text)
            hist.append(it)
            hist = hist[-32:]
        return "\n".join(out) + "\n"
```

```python
import sys, argparse
sys.path.insert(0, "work")
from asmlib import Asm

NAME = "sequential_preLN__sliding_block_cached__dense_activation_relu__decode"
HEADER = open("cdna_kernels/%s.s.ref" % NAME).read().split("; Override launch geometry")[0]

ap = argparse.ArgumentParser()
ap.add_argument("-o", default="cdna_kernels/%s.s" % NAME)
ap.add_argument("--stamp", action="store_true")
ap.add_argument("--kvmod", default="nt")
ap.add_argument("--wmod", default="")
ap.add_argument("--order", default="wq_first")
A = ap.parse_args()

L_PART = 0
L_QD = 4096
L_ST = 6144
L_YP = 6400
L_HN = 27136
HN_STRIDE = 1312
L_FP = 37888
L_W = 46080
LDS_BYTES = L_W + 81920
WS_HSUM = 0
WS_H1 = 32768
WS_STAMP = 1 << 20
FFN1_BASE, FFN1_N = 8, 27
FFN2_BASE, FFN2_N = 64, 40
SPIN_MAX = 400000

KR = 48
WR = 176
def kt(n): return "v[%d:%d]" % (KR + 4 * n, KR + 4 * n + 3)
def wt(n): return "v[%d:%d]" % (WR + 4 * n, WR + 4 * n + 3)
def vtile(n): return wt(n) if n < 20 else kt(n)
def soff(byte):
    hi, lo = byte // 4096, byte % 4096
    return ("0" if hi == 0 else "s%d" % (67 + hi)), lo

a = Asm()
stamp_idx = [0]
def stamp():
    if not A.stamp: return
    a("s_memrealtime s[90:91]\ns_waitcnt lgkmcnt(0)\ns_mov_b32 s%d, s90" % (92 + stamp_idx[0]))
    stamp_idx[0] += 1
    assert stamp_idx[0] <= 10

def wave_reduce(v, op, sdst):
    a("%s_dpp %s, %s, %s quad_perm:[1,0,3,2] row_mask:0xf bank_mask:0xf" % (op, v, v, v))
    a("%s_dpp %s, %s, %s quad_perm:[2,3,0,1] row_mask:0xf bank_mask:0xf" % (op, v, v, v))
    a("%s_dpp %s, %s, %s row_half_mirror row_mask:0xf bank_mask:0xf" % (op, v, v, v))
    a("%s_dpp %s, %s, %s row_mirror row_mask:0xf bank_mask:0xf" % (op, v, v, v))
    a("%s_dpp %s, %s, %s row_bcast:15 row_mask:0xa bank_mask:0xf" % (op, v, v, v))
    a("%s_dpp %s, %s, %s row_bcast:31 row_mask:0xc bank_mask:0xf" % (op, v, v, v))
    a("v_readlane_b32 %s, %s, 63" % (sdst, v))

def ln_stats(vals, tmp, vmean_bf, vrinv):
    t0, t1, t2 = tmp
    a("v_add_f32 %s, %s, %s" % (t0, vals[0], vals[1]))
    a("v_add_f32 %s, %s, %s" % (t1, vals[2], vals[3]))
    for k in range(4, 10, 2):
        a("v_add_f32 %s, %s, %s" % (t0, t0, vals[k]))
        a("v_add_f32 %s, %s, %s" % (t1, t1, vals[k + 1]))
    a("v_add_f32 %s, %s, %s" % (t0, t0, t1))
    wave_reduce(t0, "v_add_f32", "s84")
    a("v_mov_b32 %s, 0x3acccccd" % t2)
    a("v_mul_f32 %s, s84, %s" % (vmean_bf, t2))
    a("v_sub_f32 %s, %s, %s" % (t1, vals[0], vmean_bf))
    a("v_mul_f32 %s, %s, %s" % (t0, t1, t1))
    for k in range(1, 10):
        a("v_sub_f32 %s, %s, %s" % (t1, vals[k], vmean_bf))
        a("v_fmac_f32 %s, %s, %s" % (t0, t1, t1))
    wave_reduce(t0, "v_add_f32", "s84")
    a("v_mul_f32 %s, s84, %s" % (t0, t2))
    a("v_cvt_pk_bf16_f32 %s, %s, %s" % (t0, t0, vmean_bf))
    a("v_and_b32 %s, 0xffff0000, %s" % (vmean_bf, t0))
    a("v_lshlrev_b32 %s, 16, %s" % (t0, t0))
    a("v_add_f32 %s, 0x3727c5ac, %s" % (t0, t0))
    a("v_cvt_pk_bf16_f32 %s, %s, %s" % (t0, t0, t0))
    a("v_lshlrev_b32 %s, 16, %s" % (t0, t0))
    a("v_sqrt_f32 %s, %s" % (t0, t0))
    a("v_cvt_pk_bf16_f32 %s, %s, %s" % (t0, t0, t0))
    a("v_lshlrev_b32 %s, 16, %s" % (t0, t0))
    a("v_rcp_f32 %s, %s" % (vrinv, t0))

def selector(abuf, src, lane):
    for r in range(4):
        a("v_and_b32_dpp v%d, %s, v%d row_newbcast:%d row_mask:0xf bank_mask:0xf" % (abuf + r, src, 6 + r, lane))

def srd(d, plo, nbytes):
    a("s_mov_b32 s%d, s%d\ns_mov_b32 s%d, s%d\ns_mov_b32 s%d, %s\ns_mov_b32 s%d, 0x20000" % (d, plo, d + 1, plo + 1, d + 2, nbytes, d + 3))

a("s_cmp_ge_u32 s2, 256")
a("s_cbranch_scc1 L_end")
a("s_load_dwordx16 s[4:19], s[0:1], 0")
a("s_load_dwordx4 s[20:23], s[0:1], 64")
a("s_load_dwordx2 s[24:25], s[0:1], 80")
if A.stamp:
    a("s_memrealtime s[90:91]")
a("v_and_b32 v1, 63, v0")
a("v_lshrrev_b32 v44, 6, v0")
a("v_lshrrev_b32 v45, 4, v1")
a("v_and_b32 v46, 15, v0")
a("v_readfirstlane_b32 s26, v44")
a("s_lshr_b32 s76, s2, 5")
a("s_and_b32 s77, s2, 31")
for k in range(1, 8):
    a("s_movk_i32 s%d, %d" % (67 + k, 4096 * k))
a("v_lshlrev_b32 v2, 15, v44")
a("v_lshl_add_u32 v2, v1, 4, v2")
a("v_lshl_add_u32 v47, v44, 2, v45")
a("v_mul_u32_u24 v47, 20, v47")
a("v_lshlrev_b32 v3, 13, v47")
a("v_lshl_add_u32 v3, v46, 4, v3")
a("v_mul_u32_u24 v32, 20, v1")
a("v_add_lshl_u32 v33, v47, v46, 1")
a("v_and_b32 v34, 3, v0")
a("v_add_lshl_u32 v34, v47, v34, 1")
a("s_mul_i32 s84, s76, 1280")
a("s_lshl_b32 s85, s77, 8")
a("s_lshl_b32 s86, s2, 20")
a("s_add_u32 s86, s86, 786432")
a("s_waitcnt lgkmcnt(0)")
if A.stamp:
    a("s_mov_b32 s92, s90"); stamp_idx[0] = 1
srd(44, 4, "10240")
a("s_add_u32 s36, s10, s85\ns_addc_u32 s37, s11, 0\ns_sub_u32 s38, 5242880, s85\ns_mov_b32 s39, 0x20000")
a("s_add_u32 s28, s6, s86\ns_addc_u32 s29, s7, 0\ns_mov_b32 s30, 262144\ns_mov_b32 s31, 0x20000")
srd(48, 24, "65536")
a("s_cmp_ge_u32 s2, 8")
a("s_cbranch_scc1 L_noinit")
a("s_lshl_b32 s87, s2, 12")
a("v_lshlrev_b32 v35, 3, v0")
a("v_mov_b32 v36, 0\nv_mov_b32 v37, 0\nv_mov_b32 v38, -1\nv_mov_b32 v39, -1")
a("buffer_store_dwordx2 v[36:37], v35, s[48:51], s87 offen sc0 sc1")
a("s_add_u32 s87, s87, %d" % WS_H1)
a("buffer_store_dwordx2 v[38:39], v35, s[48:51], s87 offen sc0 sc1")
a("L_noinit:")
a("buffer_load_dwordx4 v[16:19], v32, s[44:47], s84 offen")
a("buffer_load_dword v20, v32, s[44:47], s84 offen offset:16")
a("buffer_load_ushort v22, v33, s[44:47], s84 offen")
a("buffer_load_ushort v23, v34, s[44:47], s84 offen offset:32")
NX = 4
def ld_wq(t):
    if t == 0:
        a("buffer_load_dwordx4 %s, v3, s[36:39], 0 offen %s" % (wt(t), A.wmod))
    else:
        a("s_mov_b32 s78, %d" % (t * 8192))
        a("buffer_load_dwordx4 %s, v3, s[36:39], s78 offen %s" % (wt(t), A.wmod))
def ld_k(n):
    so, im = soff(n * 1024)
    a("buffer_load_dwordx4 %s, v2, s[28:31], %s offen offset:%d %s" % (kt(n), so, im, A.kvmod))
def ld_v(n):
    so, im = soff(n * 1024)
    a("buffer_load_dwordx4 %s, v2, s[32:35], %s offen offset:%d %s" % (vtile(n), so, im, A.kvmod))
def ld_wo(t):
    so, im = soff(t * 256)
    a("buffer_load_dwordx4 %s, v4, s[40:43], %s offen offset:%d %s" % (kt(t), so, im, A.wmod))
if A.order == "wq_first":
    seq = [("q", t) for t in range(20)] + [("k", n) for n in range(32)]
else:
    seq = []
    for t in range(20):
        seq += [("q", t), ("k", t)]
    seq += [("k", n) for n in range(20, 32)]
for kind, n in seq:
    (ld_wq if kind == "q" else ld_k)(n)
def younger(kind, n):
    return len(seq) - 1 - seq.index((kind, n))

a("s_add_u32 s32, s8, s86\ns_addc_u32 s33, s9, 0\ns_mov_b32 s34, 262144\ns_mov_b32 s35, 0x20000")
a("s_mul_i32 s85, s77, 163840")
a("s_add_u32 s40, s12, s85\ns_addc_u32 s41, s13, 0\ns_mov_b32 s42, 163840\ns_mov_b32 s43, 0x20000")
srd(56, 20, "10240")
a("s_add_u32 s60, s24, %d\ns_addc_u32 s61, s25, 0\ns_mov_b32 s62, 27648\ns_mov_b32 s63, 0x20000" % WS_H1)
srd(64, 22, "256")
a("s_mov_b32 s80, 0xcccccccc\ns_mov_b32 s81, 0xcccccccc\ns_mov_b32 s82, 0xaaaaaaaa\ns_mov_b32 s83, 0xaaaaaaaa")
a("v_lshl_add_u32 v4, v44, 2, v45")
a("v_mul_u32_u24 v4, 5120, v4")
a("v_lshl_add_u32 v4, v46, 4, v4")
a("v_and_b32 v35, 1, v0")
a("v_lshlrev_b32 v35, 4, v35")
a("v_mov_b32 v36, 0xffff")
a("v_lshlrev_b32 v36, v35, v36")
a("v_lshrrev_b32 v37, 1, v46")
for r in range(4):
    a("v_cmp_eq_u32 vcc, %d, v37" % r)
    a("v_cndmask_b32 v%d, 0, v36, vcc" % (6 + r))
a("s_mov_b32 s75, 0\ns_mov_b32 s27, 0\ns_mov_b32 s79, 0")
a("s_mov_b32 s52, s16\ns_mov_b32 s53, s17\ns_mov_b32 s54, 0\ns_mov_b32 s55, 0x20000")
a("v_mov_b32 v5, 0")
a("s_sub_u32 s84, s2, %d" % FFN1_BASE)
a("s_cmp_lt_u32 s84, %d" % FFN1_N)
a("s_cbranch_scc0 L_not_r1")
a("s_mov_b32 s75, 1\ns_mov_b32 s27, s84")
a("s_lshl_b32 s85, s84, 7")
a("s_add_u32 s52, s16, s85\ns_addc_u32 s53, s17, 0\ns_sub_u32 s54, 2211840, s85")
a("s_mov_b32 s79, 27648")
a("v_mul_u32_u24 v5, 80, v44")
a("v_lshrrev_b32 v35, 3, v1")
a("v_add_u32 v5, v5, v35")
a("v_mul_u32_u24 v5, 3456, v5")
a("v_and_b32 v35, 7, v0")
a("v_lshl_add_u32 v5, v35, 4, v5")
a("L_not_r1:")
a("s_sub_u32 s84, s2, %d" % FFN2_BASE)
a("s_cmp_lt_u32 s84, %d" % FFN2_N)
a("s_cbranch_scc0 L_not_r2")
a("s_mov_b32 s75, 2\ns_mov_b32 s27, s84")
a("s_lshl_b32 s85, s84, 5")
a("s_add_u32 s52, s18, s85\ns_addc_u32 s53, s19, 0\ns_sub_u32 s54, 2211840, s85")
a("s_mov_b32 s79, 327680")
a("v_lshrrev_b32 v5, 1, v0")
a("v_mul_u32_u24 v5, 1280, v5")
a("v_and_b32 v35, 1, v0")
a("v_lshl_add_u32 v5, v35, 4, v5")
a("L_not_r2:")

a("s_waitcnt vmcnt(%d)" % len(seq))
for k in range(5):
    a("v_lshlrev_b32 v%d, 16, v%d" % (24 + 2 * k, 16 + k))
    a("v_and_b32 v%d, 0xffff0000, v%d" % (25 + 2 * k, 16 + k))
ln_stats(["v%d" % (24 + k) for k in range(10)], ["v35", "v36", "v37"], "v38", "v39")
for r in (22, 23):
    a("v_lshlrev_b32 v%d, 16, v%d" % (r, r))
    a("v_sub_f32 v%d, v%d, v38" % (r, r))
    a("v_cvt_pk_bf16_f32 v%d, v%d, v%d" % (r, r, r))
    a("v_lshlrev_b32 v%d, 16, v%d" % (r, r))
    a("v_mul_f32 v%d, v%d, v39" % (r, r))
    a("v_cvt_pk_bf16_f32 v%d, v%d, v%d" % (r, r, r))
for t in range(20):
    ab = 32 + 4 * (t & 1)
    selector(ab, "v22" if t < 16 else "v23", t & 15)
    a("s_waitcnt vmcnt(%d)" % younger("q", t))
    a("v_mfma_f32_16x16x32_bf16 v[40:43], v[%d:%d], %s, %s" % (ab, ab + 3, wt(t), "0" if t == 0 else "v[40:43]"))
for n in range(20):
    ld_v(n)
a("v_lshlrev_b32 v24, 9, v44")
a("v_lshl_add_u32 v24, v46, 5, v24")
a("v_lshl_add_u32 v24, v45, 4, v24")
a("v_mov_b32 v47, v24")
a("s_mov_b32 exec_hi, 0")
a("ds_write_b128 v47, v[40:43] offset:%d" % L_PART)
a("s_mov_b64 exec, -1")
a("v_lshlrev_b32 v25, 3, v1")
a("s_waitcnt lgkmcnt(0)")
a("s_barrier")
a("s_cmp_ge_u32 s2, 8")
a("s_cbranch_scc1 L_nosig")
a("s_cmp_lg_u32 s26, 0")
a("s_cbranch_scc1 L_nosig")
a("v_mov_b32 v26, 0\nv_mov_b32 v27, 1")
a("s_mov_b64 exec, 1")
a("buffer_atomic_add v27, v26, s[64:67], 0 offen sc1")
a("s_mov_b64 exec, -1")
a("L_nosig:")
for w in range(8):
    a("ds_read_b64 v[%d:%d], v25 offset:%d" % (26 + 2 * w, 27 + 2 * w, L_PART + 512 * w))
a("s_waitcnt lgkmcnt(0)")
for w in range(1, 8):
    a("v_add_f32 v26, v26, v%d" % (26 + 2 * w))
    a("v_add_f32 v27, v27, v%d" % (27 + 2 * w))
a("v_cvt_pk_bf16_f32 v26, v26, v27")
a("v_lshlrev_b32 v25, 2, v0")
a("ds_write_b32 v25, v26 offset:%d" % L_QD)
a("v_lshlrev_b32 v25, 8, v44")
a("v_lshl_add_u32 v25, v46, 4, v25")
a("s_waitcnt lgkmcnt(0)")
a("ds_read_b128 v[10:13], v25 offset:%d" % L_QD)
a("s_waitcnt lgkmcnt(0)")
stamp()

def reduce_scatter(dst):
    for n in range(8):
        a("v_add_f32_dpp v%d, v%d, v%d row_mirror row_mask:0xf bank_mask:0x3" % (16 + n, 16 + n, 16 + n))
    for n in range(8):
        a("v_add_f32_dpp v%d, v%d, v%d row_mirror row_mask:0xf bank_mask:0xc" % (16 + n, 24 + n, 24 + n))
    for n in range(4):
        a("v_add_f32_dpp v%d, v%d, v%d row_half_mirror row_mask:0xf bank_mask:0x5" % (16 + n, 16 + n, 16 + n))
    for n in range(4):
        a("v_add_f32_dpp v%d, v%d, v%d row_half_mirror row_mask:0xf bank_mask:0xa" % (16 + n, 20 + n, 20 + n))
    for n in range(4):
        a("v_add_f32_dpp v%d, v%d, v%d quad_perm:[3,2,1,0] row_mask:0xf bank_mask:0xf" % (16 + n, 16 + n, 16 + n))
    a("v_cndmask_b32 v16, v16, v18, s[80:81]")
    a("v_cndmask_b32 v17, v17, v19, s[80:81]")
    a("v_add_f32_dpp v16, v16, v16 quad_perm:[1,0,3,2] row_mask:0xf bank_mask:0xf")
    a("v_add_f32_dpp v17, v17, v17 quad_perm:[1,0,3,2] row_mask:0xf bank_mask:0xf")
    a("v_cndmask_b32 %s, v16, v17, s[82:83]" % dst)

for n in range(32):
    a("s_waitcnt vmcnt(%d)" % min(63, (younger("k", n) if A.order == "wq_first" else sum(1 for k in range(n + 1, 32))) + 20 + n))
    acc = 16 + (n & 15)
    for r in range(4):
        a("v_dot2_f32_bf16 v%d, v%d, v%d, %s" % (acc, KR + 4 * n + r, 10 + r, "0" if r == 0 else "v%d" % acc))
    if n < 20: ld_wo(n)
    else: ld_v(n)
    if n == 15: reduce_scatter("v14")
    if n == 31: reduce_scatter("v15")
a("s_mul_i32 s84, s26, 10240")
a("s_add_u32 s84, s84, %d" % L_W)
a("s_mov_b32 s78, 0")
for t in range(10):
    a("s_mov_b32 m0, s84")
    a("buffer_load_dwordx4 v5, s[52:55], s78 offen lds")
    if t < 9:
        a("s_add_u32 s84, s84, 1024")
        a("s_add_u32 s78, s78, s79")
NDMA = 10
a("s_load_dword s89, s[22:23], 0 glc")
stamp()

a("v_cvt_pk_bf16_f32 v16, v14, v15")
a("v_lshlrev_b32 v14, 16, v16")
a("v_and_b32 v15, 0xffff0000, v16")
a("v_mul_f32 v14, 0x3db504f3, v14")
a("v_mul_f32 v15, 0x3db504f3, v15")
a("v_cvt_pk_bf16_f32 v16, v14, v15")
a("v_lshlrev_b32 v14, 16, v16")
a("v_and_b32 v15, 0xffff0000, v16")
a("v_max_f32 v16, v14, v15")
wave_reduce("v16", "v_max_f32", "s84")
a("v_subrev_f32 v16, s84, v14")
a("v_subrev_f32 v17, s84, v15")
a("v_mul_f32 v16, 0x3fb8aa3b, v16")
a("v_mul_f32 v17, 0x3fb8aa3b, v17")
a("v_exp_f32 v16, v16")
a("v_exp_f32 v17, v17")
a("v_add_f32 v16, v16, v17")
wave_reduce("v16", "v_add_f32", "s85")
a("v_mov_b32 v16, s84")
a("v_mov_b32 v17, s85")
a("v_lshlrev_b32 v18, 3, v44")
a("s_mov_b64 exec, 1")
a("ds_write_b64 v18, v[16:17] offset:%d" % L_ST)
a("s_mov_b64 exec, -1")
a("v_and_b32 v18, 7, v0")
a("v_lshlrev_b32 v18, 3, v18")
a("s_waitcnt lgkmcnt(0)")
a("s_barrier")
a("ds_read_b64 v[16:17], v18 offset:%d" % L_ST)
a("s_waitcnt lgkmcnt(0)")
a("v_mov_b32 v18, v16")
a("v_max_f32_dpp v18, v18, v18 quad_perm:[1,0,3,2] row_mask:0xf bank_mask:0xf")
a("v_max_f32_dpp v18, v18, v18 quad_perm:[2,3,0,1] row_mask:0xf bank_mask:0xf")
a("v_max_f32_dpp v18, v18, v18 row_half_mirror row_mask:0xf bank_mask:0xf")
a("v_sub_f32 v16, v16, v18")
a("v_mul_f32 v16, 0x3fb8aa3b, v16")
a("v_exp_f32 v16, v16")
a("v_mul_f32 v16, v16, v17")
a("v_add_f32_dpp v16, v16, v16 quad_perm:[1,0,3,2] row_mask:0xf bank_mask:0xf")
a("v_add_f32_dpp v16, v16, v16 quad_perm:[2,3,0,1] row_mask:0xf bank_mask:0xf")
a("v_add_f32_dpp v16, v16, v16 row_half_mirror row_mask:0xf bank_mask:0xf")
a("v_rcp_f32 v16, v16")
a("v_sub_f32 v14, v14, v18")
a("v_sub_f32 v15, v15, v18")
a("v_mul_f32 v14, 0x3fb8aa3b, v14")
a("v_mul_f32 v15, 0x3fb8aa3b, v15")
a("v_exp_f32 v14, v14")
a("v_exp_f32 v15, v15")
a("v_mul_f32 v14, v14, v16")
a("v_mul_f32 v15, v15, v16")
a("v_cvt_pk_bf16_f32 v14, v14, v14")
a("v_cvt_pk_bf16_f32 v15, v15, v15")
a("v_lshrrev_b32 v16, 2, v46")
a("v_lshlrev_b32 v16, 10, v16")
a("v_lshl_add_u32 v16, v44, 6, v16")
a("v_lshl_add_u32 v16, v45, 4, v16")
a("v_and_b32 v17, 3, v0")
a("v_lshl_add_u32 v16, v17, 2, v16")
a("v_mul_u32_u24 v18, 2560, v44")
a("v_lshl_add_u32 v18, v46, 5, v18")
a("v_lshl_add_u32 v18, v45, 4, v18")
a("v_bfe_u32 v19, v0, 2, 6")
a("v_mul_u32_u24 v19, 10, v19")
a("v_lshrrev_b32 v20, 8, v0")
a("v_mul_u32_u24 v20, 3, v20")
a("v_add3_u32 v19, v19, v20, v17")
a("v_lshlrev_b32 v19, 2, v19")
a("v_lshlrev_b32 v20, 2, v0")
a("s_mov_b32 s86, 0x88888888\ns_mov_b32 s87, 0x88888888")
stamp()

for n in range(32):
    ab = 32 + 4 * (n & 1)
    selector(ab, "v14" if n < 16 else "v15", n & 15)
    yn = (19 - n + 32 + NDMA) if n < 20 else (31 - n + NDMA)
    a("s_waitcnt vmcnt(%d)" % yn)
    a("v_mfma_f32_16x16x32_bf16 v[40:43], v[%d:%d], %s, %s" % (ab, ab + 3, vtile(n), "0" if n == 0 else "v[40:43]"))
stamp()
a("s_mov_b32 exec_hi, 0")
a("ds_write_b128 v47, v[40:43] offset:%d" % L_PART)
a("s_mov_b64 exec, -1")
a("s_waitcnt lgkmcnt(0)")
a("s_barrier")
a("ds_read2st64_b32 v[22:23], v16 offset0:%d offset1:%d" % (L_PART // 256, L_PART // 256 + 2))
a("s_waitcnt lgkmcnt(0)")
a("v_add_f32 v22, v22, v23")
a("v_add_f32_dpp v22, v22, v22 row_ror:4 row_mask:0xf bank_mask:0xf")
a("v_add_f32_dpp v22, v22, v22 row_ror:8 row_mask:0xf bank_mask:0xf")
a("v_cvt_pk_bf16_f32 v22, v22, v22")
YA = WR
for r4 in range(4):
    ab = 32 + 4 * (r4 & 1)
    selector(ab, "v22", r4)
    for cb in range(5):
        acc = "v[%d:%d]" % (YA + 4 * cb, YA + 4 * cb + 3)
        a("v_mfma_f32_16x16x32_bf16 %s, v[%d:%d], %s, %s" % (acc, ab, ab + 3, kt(5 * r4 + cb), "0" if r4 == 0 else acc))
a("s_mov_b32 exec_hi, 0")
for cb in range(5):
    a("ds_write_b128 v18, v[%d:%d] offset:%d" % (YA + 4 * cb, YA + 4 * cb + 3, L_YP + 512 * cb))
a("s_mov_b64 exec, -1")
a("s_waitcnt lgkmcnt(0)")
a("s_cmp_eq_u32 s89, 8")
a("s_cbranch_scc1 L_initok")
a("s_mov_b32 s88, 0")
a("v_mov_b32 v23, 0")
a("L_initpoll:")
a("buffer_load_dword v24, v23, s[64:67], 0 offen sc0 sc1")
a("s_waitcnt vmcnt(0)")
a("v_readfirstlane_b32 s89, v24")
a("s_add_u32 s88, s88, 1")
a("s_cmp_gt_u32 s88, %d" % SPIN_MAX)
a("s_cbranch_scc1 L_initok")
a("s_cmp_eq_u32 s89, 8")
a("s_cbranch_scc0 L_initpoll")
a("L_initok:")
a("s_barrier")
for w in range(8):
    a("ds_read2_b32 v[%d:%d], v19 offset0:0 offset1:6" % (KR + 2 * w, KR + 2 * w + 1) if False else
      "ds_read_b32 v%d, v19 offset:%d\nds_read_b32 v%d, v19 offset:%d" % (KR + 2 * w, L_YP + 2560 * w, KR + 2 * w + 1, L_YP + 2560 * w + 24))
a("s_lshl_b32 s84, s76, 12")
a("s_waitcnt lgkmcnt(0)")
for st in (4, 2, 1):
    for w in range(st):
        a("v_add_f32 v%d, v%d, v%d" % (KR + 2 * w, KR + 2 * w, KR + 2 * (w + st)))
        a("v_add_f32 v%d, v%d, v%d" % (KR + 2 * w + 1, KR + 2 * w + 1, KR + 2 * (w + st) + 1))
a("v_cndmask_b32 v%d, v%d, 1.0, s[86:87]" % (KR, KR))
a("v_cndmask_b32 v%d, v%d, 1.0, s[86:87]" % (KR + 1, KR + 1))
a("buffer_atomic_add_f32 v%d, v20, s[48:51], s84 offen" % KR)
a("buffer_atomic_add_f32 v%d, v20, s[48:51], s84 offen offset:2048" % (KR + 1))
stamp()
a("s_cmp_eq_u32 s75, 1")
a("s_cbranch_scc1 L_ffn1")
a("s_cmp_eq_u32 s75, 2")
a("s_cbranch_scc1 L_ffn2")
a("s_branch L_fin")

a("L_ffn1:")
a("s_mul_i32 s84, s26, 1280")
a("v_mul_u32_u24 v21, 20, v1")
a("buffer_load_dwordx4 v[24:27], v21, s[44:47], s84 offen")
a("buffer_load_dword v28, v21, s[44:47], s84 offen offset:16")
a("s_waitcnt vmcnt(0)")
a("s_barrier")
AF = KR
BF = KR + 80
a("v_lshrrev_b32 v22, 2, v46")
a("v_lshl_add_u32 v22, v45, 3, v22")
a("v_lshlrev_b32 v22, 7, v22")
a("v_and_b32 v23, 3, v44")
a("v_lshl_add_u32 v22, v23, 5, v22")
a("v_lshl_add_u32 v22, v17, 3, v22")
a("v_add_u32 v22, %d, v22" % L_W)
a("v_add_u32 v23, 40960, v22")
for ks in range(20):
    base, off = ("v22", ks * 4096) if ks < 10 else ("v23", (ks - 10) * 4096)
    a("ds_read_b64_tr_b16 v[%d:%d], %s offset:%d" % (AF + 4 * ks, AF + 4 * ks + 1, base, off))
    a("ds_read_b64_tr_b16 v[%d:%d], %s offset:%d" % (AF + 4 * ks + 2, AF + 4 * ks + 3, base, off + 512))
XF = 208
for k in range(5):
    a("v_lshlrev_b32 v%d, 16, v%d" % (XF + 2 * k, 24 + k))
    a("v_and_b32 v%d, 0xffff0000, v%d" % (XF + 2 * k + 1, 24 + k))
a("v_lshlrev_b32 v22, 4, v1")
a("v_mul_u32_u24 v23, %d, v44" % HN_STRIDE)
a("v_add_u32 v23, v23, v21")
a("v_and_b32 v30, 7, v0")
a("v_mul_u32_u24 v29, %d, v30" % HN_STRIDE)
a("v_lshl_add_u32 v29, v45, 4, v29")
a("v_lshlrev_b32 v30, 4, v30")
a("v_lshl_add_u32 v30, v44, 8, v30")
a("v_lshrrev_b32 v31, 1, v45")
a("v_lshl_add_u32 v30, v31, 7, v30")
a("v_and_b32 v31, 1, v45")
a("v_lshl_add_u32 v30, v31, 3, v30")
a("s_lshl_b32 s84, s26, 12")
a("s_mov_b32 s88, 0")
a("s_mov_b32 s85, 0x42000000")
a("s_waitcnt lgkmcnt(0)")
GR = 220
a("L_poll1:")
for m in range(4):
    a("buffer_load_dwordx4 v[%d:%d], v22, s[48:51], s84 offen offset:%d sc0 sc1" % (GR + 4 * m, GR + 4 * m + 3, 1024 * m))
a("s_add_u32 s88, s88, 1")
a("s_waitcnt vmcnt(0)")
a("v_min_f32 v31, v%d, v%d" % (GR + 3, GR + 7))
a("v_min3_f32 v31, v31, v%d, v%d" % (GR + 11, GR + 15))
a("v_cmp_ne_u32 vcc, s85, v31")
a("s_cmp_gt_u32 s88, %d" % SPIN_MAX)
a("s_cbranch_scc1 L_poll1_done")
a("s_cbranch_vccnz L_poll1")
a("L_poll1_done:")
stamp()
vals = [GR + 0, GR + 1, GR + 2, GR + 4, GR + 5, GR + 6, GR + 8, GR + 9, GR + 10, GR + 12]
for k in range(5):
    a("v_cvt_pk_bf16_f32 v31, v%d, v%d" % (vals[2 * k], vals[2 * k + 1]))
    a("v_lshlrev_b32 v32, 16, v31")
    a("v_and_b32 v33, 0xffff0000, v31")
    a("v_add_f32 v32, v32, v%d" % (XF + 2 * k))
    a("v_add_f32 v33, v33, v%d" % (XF + 2 * k + 1))
    a("v_cvt_pk_bf16_f32 v31, v32, v33")
    a("v_lshlrev_b32 v%d, 16, v31" % (XF + 2 * k))
    a("v_and_b32 v%d, 0xffff0000, v31" % (XF + 2 * k + 1))
ln_stats(["v%d" % (XF + k) for k in range(10)], ["v31", "v32", "v33"], "v38", "v39")
for k in range(5):
    a("v_sub_f32 v32, v%d, v38" % (XF + 2 * k))
    a("v_sub_f32 v33, v%d, v38" % (XF + 2 * k + 1))
    a("v_cvt_pk_bf16_f32 v31, v32, v33")
    a("v_lshlrev_b32 v32, 16, v31")
    a("v_and_b32 v33, 0xffff0000, v31")
    a("v_mul_f32 v32, v32, v39")
    a("v_mul_f32 v33, v33, v39")
    a("v_cvt_pk_bf16_f32 v%d, v32, v33" % (GR + k))
    a("ds_write_b32 v23, v%d offset:%d" % (GR + k, L_HN + 4 * k))
a("s_waitcnt lgkmcnt(0)")
a("s_barrier")
a("s_cmp_ge_u32 s26, 4")
a("s_cbranch_scc1 L_fin")
for ks in range(20):
    a("ds_read_b128 v[%d:%d], v29 offset:%d" % (BF + 4 * ks, BF + 4 * ks + 3, L_HN + 64 * ks))
for ks in range(20):
    a("s_waitcnt lgkmcnt(%d)" % min(15, 19 - ks))
    a("v_mfma_f32_16x16x32_bf16 v[40:43], v[%d:%d], v[%d:%d], %s" % (AF + 4 * ks, AF + 4 * ks + 3, BF + 4 * ks, BF + 4 * ks + 3, "0" if ks == 0 else "v[40:43]"))
a("s_lshl_b32 s84, s27, 10")
for r in range(4):
    a("v_max_f32 v%d, 0, v%d" % (40 + r, 40 + r))
a("v_cvt_pk_bf16_f32 v40, v40, v41")
a("v_cvt_pk_bf16_f32 v41, v42, v43")
a("s_mov_b32 exec_lo, 0x00ff00ff\ns_mov_b32 exec_hi, 0x00ff00ff")
a("buffer_store_dwordx2 v[40:41], v30, s[60:63], s84 offen sc0 sc1")
a("s_mov_b64 exec, -1")
stamp()
a("s_branch L_fin")

if A.stamp: stamp_idx[0] = 6
a("L_ffn2:")
a("v_and_b32 v21, 7, v0")
a("v_mul_u32_u24 v22, 1280, v21")
a("v_lshl_add_u32 v22, v45, 3, v22")
a("s_lshl_b32 s78, s27, 5")
a("buffer_load_dwordx2 v[24:25], v22, s[44:47], s78 offen")
a("s_waitcnt vmcnt(0)")
a("v_mul_u32_u24 v23, 10240, v44")
a("v_lshl_add_u32 v23, v45, 8, v23")
a("v_lshl_add_u32 v23, v46, 3, v23")
a("v_add_u32 v23, %d, v23" % L_W)
for t in range(7):
    a("ds_read_b64_tr_b16 v[%d:%d], v23 offset:%d" % (AF + 4 * t, AF + 4 * t + 1, 1024 * t))
    a("ds_read_b64_tr_b16 v[%d:%d], v23 offset:%d" % (AF + 4 * t + 2, AF + 4 * t + 3, 1024 * t + 128))
a("v_lshlrev_b32 v26, 9, v44")
a("v_lshl_add_u32 v26, v45, 7, v26")
a("v_lshl_add_u32 v26, v21, 4, v26")
a("v_lshlrev_b32 v27, 4, v0")
a("v_lshlrev_b32 v28, 4, v1")
a("s_mov_b32 s85, 0x42000000")
a("s_cmp_lg_u32 s26, 0")
a("s_cbranch_scc1 L_ffn2_noh")
a("s_lshl_b32 s84, s27, 4")
a("v_lshlrev_b32 v29, 2, v45")
a("v_add_u32 v29, s84, v29")
for r in range(4):
    a("v_add_u32 v30, %d, v29" % r)
    a("v_mul_u32_u24 v31, 205, v30")
    a("v_lshrrev_b32 v31, 11, v31")
    a("v_mul_u32_u24 v32, 10, v31")
    a("v_sub_u32 v30, v30, v32")
    a("v_mul_u32_u24 v32, 11, v30")
    a("v_lshrrev_b32 v32, 5, v32")
    a("v_mul_u32_u24 v33, 3, v32")
    a("v_sub_u32 v%d, v30, v33" % (212 + r))
    a("v_lshl_add_u32 v31, v32, 6, v31")
    a("v_lshlrev_b32 v31, 4, v31")
    a("v_lshl_add_u32 v%d, v21, 12, v31" % (208 + r))
a("s_mov_b32 s88, 0")
a("L_poll2h:")
for r in range(4):
    a("buffer_load_dwordx4 v[%d:%d], v%d, s[48:51], 0 offen sc0 sc1" % (GR + 4 * r, GR + 4 * r + 3, 208 + r))
a("s_add_u32 s88, s88, 1")
a("s_waitcnt vmcnt(0)")
a("v_min_f32 v31, v%d, v%d" % (GR + 3, GR + 7))
a("v_min3_f32 v31, v31, v%d, v%d" % (GR + 11, GR + 15))
a("v_cmp_ne_u32 vcc, s85, v31")
a("s_cmp_gt_u32 s88, %d" % SPIN_MAX)
a("s_cbranch_scc1 L_poll2h_done")
a("s_cbranch_vccnz L_poll2h")
a("L_poll2h_done:")
for r in range(4):
    a("v_cmp_eq_u32 vcc, 1, v%d" % (212 + r))
    a("v_cndmask_b32 v%d, v%d, v%d, vcc" % (GR + 4 * r, GR + 4 * r, GR + 4 * r + 1))
    a("v_cmp_eq_u32 vcc, 2, v%d" % (212 + r))
    a("v_cndmask_b32 v%d, v%d, v%d, vcc" % (GR + 4 * r, GR + 4 * r, GR + 4 * r + 2))
for k in range(2):
    a("v_cvt_pk_bf16_f32 v31, v%d, v%d" % (GR + 8 * k, GR + 8 * k + 4))
    a("v_lshlrev_b32 v32, 16, v31")
    a("v_and_b32 v33, 0xffff0000, v31")
    a("v_lshlrev_b32 v34, 16, v%d" % (24 + k))
    a("v_and_b32 v35, 0xffff0000, v%d" % (24 + k))
    a("v_add_f32 v32, v32, v34")
    a("v_add_f32 v33, v33, v35")
    a("v_cvt_pk_bf16_f32 v31, v32, v33")
    a("v_lshlrev_b32 v%d, 16, v31" % (208 + 2 * k))
    a("v_and_b32 v%d, 0xffff0000, v31" % (209 + 2 * k))
a("L_ffn2_noh:")
stamp()
a("s_mov_b32 s88, 0")
a("s_waitcnt lgkmcnt(0)")
a("L_poll2:")
for t in range(7):
    a("buffer_load_dwordx4 v[%d:%d], v26, s[60:63], %s offen sc0 sc1" % (BF + 4 * t, BF + 4 * t + 3, soff(4096 * t)[0]))
a("s_add_u32 s88, s88, 1")
a("s_waitcnt vmcnt(0)")
a("v_max_u32 v31, v%d, v%d" % (BF, BF + 1))
for k in range(2, 28, 2):
    a("v_max3_u32 v31, v31, v%d, v%d" % (BF + k, BF + k + 1))
a("v_cmp_eq_u32 vcc, -1, v31")
a("s_cmp_gt_u32 s88, %d" % SPIN_MAX)
a("s_cbranch_scc1 L_poll2_done")
a("s_cbranch_vccnz L_poll2")
a("L_poll2_done:")
stamp()
for t in range(7):
    a("v_mfma_f32_16x16x32_bf16 v[40:43], v[%d:%d], v[%d:%d], %s" % (AF + 4 * t, AF + 4 * t + 3, BF + 4 * t, BF + 4 * t + 3, "0" if t == 0 else "v[40:43]"))
a("ds_write_b128 v27, v[40:43] offset:%d" % L_FP)
a("s_waitcnt lgkmcnt(0)")
a("s_barrier")
a("s_cmp_lg_u32 s26, 0")
a("s_cbranch_scc1 L_fin")
for w in range(8):
    a("ds_read_b128 v[%d:%d], v28 offset:%d" % (AF + 4 * w, AF + 4 * w + 3, L_FP + 1024 * w))
a("s_waitcnt lgkmcnt(0)")
for st in (4, 2, 1):
    for w in range(st):
        for r in range(4):
            a("v_add_f32 v%d, v%d, v%d" % (AF + 4 * w + r, AF + 4 * w + r, AF + 4 * (w + st) + r))
for k in range(2):
    a("v_cvt_pk_bf16_f32 v31, v%d, v%d" % (AF + 2 * k, AF + 2 * k + 1))
    a("v_lshlrev_b32 v32, 16, v31")
    a("v_and_b32 v33, 0xffff0000, v31")
    a("v_add_f32 v32, v32, v%d" % (208 + 2 * k))
    a("v_add_f32 v33, v33, v%d" % (209 + 2 * k))
    a("v_cvt_pk_bf16_f32 v%d, v32, v33" % (40 + k))
a("s_mov_b32 exec_lo, 0x00ff00ff\ns_mov_b32 exec_hi, 0x00ff00ff")
a("buffer_store_dwordx2 v[40:41], v22, s[56:59], s78 offen")
a("s_mov_b64 exec, -1")
a("L_fin:")
if A.stamp:
    a("s_waitcnt vmcnt(0)")
    a("s_memrealtime s[90:91]\ns_waitcnt lgkmcnt(0)\ns_mov_b32 s101, s90")
    a("s_cmp_lg_u32 s26, 0")
    a("s_cbranch_scc1 L_end")
    a("s_add_u32 s48, s24, %d\ns_addc_u32 s49, s25, 0" % WS_STAMP)
    a("s_lshl_b32 s84, s2, 6")
    a("s_getreg_b32 s85, hwreg(HW_REG_XCC_ID)")
    a("v_mov_b32 v1, 0")
    a("s_mov_b64 exec, 1")
    for k in range(10):
        a("v_mov_b32 v2, s%d" % (92 + k))
        a("buffer_store_dword v2, v1, s[48:51], s84 offen offset:%d" % (4 * k))
    a("v_mov_b32 v2, s85")
    a("buffer_store_dword v2, v1, s[48:51], s84 offen offset:40")
    a("v_mov_b32 v2, s88")
    a("buffer_store_dword v2, v1, s[48:51], s84 offen offset:44")
a("L_end:")
a("s_endpgm")

body = a.render()
txt = HEADER + "; @launch grid=(256,1,1) block=(512,1,1) lds=%d\n" % LDS_BYTES
txt += """.amdgcn_target "amdgcn-amd-amdhsa--gfx950"
.text
.globl {n}_kernel
.p2align 8
.type {n}_kernel,@function
{n}_kernel:
{body}.section .rodata,"a"
.p2align 6
.amdhsa_kernel {n}_kernel
  .amdhsa_next_free_vgpr 256
  .amdhsa_next_free_sgpr 102
  .amdhsa_accum_offset 256
  .amdhsa_group_segment_fixed_size 0
  .amdhsa_kernarg_size 88
  .amdhsa_user_sgpr_count 2
  .amdhsa_user_sgpr_kernarg_segment_ptr 1
  .amdhsa_system_sgpr_workgroup_id_x 1
  .amdhsa_float_denorm_mode_32 3
.end_amdhsa_kernel
""".format(n=NAME, body=body)
open(A.o, "w").write(txt)
print("wrote", A.o, len(txt), "bytes,", body.count("\n"), "lines")
```

```python
import sys, argparse
sys.path.insert(0, "work")
from asmlib import Asm

NAME = "sequential_preLN__sliding_block_cached__dense_activation_relu__decode"
HEADER = open("cdna_kernels/%s.s.ref" % NAME).read().split("; Override launch geometry")[0]

ap = argparse.ArgumentParser()
ap.add_argument("-o", default="cdna_kernels/%s.s" % NAME)
ap.add_argument("--stamp", action="store_true")
ap.add_argument("--kvmod", default="nt")
ap.add_argument("--wmod", default="")
ap.add_argument("--order", default="wq_first")
ap.add_argument("--map", type=int, default=0)
ap.add_argument("--dmabranch", action="store_true")
A = ap.parse_args()

L_PART = 0
L_QD = 4096
L_ST = 6144
L_YP = 6400
L_HN = 27136
HN_STRIDE = 1312
L_FP = 37888
L_W = 46080
LDS_BYTES = L_W + 81920
WS_HSUM = 0
WS_H1 = 32768
WS_STAMP = 1 << 20
FFN1_BASE, FFN1_N = 8, 27
FFN2_BASE, FFN2_N = 64, 40
SPIN_MAX = 400000

KR = 48
WR = 176
def kt(n): return "v[%d:%d]" % (KR + 4 * n, KR + 4 * n + 3)
def wt(n): return "v[%d:%d]" % (WR + 4 * n, WR + 4 * n + 3)
def vtile(n): return wt(n) if n < 20 else kt(n)
def soff(byte):
    hi, lo = byte // 4096, byte % 4096
    return ("0" if hi == 0 else "s%d" % (67 + hi)), lo

a = Asm()
stamp_idx = [0]
def stamp():
    if not A.stamp: return
    a("s_memrealtime s[90:91]\ns_waitcnt lgkmcnt(0)\ns_mov_b32 s%d, s90" % (92 + stamp_idx[0]))
    stamp_idx[0] += 1
    assert stamp_idx[0] <= 10

def wave_reduce(v, op, sdst):
    a("%s_dpp %s, %s, %s quad_perm:[1,0,3,2] row_mask:0xf bank_mask:0xf" % (op, v, v, v))
    a("%s_dpp %s, %s, %s quad_perm:[2,3,0,1] row_mask:0xf bank_mask:0xf" % (op, v, v, v))
    a("%s_dpp %s, %s, %s row_half_mirror row_mask:0xf bank_mask:0xf" % (op, v, v, v))
    a("%s_dpp %s, %s, %s row_mirror row_mask:0xf bank_mask:0xf" % (op, v, v, v))
    a("%s_dpp %s, %s, %s row_bcast:15 row_mask:0xa bank_mask:0xf" % (op, v, v, v))
    a("%s_dpp %s, %s, %s row_bcast:31 row_mask:0xc bank_mask:0xf" % (op, v, v, v))
    a("v_readlane_b32 %s, %s, 63" % (sdst, v))

def ln_stats(vals, tmp, vmean_bf, vrinv):
    t0, t1, t2 = tmp
    a("v_add_f32 %s, %s, %s" % (t0, vals[0], vals[1]))
    a("v_add_f32 %s, %s, %s" % (t1, vals[2], vals[3]))
    for k in range(4, 10, 2):
        a("v_add_f32 %s, %s, %s" % (t0, t0, vals[k]))
        a("v_add_f32 %s, %s, %s" % (t1, t1, vals[k + 1]))
    a("v_add_f32 %s, %s, %s" % (t0, t0, t1))
    wave_reduce(t0, "v_add_f32", "s84")
    a("v_mov_b32 %s, 0x3acccccd" % t2)
    a("v_mul_f32 %s, s84, %s" % (vmean_bf, t2))
    a("v_sub_f32 %s, %s, %s" % (t1, vals[0], vmean_bf))
    a("v_mul_f32 %s, %s, %s" % (t0, t1, t1))
    for k in range(1, 10):
        a("v_sub_f32 %s, %s, %s" % (t1, vals[k], vmean_bf))
        a("v_fmac_f32 %s, %s, %s" % (t0, t1, t1))
    wave_reduce(t0, "v_add_f32", "s84")
    a("v_mul_f32 %s, s84, %s" % (t0, t2))
    a("v_cvt_pk_bf16_f32 %s, %s, %s" % (t0, t0, vmean_bf))
    a("v_and_b32 %s, 0xffff0000, %s" % (vmean_bf, t0))
    a("v_lshlrev_b32 %s, 16, %s" % (t0, t0))
    a("v_add_f32 %s, 0x3727c5ac, %s" % (t0, t0))
    a("v_cvt_pk_bf16_f32 %s, %s, %s" % (t0, t0, t0))
    a("v_lshlrev_b32 %s, 16, %s" % (t0, t0))
    a("v_sqrt_f32 %s, %s" % (t0, t0))
    a("v_cvt_pk_bf16_f32 %s, %s, %s" % (t0, t0, t0))
    a("v_lshlrev_b32 %s, 16, %s" % (t0, t0))
    a("v_rcp_f32 %s, %s" % (vrinv, t0))

def selector(abuf, src, lane):
    for r in range(4):
        a("v_and_b32_dpp v%d, %s, v%d row_newbcast:%d row_mask:0xf bank_mask:0xf" % (abuf + r, src, 6 + r, lane))

def srd(d, plo, nbytes):
    a("s_mov_b32 s%d, s%d\ns_mov_b32 s%d, s%d\ns_mov_b32 s%d, %s\ns_mov_b32 s%d, 0x20000" % (d, plo, d + 1, plo + 1, d + 2, nbytes, d + 3))

a("s_cmp_ge_u32 s2, 256")
a("s_cbranch_scc1 L_end")
a("s_load_dwordx16 s[4:19], s[0:1], 0")
a("s_load_dwordx4 s[20:23], s[0:1], 64")
a("s_load_dwordx2 s[24:25], s[0:1], 80")
if A.stamp:
    a("s_memrealtime s[90:91]")
a("v_and_b32 v1, 63, v0")
a("v_lshrrev_b32 v44, 6, v0")
a("v_lshrrev_b32 v45, 4, v1")
a("v_and_b32 v46, 15, v0")
a("v_readfirstlane_b32 s26, v44")
if A.map == 0:
    a("s_lshr_b32 s76, s2, 5")
    a("s_and_b32 s77, s2, 31")
elif A.map == 1:
    a("s_lshr_b32 s76, s2, 5")
    a("s_and_b32 s77, s2, 7\ns_lshl_b32 s77, s77, 2\ns_bfe_u32 s84, s2, 0x20003\ns_or_b32 s77, s77, s84")
elif A.map == 2:
    a("s_and_b32 s76, s2, 1\ns_lshl_b32 s76, s76, 2\ns_lshr_b32 s84, s2, 6\ns_or_b32 s76, s76, s84")
    a("s_bfe_u32 s77, s2, 0x20001\ns_lshl_b32 s77, s77, 3\ns_bfe_u32 s84, s2, 0x30003\ns_or_b32 s77, s77, s84")
a("s_lshl_b32 s3, s76, 5\ns_or_b32 s3, s3, s77")
for k in range(1, 8):
    a("s_movk_i32 s%d, %d" % (67 + k, 4096 * k))
a("v_lshlrev_b32 v2, 15, v44")
a("v_lshl_add_u32 v2, v1, 4, v2")
a("v_lshl_add_u32 v47, v44, 2, v45")
a("v_mul_u32_u24 v47, 20, v47")
a("v_lshlrev_b32 v3, 13, v47")
a("v_lshl_add_u32 v3, v46, 4, v3")
a("v_mul_u32_u24 v32, 20, v1")
a("v_add_lshl_u32 v33, v47, v46, 1")
a("v_and_b32 v34, 3, v0")
a("v_add_lshl_u32 v34, v47, v34, 1")
a("s_mul_i32 s84, s76, 1280")
a("s_lshl_b32 s85, s77, 8")
a("s_lshl_b32 s86, s3, 20")
a("s_add_u32 s86, s86, 786432")
a("s_waitcnt lgkmcnt(0)")
if A.stamp:
    a("s_mov_b32 s92, s90"); stamp_idx[0] = 1
srd(44, 4, "10240")
a("s_add_u32 s36, s10, s85\ns_addc_u32 s37, s11, 0\ns_sub_u32 s38, 5242880, s85\ns_mov_b32 s39, 0x20000")
a("s_add_u32 s28, s6, s86\ns_addc_u32 s29, s7, 0\ns_mov_b32 s30, 262144\ns_mov_b32 s31, 0x20000")
srd(48, 24, "65536")
a("s_cmp_ge_u32 s2, 8")
a("s_cbranch_scc1 L_noinit")
a("s_lshl_b32 s87, s2, 12")
a("v_lshlrev_b32 v35, 3, v0")
a("v_mov_b32 v36, 0\nv_mov_b32 v37, 0\nv_mov_b32 v38, -1\nv_mov_b32 v39, -1")
a("buffer_store_dwordx2 v[36:37], v35, s[48:51], s87 offen sc0 sc1")
a("s_add_u32 s87, s87, %d" % WS_H1)
a("buffer_store_dwordx2 v[38:39], v35, s[48:51], s87 offen sc0 sc1")
a("L_noinit:")
a("buffer_load_dwordx4 v[16:19], v32, s[44:47], s84 offen")
a("buffer_load_dword v20, v32, s[44:47], s84 offen offset:16")
a("buffer_load_ushort v22, v33, s[44:47], s84 offen")
a("buffer_load_ushort v23, v34, s[44:47], s84 offen offset:32")
NX = 4
def ld_wq(t):
    if t == 0:
        a("buffer_load_dwordx4 %s, v3, s[36:39], 0 offen %s" % (wt(t), A.wmod))
    else:
        a("s_mov_b32 s78, %d" % (t * 8192))
        a("buffer_load_dwordx4 %s, v3, s[36:39], s78 offen %s" % (wt(t), A.wmod))
def ld_k(n):
    so, im = soff(n * 1024)
    a("buffer_load_dwordx4 %s, v2, s[28:31], %s offen offset:%d %s" % (kt(n), so, im, A.kvmod))
def ld_v(n):
    so, im = soff(n * 1024)
    a("buffer_load_dwordx4 %s, v2, s[32:35], %s offen offset:%d %s" % (vtile(n), so, im, A.kvmod))
def ld_wo(t):
    so, im = soff(t * 256)
    a("buffer_load_dwordx4 %s, v4, s[40:43], %s offen offset:%d %s" % (kt(t), so, im, A.wmod))
if A.order == "wq_first":
    seq = [("q", t) for t in range(20)] + [("k", n) for n in range(32)]
else:
    seq = []
    for t in range(20):
        seq += [("q", t), ("k", t)]
    seq += [("k", n) for n in range(20, 32)]
for kind, n in seq:
    (ld_wq if kind == "q" else ld_k)(n)
def younger(kind, n):
    return len(seq) - 1 - seq.index((kind, n))

a("s_add_u32 s32, s8, s86\ns_addc_u32 s33, s9, 0\ns_mov_b32 s34, 262144\ns_mov_b32 s35, 0x20000")
a("s_mul_i32 s85, s77, 163840")
a("s_add_u32 s40, s12, s85\ns_addc_u32 s41, s13, 0\ns_mov_b32 s42, 163840\ns_mov_b32 s43, 0x20000")
srd(56, 20, "10240")
a("s_add_u32 s60, s24, %d\ns_addc_u32 s61, s25, 0\ns_mov_b32 s62, 27648\ns_mov_b32 s63, 0x20000" % WS_H1)
srd(64, 22, "256")
a("s_mov_b32 s80, 0xcccccccc\ns_mov_b32 s81, 0xcccccccc\ns_mov_b32 s82, 0xaaaaaaaa\ns_mov_b32 s83, 0xaaaaaaaa")
a("v_lshl_add_u32 v4, v44, 2, v45")
a("v_mul_u32_u24 v4, 5120, v4")
a("v_lshl_add_u32 v4, v46, 4, v4")
a("v_and_b32 v35, 1, v0")
a("v_lshlrev_b32 v35, 4, v35")
a("v_mov_b32 v36, 0xffff")
a("v_lshlrev_b32 v36, v35, v36")
a("v_lshrrev_b32 v37, 1, v46")
for r in range(4):
    a("v_cmp_eq_u32 vcc, %d, v37" % r)
    a("v_cndmask_b32 v%d, 0, v36, vcc" % (6 + r))
a("s_mov_b32 s75, 0\ns_mov_b32 s27, 0\ns_mov_b32 s79, 0")
a("s_mov_b32 s52, s16\ns_mov_b32 s53, s17\ns_mov_b32 s54, 0\ns_mov_b32 s55, 0x20000")
a("v_mov_b32 v5, 0")
a("s_sub_u32 s84, s2, %d" % FFN1_BASE)
a("s_cmp_lt_u32 s84, %d" % FFN1_N)
a("s_cbranch_scc0 L_not_r1")
a("s_mov_b32 s75, 1\ns_mov_b32 s27, s84")
a("s_lshl_b32 s85, s84, 7")
a("s_add_u32 s52, s16, s85\ns_addc_u32 s53, s17, 0\ns_sub_u32 s54, 2211840, s85")
a("s_mov_b32 s79, 27648")
a("v_mul_u32_u24 v5, 80, v44")
a("v_lshrrev_b32 v35, 3, v1")
a("v_add_u32 v5, v5, v35")
a("v_mul_u32_u24 v5, 3456, v5")
a("v_and_b32 v35, 7, v0")
a("v_lshl_add_u32 v5, v35, 4, v5")
a("L_not_r1:")
a("s_sub_u32 s84, s2, %d" % FFN2_BASE)
a("s_cmp_lt_u32 s84, %d" % FFN2_N)
a("s_cbranch_scc0 L_not_r2")
a("s_mov_b32 s75, 2\ns_mov_b32 s27, s84")
a("s_lshl_b32 s85, s84, 5")
a("s_add_u32 s52, s18, s85\ns_addc_u32 s53, s19, 0\ns_sub_u32 s54, 2211840, s85")
a("s_mov_b32 s79, 327680")
a("v_lshrrev_b32 v5, 1, v0")
a("v_mul_u32_u24 v5, 1280, v5")
a("v_and_b32 v35, 1, v0")
a("v_lshl_add_u32 v5, v35, 4, v5")
a("L_not_r2:")

a("s_waitcnt vmcnt(%d)" % len(seq))
for k in range(5):
    a("v_lshlrev_b32 v%d, 16, v%d" % (24 + 2 * k, 16 + k))
    a("v_and_b32 v%d, 0xffff0000, v%d" % (25 + 2 * k, 16 + k))
ln_stats(["v%d" % (24 + k) for k in range(10)], ["v35", "v36", "v37"], "v38", "v39")
for r in (22, 23):
    a("v_lshlrev_b32 v%d, 16, v%d" % (r, r))
    a("v_sub_f32 v%d, v%d, v38" % (r, r))
    a("v_cvt_pk_bf16_f32 v%d, v%d, v%d" % (r, r, r))
    a("v_lshlrev_b32 v%d, 16, v%d" % (r, r))
    a("v_mul_f32 v%d, v%d, v39" % (r, r))
    a("v_cvt_pk_bf16_f32 v%d, v%d, v%d" % (r, r, r))
for t in range(20):
    ab = 32 + 4 * (t & 1)
    selector(ab, "v22" if t < 16 else "v23", t & 15)
    a("s_waitcnt vmcnt(%d)" % younger("q", t))
    a("v_mfma_f32_16x16x32_bf16 v[40:43], v[%d:%d], %s, %s" % (ab, ab + 3, wt(t), "0" if t == 0 else "v[40:43]"))
for n in range(20):
    ld_v(n)
a("v_lshlrev_b32 v24, 9, v44")
a("v_lshl_add_u32 v24, v46, 5, v24")
a("v_lshl_add_u32 v24, v45, 4, v24")
a("v_mov_b32 v47, v24")
a("s_mov_b32 exec_hi, 0")
a("ds_write_b128 v47, v[40:43] offset:%d" % L_PART)
a("s_mov_b64 exec, -1")
a("v_lshlrev_b32 v25, 3, v1")
a("s_waitcnt lgkmcnt(0)")
a("s_barrier")
a("s_cmp_ge_u32 s2, 8")
a("s_cbranch_scc1 L_nosig")
a("s_cmp_lg_u32 s26, 0")
a("s_cbranch_scc1 L_nosig")
a("v_mov_b32 v26, 0\nv_mov_b32 v27, 1")
a("s_mov_b64 exec, 1")
a("buffer_atomic_add v27, v26, s[64:67], 0 offen sc1")
a("s_mov_b64 exec, -1")
a("L_nosig:")
for w in range(8):
    a("ds_read_b64 v[%d:%d], v25 offset:%d" % (26 + 2 * w, 27 + 2 * w, L_PART + 512 * w))
a("s_waitcnt lgkmcnt(0)")
for w in range(1, 8):
    a("v_add_f32 v26, v26, v%d" % (26 + 2 * w))
    a("v_add_f32 v27, v27, v%d" % (27 + 2 * w))
a("v_cvt_pk_bf16_f32 v26, v26, v27")
a("v_lshlrev_b32 v25, 2, v0")
a("ds_write_b32 v25, v26 offset:%d" % L_QD)
a("v_lshlrev_b32 v25, 8, v44")
a("v_lshl_add_u32 v25, v46, 4, v25")
a("s_waitcnt lgkmcnt(0)")
a("ds_read_b128 v[10:13], v25 offset:%d" % L_QD)
a("s_waitcnt lgkmcnt(0)")
stamp()

def reduce_scatter(dst):
    for n in range(8):
        a("v_add_f32_dpp v%d, v%d, v%d row_mirror row_mask:0xf bank_mask:0x3" % (16 + n, 16 + n, 16 + n))
    for n in range(8):
        a("v_add_f32_dpp v%d, v%d, v%d row_mirror row_mask:0xf bank_mask:0xc" % (16 + n, 24 + n, 24 + n))
    for n in range(4):
        a("v_add_f32_dpp v%d, v%d, v%d row_half_mirror row_mask:0xf bank_mask:0x5" % (16 + n, 16 + n, 16 + n))
    for n in range(4):
        a("v_add_f32_dpp v%d, v%d, v%d row_half_mirror row_mask:0xf bank_mask:0xa" % (16 + n, 20 + n, 20 + n))
    for n in range(4):
        a("v_add_f32_dpp v%d, v%d, v%d quad_perm:[3,2,1,0] row_mask:0xf bank_mask:0xf" % (16 + n, 16 + n, 16 + n))
    a("v_cndmask_b32 v16, v16, v18, s[80:81]")
    a("v_cndmask_b32 v17, v17, v19, s[80:81]")
    a("v_add_f32_dpp v16, v16, v16 quad_perm:[1,0,3,2] row_mask:0xf bank_mask:0xf")
    a("v_add_f32_dpp v17, v17, v17 quad_perm:[1,0,3,2] row_mask:0xf bank_mask:0xf")
    a("v_cndmask_b32 %s, v16, v17, s[82:83]" % dst)

for n in range(32):
    a("s_waitcnt vmcnt(%d)" % min(63, (younger("k", n) if A.order == "wq_first" else sum(1 for k in range(n + 1, 32))) + 20 + n))
    acc = 16 + (n & 15)
    for r in range(4):
        a("v_dot2_f32_bf16 v%d, v%d, v%d, %s" % (acc, KR + 4 * n + r, 10 + r, "0" if r == 0 else "v%d" % acc))
    if n < 20: ld_wo(n)
    else: ld_v(n)
    if n == 15: reduce_scatter("v14")
    if n == 31: reduce_scatter("v15")
if A.dmabranch:
    a("s_cmp_eq_u32 s75, 0\ns_cbranch_scc1 L_nodma")
a("s_mul_i32 s84, s26, 10240")
a("s_add_u32 s84, s84, %d" % L_W)
a("s_mov_b32 s78, 0")
for t in range(10):
    a("s_mov_b32 m0, s84")
    a("buffer_load_dwordx4 v5, s[52:55], s78 offen lds")
    if t < 9:
        a("s_add_u32 s84, s84, 1024")
        a("s_add_u32 s78, s78, s79")
NDMA = 10
if A.dmabranch:
    a("L_nodma:")
    NDMA = 0
a("s_load_dword s89, s[22:23], 0")
stamp()

a("v_cvt_pk_bf16_f32 v16, v14, v15")
a("v_lshlrev_b32 v14, 16, v16")
a("v_and_b32 v15, 0xffff0000, v16")
a("v_mul_f32 v14, 0x3db504f3, v14")
a("v_mul_f32 v15, 0x3db504f3, v15")
a("v_cvt_pk_bf16_f32 v16, v14, v15")
a("v_lshlrev_b32 v14, 16, v16")
a("v_and_b32 v15, 0xffff0000, v16")
a("v_max_f32 v16, v14, v15")
wave_reduce("v16", "v_max_f32", "s84")
a("v_subrev_f32 v16, s84, v14")
a("v_subrev_f32 v17, s84, v15")
a("v_mul_f32 v16, 0x3fb8aa3b, v16")
a("v_mul_f32 v17, 0x3fb8aa3b, v17")
a("v_exp_f32 v16, v16")
a("v_exp_f32 v17, v17")
a("v_add_f32 v16, v16, v17")
wave_reduce("v16", "v_add_f32", "s85")
a("v_mov_b32 v16, s84")
a("v_mov_b32 v17, s85")
a("v_lshlrev_b32 v18, 3, v44")
a("s_mov_b64 exec, 1")
a("ds_write_b64 v18, v[16:17] offset:%d" % L_ST)
a("s_mov_b64 exec, -1")
a("v_and_b32 v18, 7, v0")
a("v_lshlrev_b32 v18, 3, v18")
a("s_waitcnt lgkmcnt(0)")
a("s_barrier")
a("ds_read_b64 v[16:17], v18 offset:%d" % L_ST)
a("s_waitcnt lgkmcnt(0)")
a("v_mov_b32 v18, v16")
a("v_max_f32_dpp v18, v18, v18 quad_perm:[1,0,3,2] row_mask:0xf bank_mask:0xf")
a("v_max_f32_dpp v18, v18, v18 quad_perm:[2,3,0,1] row_mask:0xf bank_mask:0xf")
a("v_max_f32_dpp v18, v18, v18 row_half_mirror row_mask:0xf bank_mask:0xf")
a("v_sub_f32 v16, v16, v18")
a("v_mul_f32 v16, 0x3fb8aa3b, v16")
a("v_exp_f32 v16, v16")
a("v_mul_f32 v16, v16, v17")
a("v_add_f32_dpp v16, v16, v16 quad_perm:[1,0,3,2] row_mask:0xf bank_mask:0xf")
a("v_add_f32_dpp v16, v16, v16 quad_perm:[2,3,0,1] row_mask:0xf bank_mask:0xf")
a("v_add_f32_dpp v16, v16, v16 row_half_mirror row_mask:0xf bank_mask:0xf")
a("v_rcp_f32 v16, v16")
a("v_sub_f32 v14, v14, v18")
a("v_sub_f32 v15, v15, v18")
a("v_mul_f32 v14, 0x3fb8aa3b, v14")
a("v_mul_f32 v15, 0x3fb8aa3b, v15")
a("v_exp_f32 v14, v14")
a("v_exp_f32 v15, v15")
a("v_mul_f32 v14, v14, v16")
a("v_mul_f32 v15, v15, v16")
a("v_cvt_pk_bf16_f32 v14, v14, v14")
a("v_cvt_pk_bf16_f32 v15, v15, v15")
a("v_lshrrev_b32 v16, 2, v46")
a("v_lshlrev_b32 v16, 10, v16")
a("v_lshl_add_u32 v16, v44, 6, v16")
a("v_lshl_add_u32 v16, v45, 4, v16")
a("v_and_b32 v17, 3, v0")
a("v_lshl_add_u32 v16, v17, 2, v16")
a("v_mul_u32_u24 v18, 2560, v44")
a("v_lshl_add_u32 v18, v46, 5, v18")
a("v_lshl_add_u32 v18, v45, 4, v18")
a("v_bfe_u32 v19, v0, 2, 6")
a("v_mul_u32_u24 v19, 10, v19")
a("v_lshrrev_b32 v20, 8, v0")
a("v_mul_u32_u24 v20, 3, v20")
a("v_add3_u32 v19, v19, v20, v17")
a("v_lshlrev_b32 v19, 2, v19")
a("v_lshlrev_b32 v20, 2, v0")
a("s_mov_b32 s86, 0x88888888\ns_mov_b32 s87, 0x88888888")
stamp()

for n in range(32):
    ab = 32 + 4 * (n & 1)
    selector(ab, "v14" if n < 16 else "v15", n & 15)
    yn = (19 - n + 32 + NDMA) if n < 20 else (31 - n + NDMA)
    a("s_waitcnt vmcnt(%d)" % yn)
    a("v_mfma_f32_16x16x32_bf16 v[40:43], v[%d:%d], %s, %s" % (ab, ab + 3, vtile(n), "0" if n == 0 else "v[40:43]"))
stamp()
a("s_mov_b32 exec_hi, 0")
a("ds_write_b128 v47, v[40:43] offset:%d" % L_PART)
a("s_mov_b64 exec, -1")
a("s_waitcnt lgkmcnt(0)")
a("s_barrier")
a("ds_read2st64_b32 v[22:23], v16 offset0:%d offset1:%d" % (L_PART // 256, L_PART // 256 + 2))
a("s_waitcnt lgkmcnt(0)")
a("v_add_f32 v22, v22, v23")
a("v_add_f32_dpp v22, v22, v22 row_ror:4 row_mask:0xf bank_mask:0xf")
a("v_add_f32_dpp v22, v22, v22 row_ror:8 row_mask:0xf bank_mask:0xf")
a("v_cvt_pk_bf16_f32 v22, v22, v22")
YA = WR
for r4 in range(4):
    ab = 32 + 4 * (r4 & 1)
    selector(ab, "v22", r4)
    for cb in range(5):
        acc = "v[%d:%d]" % (YA + 4 * cb, YA + 4 * cb + 3)
        a("v_mfma_f32_16x16x32_bf16 %s, v[%d:%d], %s, %s" % (acc, ab, ab + 3, kt(5 * r4 + cb), "0" if r4 == 0 else acc))
a("s_mov_b32 exec_hi, 0")
for cb in range(5):
    a("ds_write_b128 v18, v[%d:%d] offset:%d" % (YA + 4 * cb, YA + 4 * cb + 3, L_YP + 512 * cb))
a("s_mov_b64 exec, -1")
a("s_waitcnt lgkmcnt(0)")
a("s_cmp_eq_u32 s89, 8")
a("s_cbranch_scc1 L_initok")
a("s_mov_b32 s88, 0")
a("v_mov_b32 v23, 0")
a("L_initpoll:")
a("buffer_load_dword v24, v23, s[64:67], 0 offen sc0 sc1")
a("s_waitcnt vmcnt(0)")
a("v_readfirstlane_b32 s89, v24")
a("s_add_u32 s88, s88, 1")
a("s_cmp_gt_u32 s88, %d" % SPIN_MAX)
a("s_cbranch_scc1 L_initok")
a("s_cmp_eq_u32 s89, 8")
a("s_cbranch_scc0 L_initpoll")
a("L_initok:")
a("s_barrier")
for w in range(8):
    a("ds_read2_b32 v[%d:%d], v19 offset0:0 offset1:6" % (KR + 2 * w, KR + 2 * w + 1) if False else
      "ds_read_b32 v%d, v19 offset:%d\nds_read_b32 v%d, v19 offset:%d" % (KR + 2 * w, L_YP + 2560 * w, KR + 2 * w + 1, L_YP + 2560 * w + 24))
a("s_lshl_b32 s84, s76, 12")
a("s_waitcnt lgkmcnt(0)")
for st in (4, 2, 1):
    for w in range(st):
        a("v_add_f32 v%d, v%d, v%d" % (KR + 2 * w, KR + 2 * w, KR + 2 * (w + st)))
        a("v_add_f32 v%d, v%d, v%d" % (KR + 2 * w + 1, KR + 2 * w + 1, KR + 2 * (w + st) + 1))
a("v_cndmask_b32 v%d, v%d, 1.0, s[86:87]" % (KR, KR))
a("v_cndmask_b32 v%d, v%d, 1.0, s[86:87]" % (KR + 1, KR + 1))
a("buffer_atomic_add_f32 v%d, v20, s[48:51], s84 offen" % KR)
a("buffer_atomic_add_f32 v%d, v20, s[48:51], s84 offen offset:2048" % (KR + 1))
stamp()
a("s_cmp_eq_u32 s75, 1")
a("s_cbranch_scc1 L_ffn1")
a("s_cmp_eq_u32 s75, 2")
a("s_cbranch_scc1 L_ffn2")
a("s_branch L_fin")

a("L_ffn1:")
a("s_mul_i32 s84, s26, 1280")
a("v_mul_u32_u24 v21, 20, v1")
a("buffer_load_dwordx4 v[24:27], v21, s[44:47], s84 offen")
a("buffer_load_dword v28, v21, s[44:47], s84 offen offset:16")
a("s_waitcnt vmcnt(0)")
a("s_barrier")
AF = KR
BF = KR + 80
a("v_lshrrev_b32 v22, 2, v46")
a("v_lshl_add_u32 v22, v45, 3, v22")
a("v_lshlrev_b32 v22, 7, v22")
a("v_and_b32 v23, 3, v44")
a("v_lshl_add_u32 v22, v23, 5, v22")
a("v_lshl_add_u32 v22, v17, 3, v22")
a("v_add_u32 v22, %d, v22" % L_W)
a("v_add_u32 v23, 40960, v22")
for ks in range(20):
    base, off = ("v22", ks * 4096) if ks < 10 else ("v23", (ks - 10) * 4096)
    a("ds_read_b64_tr_b16 v[%d:%d], %s offset:%d" % (AF + 4 * ks, AF + 4 * ks + 1, base, off))
    a("ds_read_b64_tr_b16 v[%d:%d], %s offset:%d" % (AF + 4 * ks + 2, AF + 4 * ks + 3, base, off + 512))
XF = 208
for k in range(5):
    a("v_lshlrev_b32 v%d, 16, v%d" % (XF + 2 * k, 24 + k))
    a("v_and_b32 v%d, 0xffff0000, v%d" % (XF + 2 * k + 1, 24 + k))
a("v_lshlrev_b32 v22, 4, v1")
a("v_mul_u32_u24 v23, %d, v44" % HN_STRIDE)
a("v_add_u32 v23, v23, v21")
a("v_and_b32 v30, 7, v0")
a("v_mul_u32_u24 v29, %d, v30" % HN_STRIDE)
a("v_lshl_add_u32 v29, v45, 4, v29")
a("v_lshlrev_b32 v30, 4, v30")
a("v_lshl_add_u32 v30, v44, 8, v30")
a("v_lshrrev_b32 v31, 1, v45")
a("v_lshl_add_u32 v30, v31, 7, v30")
a("v_and_b32 v31, 1, v45")
a("v_lshl_add_u32 v30, v31, 3, v30")
a("s_lshl_b32 s84, s26, 12")
a("s_mov_b32 s88, 0")
a("s_mov_b32 s85, 0x42000000")
a("s_waitcnt lgkmcnt(0)")
GR = 220
a("L_poll1:")
for m in range(4):
    a("buffer_load_dwordx4 v[%d:%d], v22, s[48:51], s84 offen offset:%d sc0 sc1" % (GR + 4 * m, GR + 4 * m + 3, 1024 * m))
a("s_add_u32 s88, s88, 1")
a("s_waitcnt vmcnt(0)")
a("v_min_f32 v31, v%d, v%d" % (GR + 3, GR + 7))
a("v_min3_f32 v31, v31, v%d, v%d" % (GR + 11, GR + 15))
a("v_cmp_ne_u32 vcc, s85, v31")
a("s_cmp_gt_u32 s88, %d" % SPIN_MAX)
a("s_cbranch_scc1 L_poll1_done")
a("s_cbranch_vccnz L_poll1")
a("L_poll1_done:")
stamp()
vals = [GR + 0, GR + 1, GR + 2, GR + 4, GR + 5, GR + 6, GR + 8, GR + 9, GR + 10, GR + 12]
for k in range(5):
    a("v_cvt_pk_bf16_f32 v31, v%d, v%d" % (vals[2 * k], vals[2 * k + 1]))
    a("v_lshlrev_b32 v32, 16, v31")
    a("v_and_b32 v33, 0xffff0000, v31")
    a("v_add_f32 v32, v32, v%d" % (XF + 2 * k))
    a("v_add_f32 v33, v33, v%d" % (XF + 2 * k + 1))
    a("v_cvt_pk_bf16_f32 v31, v32, v33")
    a("v_lshlrev_b32 v%d, 16, v31" % (XF + 2 * k))
    a("v_and_b32 v%d, 0xffff0000, v31" % (XF + 2 * k + 1))
ln_stats(["v%d" % (XF + k) for k in range(10)], ["v31", "v32", "v33"], "v38", "v39")
for k in range(5):
    a("v_sub_f32 v32, v%d, v38" % (XF + 2 * k))
    a("v_sub_f32 v33, v%d, v38" % (XF + 2 * k + 1))
    a("v_cvt_pk_bf16_f32 v31, v32, v33")
    a("v_lshlrev_b32 v32, 16, v31")
    a("v_and_b32 v33, 0xffff0000, v31")
    a("v_mul_f32 v32, v32, v39")
    a("v_mul_f32 v33, v33, v39")
    a("v_cvt_pk_bf16_f32 v%d, v32, v33" % (GR + k))
    a("ds_write_b32 v23, v%d offset:%d" % (GR + k, L_HN + 4 * k))
a("s_waitcnt lgkmcnt(0)")
a("s_barrier")
a("s_cmp_ge_u32 s26, 4")
a("s_cbranch_scc1 L_fin")
for ks in range(20):
    a("ds_read_b128 v[%d:%d], v29 offset:%d" % (BF + 4 * ks, BF + 4 * ks + 3, L_HN + 64 * ks))
for ks in range(20):
    a("s_waitcnt lgkmcnt(%d)" % min(15, 19 - ks))
    a("v_mfma_f32_16x16x32_bf16 v[40:43], v[%d:%d], v[%d:%d], %s" % (AF + 4 * ks, AF + 4 * ks + 3, BF + 4 * ks, BF + 4 * ks + 3, "0" if ks == 0 else "v[40:43]"))
a("s_lshl_b32 s84, s27, 10")
for r in range(4):
    a("v_max_f32 v%d, 0, v%d" % (40 + r, 40 + r))
a("v_cvt_pk_bf16_f32 v40, v40, v41")
a("v_cvt_pk_bf16_f32 v41, v42, v43")
a("s_mov_b32 exec_lo, 0x00ff00ff\ns_mov_b32 exec_hi, 0x00ff00ff")
a("buffer_store_dwordx2 v[40:41], v30, s[60:63], s84 offen sc0 sc1")
a("s_mov_b64 exec, -1")
stamp()
a("s_branch L_fin")

if A.stamp: stamp_idx[0] = 6
a("L_ffn2:")
a("v_and_b32 v21, 7, v0")
a("v_mul_u32_u24 v22, 1280, v21")
a("v_lshl_add_u32 v22, v45, 3, v22")
a("s_lshl_b32 s78, s27, 5")
a("buffer_load_dwordx2 v[24:25], v22, s[44:47], s78 offen")
a("s_waitcnt vmcnt(0)")
a("v_mul_u32_u24 v23, 10240, v44")
a("v_lshl_add_u32 v23, v45, 8, v23")
a("v_lshl_add_u32 v23, v46, 3, v23")
a("v_add_u32 v23, %d, v23" % L_W)
for t in range(7):
    a("ds_read_b64_tr_b16 v[%d:%d], v23 offset:%d" % (AF + 4 * t, AF + 4 * t + 1, 1024 * t))
    a("ds_read_b64_tr_b16 v[%d:%d], v23 offset:%d" % (AF + 4 * t + 2, AF + 4 * t + 3, 1024 * t + 128))
a("v_lshlrev_b32 v26, 9, v44")
a("v_lshl_add_u32 v26, v45, 7, v26")
a("v_lshl_add_u32 v26, v21, 4, v26")
a("v_lshlrev_b32 v27, 4, v0")
a("v_lshlrev_b32 v28, 4, v1")
a("s_mov_b32 s85, 0x42000000")
a("s_cmp_lg_u32 s26, 0")
a("s_cbranch_scc1 L_ffn2_noh")
a("s_lshl_b32 s84, s27, 4")
a("v_lshlrev_b32 v29, 2, v45")
a("v_add_u32 v29, s84, v29")
for r in range(4):
    a("v_add_u32 v30, %d, v29" % r)
    a("v_mul_u32_u24 v31, 205, v30")
    a("v_lshrrev_b32 v31, 11, v31")
    a("v_mul_u32_u24 v32, 10, v31")
    a("v_sub_u32 v30, v30, v32")
    a("v_mul_u32_u24 v32, 11, v30")
    a("v_lshrrev_b32 v32, 5, v32")
    a("v_mul_u32_u24 v33, 3, v32")
    a("v_sub_u32 v%d, v30, v33" % (212 + r))
    a("v_lshl_add_u32 v31, v32, 6, v31")
    a("v_lshlrev_b32 v31, 4, v31")
    a("v_lshl_add_u32 v%d, v21, 12, v31" % (208 + r))
a("s_mov_b32 s88, 0")
a("L_poll2h:")
for r in range(4):
    a("buffer_load_dwordx4 v[%d:%d], v%d, s[48:51], 0 offen sc0 sc1" % (GR + 4 * r, GR + 4 * r + 3, 208 + r))
a("s_add_u32 s88, s88, 1")
a("s_waitcnt vmcnt(0)")
a("v_min_f32 v31, v%d, v%d" % (GR + 3, GR + 7))
a("v_min3_f32 v31, v31, v%d, v%d" % (GR + 11, GR + 15))
a("v_cmp_ne_u32 vcc, s85, v31")
a("s_cmp_gt_u32 s88, %d" % SPIN_MAX)
a("s_cbranch_scc1 L_poll2h_done")
a("s_cbranch_vccnz L_poll2h")
a("L_poll2h_done:")
for r in range(4):
    a("v_cmp_eq_u32 vcc, 1, v%d" % (212 + r))
    a("v_cndmask_b32 v%d, v%d, v%d, vcc" % (GR + 4 * r, GR + 4 * r, GR + 4 * r + 1))
    a("v_cmp_eq_u32 vcc, 2, v%d" % (212 + r))
    a("v_cndmask_b32 v%d, v%d, v%d, vcc" % (GR + 4 * r, GR + 4 * r, GR + 4 * r + 2))
for k in range(2):
    a("v_cvt_pk_bf16_f32 v31, v%d, v%d" % (GR + 8 * k, GR + 8 * k + 4))
    a("v_lshlrev_b32 v32, 16, v31")
    a("v_and_b32 v33, 0xffff0000, v31")
    a("v_lshlrev_b32 v34, 16, v%d" % (24 + k))
    a("v_and_b32 v35, 0xffff0000, v%d" % (24 + k))
    a("v_add_f32 v32, v32, v34")
    a("v_add_f32 v33, v33, v35")
    a("v_cvt_pk_bf16_f32 v31, v32, v33")
    a("v_lshlrev_b32 v%d, 16, v31" % (208 + 2 * k))
    a("v_and_b32 v%d, 0xffff0000, v31" % (209 + 2 * k))
a("L_ffn2_noh:")
stamp()
a("s_mov_b32 s88, 0")
a("s_waitcnt lgkmcnt(0)")
a("L_poll2:")
for t in range(7):
    a("buffer_load_dwordx4 v[%d:%d], v26, s[60:63], %s offen sc0 sc1" % (BF + 4 * t, BF + 4 * t + 3, soff(4096 * t)[0]))
a("s_add_u32 s88, s88, 1")
a("s_waitcnt vmcnt(0)")
a("v_max_u32 v31, v%d, v%d" % (BF, BF + 1))
for k in range(2, 28, 2):
    a("v_max3_u32 v31, v31, v%d, v%d" % (BF + k, BF + k + 1))
a("v_cmp_eq_u32 vcc, -1, v31")
a("s_cmp_gt_u32 s88, %d" % SPIN_MAX)
a("s_cbranch_scc1 L_poll2_done")
a("s_cbranch_vccnz L_poll2")
a("L_poll2_done:")
stamp()
for t in range(7):
    a("v_mfma_f32_16x16x32_bf16 v[40:43], v[%d:%d], v[%d:%d], %s" % (AF + 4 * t, AF + 4 * t + 3, BF + 4 * t, BF + 4 * t + 3, "0" if t == 0 else "v[40:43]"))
a("ds_write_b128 v27, v[40:43] offset:%d" % L_FP)
a("s_waitcnt lgkmcnt(0)")
a("s_barrier")
a("s_cmp_lg_u32 s26, 0")
a("s_cbranch_scc1 L_fin")
for w in range(8):
    a("ds_read_b128 v[%d:%d], v28 offset:%d" % (AF + 4 * w, AF + 4 * w + 3, L_FP + 1024 * w))
a("s_waitcnt lgkmcnt(0)")
for st in (4, 2, 1):
    for w in range(st):
        for r in range(4):
            a("v_add_f32 v%d, v%d, v%d" % (AF + 4 * w + r, AF + 4 * w + r, AF + 4 * (w + st) + r))
for k in range(2):
    a("v_cvt_pk_bf16_f32 v31, v%d, v%d" % (AF + 2 * k, AF + 2 * k + 1))
    a("v_lshlrev_b32 v32, 16, v31")
    a("v_and_b32 v33, 0xffff0000, v31")
    a("v_add_f32 v32, v32, v%d" % (208 + 2 * k))
    a("v_add_f32 v33, v33, v%d" % (209 + 2 * k))
    a("v_cvt_pk_bf16_f32 v%d, v32, v33" % (40 + k))
a("s_mov_b32 exec_lo, 0x00ff00ff\ns_mov_b32 exec_hi, 0x00ff00ff")
a("buffer_store_dwordx2 v[40:41], v22, s[56:59], s78 offen")
a("s_mov_b64 exec, -1")
a("L_fin:")
if A.stamp:
    a("s_waitcnt vmcnt(0)")
    a("s_memrealtime s[90:91]\ns_waitcnt lgkmcnt(0)\ns_mov_b32 s101, s90")
    a("s_cmp_lg_u32 s26, 0")
    a("s_cbranch_scc1 L_end")
    a("s_add_u32 s48, s24, %d\ns_addc_u32 s49, s25, 0" % WS_STAMP)
    a("s_lshl_b32 s84, s2, 6")
    a("s_getreg_b32 s85, hwreg(HW_REG_XCC_ID)")
    a("v_mov_b32 v1, 0")
    a("s_mov_b64 exec, 1")
    for k in range(10):
        a("v_mov_b32 v2, s%d" % (92 + k))
        a("buffer_store_dword v2, v1, s[48:51], s84 offen offset:%d" % (4 * k))
    a("v_mov_b32 v2, s85")
    a("buffer_store_dword v2, v1, s[48:51], s84 offen offset:40")
    a("v_mov_b32 v2, s88")
    a("buffer_store_dword v2, v1, s[48:51], s84 offen offset:44")
a("L_end:")
a("s_endpgm")

body = a.render()
txt = HEADER + "; @launch grid=(256,1,1) block=(512,1,1) lds=%d\n" % LDS_BYTES
txt += """.amdgcn_target "amdgcn-amd-amdhsa--gfx950"
.text
.globl {n}_kernel
.p2align 8
.type {n}_kernel,@function
{n}_kernel:
{body}.section .rodata,"a"
.p2align 6
.amdhsa_kernel {n}_kernel
  .amdhsa_next_free_vgpr 256
  .amdhsa_next_free_sgpr 102
  .amdhsa_accum_offset 256
  .amdhsa_group_segment_fixed_size 0
  .amdhsa_kernarg_size 88
  .amdhsa_user_sgpr_count 2
  .amdhsa_user_sgpr_kernarg_segment_ptr 1
  .amdhsa_system_sgpr_workgroup_id_x 1
  .amdhsa_float_denorm_mode_32 3
.end_amdhsa_kernel
""".format(n=NAME, body=body)
open(A.o, "w").write(txt)
print("wrote", A.o, len(txt), "bytes,", body.count("\n"), "lines")
```

```python
import sys, argparse
sys.path.insert(0, "work")
from asmlib import Asm

NAME = "sequential_preLN__sliding_block_cached__dense_activation_relu__decode"
HEADER = open("cdna_kernels/%s.s.ref" % NAME).read().split("; Override launch geometry")[0]

ap = argparse.ArgumentParser()
ap.add_argument("-o", default="cdna_kernels/%s.s" % NAME)
ap.add_argument("--stamp", action="store_true")
ap.add_argument("--kvmod", default="nt")
ap.add_argument("--wmod", default="")
ap.add_argument("--order", default="wq_first")
ap.add_argument("--map", type=int, default=0)
ap.add_argument("--dmabranch", action="store_true")
ap.add_argument("--dbgstamp", action="store_true")
A = ap.parse_args()

L_PART = 0
L_QD = 4096
L_ST = 6144
L_YP = 6400
L_HN = 27136
HN_STRIDE = 1312
L_FP = 37888
L_W = 46080
LDS_BYTES = L_W + 81920
WS_HSUM = 0
WS_H1 = 32768
WS_STAMP = 1 << 20
FFN1_BASE, FFN1_N = 8, 27
FFN2_BASE, FFN2_N = 64, 40
SPIN_MAX = 400000

KR = 48
WR = 176
def kt(n): return "v[%d:%d]" % (KR + 4 * n, KR + 4 * n + 3)
def wt(n): return "v[%d:%d]" % (WR + 4 * n, WR + 4 * n + 3)
def vtile(n): return wt(n) if n < 20 else kt(n)
def soff(byte):
    hi, lo = byte // 4096, byte % 4096
    return ("0" if hi == 0 else "s%d" % (67 + hi)), lo

a = Asm()
stamp_idx = [0]
def stamp():
    if not A.stamp: return
    a("s_memrealtime s[90:91]\ns_waitcnt lgkmcnt(0)\ns_mov_b32 s%d, s90" % (92 + stamp_idx[0]))
    stamp_idx[0] += 1
    assert stamp_idx[0] <= 10

def wave_reduce(v, op, sdst):
    a("%s_dpp %s, %s, %s quad_perm:[1,0,3,2] row_mask:0xf bank_mask:0xf" % (op, v, v, v))
    a("%s_dpp %s, %s, %s quad_perm:[2,3,0,1] row_mask:0xf bank_mask:0xf" % (op, v, v, v))
    a("%s_dpp %s, %s, %s row_half_mirror row_mask:0xf bank_mask:0xf" % (op, v, v, v))
    a("%s_dpp %s, %s, %s row_mirror row_mask:0xf bank_mask:0xf" % (op, v, v, v))
    a("%s_dpp %s, %s, %s row_bcast:15 row_mask:0xa bank_mask:0xf" % (op, v, v, v))
    a("%s_dpp %s, %s, %s row_bcast:31 row_mask:0xc bank_mask:0xf" % (op, v, v, v))
    a("v_readlane_b32 %s, %s, 63" % (sdst, v))

def ln_stats(vals, tmp, vmean_bf, vrinv):
    t0, t1, t2 = tmp
    a("v_add_f32 %s, %s, %s" % (t0, vals[0], vals[1]))
    a("v_add_f32 %s, %s, %s" % (t1, vals[2], vals[3]))
    for k in range(4, 10, 2):
        a("v_add_f32 %s, %s, %s" % (t0, t0, vals[k]))
        a("v_add_f32 %s, %s, %s" % (t1, t1, vals[k + 1]))
    a("v_add_f32 %s, %s, %s" % (t0, t0, t1))
    wave_reduce(t0, "v_add_f32", "s84")
    a("v_mov_b32 %s, 0x3acccccd" % t2)
    a("v_mul_f32 %s, s84, %s" % (vmean_bf, t2))
    a("v_sub_f32 %s, %s, %s" % (t1, vals[0], vmean_bf))
    a("v_mul_f32 %s, %s, %s" % (t0, t1, t1))
    for k in range(1, 10):
        a("v_sub_f32 %s, %s, %s" % (t1, vals[k], vmean_bf))
        a("v_fmac_f32 %s, %s, %s" % (t0, t1, t1))
    wave_reduce(t0, "v_add_f32", "s84")
    a("v_mul_f32 %s, s84, %s" % (t0, t2))
    a("v_cvt_pk_bf16_f32 %s, %s, %s" % (t0, t0, vmean_bf))
    a("v_and_b32 %s, 0xffff0000, %s" % (vmean_bf, t0))
    a("v_lshlrev_b32 %s, 16, %s" % (t0, t0))
    a("v_add_f32 %s, 0x3727c5ac, %s" % (t0, t0))
    a("v_cvt_pk_bf16_f32 %s, %s, %s" % (t0, t0, t0))
    a("v_lshlrev_b32 %s, 16, %s" % (t0, t0))
    a("v_sqrt_f32 %s, %s" % (t0, t0))
    a("v_cvt_pk_bf16_f32 %s, %s, %s" % (t0, t0, t0))
    a("v_lshlrev_b32 %s, 16, %s" % (t0, t0))
    a("v_rcp_f32 %s, %s" % (vrinv, t0))

def selector(abuf, src, lane):
    for r in range(4):
        a("v_and_b32_dpp v%d, %s, v%d row_newbcast:%d row_mask:0xf bank_mask:0xf" % (abuf + r, src, 6 + r, lane))

def srd(d, plo, nbytes):
    a("s_mov_b32 s%d, s%d\ns_mov_b32 s%d, s%d\ns_mov_b32 s%d, %s\ns_mov_b32 s%d, 0x20000" % (d, plo, d + 1, plo + 1, d + 2, nbytes, d + 3))

a("s_cmp_ge_u32 s2, 256")
a("s_cbranch_scc1 L_end")
a("s_load_dwordx16 s[4:19], s[0:1], 0")
a("s_load_dwordx4 s[20:23], s[0:1], 64")
a("s_load_dwordx2 s[24:25], s[0:1], 80")
if A.stamp:
    a("s_memrealtime s[90:91]")
a("v_and_b32 v1, 63, v0")
a("v_lshrrev_b32 v44, 6, v0")
a("v_lshrrev_b32 v45, 4, v1")
a("v_and_b32 v46, 15, v0")
a("v_readfirstlane_b32 s26, v44")
if A.map == 0:
    a("s_lshr_b32 s76, s2, 5")
    a("s_and_b32 s77, s2, 31")
elif A.map == 1:
    a("s_lshr_b32 s76, s2, 5")
    a("s_and_b32 s77, s2, 7\ns_lshl_b32 s77, s77, 2\ns_bfe_u32 s84, s2, 0x20003\ns_or_b32 s77, s77, s84")
elif A.map == 2:
    a("s_and_b32 s76, s2, 1\ns_lshl_b32 s76, s76, 2\ns_lshr_b32 s84, s2, 6\ns_or_b32 s76, s76, s84")
    a("s_bfe_u32 s77, s2, 0x20001\ns_lshl_b32 s77, s77, 3\ns_bfe_u32 s84, s2, 0x30003\ns_or_b32 s77, s77, s84")
a("s_lshl_b32 s3, s76, 5\ns_or_b32 s3, s3, s77")
for k in range(1, 8):
    a("s_movk_i32 s%d, %d" % (67 + k, 4096 * k))
a("v_lshlrev_b32 v2, 15, v44")
a("v_lshl_add_u32 v2, v1, 4, v2")
a("v_lshl_add_u32 v47, v44, 2, v45")
a("v_mul_u32_u24 v47, 20, v47")
a("v_lshlrev_b32 v3, 13, v47")
a("v_lshl_add_u32 v3, v46, 4, v3")
a("v_mul_u32_u24 v32, 20, v1")
a("v_add_lshl_u32 v33, v47, v46, 1")
a("v_and_b32 v34, 3, v0")
a("v_add_lshl_u32 v34, v47, v34, 1")
a("s_mul_i32 s84, s76, 1280")
a("s_lshl_b32 s85, s77, 8")
a("s_lshl_b32 s86, s3, 20")
a("s_add_u32 s86, s86, 786432")
a("s_waitcnt lgkmcnt(0)")
if A.stamp:
    a("s_mov_b32 s92, s90"); stamp_idx[0] = 1
srd(44, 4, "10240")
a("s_add_u32 s36, s10, s85\ns_addc_u32 s37, s11, 0\ns_sub_u32 s38, 5242880, s85\ns_mov_b32 s39, 0x20000")
a("s_add_u32 s28, s6, s86\ns_addc_u32 s29, s7, 0\ns_mov_b32 s30, 262144\ns_mov_b32 s31, 0x20000")
srd(48, 24, "65536")
a("s_cmp_ge_u32 s2, 8")
a("s_cbranch_scc1 L_noinit")
a("s_lshl_b32 s87, s2, 12")
a("v_lshlrev_b32 v35, 3, v0")
a("v_mov_b32 v36, 0\nv_mov_b32 v37, 0\nv_mov_b32 v38, -1\nv_mov_b32 v39, -1")
a("buffer_store_dwordx2 v[36:37], v35, s[48:51], s87 offen sc0 sc1")
a("s_add_u32 s87, s87, %d" % WS_H1)
a("buffer_store_dwordx2 v[38:39], v35, s[48:51], s87 offen sc0 sc1")
a("L_noinit:")
a("buffer_load_dwordx4 v[16:19], v32, s[44:47], s84 offen")
a("buffer_load_dword v20, v32, s[44:47], s84 offen offset:16")
a("buffer_load_ushort v22, v33, s[44:47], s84 offen")
a("buffer_load_ushort v23, v34, s[44:47], s84 offen offset:32")
NX = 4
def ld_wq(t):
    if t == 0:
        a("buffer_load_dwordx4 %s, v3, s[36:39], 0 offen %s" % (wt(t), A.wmod))
    else:
        a("s_mov_b32 s78, %d" % (t * 8192))
        a("buffer_load_dwordx4 %s, v3, s[36:39], s78 offen %s" % (wt(t), A.wmod))
def ld_k(n):
    so, im = soff(n * 1024)
    a("buffer_load_dwordx4 %s, v2, s[28:31], %s offen offset:%d %s" % (kt(n), so, im, A.kvmod))
def ld_v(n):
    so, im = soff(n * 1024)
    a("buffer_load_dwordx4 %s, v2, s[32:35], %s offen offset:%d %s" % (vtile(n), so, im, A.kvmod))
def ld_wo(t):
    so, im = soff(t * 256)
    a("buffer_load_dwordx4 %s, v4, s[40:43], %s offen offset:%d %s" % (kt(t), so, im, A.wmod))
if A.order == "wq_first":
    seq = [("q", t) for t in range(20)] + [("k", n) for n in range(32)]
else:
    seq = []
    for t in range(20):
        seq += [("q", t), ("k", t)]
    seq += [("k", n) for n in range(20, 32)]
for kind, n in seq:
    (ld_wq if kind == "q" else ld_k)(n)
def younger(kind, n):
    return len(seq) - 1 - seq.index((kind, n))

a("s_add_u32 s32, s8, s86\ns_addc_u32 s33, s9, 0\ns_mov_b32 s34, 262144\ns_mov_b32 s35, 0x20000")
a("s_mul_i32 s85, s77, 163840")
a("s_add_u32 s40, s12, s85\ns_addc_u32 s41, s13, 0\ns_mov_b32 s42, 163840\ns_mov_b32 s43, 0x20000")
srd(56, 20, "10240")
a("s_add_u32 s60, s24, %d\ns_addc_u32 s61, s25, 0\ns_mov_b32 s62, 27648\ns_mov_b32 s63, 0x20000" % WS_H1)
srd(64, 22, "256")
a("s_mov_b32 s80, 0xcccccccc\ns_mov_b32 s81, 0xcccccccc\ns_mov_b32 s82, 0xaaaaaaaa\ns_mov_b32 s83, 0xaaaaaaaa")
a("v_lshl_add_u32 v4, v44, 2, v45")
a("v_mul_u32_u24 v4, 5120, v4")
a("v_lshl_add_u32 v4, v46, 4, v4")
a("v_and_b32 v35, 1, v0")
a("v_lshlrev_b32 v35, 4, v35")
a("v_mov_b32 v36, 0xffff")
a("v_lshlrev_b32 v36, v35, v36")
a("v_lshrrev_b32 v37, 1, v46")
for r in range(4):
    a("v_cmp_eq_u32 vcc, %d, v37" % r)
    a("v_cndmask_b32 v%d, 0, v36, vcc" % (6 + r))
a("s_mov_b32 s75, 0\ns_mov_b32 s27, 0\ns_mov_b32 s79, 0")
a("s_mov_b32 s52, s16\ns_mov_b32 s53, s17\ns_mov_b32 s54, 0\ns_mov_b32 s55, 0x20000")
a("v_mov_b32 v5, 0")
a("s_sub_u32 s84, s2, %d" % FFN1_BASE)
a("s_cmp_lt_u32 s84, %d" % FFN1_N)
a("s_cbranch_scc0 L_not_r1")
a("s_mov_b32 s75, 1\ns_mov_b32 s27, s84")
a("s_lshl_b32 s85, s84, 7")
a("s_add_u32 s52, s16, s85\ns_addc_u32 s53, s17, 0\ns_sub_u32 s54, 2211840, s85")
a("s_mov_b32 s79, 27648")
a("v_mul_u32_u24 v5, 80, v44")
a("v_lshrrev_b32 v35, 3, v1")
a("v_add_u32 v5, v5, v35")
a("v_mul_u32_u24 v5, 3456, v5")
a("v_and_b32 v35, 7, v0")
a("v_lshl_add_u32 v5, v35, 4, v5")
a("L_not_r1:")
a("s_sub_u32 s84, s2, %d" % FFN2_BASE)
a("s_cmp_lt_u32 s84, %d" % FFN2_N)
a("s_cbranch_scc0 L_not_r2")
a("s_mov_b32 s75, 2\ns_mov_b32 s27, s84")
a("s_lshl_b32 s85, s84, 5")
a("s_add_u32 s52, s18, s85\ns_addc_u32 s53, s19, 0\ns_sub_u32 s54, 2211840, s85")
a("s_mov_b32 s79, 327680")
a("v_lshrrev_b32 v5, 1, v0")
a("v_mul_u32_u24 v5, 1280, v5")
a("v_and_b32 v35, 1, v0")
a("v_lshl_add_u32 v5, v35, 4, v5")
a("L_not_r2:")

a("s_waitcnt vmcnt(%d)" % len(seq))
for k in range(5):
    a("v_lshlrev_b32 v%d, 16, v%d" % (24 + 2 * k, 16 + k))
    a("v_and_b32 v%d, 0xffff0000, v%d" % (25 + 2 * k, 16 + k))
ln_stats(["v%d" % (24 + k) for k in range(10)], ["v35", "v36", "v37"], "v38", "v39")
for r in (22, 23):
    a("v_lshlrev_b32 v%d, 16, v%d" % (r, r))
    a("v_sub_f32 v%d, v%d, v38" % (r, r))
    a("v_cvt_pk_bf16_f32 v%d, v%d, v%d" % (r, r, r))
    a("v_lshlrev_b32 v%d, 16, v%d" % (r, r))
    a("v_mul_f32 v%d, v%d, v39" % (r, r))
    a("v_cvt_pk_bf16_f32 v%d, v%d, v%d" % (r, r, r))
for t in range(20):
    ab = 32 + 4 * (t & 1)
    selector(ab, "v22" if t < 16 else "v23", t & 15)
    a("s_waitcnt vmcnt(%d)" % younger("q", t))
    a("v_mfma_f32_16x16x32_bf16 v[40:43], v[%d:%d], %s, %s" % (ab, ab + 3, wt(t), "0" if t == 0 else "v[40:43]"))
for n in range(20):
    ld_v(n)
a("v_lshlrev_b32 v24, 9, v44")
a("v_lshl_add_u32 v24, v46, 5, v24")
a("v_lshl_add_u32 v24, v45, 4, v24")
a("v_mov_b32 v47, v24")
a("s_mov_b32 exec_hi, 0")
a("ds_write_b128 v47, v[40:43] offset:%d" % L_PART)
a("s_mov_b64 exec, -1")
a("v_lshlrev_b32 v25, 3, v1")
a("s_waitcnt lgkmcnt(0)")
a("s_barrier")
a("s_cmp_ge_u32 s2, 8")
a("s_cbranch_scc1 L_nosig")
a("s_cmp_lg_u32 s26, 0")
a("s_cbranch_scc1 L_nosig")
a("v_mov_b32 v26, 0\nv_mov_b32 v27, 1")
a("s_mov_b64 exec, 1")
a("buffer_atomic_add v27, v26, s[64:67], 0 offen sc1")
a("s_mov_b64 exec, -1")
a("L_nosig:")
for w in range(8):
    a("ds_read_b64 v[%d:%d], v25 offset:%d" % (26 + 2 * w, 27 + 2 * w, L_PART + 512 * w))
a("s_waitcnt lgkmcnt(0)")
for w in range(1, 8):
    a("v_add_f32 v26, v26, v%d" % (26 + 2 * w))
    a("v_add_f32 v27, v27, v%d" % (27 + 2 * w))
a("v_cvt_pk_bf16_f32 v26, v26, v27")
a("v_lshlrev_b32 v25, 2, v0")
a("ds_write_b32 v25, v26 offset:%d" % L_QD)
a("v_lshlrev_b32 v25, 8, v44")
a("v_lshl_add_u32 v25, v46, 4, v25")
a("s_waitcnt lgkmcnt(0)")
a("ds_read_b128 v[10:13], v25 offset:%d" % L_QD)
a("s_waitcnt lgkmcnt(0)")
stamp()

def reduce_scatter(dst):
    for n in range(8):
        a("v_add_f32_dpp v%d, v%d, v%d row_mirror row_mask:0xf bank_mask:0x3" % (16 + n, 16 + n, 16 + n))
    for n in range(8):
        a("v_add_f32_dpp v%d, v%d, v%d row_mirror row_mask:0xf bank_mask:0xc" % (16 + n, 24 + n, 24 + n))
    for n in range(4):
        a("v_add_f32_dpp v%d, v%d, v%d row_half_mirror row_mask:0xf bank_mask:0x5" % (16 + n, 16 + n, 16 + n))
    for n in range(4):
        a("v_add_f32_dpp v%d, v%d, v%d row_half_mirror row_mask:0xf bank_mask:0xa" % (16 + n, 20 + n, 20 + n))
    for n in range(4):
        a("v_add_f32_dpp v%d, v%d, v%d quad_perm:[3,2,1,0] row_mask:0xf bank_mask:0xf" % (16 + n, 16 + n, 16 + n))
    a("v_cndmask_b32 v16, v16, v18, s[80:81]")
    a("v_cndmask_b32 v17, v17, v19, s[80:81]")
    a("v_add_f32_dpp v16, v16, v16 quad_perm:[1,0,3,2] row_mask:0xf bank_mask:0xf")
    a("v_add_f32_dpp v17, v17, v17 quad_perm:[1,0,3,2] row_mask:0xf bank_mask:0xf")
    a("v_cndmask_b32 %s, v16, v17, s[82:83]" % dst)

for n in range(32):
    a("s_waitcnt vmcnt(%d)" % min(63, (younger("k", n) if A.order == "wq_first" else sum(1 for k in range(n + 1, 32))) + 20 + n))
    acc = 16 + (n & 15)
    for r in range(4):
        a("v_dot2_f32_bf16 v%d, v%d, v%d, %s" % (acc, KR + 4 * n + r, 10 + r, "0" if r == 0 else "v%d" % acc))
    if n < 20: ld_wo(n)
    else: ld_v(n)
    if n == 15: reduce_scatter("v14")
    if n == 31: reduce_scatter("v15")
if A.dmabranch:
    a("s_cmp_eq_u32 s75, 0\ns_cbranch_scc1 L_nodma")
a("s_mul_i32 s84, s26, 10240")
a("s_add_u32 s84, s84, %d" % L_W)
a("s_mov_b32 s78, 0")
for t in range(10):
    a("s_mov_b32 m0, s84")
    a("buffer_load_dwordx4 v5, s[52:55], s78 offen lds")
    if t < 9:
        a("s_add_u32 s84, s84, 1024")
        a("s_add_u32 s78, s78, s79")
NDMA = 10
if A.dmabranch:
    a("L_nodma:")
    NDMA = 0
a("s_load_dword s89, s[22:23], 0")
stamp()

a("v_cvt_pk_bf16_f32 v16, v14, v15")
a("v_lshlrev_b32 v14, 16, v16")
a("v_and_b32 v15, 0xffff0000, v16")
a("v_mul_f32 v14, 0x3db504f3, v14")
a("v_mul_f32 v15, 0x3db504f3, v15")
a("v_cvt_pk_bf16_f32 v16, v14, v15")
a("v_lshlrev_b32 v14, 16, v16")
a("v_and_b32 v15, 0xffff0000, v16")
a("v_max_f32 v16, v14, v15")
wave_reduce("v16", "v_max_f32", "s84")
a("v_subrev_f32 v16, s84, v14")
a("v_subrev_f32 v17, s84, v15")
a("v_mul_f32 v16, 0x3fb8aa3b, v16")
a("v_mul_f32 v17, 0x3fb8aa3b, v17")
a("v_exp_f32 v16, v16")
a("v_exp_f32 v17, v17")
a("v_add_f32 v16, v16, v17")
wave_reduce("v16", "v_add_f32", "s85")
a("v_mov_b32 v16, s84")
a("v_mov_b32 v17, s85")
a("v_lshlrev_b32 v18, 3, v44")
a("s_mov_b64 exec, 1")
a("ds_write_b64 v18, v[16:17] offset:%d" % L_ST)
a("s_mov_b64 exec, -1")
a("v_and_b32 v18, 7, v0")
a("v_lshlrev_b32 v18, 3, v18")
a("s_waitcnt lgkmcnt(0)")
a("s_barrier")
a("ds_read_b64 v[16:17], v18 offset:%d" % L_ST)
a("s_waitcnt lgkmcnt(0)")
a("v_mov_b32 v18, v16")
a("v_max_f32_dpp v18, v18, v18 quad_perm:[1,0,3,2] row_mask:0xf bank_mask:0xf")
a("v_max_f32_dpp v18, v18, v18 quad_perm:[2,3,0,1] row_mask:0xf bank_mask:0xf")
a("v_max_f32_dpp v18, v18, v18 row_half_mirror row_mask:0xf bank_mask:0xf")
a("v_sub_f32 v16, v16, v18")
a("v_mul_f32 v16, 0x3fb8aa3b, v16")
a("v_exp_f32 v16, v16")
a("v_mul_f32 v16, v16, v17")
a("v_add_f32_dpp v16, v16, v16 quad_perm:[1,0,3,2] row_mask:0xf bank_mask:0xf")
a("v_add_f32_dpp v16, v16, v16 quad_perm:[2,3,0,1] row_mask:0xf bank_mask:0xf")
a("v_add_f32_dpp v16, v16, v16 row_half_mirror row_mask:0xf bank_mask:0xf")
a("v_rcp_f32 v16, v16")
a("v_sub_f32 v14, v14, v18")
a("v_sub_f32 v15, v15, v18")
a("v_mul_f32 v14, 0x3fb8aa3b, v14")
a("v_mul_f32 v15, 0x3fb8aa3b, v15")
a("v_exp_f32 v14, v14")
a("v_exp_f32 v15, v15")
a("v_mul_f32 v14, v14, v16")
a("v_mul_f32 v15, v15, v16")
a("v_cvt_pk_bf16_f32 v14, v14, v14")
a("v_cvt_pk_bf16_f32 v15, v15, v15")
a("v_lshrrev_b32 v16, 2, v46")
a("v_lshlrev_b32 v16, 10, v16")
a("v_lshl_add_u32 v16, v44, 6, v16")
a("v_lshl_add_u32 v16, v45, 4, v16")
a("v_and_b32 v17, 3, v0")
a("v_lshl_add_u32 v16, v17, 2, v16")
a("v_mul_u32_u24 v18, 2560, v44")
a("v_lshl_add_u32 v18, v46, 5, v18")
a("v_lshl_add_u32 v18, v45, 4, v18")
a("v_bfe_u32 v19, v0, 2, 6")
a("v_mul_u32_u24 v19, 10, v19")
a("v_lshrrev_b32 v20, 8, v0")
a("v_mul_u32_u24 v20, 3, v20")
a("v_add3_u32 v19, v19, v20, v17")
a("v_lshlrev_b32 v19, 2, v19")
a("v_lshlrev_b32 v20, 2, v0")
a("s_mov_b32 s86, 0x88888888\ns_mov_b32 s87, 0x88888888")
stamp()

for n in range(32):
    ab = 32 + 4 * (n & 1)
    selector(ab, "v14" if n < 16 else "v15", n & 15)
    yn = (19 - n + 32 + NDMA) if n < 20 else (31 - n + NDMA)
    a("s_waitcnt vmcnt(%d)" % yn)
    a("v_mfma_f32_16x16x32_bf16 v[40:43], v[%d:%d], %s, %s" % (ab, ab + 3, vtile(n), "0" if n == 0 else "v[40:43]"))
stamp()
a("s_mov_b32 exec_hi, 0")
a("ds_write_b128 v47, v[40:43] offset:%d" % L_PART)
a("s_mov_b64 exec, -1")
a("s_waitcnt lgkmcnt(0)")
a("s_barrier")
a("ds_read2st64_b32 v[22:23], v16 offset0:%d offset1:%d" % (L_PART // 256, L_PART // 256 + 2))
a("s_waitcnt lgkmcnt(0)")
a("v_add_f32 v22, v22, v23")
a("v_add_f32_dpp v22, v22, v22 row_ror:4 row_mask:0xf bank_mask:0xf")
a("v_add_f32_dpp v22, v22, v22 row_ror:8 row_mask:0xf bank_mask:0xf")
a("v_cvt_pk_bf16_f32 v22, v22, v22")
YA = WR
for r4 in range(4):
    ab = 32 + 4 * (r4 & 1)
    selector(ab, "v22", r4)
    for cb in range(5):
        acc = "v[%d:%d]" % (YA + 4 * cb, YA + 4 * cb + 3)
        a("v_mfma_f32_16x16x32_bf16 %s, v[%d:%d], %s, %s" % (acc, ab, ab + 3, kt(5 * r4 + cb), "0" if r4 == 0 else acc))
a("s_mov_b32 exec_hi, 0")
for cb in range(5):
    a("ds_write_b128 v18, v[%d:%d] offset:%d" % (YA + 4 * cb, YA + 4 * cb + 3, L_YP + 512 * cb))
a("s_mov_b64 exec, -1")
a("s_waitcnt lgkmcnt(0)")
a("s_cmp_eq_u32 s89, 8")
a("s_cbranch_scc1 L_initok")
a("s_mov_b32 s88, 0")
a("v_mov_b32 v23, 0")
a("L_initpoll:")
a("buffer_load_dword v24, v23, s[64:67], 0 offen sc0 sc1")
a("s_waitcnt vmcnt(0)")
a("v_readfirstlane_b32 s89, v24")
a("s_add_u32 s88, s88, 1")
a("s_cmp_gt_u32 s88, %d" % SPIN_MAX)
a("s_cbranch_scc1 L_initok")
a("s_cmp_eq_u32 s89, 8")
a("s_cbranch_scc0 L_initpoll")
a("L_initok:")
a("s_barrier")
for w in range(8):
    a("ds_read2_b32 v[%d:%d], v19 offset0:0 offset1:6" % (KR + 2 * w, KR + 2 * w + 1) if False else
      "ds_read_b32 v%d, v19 offset:%d\nds_read_b32 v%d, v19 offset:%d" % (KR + 2 * w, L_YP + 2560 * w, KR + 2 * w + 1, L_YP + 2560 * w + 24))
a("s_lshl_b32 s84, s76, 12")
a("s_waitcnt lgkmcnt(0)")
for st in (4, 2, 1):
    for w in range(st):
        a("v_add_f32 v%d, v%d, v%d" % (KR + 2 * w, KR + 2 * w, KR + 2 * (w + st)))
        a("v_add_f32 v%d, v%d, v%d" % (KR + 2 * w + 1, KR + 2 * w + 1, KR + 2 * (w + st) + 1))
a("v_cndmask_b32 v%d, v%d, 1.0, s[86:87]" % (KR, KR))
a("v_cndmask_b32 v%d, v%d, 1.0, s[86:87]" % (KR + 1, KR + 1))
a("buffer_atomic_add_f32 v%d, v20, s[48:51], s84 offen" % KR)
a("buffer_atomic_add_f32 v%d, v20, s[48:51], s84 offen offset:2048" % (KR + 1))
stamp()
a("s_cmp_eq_u32 s75, 1")
a("s_cbranch_scc1 L_ffn1")
a("s_cmp_eq_u32 s75, 2")
a("s_cbranch_scc1 L_ffn2")
a("s_branch L_fin")

a("L_ffn1:")
a("s_mul_i32 s84, s26, 1280")
a("v_mul_u32_u24 v21, 20, v1")
a("buffer_load_dwordx4 v[24:27], v21, s[44:47], s84 offen")
a("buffer_load_dword v28, v21, s[44:47], s84 offen offset:16")
a("s_waitcnt vmcnt(0)")
a("s_barrier")
AF = KR
BF = KR + 80
a("v_lshrrev_b32 v22, 2, v46")
a("v_lshl_add_u32 v22, v45, 3, v22")
a("v_lshlrev_b32 v22, 7, v22")
a("v_and_b32 v23, 3, v44")
a("v_lshl_add_u32 v22, v23, 5, v22")
a("v_lshl_add_u32 v22, v17, 3, v22")
a("v_add_u32 v22, %d, v22" % L_W)
a("v_add_u32 v23, 40960, v22")
for ks in range(20):
    base, off = ("v22", ks * 4096) if ks < 10 else ("v23", (ks - 10) * 4096)
    a("ds_read_b64_tr_b16 v[%d:%d], %s offset:%d" % (AF + 4 * ks, AF + 4 * ks + 1, base, off))
    a("ds_read_b64_tr_b16 v[%d:%d], %s offset:%d" % (AF + 4 * ks + 2, AF + 4 * ks + 3, base, off + 512))
XF = 208
for k in range(5):
    a("v_lshlrev_b32 v%d, 16, v%d" % (XF + 2 * k, 24 + k))
    a("v_and_b32 v%d, 0xffff0000, v%d" % (XF + 2 * k + 1, 24 + k))
a("v_lshlrev_b32 v22, 4, v1")
a("v_mul_u32_u24 v23, %d, v44" % HN_STRIDE)
a("v_add_u32 v23, v23, v21")
a("v_and_b32 v30, 7, v0")
a("v_mul_u32_u24 v29, %d, v30" % HN_STRIDE)
a("v_lshl_add_u32 v29, v45, 4, v29")
a("v_lshlrev_b32 v30, 4, v30")
a("v_lshl_add_u32 v30, v44, 8, v30")
a("v_lshrrev_b32 v31, 1, v45")
a("v_lshl_add_u32 v30, v31, 7, v30")
a("v_and_b32 v31, 1, v45")
a("v_lshl_add_u32 v30, v31, 3, v30")
a("s_lshl_b32 s84, s26, 12")
a("s_mov_b32 s88, 0")
a("s_mov_b32 s85, 0x42000000")
a("s_waitcnt lgkmcnt(0)")
GR = 220
a("L_poll1:")
for m in range(4):
    a("buffer_load_dwordx4 v[%d:%d], v22, s[48:51], s84 offen offset:%d sc0 sc1" % (GR + 4 * m, GR + 4 * m + 3, 1024 * m))
a("s_add_u32 s88, s88, 1")
a("s_waitcnt vmcnt(0)")
a("v_min_f32 v31, v%d, v%d" % (GR + 3, GR + 7))
a("v_min3_f32 v31, v31, v%d, v%d" % (GR + 11, GR + 15))
a("v_cmp_ne_u32 vcc, s85, v31")
a("s_cmp_gt_u32 s88, %d" % SPIN_MAX)
a("s_cbranch_scc1 L_poll1_done")
a("s_cbranch_vccnz L_poll1")
a("L_poll1_done:")
stamp()
vals = [GR + 0, GR + 1, GR + 2, GR + 4, GR + 5, GR + 6, GR + 8, GR + 9, GR + 10, GR + 12]
for k in range(5):
    a("v_cvt_pk_bf16_f32 v31, v%d, v%d" % (vals[2 * k], vals[2 * k + 1]))
    a("v_lshlrev_b32 v32, 16, v31")
    a("v_and_b32 v33, 0xffff0000, v31")
    a("v_add_f32 v32, v32, v%d" % (XF + 2 * k))
    a("v_add_f32 v33, v33, v%d" % (XF + 2 * k + 1))
    a("v_cvt_pk_bf16_f32 v31, v32, v33")
    a("v_lshlrev_b32 v%d, 16, v31" % (XF + 2 * k))
    a("v_and_b32 v%d, 0xffff0000, v31" % (XF + 2 * k + 1))
ln_stats(["v%d" % (XF + k) for k in range(10)], ["v31", "v32", "v33"], "v38", "v39")
for k in range(5):
    a("v_sub_f32 v32, v%d, v38" % (XF + 2 * k))
    a("v_sub_f32 v33, v%d, v38" % (XF + 2 * k + 1))
    a("v_cvt_pk_bf16_f32 v31, v32, v33")
    a("v_lshlrev_b32 v32, 16, v31")
    a("v_and_b32 v33, 0xffff0000, v31")
    a("v_mul_f32 v32, v32, v39")
    a("v_mul_f32 v33, v33, v39")
    a("v_cvt_pk_bf16_f32 v%d, v32, v33" % (GR + k))
    a("ds_write_b32 v23, v%d offset:%d" % (GR + k, L_HN + 4 * k))
a("s_waitcnt lgkmcnt(0)")
a("s_barrier")
a("s_cmp_ge_u32 s26, 4")
a("s_cbranch_scc1 L_fin")
for ks in range(20):
    a("ds_read_b128 v[%d:%d], v29 offset:%d" % (BF + 4 * ks, BF + 4 * ks + 3, L_HN + 64 * ks))
for ks in range(20):
    a("s_waitcnt lgkmcnt(%d)" % min(15, 19 - ks))
    a("v_mfma_f32_16x16x32_bf16 v[40:43], v[%d:%d], v[%d:%d], %s" % (AF + 4 * ks, AF + 4 * ks + 3, BF + 4 * ks, BF + 4 * ks + 3, "0" if ks == 0 else "v[40:43]"))
a("s_lshl_b32 s84, s27, 10")
for r in range(4):
    a("v_max_f32 v%d, 0, v%d" % (40 + r, 40 + r))
a("v_cvt_pk_bf16_f32 v40, v40, v41")
a("v_cvt_pk_bf16_f32 v41, v42, v43")
a("s_mov_b32 exec_lo, 0x00ff00ff\ns_mov_b32 exec_hi, 0x00ff00ff")
a("buffer_store_dwordx2 v[40:41], v30, s[60:63], s84 offen sc0 sc1")
a("s_mov_b64 exec, -1")
stamp()
a("s_branch L_fin")

if A.stamp: stamp_idx[0] = 6
a("L_ffn2:")
a("v_and_b32 v21, 7, v0")
a("v_mul_u32_u24 v22, 1280, v21")
a("v_lshl_add_u32 v22, v45, 3, v22")
a("s_lshl_b32 s78, s27, 5")
a("buffer_load_dwordx2 v[24:25], v22, s[44:47], s78 offen")
a("s_waitcnt vmcnt(0)")
a("v_mul_u32_u24 v23, 10240, v44")
a("v_lshl_add_u32 v23, v45, 8, v23")
a("v_lshl_add_u32 v23, v46, 3, v23")
a("v_add_u32 v23, %d, v23" % L_W)
for t in range(7):
    a("ds_read_b64_tr_b16 v[%d:%d], v23 offset:%d" % (AF + 4 * t, AF + 4 * t + 1, 1024 * t))
    a("ds_read_b64_tr_b16 v[%d:%d], v23 offset:%d" % (AF + 4 * t + 2, AF + 4 * t + 3, 1024 * t + 128))
a("v_lshlrev_b32 v26, 9, v44")
a("v_lshl_add_u32 v26, v45, 7, v26")
a("v_lshl_add_u32 v26, v21, 4, v26")
a("v_lshlrev_b32 v27, 4, v0")
a("v_lshlrev_b32 v28, 4, v1")
a("s_mov_b32 s85, 0x42000000")
a("s_cmp_lg_u32 s26, 0")
a("s_cbranch_scc1 L_ffn2_noh")
a("s_lshl_b32 s84, s27, 4")
a("v_lshlrev_b32 v29, 2, v45")
a("v_add_u32 v29, s84, v29")
for r in range(4):
    a("v_add_u32 v30, %d, v29" % r)
    a("v_mul_u32_u24 v31, 205, v30")
    a("v_lshrrev_b32 v31, 11, v31")
    a("v_mul_u32_u24 v32, 10, v31")
    a("v_sub_u32 v30, v30, v32")
    a("v_mul_u32_u24 v32, 11, v30")
    a("v_lshrrev_b32 v32, 5, v32")
    a("v_mul_u32_u24 v33, 3, v32")
    a("v_sub_u32 v%d, v30, v33" % (212 + r))
    a("v_lshl_add_u32 v31, v32, 6, v31")
    a("v_lshlrev_b32 v31, 4, v31")
    a("v_lshl_add_u32 v%d, v21, 12, v31" % (208 + r))
a("s_mov_b32 s88, 0")
a("L_poll2h:")
for r in range(4):
    a("buffer_load_dwordx4 v[%d:%d], v%d, s[48:51], 0 offen sc0 sc1" % (GR + 4 * r, GR + 4 * r + 3, 208 + r))
a("s_add_u32 s88, s88, 1")
a("s_waitcnt vmcnt(0)")
a("v_min_f32 v31, v%d, v%d" % (GR + 3, GR + 7))
a("v_min3_f32 v31, v31, v%d, v%d" % (GR + 11, GR + 15))
a("v_cmp_ne_u32 vcc, s85, v31")
a("s_cmp_gt_u32 s88, %d" % SPIN_MAX)
a("s_cbranch_scc1 L_poll2h_done")
a("s_cbranch_vccnz L_poll2h")
a("L_poll2h_done:")
for r in range(4):
    a("v_cmp_eq_u32 vcc, 1, v%d" % (212 + r))
    a("v_cndmask_b32 v%d, v%d, v%d, vcc" % (GR + 4 * r, GR + 4 * r, GR + 4 * r + 1))
    a("v_cmp_eq_u32 vcc, 2, v%d" % (212 + r))
    a("v_cndmask_b32 v%d, v%d, v%d, vcc" % (GR + 4 * r, GR + 4 * r, GR + 4 * r + 2))
for k in range(2):
    a("v_cvt_pk_bf16_f32 v31, v%d, v%d" % (GR + 8 * k, GR + 8 * k + 4))
    a("v_lshlrev_b32 v32, 16, v31")
    a("v_and_b32 v33, 0xffff0000, v31")
    a("v_lshlrev_b32 v34, 16, v%d" % (24 + k))
    a("v_and_b32 v35, 0xffff0000, v%d" % (24 + k))
    a("v_add_f32 v32, v32, v34")
    a("v_add_f32 v33, v33, v35")
    a("v_cvt_pk_bf16_f32 v31, v32, v33")
    a("v_lshlrev_b32 v%d, 16, v31" % (208 + 2 * k))
    a("v_and_b32 v%d, 0xffff0000, v31" % (209 + 2 * k))
a("L_ffn2_noh:")
stamp()
a("s_mov_b32 s88, 0")
a("s_waitcnt lgkmcnt(0)")
a("L_poll2:")
for t in range(7):
    a("buffer_load_dwordx4 v[%d:%d], v26, s[60:63], %s offen sc0 sc1" % (BF + 4 * t, BF + 4 * t + 3, soff(4096 * t)[0]))
a("s_add_u32 s88, s88, 1")
a("s_waitcnt vmcnt(0)")
a("v_max_u32 v31, v%d, v%d" % (BF, BF + 1))
for k in range(2, 28, 2):
    a("v_max3_u32 v31, v31, v%d, v%d" % (BF + k, BF + k + 1))
a("v_cmp_eq_u32 vcc, -1, v31")
a("s_cmp_gt_u32 s88, %d" % SPIN_MAX)
a("s_cbranch_scc1 L_poll2_done")
a("s_cbranch_vccnz L_poll2")
a("L_poll2_done:")
stamp()
for t in range(7):
    a("v_mfma_f32_16x16x32_bf16 v[40:43], v[%d:%d], v[%d:%d], %s" % (AF + 4 * t, AF + 4 * t + 3, BF + 4 * t, BF + 4 * t + 3, "0" if t == 0 else "v[40:43]"))
a("ds_write_b128 v27, v[40:43] offset:%d" % L_FP)
a("s_waitcnt lgkmcnt(0)")
a("s_barrier")
a("s_cmp_lg_u32 s26, 0")
a("s_cbranch_scc1 L_fin")
for w in range(8):
    a("ds_read_b128 v[%d:%d], v28 offset:%d" % (AF + 4 * w, AF + 4 * w + 3, L_FP + 1024 * w))
a("s_waitcnt lgkmcnt(0)")
for st in (4, 2, 1):
    for w in range(st):
        for r in range(4):
            a("v_add_f32 v%d, v%d, v%d" % (AF + 4 * w + r, AF + 4 * w + r, AF + 4 * (w + st) + r))
for k in range(2):
    a("v_cvt_pk_bf16_f32 v31, v%d, v%d" % (AF + 2 * k, AF + 2 * k + 1))
    a("v_lshlrev_b32 v32, 16, v31")
    a("v_and_b32 v33, 0xffff0000, v31")
    a("v_add_f32 v32, v32, v%d" % (208 + 2 * k))
    a("v_add_f32 v33, v33, v%d" % (209 + 2 * k))
    a("v_cvt_pk_bf16_f32 v%d, v32, v33" % (40 + k))
a("s_mov_b32 exec_lo, 0x00ff00ff\ns_mov_b32 exec_hi, 0x00ff00ff")
a("buffer_store_dwordx2 v[40:41], v22, s[56:59], s78 offen")
a("s_mov_b64 exec, -1")
a("L_fin:")
if A.stamp:
    a("s_waitcnt vmcnt(0)")
    a("s_memrealtime s[90:91]\ns_waitcnt lgkmcnt(0)\ns_mov_b32 s101, s90")
    a("s_cmp_lg_u32 s26, 0")
    a("s_cbranch_scc1 L_end")
    a("s_add_u32 s48, s24, %d\ns_addc_u32 s49, s25, 0" % WS_STAMP)
    a("s_lshl_b32 s84, s2, 6")
    a("s_getreg_b32 s85, hwreg(HW_REG_XCC_ID)")
    a("v_mov_b32 v1, 0")
    a("s_mov_b64 exec, 1")
    for k in range(10):
        a("v_mov_b32 v2, s%d" % (92 + k))
        a("buffer_store_dword v2, v1, s[48:51], s84 offen offset:%d" % (4 * k))
    if A.dbgstamp:
        a("s_cmp_lg_u32 s75, 2\ns_cbranch_scc1 L_end")
        a("s_not_b32 s86, s92")
        a("v_mov_b32 v2, s86")
        a("buffer_atomic_umax v2, v1, s[64:67], 0 offen offset:4 sc1")
        for k in (4, 5, 6, 7, 9):
            a("v_mov_b32 v2, s%d" % (92 + k))
            a("buffer_atomic_umax v2, v1, s[64:67], 0 offen offset:%d sc1" % (8 + 4 * k))
    a("v_mov_b32 v2, s85")
    a("buffer_store_dword v2, v1, s[48:51], s84 offen offset:40")
    a("v_mov_b32 v2, s88")
    a("buffer_store_dword v2, v1, s[48:51], s84 offen offset:44")
a("L_end:")
a("s_endpgm")

body = a.render()
txt = HEADER + "; @launch grid=(256,1,1) block=(512,1,1) lds=%d\n" % LDS_BYTES
txt += """.amdgcn_target "amdgcn-amd-amdhsa--gfx950"
.text
.globl {n}_kernel
.p2align 8
.type {n}_kernel,@function
{n}_kernel:
{body}.section .rodata,"a"
.p2align 6
.amdhsa_kernel {n}_kernel
  .amdhsa_next_free_vgpr 256
  .amdhsa_next_free_sgpr 102
  .amdhsa_accum_offset 256
  .amdhsa_group_segment_fixed_size 0
  .amdhsa_kernarg_size 88
  .amdhsa_user_sgpr_count 2
  .amdhsa_user_sgpr_kernarg_segment_ptr 1
  .amdhsa_system_sgpr_workgroup_id_x 1
  .amdhsa_float_denorm_mode_32 3
.end_amdhsa_kernel
""".format(n=NAME, body=body)
open(A.o, "w").write(txt)
print("wrote", A.o, len(txt), "bytes,", body.count("\n"), "lines")
```

```python
import sys, argparse
sys.path.insert(0, "work")
from asmlib import Asm

NAME = "sequential_preLN__sliding_block_cached__dense_activation_relu__decode"
HEADER = open("cdna_kernels/%s.s.ref" % NAME).read().split("; Override launch geometry")[0]

ap = argparse.ArgumentParser()
ap.add_argument("-o", default="cdna_kernels/%s.s" % NAME)
ap.add_argument("--stamp", action="store_true")
ap.add_argument("--dbgstamp", action="store_true")
ap.add_argument("--kvmod", default="nt")
ap.add_argument("--wmod", default="nt")
ap.add_argument("--dmod", default="nt")
ap.add_argument("--pmod", default="sc0 sc1")
ap.add_argument("--L", type=int, default=12)
ap.add_argument("--pat", type=int, default=1)
ap.add_argument("--qk", type=int, default=2)
ap.add_argument("--wo_start", type=int, default=12)
ap.add_argument("--wo_every", type=int, default=2)
ap.add_argument("--codepf", action="store_true")
ap.add_argument("--LV", type=int, default=0)
ap.add_argument("--dma", default="stream")
ap.add_argument("--pf", type=int, default=0)
ap.add_argument("--pfmod", default="")
A = ap.parse_args()

L_PART = 0
L_QD = 4096
L_ST = 6144
L_YP = 6400
L_HN = 27136
HN_STRIDE = 1312
L_FP = 37888
L_W = 46080
LDS_BYTES = L_W + 81920
WS_H1 = 32768
WS_STAMP = 1 << 20
FFN1_N, FFN2_N = 27, 40
L_TK = 6208
SPIN_MAX = 400000

RING = 48; NRING = 32
WO = 176
def t4(r): return "v[%d:%d]" % (r, r + 3)
def soff(byte):
    hi, lo = byte // 4096, byte % 4096
    return ("0" if hi == 0 else "s%d" % (67 + hi)), lo

a = Asm()
stamp_idx = [0]
def stamp():
    if not A.stamp: return
    a("s_memrealtime s[90:91]\ns_waitcnt lgkmcnt(0)\ns_mov_b32 s%d, s90" % (92 + stamp_idx[0]))
    stamp_idx[0] += 1
    assert stamp_idx[0] <= 9

def wave_reduce(v, op, sdst):
    for m in ("quad_perm:[1,0,3,2] row_mask:0xf", "quad_perm:[2,3,0,1] row_mask:0xf", "row_half_mirror row_mask:0xf",
              "row_mirror row_mask:0xf", "row_bcast:15 row_mask:0xa", "row_bcast:31 row_mask:0xc"):
        a("%s_dpp %s, %s, %s %s bank_mask:0xf" % (op, v, v, v, m))
    a("v_readlane_b32 %s, %s, 63" % (sdst, v))

def ln_stats(vals, tmp, vmean_bf, vrinv):
    t0, t1, t2 = tmp
    a("v_add_f32 %s, %s, %s" % (t0, vals[0], vals[1]))
    a("v_add_f32 %s, %s, %s" % (t1, vals[2], vals[3]))
    for k in range(4, 10, 2):
        a("v_add_f32 %s, %s, %s" % (t0, t0, vals[k]))
        a("v_add_f32 %s, %s, %s" % (t1, t1, vals[k + 1]))
    a("v_add_f32 %s, %s, %s" % (t0, t0, t1))
    wave_reduce(t0, "v_add_f32", "s84")
    a("v_mov_b32 %s, 0x3acccccd" % t2)
    a("v_mul_f32 %s, s84, %s" % (vmean_bf, t2))
    a("v_sub_f32 %s, %s, %s" % (t1, vals[0], vmean_bf))
    a("v_mul_f32 %s, %s, %s" % (t0, t1, t1))
    for k in range(1, 10):
        a("v_sub_f32 %s, %s, %s" % (t1, vals[k], vmean_bf))
        a("v_fmac_f32 %s, %s, %s" % (t0, t1, t1))
    wave_reduce(t0, "v_add_f32", "s84")
    a("v_mul_f32 %s, s84, %s" % (t0, t2))
    a("v_cvt_pk_bf16_f32 %s, %s, %s" % (t0, t0, vmean_bf))
    a("v_and_b32 %s, 0xffff0000, %s" % (vmean_bf, t0))
    a("v_lshlrev_b32 %s, 16, %s" % (t0, t0))
    a("v_add_f32 %s, 0x3727c5ac, %s" % (t0, t0))
    a("v_cvt_pk_bf16_f32 %s, %s, %s" % (t0, t0, t0))
    a("v_lshlrev_b32 %s, 16, %s" % (t0, t0))
    a("v_sqrt_f32 %s, %s" % (t0, t0))
    a("v_cvt_pk_bf16_f32 %s, %s, %s" % (t0, t0, t0))
    a("v_lshlrev_b32 %s, 16, %s" % (t0, t0))
    a("v_rcp_f32 %s, %s" % (vrinv, t0))

def selector(abuf, src, lane):
    for r in range(4):
        a("v_and_b32_dpp v%d, %s, v%d row_newbcast:%d row_mask:0xf bank_mask:0xf" % (abuf + r, src, 6 + r, lane))

def srd(d, plo, nbytes):
    a("s_mov_b32 s%d, s%d\ns_mov_b32 s%d, s%d\ns_mov_b32 s%d, %s\ns_mov_b32 s%d, 0x20000" % (d, plo, d + 1, plo + 1, d + 2, nbytes, d + 3))

S = []
kv = [("k", n) for n in range(32)] + [("v", n) for n in range(32)]
qi = 0; ki = 0
while qi < 20:
    for _ in range(A.qk):
        if qi < 20: S.append(("q", qi)); qi += 1
    S.append(kv[ki]); ki += 1
oi = 0
while ki < 64:
    S.append(kv[ki]); ki += 1
    if ki >= A.wo_start and (ki - A.wo_start) % A.wo_every == 0 and oi < 20:
        S.append(("o", oi)); oi += 1
assert oi == 20
POS = {e: p for p, e in enumerate(S)}
free = list(range(NRING))
slot = {}
st = {"issued": 0, "maxpos": -1, "gate": len(S)}
def reg_of(e):
    if e[0] == "o": return WO + 4 * e[1]
    return RING + 4 * slot[e]
def issue(e):
    kind, n = e
    if kind in "qkv":
        if not free: return False
        slot[e] = free.pop(0)
    if kind == "q":
        so = "0"
        if n: a("s_mov_b32 s78, %d" % (n * 8192)); so = "s78"
        a("buffer_load_dwordx4 %s, v3, s[36:39], %s offen %s" % (t4(reg_of(e)), so, A.wmod))
    elif kind in "kv":
        sr = "s[28:31]" if kind == "k" else "s[32:35]"
        if A.pat == 0:
            so, im = soff(n * 1024)
        else:
            so, im = "0", 0
            if n: a("s_mov_b32 s78, %d" % (n * 8192)); so = "s78"
        a("buffer_load_dwordx4 %s, v2, %s, %s offen offset:%d %s" % (t4(reg_of(e)), sr, so, im, A.kvmod))
    elif kind == "o":
        so, im = soff(n * 256)
        a("buffer_load_dwordx4 %s, v4, s[40:43], %s offen offset:%d %s" % (t4(reg_of(e)), so, im, A.wmod))
    return True
def pump(upto):
    upto = min(upto, len(S) - 1, st["gate"] - 1)
    while st["issued"] <= upto:
        if not issue(S[st["issued"]]): break
        st["issued"] += 1
def ready(e):
    p = POS[e]
    st["maxpos"] = max(st["maxpos"], p)
    pump(st["maxpos"] + A.L)
    assert st["issued"] > p, (e, st)
    n = st["issued"] - 1 - p
    assert n <= 63
    a("s_waitcnt vmcnt(%d)" % n)
def done(e):
    free.append(slot.pop(e))

a("s_cmp_ge_u32 s2, 256")
a("s_cbranch_scc1 L_end")
a("s_load_dwordx16 s[4:19], s[0:1], 0")
a("s_load_dwordx4 s[20:23], s[0:1], 64")
a("s_load_dwordx2 s[24:25], s[0:1], 80")
if A.stamp:
    a("s_memrealtime s[90:91]")
a("v_and_b32 v1, 63, v0")
a("v_lshrrev_b32 v44, 6, v0")
a("v_lshrrev_b32 v45, 4, v1")
a("v_and_b32 v46, 15, v0")
a("v_readfirstlane_b32 s26, v44")
a("s_lshr_b32 s76, s2, 5")
a("s_and_b32 s77, s2, 31")
if A.pat == 0:
    a("v_lshlrev_b32 v2, 15, v44")
    a("v_lshl_add_u32 v2, v1, 4, v2")
else:
    a("v_lshlrev_b32 v2, 4, v0")
a("v_lshl_add_u32 v47, v44, 2, v45")
a("v_mul_u32_u24 v4, 5120, v47")
a("v_mul_u32_u24 v47, 20, v47")
a("v_lshlrev_b32 v3, 13, v47")
a("v_lshl_add_u32 v3, v46, 4, v3")
a("v_lshl_add_u32 v4, v46, 4, v4")
a("v_mul_u32_u24 v32, 20, v1")
a("v_add_lshl_u32 v33, v47, v46, 1")
a("v_and_b32 v34, 3, v0")
a("v_add_lshl_u32 v34, v47, v34, 1")
a("s_mul_i32 s84, s76, 1280")
a("s_lshl_b32 s85, s77, 8")
a("s_lshl_b32 s86, s2, 20")
a("s_add_u32 s86, s86, 786432")
a("s_mov_b32 s46, 10240\ns_mov_b32 s47, 0x20000")
a("s_sub_u32 s38, 5242880, s85\ns_mov_b32 s39, 0x20000")
a("s_mov_b32 s30, 262144\ns_mov_b32 s31, 0x20000")
for k in range(1, 8):
    a("s_movk_i32 s%d, %d" % (67 + k, 4096 * k))
a("s_waitcnt lgkmcnt(0)")
if A.stamp:
    a("s_mov_b32 s92, s90"); stamp_idx[0] = 1
a("s_mov_b32 s44, s4\ns_mov_b32 s45, s5")
a("s_add_u32 s36, s10, s85\ns_addc_u32 s37, s11, 0")
a("s_add_u32 s28, s6, s86\ns_addc_u32 s29, s7, 0")
a("s_cmp_ge_u32 s2, 8")
a("s_cbranch_scc1 L_noinit")
srd(48, 24, "66560")
a("s_lshl_b32 s87, s2, 12")
a("v_lshlrev_b32 v35, 3, v0")
a("v_mov_b32 v36, 0\nv_mov_b32 v37, 0\nv_mov_b32 v38, -1\nv_mov_b32 v39, -1")
a("buffer_store_dwordx2 v[36:37], v35, s[48:51], s87 offen sc0 sc1")
a("s_add_u32 s87, s87, %d" % WS_H1)
a("buffer_store_dwordx2 v[38:39], v35, s[48:51], s87 offen sc0 sc1")
a("s_lshl_b32 s87, s2, 7\ns_add_u32 s87, s87, 65536")
a("v_and_b32 v35, 0x78, v35")
a("buffer_store_dwordx2 v[36:37], v35, s[48:51], s87 offen sc0 sc1")
a("L_noinit:")
a("buffer_load_dwordx4 v[16:19], v32, s[44:47], s84 offen")
a("buffer_load_dword v20, v32, s[44:47], s84 offen offset:16")
a("buffer_load_ushort v22, v33, s[44:47], s84 offen")
a("buffer_load_ushort v23, v34, s[44:47], s84 offen offset:32")
st["gate"] = POS[("o", 0)]
pump(A.L)
n_first = st["issued"]
if A.codepf:
    a("s_getpc_b64 s[84:85]")
    a("L_pc:")
    a("s_sub_u32 s84, s84, L_pc-%s_kernel" % NAME)
    a("s_subb_u32 s85, s85, 0")
    a("v_lshlrev_b32 v35, 5, v0")
    a("global_load_dword v5, v35, s[84:85]")
a("s_add_u32 s32, s8, s86\ns_addc_u32 s33, s9, 0\ns_mov_b32 s34, 262144\ns_mov_b32 s35, 0x20000")
a("s_mul_i32 s85, s77, 163840")
a("s_add_u32 s40, s12, s85\ns_addc_u32 s41, s13, 0\ns_mov_b32 s42, 163840\ns_mov_b32 s43, 0x20000")
srd(48, 24, "66560")
srd(56, 20, "10240")
a("s_add_u32 s60, s24, %d\ns_addc_u32 s61, s25, 0\ns_mov_b32 s62, 27648\ns_mov_b32 s63, 0x20000" % WS_H1)
srd(64, 22, "256")
a("s_mov_b32 s80, 0xcccccccc\ns_mov_b32 s81, 0xcccccccc\ns_mov_b32 s82, 0xaaaaaaaa\ns_mov_b32 s83, 0xaaaaaaaa")
a("v_and_b32 v35, 1, v0")
a("v_lshlrev_b32 v35, 4, v35")
a("v_mov_b32 v38, 0xffff")
a("v_lshlrev_b32 v38, v35, v38")
a("v_lshrrev_b32 v37, 1, v46")
for r in range(4):
    a("v_cmp_eq_u32 vcc, %d, v37" % r)
    a("v_cndmask_b32 v%d, 0, v38, vcc" % (6 + r))
a("v_lshlrev_b32 v47, 9, v44")
a("v_lshl_add_u32 v47, v46, 5, v47")
a("v_lshl_add_u32 v47, v45, 4, v47")
st["gate"] = len(S)

a("s_waitcnt vmcnt(%d)" % (n_first + (1 if A.codepf else 0)))
for k in range(5):
    a("v_lshlrev_b32 v%d, 16, v%d" % (24 + 2 * k, 16 + k))
    a("v_and_b32 v%d, 0xffff0000, v%d" % (25 + 2 * k, 16 + k))
ln_stats(["v%d" % (24 + k) for k in range(10)], ["v34", "v35", "v37"], "v38", "v39")
for r in (22, 23):
    a("v_lshlrev_b32 v%d, 16, v%d" % (r, r))
    a("v_sub_f32 v%d, v%d, v38" % (r, r))
    a("v_cvt_pk_bf16_f32 v%d, v%d, v%d" % (r, r, r))
    a("v_lshlrev_b32 v%d, 16, v%d" % (r, r))
    a("v_mul_f32 v%d, v%d, v39" % (r, r))
    a("v_cvt_pk_bf16_f32 v%d, v%d, v%d" % (r, r, r))
for t in range(20):
    ab = 24 + 4 * (t & 1)
    selector(ab, "v22" if t < 16 else "v23", t & 15)
    e = ("q", t)
    ready(e)
    a("v_mfma_f32_16x16x32_bf16 v[40:43], %s, %s, %s" % (t4(ab), t4(reg_of(e)), "0" if t == 0 else "v[40:43]"))
    done(e)
a("s_mov_b32 exec_hi, 0")
a("ds_write_b128 v47, v[40:43] offset:%d" % L_PART)
a("s_mov_b64 exec, -1")
a("v_lshlrev_b32 v25, 3, v1")
a("s_waitcnt lgkmcnt(0)")
a("s_barrier")
a("s_cmp_ge_u32 s2, 8")
a("s_cbranch_scc1 L_nosig")
a("s_cmp_lg_u32 s26, 0")
a("s_cbranch_scc1 L_nosig")
a("v_mov_b32 v26, 0\nv_mov_b32 v27, 1")
a("s_mov_b64 exec, 1")
a("buffer_atomic_add v27, v26, s[64:67], 0 offen sc1")
a("s_mov_b64 exec, -1")
a("L_nosig:")
for w in range(8):
    a("ds_read_b64 v[%d:%d], v25 offset:%d" % (28 + 2 * w, 29 + 2 * w, L_PART + 512 * w))
a("s_waitcnt lgkmcnt(0)")
for w in range(1, 8):
    a("v_add_f32 v28, v28, v%d" % (28 + 2 * w))
    a("v_add_f32 v29, v29, v%d" % (29 + 2 * w))
a("v_cvt_pk_bf16_f32 v28, v28, v29")
a("v_lshlrev_b32 v25, 2, v0")
a("ds_write_b32 v25, v28 offset:%d" % L_QD)
a("v_lshlrev_b32 v25, 8, v44")
a("v_lshl_add_u32 v25, v46, 4, v25")
a("s_waitcnt lgkmcnt(0)")
a("ds_read_b128 v[10:13], v25 offset:%d" % L_QD)
a("s_waitcnt lgkmcnt(0)")
stamp()

def reduce_scatter(dst):
    for n in range(8):
        a("v_add_f32_dpp v%d, v%d, v%d row_mirror row_mask:0xf bank_mask:0x3" % (16 + n, 16 + n, 16 + n))
    for n in range(8):
        a("v_add_f32_dpp v%d, v%d, v%d row_mirror row_mask:0xf bank_mask:0xc" % (16 + n, 24 + n, 24 + n))
    for n in range(4):
        a("v_add_f32_dpp v%d, v%d, v%d row_half_mirror row_mask:0xf bank_mask:0x5" % (16 + n, 16 + n, 16 + n))
    for n in range(4):
        a("v_add_f32_dpp v%d, v%d, v%d row_half_mirror row_mask:0xf bank_mask:0xa" % (16 + n, 20 + n, 20 + n))
    for n in range(4):
        a("v_add_f32_dpp v%d, v%d, v%d quad_perm:[3,2,1,0] row_mask:0xf bank_mask:0xf" % (16 + n, 16 + n, 16 + n))
    a("v_cndmask_b32 v16, v16, v18, s[80:81]")
    a("v_cndmask_b32 v17, v17, v19, s[80:81]")
    a("v_add_f32_dpp v16, v16, v16 quad_perm:[1,0,3,2] row_mask:0xf bank_mask:0xf")
    a("v_add_f32_dpp v17, v17, v17 quad_perm:[1,0,3,2] row_mask:0xf bank_mask:0xf")
    a("v_cndmask_b32 %s, v16, v17, s[82:83]" % dst)

for n in range(32):
    e = ("k", n)
    ready(e)
    acc = 16 + (n & 15)
    for r in range(4):
        a("v_dot2_f32_bf16 v%d, v%d, v%d, %s" % (acc, reg_of(e) + r, 10 + r, "0" if r == 0 else "v%d" % acc))
    done(e)
    if n == 15: reduce_scatter("v14")
    if n == 31: reduce_scatter("v15")
a("s_load_dword s89, s[22:23], 0")
stamp()

a("v_cvt_pk_bf16_f32 v16, v14, v15")
a("v_lshlrev_b32 v14, 16, v16")
a("v_and_b32 v15, 0xffff0000, v16")
a("v_mul_f32 v14, 0x3db504f3, v14")
a("v_mul_f32 v15, 0x3db504f3, v15")
a("v_cvt_pk_bf16_f32 v16, v14, v15")
a("v_lshlrev_b32 v14, 16, v16")
a("v_and_b32 v15, 0xffff0000, v16")
a("v_max_f32 v16, v14, v15")
wave_reduce("v16", "v_max_f32", "s84")
a("v_subrev_f32 v16, s84, v14")
a("v_subrev_f32 v17, s84, v15")
a("v_mul_f32 v16, 0x3fb8aa3b, v16")
a("v_mul_f32 v17, 0x3fb8aa3b, v17")
a("v_exp_f32 v16, v16")
a("v_exp_f32 v17, v17")
a("v_add_f32 v16, v16, v17")
wave_reduce("v16", "v_add_f32", "s85")
a("v_mov_b32 v16, s84")
a("v_mov_b32 v17, s85")
a("v_lshlrev_b32 v18, 3, v44")
a("s_mov_b64 exec, 1")
a("ds_write_b64 v18, v[16:17] offset:%d" % L_ST)
a("s_mov_b64 exec, -1")
a("v_and_b32 v18, 7, v0")
a("v_lshlrev_b32 v18, 3, v18")
a("s_waitcnt lgkmcnt(0)")
a("s_barrier")
a("ds_read_b64 v[16:17], v18 offset:%d" % L_ST)
a("s_waitcnt lgkmcnt(0)")
a("v_mov_b32 v18, v16")
for m in ("quad_perm:[1,0,3,2]", "quad_perm:[2,3,0,1]", "row_half_mirror"):
    a("v_max_f32_dpp v18, v18, v18 %s row_mask:0xf bank_mask:0xf" % m)
a("v_sub_f32 v16, v16, v18")
a("v_mul_f32 v16, 0x3fb8aa3b, v16")
a("v_exp_f32 v16, v16")
a("v_mul_f32 v16, v16, v17")
for m in ("quad_perm:[1,0,3,2]", "quad_perm:[2,3,0,1]", "row_half_mirror"):
    a("v_add_f32_dpp v16, v16, v16 %s row_mask:0xf bank_mask:0xf" % m)
a("v_rcp_f32 v16, v16")
a("v_sub_f32 v14, v14, v18")
a("v_sub_f32 v15, v15, v18")
a("v_mul_f32 v14, 0x3fb8aa3b, v14")
a("v_mul_f32 v15, 0x3fb8aa3b, v15")
a("v_exp_f32 v14, v14")
a("v_exp_f32 v15, v15")
a("v_mul_f32 v14, v14, v16")
a("v_mul_f32 v15, v15, v16")
a("v_cvt_pk_bf16_f32 v14, v14, v14")
a("v_cvt_pk_bf16_f32 v15, v15, v15")
stamp()

def pv(n):
    ab = 32 + 4 * (n & 1)
    selector(ab, "v14" if n < 16 else "v15", n & 15)
    e = ("v", n)
    ready(e)
    a("v_mfma_f32_16x16x32_bf16 v[40:43], %s, %s, %s" % (t4(ab), t4(reg_of(e)), "0" if n == 0 else "v[40:43]"))
    done(e)

a("v_lshrrev_b32 v16, 2, v46")
a("v_lshlrev_b32 v16, 10, v16")
a("v_lshl_add_u32 v16, v44, 6, v16")
a("v_lshl_add_u32 v16, v45, 4, v16")
a("v_and_b32 v17, 3, v0")
a("v_lshl_add_u32 v16, v17, 2, v16")
a("v_mul_u32_u24 v18, 2560, v44")
a("v_lshl_add_u32 v18, v46, 5, v18")
a("v_lshl_add_u32 v18, v45, 4, v18")
a("v_bfe_u32 v19, v0, 2, 6")
a("v_mul_u32_u24 v19, 5, v19")
a("v_lshrrev_b32 v20, 8, v0")
a("v_mul_u32_u24 v20, 3, v20")
a("v_add3_u32 v19, v19, v20, v17")
a("v_lshlrev_b32 v19, 3, v19")
a("v_lshlrev_b32 v20, 2, v0")
a("v_mov_b32 v21, 0\nv_mov_b32 v22, 1")
a("s_and_b32 s77, s2, 7\ns_lshl_b32 s75, s77, 7\ns_add_u32 s75, s75, 65536")
a("s_mov_b32 s86, 0x88888888\ns_mov_b32 s87, 0x88888888")
if A.pf:
    a("s_lshr_b32 s84, s2, 3")
    a("s_cmp_ge_u32 s26, 4")
    a("s_cselect_b32 s52, s18, s16\ns_cselect_b32 s53, s19, s17")
    a("s_mov_b32 s54, 2211840\ns_mov_b32 s55, 0x20000")
    a("v_mov_b32 v12, 0x7fffff00")
    a("s_cbranch_scc1 L_pf2")
    a("s_and_b32 s85, s84, 7\ns_mul_i32 s85, s85, 80")
    a("v_lshrrev_b32 v23, 1, v0")
    a("v_add_u32 v23, s85, v23")
    a("v_mul_u32_u24 v23, 3456, v23")
    a("v_and_b32 v13, 1, v0")
    a("v_lshl_add_u32 v23, v13, 6, v23")
    a("s_and_b32 s85, s84, 0x18\ns_add_u32 s85, s85, s77")
    a("s_cmp_lt_u32 s85, 27")
    a("s_cselect_b32 s84, 160, 0")
    a("s_lshl_b32 s85, s85, 7")
    a("v_add_u32 v23, s85, v23")
    a("v_cmp_gt_u32 vcc, s84, v0")
    a("v_cndmask_b32 v23, v12, v23, vcc")
    a("s_branch L_pfdone")
    a("L_pf2:")
    a("s_mul_i32 s84, s84, 54")
    a("v_bfe_u32 v23, v0, 2, 6")
    a("v_add_u32 v23, s84, v23")
    a("v_mul_u32_u24 v23, 1280, v23")
    a("v_lshl_add_u32 v23, v17, 6, v23")
    a("s_mul_i32 s85, s77, 160\ns_and_b32 s85, s85, 0xff80")
    a("v_add_u32 v23, s85, v23")
    a("v_cmp_gt_u32 vcc, %d, v0" % (256 + 216))
    a("v_cndmask_b32 v23, v12, v23, vcc")
    a("L_pfdone:")

if A.LV: A.L = A.LV
for n in range(32):
    pv(n)
assert st["issued"] == len(S)
stamp()
if A.pf == 2:
    a("buffer_load_dword v24, v23, s[52:55], 0 offen %s" % A.pfmod)
a("s_mov_b32 exec_hi, 0")
a("ds_write_b128 v47, v[40:43] offset:%d" % L_PART)
a("s_mov_b64 exec, -1")
a("s_waitcnt lgkmcnt(0)")
a("s_barrier")
a("ds_read2st64_b32 v[10:11], v16 offset0:%d offset1:%d" % (L_PART // 256, L_PART // 256 + 2))
if A.pf == 1:
    a("buffer_load_dword v24, v23, s[52:55], 0 offen %s" % A.pfmod)
a("s_cmp_eq_u32 s89, 8")
a("s_cbranch_scc0 L_initslow")
a("L_initok:")
a("s_cmp_lg_u32 s26, 0")
a("s_cbranch_scc1 L_notk")
a("s_mov_b64 exec, 1")
a("buffer_atomic_add v22, v21, s[48:51], s75 offen sc0 sc1")
a("s_mov_b64 exec, -1")
a("L_notk:")
a("s_waitcnt lgkmcnt(0)")
a("v_add_f32 v10, v10, v11")
a("v_add_f32_dpp v10, v10, v10 row_ror:4 row_mask:0xf bank_mask:0xf")
a("v_add_f32_dpp v10, v10, v10 row_ror:8 row_mask:0xf bank_mask:0xf")
a("v_cvt_pk_bf16_f32 v10, v10, v10")
YA = 128
for r4 in range(4):
    ab = 32 + 4 * (r4 & 1)
    selector(ab, "v10", r4)
    for cb in range(5):
        acc = t4(YA + 4 * cb)
        a("v_mfma_f32_16x16x32_bf16 %s, %s, %s, %s" % (acc, t4(ab), t4(WO + 4 * (5 * r4 + cb)), "0" if r4 == 0 else acc))
a("s_mov_b32 exec_hi, 0")
for cb in range(5):
    a("ds_write_b128 v18, %s offset:%d" % (t4(YA + 4 * cb), L_YP + 512 * cb))
a("s_mov_b64 exec, -1")
a("s_lshl_b32 s84, s76, 12")
a("s_waitcnt lgkmcnt(0)")
a("s_barrier")
YS = 148
for w in range(8):
    a("ds_read_b64 v[%d:%d], v19 offset:%d" % (YS + 2 * w, YS + 2 * w + 1, L_YP + 2560 * w))
for s_ in (4, 2, 1):
    for w in range(s_):
        if s_ == 4: a("s_waitcnt lgkmcnt(%d)" % (3 - w))
        a("v_pk_add_f32 v[%d:%d], v[%d:%d], v[%d:%d]" % (YS + 2 * w, YS + 2 * w + 1, YS + 2 * w, YS + 2 * w + 1, YS + 2 * (w + s_), YS + 2 * (w + s_) + 1))
a("v_cndmask_b32 v10, v%d, 1.0, s[86:87]" % YS)
a("v_cndmask_b32 v11, v%d, 1.0, s[86:87]" % (YS + 1))
a("buffer_atomic_add_f32 v10, v20, s[48:51], s84 offen")
a("buffer_atomic_add_f32 v11, v20, s[48:51], s84 offen offset:2048")
stamp()
a("s_cmp_lg_u32 s26, 0")
a("s_cbranch_scc1 L_notk2")
a("s_waitcnt vmcnt(2)")
a("s_mov_b64 exec, 1")
a("ds_write_b32 v21, v22 offset:%d" % L_TK)
a("s_mov_b64 exec, -1")
a("s_waitcnt lgkmcnt(0)")
a("L_notk2:")
a("s_barrier")
a("ds_read_b32 v22, v21 offset:%d" % L_TK)
a("s_mul_i32 s3, s26, 10240")
a("s_add_u32 s3, s3, %d" % L_W)
a("s_mov_b32 s54, 2211840\ns_mov_b32 s55, 0x20000")
a("s_mov_b32 s85, 0x42000000")
a("s_mov_b32 s88, 0")
a("v_and_b32 v10, 7, v0")
a("s_waitcnt lgkmcnt(0)")
a("v_readfirstlane_b32 s79, v22")
a("s_mul_i32 s27, s77, 5\ns_add_u32 s27, s27, s79")
a("s_cmp_lt_u32 s79, 5")
a("s_cbranch_scc1 L_ffn2")
a("s_min_u32 s79, s79, 64")
a("s_lshl_b32 s27, s79, 3\ns_add_u32 s27, s27, s77")
a("s_cmp_ge_u32 s27, %d" % (FFN2_N + FFN1_N))
a("s_cbranch_scc1 L_fin")

def dma(n, vregs, step):
    for t in range(n):
        a("s_mov_b32 m0, s3")
        a("buffer_load_dwordx4 %s, s[52:55], s77 offen %s lds" % (vregs[t % len(vregs)], A.dmod))
        if t < n - 1:
            a("s_add_u32 s3, s3, 1024")
            a("s_add_u32 s77, s77, %d" % step)

AF = 48; BF = 128; XF = 208; GR = 220
a("s_sub_u32 s79, s27, %d" % FFN2_N)
a("s_mov_b32 s52, s16\ns_mov_b32 s53, s17")
a("s_lshl_b32 s77, s79, 7")
a("v_mul_u32_u24 v5, 80, v44")
a("v_lshrrev_b32 v11, 3, v1")
a("v_add_u32 v5, v5, v11")
a("v_mul_u32_u24 v5, 3456, v5")
a("v_and_b32 v11, 2, v11")
a("v_xor_b32 v11, v10, v11")
a("v_lshl_add_u32 v12, v11, 4, v5")
a("v_xor_b32 v11, 4, v11")
a("v_lshl_add_u32 v13, v11, 4, v5")
dma(10, ["v12", "v13"], 27648)
a("v_mul_u32_u24 v23, 20, v1")
a("v_mul_u32_u24 v21, 1280, v44")
a("v_add_u32 v21, v21, v23")
a("buffer_load_dwordx4 v[24:27], v21, s[44:47], 0 offen")
a("buffer_load_dword v28, v21, s[44:47], 0 offen offset:16")
a("v_lshlrev_b32 v22, 12, v44")
a("v_lshl_add_u32 v22, v1, 4, v22")
def poll1_issue():
    for m in range(4):
        a("buffer_load_dwordx4 %s, v22, s[48:51], 0 offen offset:%d %s" % (t4(GR + 4 * m), 1024 * m, A.pmod))
poll1_issue()
a("v_mul_u32_u24 v11, %d, v44" % HN_STRIDE)
a("v_add_u32 v23, v23, v11")
a("v_mul_u32_u24 v29, %d, v10" % HN_STRIDE)
a("v_lshl_add_u32 v29, v45, 4, v29")
a("v_lshlrev_b32 v30, 4, v10")
a("v_lshl_add_u32 v30, v44, 8, v30")
a("v_lshrrev_b32 v11, 1, v45")
a("v_lshl_add_u32 v30, v11, 7, v30")
a("v_and_b32 v11, 1, v45")
a("v_lshl_add_u32 v30, v11, 3, v30")
a("v_lshrrev_b32 v12, 2, v46")
a("v_lshl_add_u32 v12, v45, 3, v12")
a("v_lshlrev_b32 v12, 7, v12")
a("v_lshrrev_b32 v13, 3, v46")
a("v_lshl_add_u32 v13, v11, 1, v13")
a("v_and_b32 v11, 3, v44")
a("v_xor_b32 v11, v11, v13")
a("v_lshl_add_u32 v12, v11, 5, v12")
a("v_lshl_add_u32 v12, v17, 3, v12")
a("v_add_u32 v12, %d, v12" % L_W)
a("v_add_u32 v13, 40960, v12")
a("s_waitcnt vmcnt(4)")
a("s_barrier")
a("s_cmp_ge_u32 s26, 4")
a("s_cbranch_scc1 L_notr")
for ks in range(20):
    base, off = ("v12", ks * 4096) if ks < 10 else ("v13", (ks - 10) * 4096)
    a("ds_read_b64_tr_b16 v[%d:%d], %s offset:%d" % (AF + 4 * ks, AF + 4 * ks + 1, base, off))
    a("ds_read_b64_tr_b16 v[%d:%d], %s offset:%d" % (AF + 4 * ks + 2, AF + 4 * ks + 3, base, off + 512))
a("L_notr:")
for k in range(5):
    a("v_lshlrev_b32 v%d, 16, v%d" % (XF + 2 * k, 24 + k))
    a("v_and_b32 v%d, 0xffff0000, v%d" % (XF + 2 * k + 1, 24 + k))
a("s_branch L_poll1_chk")
a("L_poll1:")
poll1_issue()
a("L_poll1_chk:")
a("s_add_u32 s88, s88, 1")
a("s_waitcnt vmcnt(0)")
a("v_min_f32 v31, v%d, v%d" % (GR + 3, GR + 7))
a("v_min3_f32 v31, v31, v%d, v%d" % (GR + 11, GR + 15))
a("v_cmp_ne_u32 vcc, s85, v31")
a("s_cmp_gt_u32 s88, %d" % SPIN_MAX)
a("s_cbranch_scc1 L_poll1_done")
a("s_cbranch_vccnz L_poll1")
a("L_poll1_done:")
stamp()
pairs = [(GR + 0, GR + 8), (GR + 1, GR + 9), (GR + 2, GR + 10), (GR + 4, GR + 12), (GR + 5, GR + 13)]
for k in range(5):
    a("v_cvt_pk_bf16_f32 v%d, v%d, v%d" % (24 + k, pairs[k][0], pairs[k][1]))
for k in range(5):
    a("v_lshlrev_b32 v%d, 16, v%d" % (GR + 2 * k, 24 + k))
    a("v_and_b32 v%d, 0xffff0000, v%d" % (GR + 2 * k + 1, 24 + k))
for k in range(10):
    a("v_add_f32 v%d, v%d, v%d" % (GR + k, GR + k, XF + k))
for k in range(5):
    a("v_cvt_pk_bf16_f32 v%d, v%d, v%d" % (24 + k, GR + 2 * k, GR + 2 * k + 1))
for k in range(5):
    a("v_lshlrev_b32 v%d, 16, v%d" % (XF + 2 * k, 24 + k))
    a("v_and_b32 v%d, 0xffff0000, v%d" % (XF + 2 * k + 1, 24 + k))
ln_stats(["v%d" % (XF + k) for k in range(10)], ["v31", "v32", "v33"], "v38", "v39")
for k in range(10):
    a("v_sub_f32 v%d, v%d, v38" % (XF + k, XF + k))
for k in range(5):
    a("v_cvt_pk_bf16_f32 v%d, v%d, v%d" % (24 + k, XF + 2 * k, XF + 2 * k + 1))
for k in range(5):
    a("v_lshlrev_b32 v%d, 16, v%d" % (XF + 2 * k, 24 + k))
    a("v_and_b32 v%d, 0xffff0000, v%d" % (XF + 2 * k + 1, 24 + k))
for k in range(10):
    a("v_mul_f32 v%d, v%d, v39" % (XF + k, XF + k))
for k in range(5):
    a("v_cvt_pk_bf16_f32 v%d, v%d, v%d" % (24 + k, XF + 2 * k, XF + 2 * k + 1))
    a("ds_write_b32 v23, v%d offset:%d" % (24 + k, L_HN + 4 * k))
a("s_waitcnt lgkmcnt(0)")
a("s_barrier")
if A.stamp:
    a("s_memrealtime s[90:91]\ns_waitcnt lgkmcnt(0)\ns_mov_b32 s100, s90")
a("s_cmp_ge_u32 s26, 4")
a("s_cbranch_scc1 L_fin")
for ks in range(20):
    a("ds_read_b128 %s, v29 offset:%d" % (t4(BF + 4 * ks), L_HN + 64 * ks))
for ks in range(20):
    a("s_waitcnt lgkmcnt(%d)" % min(15, 19 - ks))
    a("v_mfma_f32_16x16x32_bf16 v[40:43], %s, %s, %s" % (t4(AF + 4 * ks), t4(BF + 4 * ks), "0" if ks == 0 else "v[40:43]"))
a("s_lshl_b32 s84, s79, 10")
a("s_mov_b32 exec_lo, 0x00ff00ff\ns_mov_b32 exec_hi, 0x00ff00ff")
for r in range(4):
    a("v_max_f32 v%d, 0, v%d" % (40 + r, 40 + r))
a("v_cvt_pk_bf16_f32 v40, v40, v41")
a("v_cvt_pk_bf16_f32 v41, v42, v43")
a("buffer_store_dwordx2 v[40:41], v30, s[60:63], s84 offen %s" % A.pmod)
a("s_mov_b64 exec, -1")
stamp()
a("s_branch L_fin")

if A.stamp: stamp_idx[0] = 6
a("L_ffn2:")
a("s_mov_b32 s52, s18\ns_mov_b32 s53, s19")
a("s_lshl_b32 s77, s27, 5")
a("s_mov_b32 s79, s77")
a("v_lshrrev_b32 v5, 1, v0")
a("v_mul_u32_u24 v5, 1280, v5")
a("v_and_b32 v11, 1, v0")
a("v_lshl_add_u32 v5, v11, 4, v5")
dma(7, ["v5"], 327680)
a("v_mul_u32_u24 v21, 1280, v10")
a("v_lshl_add_u32 v21, v45, 3, v21")
a("buffer_load_dwordx2 v[24:25], v21, s[44:47], s79 offen")
a("v_mul_u32_u24 v12, 10240, v44")
a("v_lshl_add_u32 v12, v45, 8, v12")
a("v_lshl_add_u32 v12, v46, 3, v12")
a("v_add_u32 v12, %d, v12" % L_W)
a("v_lshlrev_b32 v22, 9, v44")
a("v_lshl_add_u32 v22, v45, 7, v22")
a("v_lshl_add_u32 v22, v10, 4, v22")
a("v_lshlrev_b32 v16, 4, v0")
a("v_lshlrev_b32 v17, 4, v1")
a("s_cmp_lg_u32 s26, 0")
a("s_cbranch_scc1 L_ffn2_noh")
a("s_lshl_b32 s84, s27, 4")
a("v_lshlrev_b32 v11, 2, v45")
a("v_add_u32 v11, s84, v11")
for r in range(4):
    a("v_add_u32 v13, %d, v11" % r)
    a("v_mul_u32_u24 v29, 205, v13")
    a("v_lshrrev_b32 v29, 11, v29")
    a("v_mul_u32_u24 v30, 10, v29")
    a("v_sub_u32 v13, v13, v30")
    a("v_and_b32 v30, 1, v13")
    a("v_lshrrev_b32 v13, 1, v13")
    a("v_mul_u32_u24 v31, 11, v13")
    a("v_lshrrev_b32 v31, 5, v31")
    a("v_lshl_add_u32 v30, v30, 1, v31")
    a("v_mul_u32_u24 v31, 3, v31")
    a("v_sub_u32 v%d, v13, v31" % (XF + 4 + r))
    a("v_lshl_add_u32 v29, v30, 6, v29")
    a("v_lshlrev_b32 v29, 4, v29")
    a("v_lshl_add_u32 v%d, v10, 12, v29" % (XF + r))
a("L_poll2h:")
for r in range(4):
    a("buffer_load_dwordx4 %s, v%d, s[48:51], 0 offen %s" % (t4(GR + 4 * r), XF + r, A.pmod))
a("s_add_u32 s88, s88, 1")
a("s_waitcnt vmcnt(0)")
a("v_min_f32 v31, v%d, v%d" % (GR + 3, GR + 7))
a("v_min3_f32 v31, v31, v%d, v%d" % (GR + 11, GR + 15))
a("v_cmp_ne_u32 vcc, s85, v31")
a("s_cmp_gt_u32 s88, %d" % SPIN_MAX)
a("s_cbranch_scc1 L_poll2h_done")
a("s_cbranch_vccnz L_poll2h")
a("L_poll2h_done:")
for r in range(4):
    a("v_cmp_eq_u32 vcc, 1, v%d" % (XF + 4 + r))
    a("v_cndmask_b32 v%d, v%d, v%d, vcc" % (GR + 4 * r, GR + 4 * r, GR + 4 * r + 1))
    a("v_cmp_eq_u32 vcc, 2, v%d" % (XF + 4 + r))
    a("v_cndmask_b32 v%d, v%d, v%d, vcc" % (GR + 4 * r, GR + 4 * r, GR + 4 * r + 2))
for k in range(2):
    a("v_cvt_pk_bf16_f32 v31, v%d, v%d" % (GR + 8 * k, GR + 8 * k + 4))
    a("v_lshlrev_b32 v32, 16, v31")
    a("v_and_b32 v33, 0xffff0000, v31")
    a("v_lshlrev_b32 v34, 16, v%d" % (24 + k))
    a("v_and_b32 v35, 0xffff0000, v%d" % (24 + k))
    a("v_add_f32 v32, v32, v34")
    a("v_add_f32 v33, v33, v35")
    a("v_cvt_pk_bf16_f32 v31, v32, v33")
    a("v_lshlrev_b32 v%d, 16, v31" % (XF + 2 * k))
    a("v_and_b32 v%d, 0xffff0000, v31" % (XF + 1 + 2 * k))
a("L_ffn2_noh:")
a("s_waitcnt vmcnt(0)")
for t in range(7):
    a("ds_read_b64_tr_b16 v[%d:%d], v12 offset:%d" % (AF + 4 * t, AF + 4 * t + 1, 1024 * t))
    a("ds_read_b64_tr_b16 v[%d:%d], v12 offset:%d" % (AF + 4 * t + 2, AF + 4 * t + 3, 1024 * t + 128))
stamp()
a("s_mov_b32 s88, 0")
a("L_poll2:")
for t in range(7):
    a("buffer_load_dwordx4 %s, v22, s[60:63], %s offen %s" % (t4(BF + 4 * t), soff(4096 * t)[0], A.pmod))
a("s_add_u32 s88, s88, 1")
a("s_waitcnt vmcnt(0) lgkmcnt(0)")
a("v_max_u32 v31, v%d, v%d" % (BF, BF + 1))
a("v_max_u32 v32, v%d, v%d" % (BF + 2, BF + 3))
for k in range(4, 28, 4):
    a("v_max3_u32 v31, v31, v%d, v%d" % (BF + k, BF + k + 1))
    a("v_max3_u32 v32, v32, v%d, v%d" % (BF + k + 2, BF + k + 3))
a("v_max_u32 v31, v31, v32")
a("v_cmp_eq_u32 vcc, -1, v31")
a("s_cmp_gt_u32 s88, %d" % SPIN_MAX)
a("s_cbranch_scc1 L_poll2_done")
a("s_cbranch_vccnz L_poll2")
a("L_poll2_done:")
stamp()
for t in range(7):
    a("v_mfma_f32_16x16x32_bf16 v[40:43], %s, %s, %s" % (t4(AF + 4 * t), t4(BF + 4 * t), "0" if t == 0 else "v[40:43]"))
a("ds_write_b128 v16, v[40:43] offset:%d" % L_FP)
a("s_waitcnt lgkmcnt(0)")
a("s_barrier")
a("s_cmp_lg_u32 s26, 0")
a("s_cbranch_scc1 L_fin")
for w in range(8):
    a("ds_read_b128 %s, v17 offset:%d" % (t4(AF + 4 * w), L_FP + 1024 * w))
a("s_waitcnt lgkmcnt(0)")
for s_ in (4, 2, 1):
    for w in range(s_):
        for r in range(0, 4, 2):
            a("v_pk_add_f32 v[%d:%d], v[%d:%d], v[%d:%d]" % (AF + 4 * w + r, AF + 4 * w + r + 1, AF + 4 * w + r, AF + 4 * w + r + 1, AF + 4 * (w + s_) + r, AF + 4 * (w + s_) + r + 1))
a("s_mov_b32 exec_lo, 0x00ff00ff\ns_mov_b32 exec_hi, 0x00ff00ff")
for k in range(2):
    a("v_cvt_pk_bf16_f32 v31, v%d, v%d" % (AF + 2 * k, AF + 2 * k + 1))
    a("v_lshlrev_b32 v32, 16, v31")
    a("v_and_b32 v33, 0xffff0000, v31")
    a("v_add_f32 v32, v32, v%d" % (XF + 2 * k))
    a("v_add_f32 v33, v33, v%d" % (XF + 1 + 2 * k))
    a("v_cvt_pk_bf16_f32 v%d, v32, v33" % (40 + k))
a("buffer_store_dwordx2 v[40:41], v21, s[56:59], s79 offen")
a("s_mov_b64 exec, -1")
a("L_fin:")
if A.stamp:
    a("s_waitcnt vmcnt(0)")
    a("s_memrealtime s[90:91]\ns_waitcnt lgkmcnt(0)\ns_mov_b32 s101, s90")
    a("s_add_u32 s48, s24, %d\ns_addc_u32 s49, s25, 0\ns_mov_b32 s50, 131072" % WS_STAMP)
    a("s_lshl_b32 s84, s2, 3\ns_add_u32 s84, s84, s26\ns_lshl_b32 s84, s84, 6")
    a("s_getreg_b32 s85, hwreg(HW_REG_XCC_ID)")
    a("v_mov_b32 v1, 0")
    a("s_mov_b64 exec, 1")
    for k in range(10):
        a("v_mov_b32 v2, s%d" % (92 + k))
        a("buffer_store_dword v2, v1, s[48:51], s84 offen offset:%d" % (4 * k))
    a("v_mov_b32 v2, s85")
    a("buffer_store_dword v2, v1, s[48:51], s84 offen offset:40")
    a("v_mov_b32 v2, s88")
    a("buffer_store_dword v2, v1, s[48:51], s84 offen offset:44")
    a("v_mov_b32 v2, s27")
    a("buffer_store_dword v2, v1, s[48:51], s84 offen offset:48")
    if A.dbgstamp:
        a("s_cmp_ge_u32 s27, 40\ns_cbranch_scc1 L_end\ns_cmp_lg_u32 s26, 0\ns_cbranch_scc1 L_end")
        a("s_not_b32 s86, s92")
        a("v_mov_b32 v2, s86")
        a("buffer_atomic_umax v2, v1, s[64:67], 0 offen offset:4 sc1")
        for k in (4, 5, 6, 7, 9):
            a("v_mov_b32 v2, s%d" % (92 + k))
            a("buffer_atomic_umax v2, v1, s[64:67], 0 offen offset:%d sc1" % (8 + 4 * k))
a("L_end:")
a("s_endpgm")
a("L_initslow:")
a("s_mov_b32 s88, 0")
a("L_initpoll:")
a("buffer_load_dword v12, v21, s[64:67], 0 offen sc0 sc1")
a("s_waitcnt vmcnt(0)")
a("v_readfirstlane_b32 s89, v12")
a("s_add_u32 s88, s88, 1")
a("s_cmp_gt_u32 s88, %d" % SPIN_MAX)
a("s_cbranch_scc1 L_initok")
a("s_cmp_eq_u32 s89, 8")
a("s_cbranch_scc0 L_initpoll")
a("s_branch L_initok")

body = a.render()
txt = HEADER + "; @launch grid=(256,1,1) block=(512,1,1) lds=%d\n" % LDS_BYTES
txt += """.amdgcn_target "amdgcn-amd-amdhsa--gfx950"
.text
.globl {n}_kernel
.p2align 8
.type {n}_kernel,@function
{n}_kernel:
{body}.section .rodata,"a"
.p2align 6
.amdhsa_kernel {n}_kernel
  .amdhsa_next_free_vgpr 256
  .amdhsa_next_free_sgpr 102
  .amdhsa_accum_offset 256
  .amdhsa_group_segment_fixed_size 0
  .amdhsa_kernarg_size 88
  .amdhsa_user_sgpr_count 2
  .amdhsa_user_sgpr_kernarg_segment_ptr 1
  .amdhsa_system_sgpr_workgroup_id_x 1
  .amdhsa_float_denorm_mode_32 3
.end_amdhsa_kernel
""".format(n=NAME, body=body)
open(A.o, "w").write(txt)
print("wrote", A.o, len(txt), "bytes,", body.count("\\n"), "lines")
```

```python
import sys, argparse
sys.path.insert(0, "work")
from asmlib import Asm

NAME = "sequential_preLN__sliding_block_cached__dense_activation_relu__decode"
HEADER = open("cdna_kernels/%s.s.ref" % NAME).read().split("; Override launch geometry")[0]

ap = argparse.ArgumentParser()
ap.add_argument("-o", default="cdna_kernels/%s.s" % NAME)
ap.add_argument("--stamp", action="store_true")
ap.add_argument("--dbgstamp", action="store_true")
ap.add_argument("--kvmod", default="nt")
ap.add_argument("--wmod", default="nt")
ap.add_argument("--dmod", default="nt")
ap.add_argument("--pmod", default="sc0 sc1")
ap.add_argument("--L", type=int, default=12)
ap.add_argument("--pat", type=int, default=1)
ap.add_argument("--qk", type=int, default=2)
ap.add_argument("--wo_start", type=int, default=12)
ap.add_argument("--wo_every", type=int, default=2)
ap.add_argument("--codepf", action="store_true")
ap.add_argument("--diagnum", action="store_true")
ap.add_argument("--LV", type=int, default=0)
ap.add_argument("--dma", default="stream")
ap.add_argument("--pf", type=int, default=0)
ap.add_argument("--pfmod", default="")
A = ap.parse_args()

L_PART = 0
L_QD = 4096
L_ST = 6144
L_YP = 6400
L_HN = 27136
HN_STRIDE = 1312
L_FP = 37888
L_W = 46080
LDS_BYTES = L_W + 81920
WS_H1 = 32768
WS_STAMP = 1 << 20
FFN1_N, FFN2_N = 27, 40
L_TK = 6208
SPIN_MAX = 400000

RING = 48; NRING = 32
WO = 176
def t4(r): return "v[%d:%d]" % (r, r + 3)
def soff(byte):
    hi, lo = byte // 4096, byte % 4096
    return ("0" if hi == 0 else "s%d" % (67 + hi)), lo

a = Asm()
stamp_idx = [0]
def stamp():
    if not A.stamp: return
    a("s_memrealtime s[90:91]\ns_waitcnt lgkmcnt(0)\ns_mov_b32 s%d, s90" % (92 + stamp_idx[0]))
    stamp_idx[0] += 1
    assert stamp_idx[0] <= 9

def wave_reduce(v, op, sdst):
    for m in ("quad_perm:[1,0,3,2] row_mask:0xf", "quad_perm:[2,3,0,1] row_mask:0xf", "row_half_mirror row_mask:0xf",
              "row_mirror row_mask:0xf", "row_bcast:15 row_mask:0xa", "row_bcast:31 row_mask:0xc"):
        a("%s_dpp %s, %s, %s %s bank_mask:0xf" % (op, v, v, v, m))
    a("v_readlane_b32 %s, %s, 63" % (sdst, v))

def ln_stats(vals, tmp, vmean_bf, vrinv):
    t0, t1, t2 = tmp
    a("v_add_f32 %s, %s, %s" % (t0, vals[0], vals[1]))
    a("v_add_f32 %s, %s, %s" % (t1, vals[2], vals[3]))
    for k in range(4, 10, 2):
        a("v_add_f32 %s, %s, %s" % (t0, t0, vals[k]))
        a("v_add_f32 %s, %s, %s" % (t1, t1, vals[k + 1]))
    a("v_add_f32 %s, %s, %s" % (t0, t0, t1))
    wave_reduce(t0, "v_add_f32", "s84")
    a("v_mov_b32 %s, 0x3acccccd" % t2)
    a("v_mul_f32 %s, s84, %s" % (vmean_bf, t2))
    a("v_sub_f32 %s, %s, %s" % (t1, vals[0], vmean_bf))
    a("v_mul_f32 %s, %s, %s" % (t0, t1, t1))
    for k in range(1, 10):
        a("v_sub_f32 %s, %s, %s" % (t1, vals[k], vmean_bf))
        a("v_fmac_f32 %s, %s, %s" % (t0, t1, t1))
    wave_reduce(t0, "v_add_f32", "s84")
    a("v_mul_f32 %s, s84, %s" % (t0, t2))
    a("v_cvt_pk_bf16_f32 %s, %s, %s" % (t0, t0, vmean_bf))
    a("v_and_b32 %s, 0xffff0000, %s" % (vmean_bf, t0))
    a("v_lshlrev_b32 %s, 16, %s" % (t0, t0))
    a("v_add_f32 %s, 0x3727c5ac, %s" % (t0, t0))
    a("v_cvt_pk_bf16_f32 %s, %s, %s" % (t0, t0, t0))
    a("v_lshlrev_b32 %s, 16, %s" % (t0, t0))
    a("v_sqrt_f32 %s, %s" % (t0, t0))
    a("v_cvt_pk_bf16_f32 %s, %s, %s" % (t0, t0, t0))
    a("v_lshlrev_b32 %s, 16, %s" % (t0, t0))
    a("v_rcp_f32 %s, %s" % (vrinv, t0))

def selector(abuf, src, lane):
    for r in range(4):
        a("v_and_b32_dpp v%d, %s, v%d row_newbcast:%d row_mask:0xf bank_mask:0xf" % (abuf + r, src, 6 + r, lane))

def srd(d, plo, nbytes):
    a("s_mov_b32 s%d, s%d\ns_mov_b32 s%d, s%d\ns_mov_b32 s%d, %s\ns_mov_b32 s%d, 0x20000" % (d, plo, d + 1, plo + 1, d + 2, nbytes, d + 3))

S = []
kv = [("k", n) for n in range(32)] + [("v", n) for n in range(32)]
qi = 0; ki = 0
while qi < 20:
    for _ in range(A.qk):
        if qi < 20: S.append(("q", qi)); qi += 1
    S.append(kv[ki]); ki += 1
oi = 0
while ki < 64:
    S.append(kv[ki]); ki += 1
    if ki >= A.wo_start and (ki - A.wo_start) % A.wo_every == 0 and oi < 20:
        S.append(("o", oi)); oi += 1
assert oi == 20
POS = {e: p for p, e in enumerate(S)}
free = list(range(NRING))
slot = {}
st = {"issued": 0, "maxpos": -1, "gate": len(S)}
def reg_of(e):
    if e[0] == "o": return WO + 4 * e[1]
    return RING + 4 * slot[e]
def issue(e):
    kind, n = e
    if kind in "qkv":
        if not free: return False
        slot[e] = free.pop(0)
    if kind == "q":
        so = "0"
        if n: a("s_mov_b32 s78, %d" % (n * 8192)); so = "s78"
        a("buffer_load_dwordx4 %s, v3, s[36:39], %s offen %s" % (t4(reg_of(e)), so, A.wmod))
    elif kind in "kv":
        sr = "s[28:31]" if kind == "k" else "s[32:35]"
        if A.pat == 0:
            so, im = soff(n * 1024)
        else:
            so, im = "0", 0
            if n: a("s_mov_b32 s78, %d" % (n * 8192)); so = "s78"
        a("buffer_load_dwordx4 %s, v2, %s, %s offen offset:%d %s" % (t4(reg_of(e)), sr, so, im, A.kvmod))
    elif kind == "o":
        so, im = soff(n * 256)
        a("buffer_load_dwordx4 %s, v4, s[40:43], %s offen offset:%d %s" % (t4(reg_of(e)), so, im, A.wmod))
    return True
def pump(upto):
    upto = min(upto, len(S) - 1, st["gate"] - 1)
    while st["issued"] <= upto:
        if not issue(S[st["issued"]]): break
        st["issued"] += 1
def ready(e):
    p = POS[e]
    st["maxpos"] = max(st["maxpos"], p)
    pump(st["maxpos"] + A.L)
    assert st["issued"] > p, (e, st)
    n = st["issued"] - 1 - p
    assert n <= 63
    a("s_waitcnt vmcnt(%d)" % n)
def done(e):
    free.append(slot.pop(e))

a("s_cmp_ge_u32 s2, 256")
a("s_cbranch_scc1 L_end")
a("s_load_dwordx16 s[4:19], s[0:1], 0")
a("s_load_dwordx4 s[20:23], s[0:1], 64")
a("s_load_dwordx2 s[24:25], s[0:1], 80")
if A.stamp:
    a("s_memrealtime s[90:91]")
a("v_and_b32 v1, 63, v0")
a("v_lshrrev_b32 v44, 6, v0")
a("v_lshrrev_b32 v45, 4, v1")
a("v_and_b32 v46, 15, v0")
a("v_readfirstlane_b32 s26, v44")
a("s_lshr_b32 s76, s2, 5")
a("s_and_b32 s77, s2, 31")
if A.pat == 0:
    a("v_lshlrev_b32 v2, 15, v44")
    a("v_lshl_add_u32 v2, v1, 4, v2")
else:
    a("v_lshlrev_b32 v2, 4, v0")
a("v_lshl_add_u32 v47, v44, 2, v45")
a("v_mul_u32_u24 v4, 5120, v47")
a("v_mul_u32_u24 v47, 20, v47")
a("v_lshlrev_b32 v3, 13, v47")
a("v_lshl_add_u32 v3, v46, 4, v3")
a("v_lshl_add_u32 v4, v46, 4, v4")
a("v_mul_u32_u24 v32, 20, v1")
a("v_add_lshl_u32 v33, v47, v46, 1")
a("v_and_b32 v34, 3, v0")
a("v_add_lshl_u32 v34, v47, v34, 1")
a("s_mul_i32 s84, s76, 1280")
a("s_lshl_b32 s85, s77, 8")
a("s_lshl_b32 s86, s2, 20")
a("s_add_u32 s86, s86, 786432")
a("s_mov_b32 s46, 10240\ns_mov_b32 s47, 0x20000")
a("s_sub_u32 s38, 5242880, s85\ns_mov_b32 s39, 0x20000")
a("s_mov_b32 s30, 262144\ns_mov_b32 s31, 0x20000")
for k in range(1, 8):
    a("s_movk_i32 s%d, %d" % (67 + k, 4096 * k))
a("s_waitcnt lgkmcnt(0)")
if A.stamp:
    a("s_mov_b32 s92, s90"); stamp_idx[0] = 1
a("s_mov_b32 s44, s4\ns_mov_b32 s45, s5")
a("s_add_u32 s36, s10, s85\ns_addc_u32 s37, s11, 0")
a("s_add_u32 s28, s6, s86\ns_addc_u32 s29, s7, 0")
a("s_cmp_ge_u32 s2, 8")
a("s_cbranch_scc1 L_noinit")
srd(48, 24, "66560")
a("s_lshl_b32 s87, s2, 12")
a("v_lshlrev_b32 v35, 3, v0")
a("v_mov_b32 v36, 0\nv_mov_b32 v37, 0\nv_mov_b32 v38, -1\nv_mov_b32 v39, -1")
a("buffer_store_dwordx2 v[36:37], v35, s[48:51], s87 offen sc0 sc1")
a("s_add_u32 s87, s87, %d" % WS_H1)
a("buffer_store_dwordx2 v[38:39], v35, s[48:51], s87 offen sc0 sc1")
a("s_lshl_b32 s87, s2, 7\ns_add_u32 s87, s87, 65536")
a("v_and_b32 v35, 0x78, v35")
a("buffer_store_dwordx2 v[36:37], v35, s[48:51], s87 offen sc0 sc1")
a("L_noinit:")
a("buffer_load_dwordx4 v[16:19], v32, s[44:47], s84 offen")
a("buffer_load_dword v20, v32, s[44:47], s84 offen offset:16")
a("buffer_load_ushort v22, v33, s[44:47], s84 offen")
a("buffer_load_ushort v23, v34, s[44:47], s84 offen offset:32")
st["gate"] = POS[("o", 0)]
pump(A.L)
n_first = st["issued"]
if A.codepf:
    a("s_getpc_b64 s[84:85]")
    a("L_pc:")
    a("s_sub_u32 s84, s84, L_pc-%s_kernel" % NAME)
    a("s_subb_u32 s85, s85, 0")
    a("v_lshlrev_b32 v35, 5, v0")
    a("global_load_dword v5, v35, s[84:85]")
a("s_add_u32 s32, s8, s86\ns_addc_u32 s33, s9, 0\ns_mov_b32 s34, 262144\ns_mov_b32 s35, 0x20000")
a("s_mul_i32 s85, s77, 163840")
a("s_add_u32 s40, s12, s85\ns_addc_u32 s41, s13, 0\ns_mov_b32 s42, 163840\ns_mov_b32 s43, 0x20000")
srd(48, 24, "66560")
srd(56, 20, "10240")
a("s_add_u32 s60, s24, %d\ns_addc_u32 s61, s25, 0\ns_mov_b32 s62, 27648\ns_mov_b32 s63, 0x20000" % WS_H1)
srd(64, 22, "256")
a("s_mov_b32 s80, 0xcccccccc\ns_mov_b32 s81, 0xcccccccc\ns_mov_b32 s82, 0xaaaaaaaa\ns_mov_b32 s83, 0xaaaaaaaa")
a("v_and_b32 v35, 1, v0")
a("v_lshlrev_b32 v35, 4, v35")
a("v_mov_b32 v38, 0xffff")
a("v_lshlrev_b32 v38, v35, v38")
a("v_lshrrev_b32 v37, 1, v46")
for r in range(4):
    a("v_cmp_eq_u32 vcc, %d, v37" % r)
    a("v_cndmask_b32 v%d, 0, v38, vcc" % (6 + r))
a("v_lshlrev_b32 v47, 9, v44")
a("v_lshl_add_u32 v47, v46, 5, v47")
a("v_lshl_add_u32 v47, v45, 4, v47")
st["gate"] = len(S)

a("s_waitcnt vmcnt(%d)" % (n_first + (1 if A.codepf else 0)))
for k in range(5):
    a("v_lshlrev_b32 v%d, 16, v%d" % (24 + 2 * k, 16 + k))
    a("v_and_b32 v%d, 0xffff0000, v%d" % (25 + 2 * k, 16 + k))
ln_stats(["v%d" % (24 + k) for k in range(10)], ["v34", "v35", "v37"], "v38", "v39")
for r in (22, 23):
    a("v_lshlrev_b32 v%d, 16, v%d" % (r, r))
    a("v_sub_f32 v%d, v%d, v38" % (r, r))
    a("v_cvt_pk_bf16_f32 v%d, v%d, v%d" % (r, r, r))
    a("v_lshlrev_b32 v%d, 16, v%d" % (r, r))
    a("v_mul_f32 v%d, v%d, v39" % (r, r))
    a("v_cvt_pk_bf16_f32 v%d, v%d, v%d" % (r, r, r))
for t in range(20):
    ab = 24 + 4 * (t & 1)
    selector(ab, "v22" if t < 16 else "v23", t & 15)
    e = ("q", t)
    ready(e)
    a("v_mfma_f32_16x16x32_bf16 v[40:43], %s, %s, %s" % (t4(ab), t4(reg_of(e)), "0" if t == 0 else "v[40:43]"))
    done(e)
a("s_mov_b32 exec_hi, 0")
a("ds_write_b128 v47, v[40:43] offset:%d" % L_PART)
a("s_mov_b64 exec, -1")
a("v_lshlrev_b32 v25, 3, v1")
a("s_waitcnt lgkmcnt(0)")
a("s_barrier")
a("s_cmp_ge_u32 s2, 8")
a("s_cbranch_scc1 L_nosig")
a("s_cmp_lg_u32 s26, 0")
a("s_cbranch_scc1 L_nosig")
a("v_mov_b32 v26, 0\nv_mov_b32 v27, 1")
a("s_mov_b64 exec, 1")
a("buffer_atomic_add v27, v26, s[64:67], 0 offen sc1")
a("s_mov_b64 exec, -1")
a("L_nosig:")
if A.diagnum:
    a("s_cmp_lg_u32 s26, 0\ns_cbranch_scc1 L_nodiag")
    a("s_getreg_b32 s84, hwreg(HW_REG_XCC_ID)\ns_sub_u32 s84, s84, s2\ns_and_b32 s84, s84, 7\ns_lshl_b32 s84, 1, s84")
    a("v_mov_b32 v26, 0\nv_mov_b32 v27, s84\ns_mov_b64 exec, 1")
    a("buffer_atomic_or v27, v26, s[64:67], 0 offen offset:32 sc1\ns_mov_b64 exec, -1")
    a("L_nodiag:")
for w in range(8):
    a("ds_read_b64 v[%d:%d], v25 offset:%d" % (28 + 2 * w, 29 + 2 * w, L_PART + 512 * w))
a("s_waitcnt lgkmcnt(0)")
for w in range(1, 8):
    a("v_add_f32 v28, v28, v%d" % (28 + 2 * w))
    a("v_add_f32 v29, v29, v%d" % (29 + 2 * w))
a("v_cvt_pk_bf16_f32 v28, v28, v29")
a("v_lshlrev_b32 v25, 2, v0")
a("ds_write_b32 v25, v28 offset:%d" % L_QD)
a("v_lshlrev_b32 v25, 8, v44")
a("v_lshl_add_u32 v25, v46, 4, v25")
a("s_waitcnt lgkmcnt(0)")
a("ds_read_b128 v[10:13], v25 offset:%d" % L_QD)
a("s_waitcnt lgkmcnt(0)")
stamp()

def reduce_scatter(dst):
    for n in range(8):
        a("v_add_f32_dpp v%d, v%d, v%d row_mirror row_mask:0xf bank_mask:0x3" % (16 + n, 16 + n, 16 + n))
    for n in range(8):
        a("v_add_f32_dpp v%d, v%d, v%d row_mirror row_mask:0xf bank_mask:0xc" % (16 + n, 24 + n, 24 + n))
    for n in range(4):
        a("v_add_f32_dpp v%d, v%d, v%d row_half_mirror row_mask:0xf bank_mask:0x5" % (16 + n, 16 + n, 16 + n))
    for n in range(4):
        a("v_add_f32_dpp v%d, v%d, v%d row_half_mirror row_mask:0xf bank_mask:0xa" % (16 + n, 20 + n, 20 + n))
    for n in range(4):
        a("v_add_f32_dpp v%d, v%d, v%d quad_perm:[3,2,1,0] row_mask:0xf bank_mask:0xf" % (16 + n, 16 + n, 16 + n))
    a("v_cndmask_b32 v16, v16, v18, s[80:81]")
    a("v_cndmask_b32 v17, v17, v19, s[80:81]")
    a("v_add_f32_dpp v16, v16, v16 quad_perm:[1,0,3,2] row_mask:0xf bank_mask:0xf")
    a("v_add_f32_dpp v17, v17, v17 quad_perm:[1,0,3,2] row_mask:0xf bank_mask:0xf")
    a("v_cndmask_b32 %s, v16, v17, s[82:83]" % dst)

for n in range(32):
    e = ("k", n)
    ready(e)
    acc = 16 + (n & 15)
    for r in range(4):
        a("v_dot2_f32_bf16 v%d, v%d, v%d, %s" % (acc, reg_of(e) + r, 10 + r, "0" if r == 0 else "v%d" % acc))
    done(e)
    if n == 15: reduce_scatter("v14")
    if n == 31: reduce_scatter("v15")
a("s_load_dword s89, s[22:23], 0")
stamp()

a("v_cvt_pk_bf16_f32 v16, v14, v15")
a("v_lshlrev_b32 v14, 16, v16")
a("v_and_b32 v15, 0xffff0000, v16")
a("v_mul_f32 v14, 0x3db504f3, v14")
a("v_mul_f32 v15, 0x3db504f3, v15")
a("v_cvt_pk_bf16_f32 v16, v14, v15")
a("v_lshlrev_b32 v14, 16, v16")
a("v_and_b32 v15, 0xffff0000, v16")
a("v_max_f32 v16, v14, v15")
wave_reduce("v16", "v_max_f32", "s84")
a("v_subrev_f32 v16, s84, v14")
a("v_subrev_f32 v17, s84, v15")
a("v_mul_f32 v16, 0x3fb8aa3b, v16")
a("v_mul_f32 v17, 0x3fb8aa3b, v17")
a("v_exp_f32 v16, v16")
a("v_exp_f32 v17, v17")
a("v_add_f32 v16, v16, v17")
wave_reduce("v16", "v_add_f32", "s85")
a("v_mov_b32 v16, s84")
a("v_mov_b32 v17, s85")
a("v_lshlrev_b32 v18, 3, v44")
a("s_mov_b64 exec, 1")
a("ds_write_b64 v18, v[16:17] offset:%d" % L_ST)
a("s_mov_b64 exec, -1")
a("v_and_b32 v18, 7, v0")
a("v_lshlrev_b32 v18, 3, v18")
a("s_waitcnt lgkmcnt(0)")
a("s_barrier")
a("ds_read_b64 v[16:17], v18 offset:%d" % L_ST)
a("s_waitcnt lgkmcnt(0)")
a("v_mov_b32 v18, v16")
for m in ("quad_perm:[1,0,3,2]", "quad_perm:[2,3,0,1]", "row_half_mirror"):
    a("v_max_f32_dpp v18, v18, v18 %s row_mask:0xf bank_mask:0xf" % m)
a("v_sub_f32 v16, v16, v18")
a("v_mul_f32 v16, 0x3fb8aa3b, v16")
a("v_exp_f32 v16, v16")
a("v_mul_f32 v16, v16, v17")
for m in ("quad_perm:[1,0,3,2]", "quad_perm:[2,3,0,1]", "row_half_mirror"):
    a("v_add_f32_dpp v16, v16, v16 %s row_mask:0xf bank_mask:0xf" % m)
a("v_rcp_f32 v16, v16")
a("v_sub_f32 v14, v14, v18")
a("v_sub_f32 v15, v15, v18")
a("v_mul_f32 v14, 0x3fb8aa3b, v14")
a("v_mul_f32 v15, 0x3fb8aa3b, v15")
a("v_exp_f32 v14, v14")
a("v_exp_f32 v15, v15")
a("v_mul_f32 v14, v14, v16")
a("v_mul_f32 v15, v15, v16")
a("v_cvt_pk_bf16_f32 v14, v14, v14")
a("v_cvt_pk_bf16_f32 v15, v15, v15")
stamp()

def pv(n):
    ab = 32 + 4 * (n & 1)
    selector(ab, "v14" if n < 16 else "v15", n & 15)
    e = ("v", n)
    ready(e)
    a("v_mfma_f32_16x16x32_bf16 v[40:43], %s, %s, %s" % (t4(ab), t4(reg_of(e)), "0" if n == 0 else "v[40:43]"))
    done(e)

a("v_lshrrev_b32 v16, 2, v46")
a("v_lshlrev_b32 v16, 10, v16")
a("v_lshl_add_u32 v16, v44, 6, v16")
a("v_lshl_add_u32 v16, v45, 4, v16")
a("v_and_b32 v17, 3, v0")
a("v_lshl_add_u32 v16, v17, 2, v16")
a("v_mul_u32_u24 v18, 2560, v44")
a("v_lshl_add_u32 v18, v46, 5, v18")
a("v_lshl_add_u32 v18, v45, 4, v18")
a("v_bfe_u32 v19, v0, 2, 6")
a("v_mul_u32_u24 v19, 5, v19")
a("v_lshrrev_b32 v20, 8, v0")
a("v_mul_u32_u24 v20, 3, v20")
a("v_add3_u32 v19, v19, v20, v17")
a("v_lshlrev_b32 v19, 3, v19")
a("v_lshlrev_b32 v20, 2, v0")
a("v_mov_b32 v21, 0\nv_mov_b32 v22, 1")
a("s_and_b32 s77, s2, 7\ns_lshl_b32 s75, s77, 7\ns_add_u32 s75, s75, 65536")
a("s_mov_b32 s86, 0x88888888\ns_mov_b32 s87, 0x88888888")
if A.pf:
    a("s_lshr_b32 s84, s2, 3")
    a("s_cmp_ge_u32 s26, 4")
    a("s_cselect_b32 s52, s18, s16\ns_cselect_b32 s53, s19, s17")
    a("s_mov_b32 s54, 2211840\ns_mov_b32 s55, 0x20000")
    a("v_mov_b32 v12, 0x7fffff00")
    a("s_cbranch_scc1 L_pf2")
    a("s_and_b32 s85, s84, 7\ns_mul_i32 s85, s85, 80")
    a("v_lshrrev_b32 v23, 1, v0")
    a("v_add_u32 v23, s85, v23")
    a("v_mul_u32_u24 v23, 3456, v23")
    a("v_and_b32 v13, 1, v0")
    a("v_lshl_add_u32 v23, v13, 6, v23")
    a("s_and_b32 s85, s84, 0x18\ns_add_u32 s85, s85, s77")
    a("s_cmp_lt_u32 s85, 27")
    a("s_cselect_b32 s84, 160, 0")
    a("s_lshl_b32 s85, s85, 7")
    a("v_add_u32 v23, s85, v23")
    a("v_cmp_gt_u32 vcc, s84, v0")
    a("v_cndmask_b32 v23, v12, v23, vcc")
    a("s_branch L_pfdone")
    a("L_pf2:")
    a("s_mul_i32 s84, s84, 54")
    a("v_bfe_u32 v23, v0, 2, 6")
    a("v_add_u32 v23, s84, v23")
    a("v_mul_u32_u24 v23, 1280, v23")
    a("v_lshl_add_u32 v23, v17, 6, v23")
    a("s_mul_i32 s85, s77, 160\ns_and_b32 s85, s85, 0xff80")
    a("v_add_u32 v23, s85, v23")
    a("v_cmp_gt_u32 vcc, %d, v0" % (256 + 216))
    a("v_cndmask_b32 v23, v12, v23, vcc")
    a("L_pfdone:")

if A.LV: A.L = A.LV
for n in range(32):
    pv(n)
assert st["issued"] == len(S)
stamp()
if A.pf == 2:
    a("buffer_load_dword v24, v23, s[52:55], 0 offen %s" % A.pfmod)
a("s_mov_b32 exec_hi, 0")
a("ds_write_b128 v47, v[40:43] offset:%d" % L_PART)
a("s_mov_b64 exec, -1")
a("s_waitcnt lgkmcnt(0)")
a("s_barrier")
a("ds_read2st64_b32 v[10:11], v16 offset0:%d offset1:%d" % (L_PART // 256, L_PART // 256 + 2))
if A.pf == 1:
    a("buffer_load_dword v24, v23, s[52:55], 0 offen %s" % A.pfmod)
a("s_cmp_eq_u32 s89, 8")
a("s_cbranch_scc0 L_initslow")
a("L_initok:")
a("s_cmp_lg_u32 s26, 0")
a("s_cbranch_scc1 L_notk")
a("s_mov_b64 exec, 1")
a("buffer_atomic_add v22, v21, s[48:51], s75 offen sc0 sc1")
a("s_mov_b64 exec, -1")
a("L_notk:")
a("s_waitcnt lgkmcnt(0)")
a("v_add_f32 v10, v10, v11")
a("v_add_f32_dpp v10, v10, v10 row_ror:4 row_mask:0xf bank_mask:0xf")
a("v_add_f32_dpp v10, v10, v10 row_ror:8 row_mask:0xf bank_mask:0xf")
a("v_cvt_pk_bf16_f32 v10, v10, v10")
YA = 128
for r4 in range(4):
    ab = 32 + 4 * (r4 & 1)
    selector(ab, "v10", r4)
    for cb in range(5):
        acc = t4(YA + 4 * cb)
        a("v_mfma_f32_16x16x32_bf16 %s, %s, %s, %s" % (acc, t4(ab), t4(WO + 4 * (5 * r4 + cb)), "0" if r4 == 0 else acc))
a("s_mov_b32 exec_hi, 0")
for cb in range(5):
    a("ds_write_b128 v18, %s offset:%d" % (t4(YA + 4 * cb), L_YP + 512 * cb))
a("s_mov_b64 exec, -1")
a("s_lshl_b32 s84, s76, 12")
a("s_waitcnt lgkmcnt(0)")
a("s_barrier")
YS = 148
for w in range(8):
    a("ds_read_b64 v[%d:%d], v19 offset:%d" % (YS + 2 * w, YS + 2 * w + 1, L_YP + 2560 * w))
for s_ in (4, 2, 1):
    for w in range(s_):
        if s_ == 4: a("s_waitcnt lgkmcnt(%d)" % (3 - w))
        a("v_pk_add_f32 v[%d:%d], v[%d:%d], v[%d:%d]" % (YS + 2 * w, YS + 2 * w + 1, YS + 2 * w, YS + 2 * w + 1, YS + 2 * (w + s_), YS + 2 * (w + s_) + 1))
a("v_cndmask_b32 v10, v%d, 1.0, s[86:87]" % YS)
a("v_cndmask_b32 v11, v%d, 1.0, s[86:87]" % (YS + 1))
a("buffer_atomic_add_f32 v10, v20, s[48:51], s84 offen")
a("buffer_atomic_add_f32 v11, v20, s[48:51], s84 offen offset:2048")
stamp()
a("s_cmp_lg_u32 s26, 0")
a("s_cbranch_scc1 L_notk2")
a("s_waitcnt vmcnt(2)")
a("s_mov_b64 exec, 1")
a("ds_write_b32 v21, v22 offset:%d" % L_TK)
a("s_mov_b64 exec, -1")
a("s_waitcnt lgkmcnt(0)")
a("L_notk2:")
a("s_barrier")
a("ds_read_b32 v22, v21 offset:%d" % L_TK)
a("s_mul_i32 s3, s26, 10240")
a("s_add_u32 s3, s3, %d" % L_W)
a("s_mov_b32 s54, 2211840\ns_mov_b32 s55, 0x20000")
a("s_mov_b32 s85, 0x42000000")
a("s_mov_b32 s88, 0")
a("v_and_b32 v10, 7, v0")
a("s_waitcnt lgkmcnt(0)")
a("v_readfirstlane_b32 s79, v22")
a("s_mul_i32 s27, s77, 5\ns_add_u32 s27, s27, s79")
a("s_cmp_lt_u32 s79, 5")
a("s_cbranch_scc1 L_ffn2")
a("s_min_u32 s79, s79, 64")
a("s_lshl_b32 s27, s79, 3\ns_add_u32 s27, s27, s77")
a("s_cmp_ge_u32 s27, %d" % (FFN2_N + FFN1_N))
a("s_cbranch_scc1 L_fin")

def dma(n, vregs, step):
    for t in range(n):
        a("s_mov_b32 m0, s3")
        a("buffer_load_dwordx4 %s, s[52:55], s77 offen %s lds" % (vregs[t % len(vregs)], A.dmod))
        if t < n - 1:
            a("s_add_u32 s3, s3, 1024")
            a("s_add_u32 s77, s77, %d" % step)

AF = 48; BF = 128; XF = 208; GR = 220
a("s_sub_u32 s79, s27, %d" % FFN2_N)
a("s_mov_b32 s52, s16\ns_mov_b32 s53, s17")
a("s_lshl_b32 s77, s79, 7")
a("v_mul_u32_u24 v5, 80, v44")
a("v_lshrrev_b32 v11, 3, v1")
a("v_add_u32 v5, v5, v11")
a("v_mul_u32_u24 v5, 3456, v5")
a("v_and_b32 v11, 2, v11")
a("v_xor_b32 v11, v10, v11")
a("v_lshl_add_u32 v12, v11, 4, v5")
a("v_xor_b32 v11, 4, v11")
a("v_lshl_add_u32 v13, v11, 4, v5")
dma(10, ["v12", "v13"], 27648)
a("v_mul_u32_u24 v23, 20, v1")
a("v_mul_u32_u24 v21, 1280, v44")
a("v_add_u32 v21, v21, v23")
a("buffer_load_dwordx4 v[24:27], v21, s[44:47], 0 offen")
a("buffer_load_dword v28, v21, s[44:47], 0 offen offset:16")
a("v_lshlrev_b32 v22, 12, v44")
a("v_lshl_add_u32 v22, v1, 4, v22")
def poll1_issue():
    for m in range(4):
        a("buffer_load_dwordx4 %s, v22, s[48:51], 0 offen offset:%d %s" % (t4(GR + 4 * m), 1024 * m, A.pmod))
poll1_issue()
a("v_mul_u32_u24 v11, %d, v44" % HN_STRIDE)
a("v_add_u32 v23, v23, v11")
a("v_mul_u32_u24 v29, %d, v10" % HN_STRIDE)
a("v_lshl_add_u32 v29, v45, 4, v29")
a("v_lshlrev_b32 v30, 4, v10")
a("v_lshl_add_u32 v30, v44, 8, v30")
a("v_lshrrev_b32 v11, 1, v45")
a("v_lshl_add_u32 v30, v11, 7, v30")
a("v_and_b32 v11, 1, v45")
a("v_lshl_add_u32 v30, v11, 3, v30")
a("v_lshrrev_b32 v12, 2, v46")
a("v_lshl_add_u32 v12, v45, 3, v12")
a("v_lshlrev_b32 v12, 7, v12")
a("v_lshrrev_b32 v13, 3, v46")
a("v_lshl_add_u32 v13, v11, 1, v13")
a("v_and_b32 v11, 3, v44")
a("v_xor_b32 v11, v11, v13")
a("v_lshl_add_u32 v12, v11, 5, v12")
a("v_lshl_add_u32 v12, v17, 3, v12")
a("v_add_u32 v12, %d, v12" % L_W)
a("v_add_u32 v13, 40960, v12")
a("s_waitcnt vmcnt(4)")
a("s_barrier")
a("s_cmp_ge_u32 s26, 4")
a("s_cbranch_scc1 L_notr")
for ks in range(20):
    base, off = ("v12", ks * 4096) if ks < 10 else ("v13", (ks - 10) * 4096)
    a("ds_read_b64_tr_b16 v[%d:%d], %s offset:%d" % (AF + 4 * ks, AF + 4 * ks + 1, base, off))
    a("ds_read_b64_tr_b16 v[%d:%d], %s offset:%d" % (AF + 4 * ks + 2, AF + 4 * ks + 3, base, off + 512))
a("L_notr:")
for k in range(5):
    a("v_lshlrev_b32 v%d, 16, v%d" % (XF + 2 * k, 24 + k))
    a("v_and_b32 v%d, 0xffff0000, v%d" % (XF + 2 * k + 1, 24 + k))
a("s_branch L_poll1_chk")
a("L_poll1:")
poll1_issue()
a("L_poll1_chk:")
a("s_add_u32 s88, s88, 1")
a("s_waitcnt vmcnt(0)")
a("v_min_f32 v31, v%d, v%d" % (GR + 3, GR + 7))
a("v_min3_f32 v31, v31, v%d, v%d" % (GR + 11, GR + 15))
a("v_cmp_ne_u32 vcc, s85, v31")
a("s_cmp_gt_u32 s88, %d" % SPIN_MAX)
a("s_cbranch_scc1 L_poll1_done")
a("s_cbranch_vccnz L_poll1")
a("L_poll1_done:")
stamp()
pairs = [(GR + 0, GR + 8), (GR + 1, GR + 9), (GR + 2, GR + 10), (GR + 4, GR + 12), (GR + 5, GR + 13)]
for k in range(5):
    a("v_cvt_pk_bf16_f32 v%d, v%d, v%d" % (24 + k, pairs[k][0], pairs[k][1]))
for k in range(5):
    a("v_lshlrev_b32 v%d, 16, v%d" % (GR + 2 * k, 24 + k))
    a("v_and_b32 v%d, 0xffff0000, v%d" % (GR + 2 * k + 1, 24 + k))
for k in range(10):
    a("v_add_f32 v%d, v%d, v%d" % (GR + k, GR + k, XF + k))
for k in range(5):
    a("v_cvt_pk_bf16_f32 v%d, v%d, v%d" % (24 + k, GR + 2 * k, GR + 2 * k + 1))
for k in range(5):
    a("v_lshlrev_b32 v%d, 16, v%d" % (XF + 2 * k, 24 + k))
    a("v_and_b32 v%d, 0xffff0000, v%d" % (XF + 2 * k + 1, 24 + k))
ln_stats(["v%d" % (XF + k) for k in range(10)], ["v31", "v32", "v33"], "v38", "v39")
for k in range(10):
    a("v_sub_f32 v%d, v%d, v38" % (XF + k, XF + k))
for k in range(5):
    a("v_cvt_pk_bf16_f32 v%d, v%d, v%d" % (24 + k, XF + 2 * k, XF + 2 * k + 1))
for k in range(5):
    a("v_lshlrev_b32 v%d, 16, v%d" % (XF + 2 * k, 24 + k))
    a("v_and_b32 v%d, 0xffff0000, v%d" % (XF + 2 * k + 1, 24 + k))
for k in range(10):
    a("v_mul_f32 v%d, v%d, v39" % (XF + k, XF + k))
for k in range(5):
    a("v_cvt_pk_bf16_f32 v%d, v%d, v%d" % (24 + k, XF + 2 * k, XF + 2 * k + 1))
    a("ds_write_b32 v23, v%d offset:%d" % (24 + k, L_HN + 4 * k))
a("s_waitcnt lgkmcnt(0)")
a("s_barrier")
if A.stamp:
    a("s_memrealtime s[90:91]\ns_waitcnt lgkmcnt(0)\ns_mov_b32 s100, s90")
a("s_cmp_ge_u32 s26, 4")
a("s_cbranch_scc1 L_fin")
for ks in range(20):
    a("ds_read_b128 %s, v29 offset:%d" % (t4(BF + 4 * ks), L_HN + 64 * ks))
for ks in range(20):
    a("s_waitcnt lgkmcnt(%d)" % min(15, 19 - ks))
    a("v_mfma_f32_16x16x32_bf16 v[40:43], %s, %s, %s" % (t4(AF + 4 * ks), t4(BF + 4 * ks), "0" if ks == 0 else "v[40:43]"))
a("s_lshl_b32 s84, s79, 10")
a("s_mov_b32 exec_lo, 0x00ff00ff\ns_mov_b32 exec_hi, 0x00ff00ff")
for r in range(4):
    a("v_max_f32 v%d, 0, v%d" % (40 + r, 40 + r))
a("v_cvt_pk_bf16_f32 v40, v40, v41")
a("v_cvt_pk_bf16_f32 v41, v42, v43")
a("buffer_store_dwordx2 v[40:41], v30, s[60:63], s84 offen %s" % A.pmod)
a("s_mov_b64 exec, -1")
stamp()
a("s_branch L_fin")

if A.stamp: stamp_idx[0] = 6
a("L_ffn2:")
a("s_mov_b32 s52, s18\ns_mov_b32 s53, s19")
a("s_lshl_b32 s77, s27, 5")
a("s_mov_b32 s79, s77")
a("v_lshrrev_b32 v5, 1, v0")
a("v_mul_u32_u24 v5, 1280, v5")
a("v_and_b32 v11, 1, v0")
a("v_lshl_add_u32 v5, v11, 4, v5")
dma(7, ["v5"], 327680)
a("v_mul_u32_u24 v21, 1280, v10")
a("v_lshl_add_u32 v21, v45, 3, v21")
a("buffer_load_dwordx2 v[24:25], v21, s[44:47], s79 offen")
a("v_mul_u32_u24 v12, 10240, v44")
a("v_lshl_add_u32 v12, v45, 8, v12")
a("v_lshl_add_u32 v12, v46, 3, v12")
a("v_add_u32 v12, %d, v12" % L_W)
a("v_lshlrev_b32 v22, 9, v44")
a("v_lshl_add_u32 v22, v45, 7, v22")
a("v_lshl_add_u32 v22, v10, 4, v22")
a("v_lshlrev_b32 v16, 4, v0")
a("v_lshlrev_b32 v17, 4, v1")
a("s_cmp_lg_u32 s26, 0")
a("s_cbranch_scc1 L_ffn2_noh")
a("s_lshl_b32 s84, s27, 4")
a("v_lshlrev_b32 v11, 2, v45")
a("v_add_u32 v11, s84, v11")
for r in range(4):
    a("v_add_u32 v13, %d, v11" % r)
    a("v_mul_u32_u24 v29, 205, v13")
    a("v_lshrrev_b32 v29, 11, v29")
    a("v_mul_u32_u24 v30, 10, v29")
    a("v_sub_u32 v13, v13, v30")
    a("v_and_b32 v30, 1, v13")
    a("v_lshrrev_b32 v13, 1, v13")
    a("v_mul_u32_u24 v31, 11, v13")
    a("v_lshrrev_b32 v31, 5, v31")
    a("v_lshl_add_u32 v30, v30, 1, v31")
    a("v_mul_u32_u24 v31, 3, v31")
    a("v_sub_u32 v%d, v13, v31" % (XF + 4 + r))
    a("v_lshl_add_u32 v29, v30, 6, v29")
    a("v_lshlrev_b32 v29, 4, v29")
    a("v_lshl_add_u32 v%d, v10, 12, v29" % (XF + r))
a("L_poll2h:")
for r in range(4):
    a("buffer_load_dwordx4 %s, v%d, s[48:51], 0 offen %s" % (t4(GR + 4 * r), XF + r, A.pmod))
a("s_add_u32 s88, s88, 1")
a("s_waitcnt vmcnt(0)")
a("v_min_f32 v31, v%d, v%d" % (GR + 3, GR + 7))
a("v_min3_f32 v31, v31, v%d, v%d" % (GR + 11, GR + 15))
a("v_cmp_ne_u32 vcc, s85, v31")
a("s_cmp_gt_u32 s88, %d" % SPIN_MAX)
a("s_cbranch_scc1 L_poll2h_done")
a("s_cbranch_vccnz L_poll2h")
a("L_poll2h_done:")
for r in range(4):
    a("v_cmp_eq_u32 vcc, 1, v%d" % (XF + 4 + r))
    a("v_cndmask_b32 v%d, v%d, v%d, vcc" % (GR + 4 * r, GR + 4 * r, GR + 4 * r + 1))
    a("v_cmp_eq_u32 vcc, 2, v%d" % (XF + 4 + r))
    a("v_cndmask_b32 v%d, v%d, v%d, vcc" % (GR + 4 * r, GR + 4 * r, GR + 4 * r + 2))
for k in range(2):
    a("v_cvt_pk_bf16_f32 v31, v%d, v%d" % (GR + 8 * k, GR + 8 * k + 4))
    a("v_lshlrev_b32 v32, 16, v31")
    a("v_and_b32 v33, 0xffff0000, v31")
    a("v_lshlrev_b32 v34, 16, v%d" % (24 + k))
    a("v_and_b32 v35, 0xffff0000, v%d" % (24 + k))
    a("v_add_f32 v32, v32, v34")
    a("v_add_f32 v33, v33, v35")
    a("v_cvt_pk_bf16_f32 v31, v32, v33")
    a("v_lshlrev_b32 v%d, 16, v31" % (XF + 2 * k))
    a("v_and_b32 v%d, 0xffff0000, v31" % (XF + 1 + 2 * k))
a("L_ffn2_noh:")
a("s_waitcnt vmcnt(0)")
for t in range(7):
    a("ds_read_b64_tr_b16 v[%d:%d], v12 offset:%d" % (AF + 4 * t, AF + 4 * t + 1, 1024 * t))
    a("ds_read_b64_tr_b16 v[%d:%d], v12 offset:%d" % (AF + 4 * t + 2, AF + 4 * t + 3, 1024 * t + 128))
stamp()
a("s_mov_b32 s88, 0")
a("L_poll2:")
for t in range(7):
    a("buffer_load_dwordx4 %s, v22, s[60:63], %s offen %s" % (t4(BF + 4 * t), soff(4096 * t)[0], A.pmod))
a("s_add_u32 s88, s88, 1")
a("s_waitcnt vmcnt(0) lgkmcnt(0)")
a("v_max_u32 v31, v%d, v%d" % (BF, BF + 1))
a("v_max_u32 v32, v%d, v%d" % (BF + 2, BF + 3))
for k in range(4, 28, 4):
    a("v_max3_u32 v31, v31, v%d, v%d" % (BF + k, BF + k + 1))
    a("v_max3_u32 v32, v32, v%d, v%d" % (BF + k + 2, BF + k + 3))
a("v_max_u32 v31, v31, v32")
a("v_cmp_eq_u32 vcc, -1, v31")
a("s_cmp_gt_u32 s88, %d" % SPIN_MAX)
a("s_cbranch_scc1 L_poll2_done")
a("s_cbranch_vccnz L_poll2")
a("L_poll2_done:")
stamp()
for t in range(7):
    a("v_mfma_f32_16x16x32_bf16 v[40:43], %s, %s, %s" % (t4(AF + 4 * t), t4(BF + 4 * t), "0" if t == 0 else "v[40:43]"))
a("ds_write_b128 v16, v[40:43] offset:%d" % L_FP)
a("s_waitcnt lgkmcnt(0)")
a("s_barrier")
a("s_cmp_lg_u32 s26, 0")
a("s_cbranch_scc1 L_fin")
for w in range(8):
    a("ds_read_b128 %s, v17 offset:%d" % (t4(AF + 4 * w), L_FP + 1024 * w))
a("s_waitcnt lgkmcnt(0)")
for s_ in (4, 2, 1):
    for w in range(s_):
        for r in range(0, 4, 2):
            a("v_pk_add_f32 v[%d:%d], v[%d:%d], v[%d:%d]" % (AF + 4 * w + r, AF + 4 * w + r + 1, AF + 4 * w + r, AF + 4 * w + r + 1, AF + 4 * (w + s_) + r, AF + 4 * (w + s_) + r + 1))
a("s_mov_b32 exec_lo, 0x00ff00ff\ns_mov_b32 exec_hi, 0x00ff00ff")
for k in range(2):
    a("v_cvt_pk_bf16_f32 v31, v%d, v%d" % (AF + 2 * k, AF + 2 * k + 1))
    a("v_lshlrev_b32 v32, 16, v31")
    a("v_and_b32 v33, 0xffff0000, v31")
    a("v_add_f32 v32, v32, v%d" % (XF + 2 * k))
    a("v_add_f32 v33, v33, v%d" % (XF + 1 + 2 * k))
    a("v_cvt_pk_bf16_f32 v%d, v32, v33" % (40 + k))
a("buffer_store_dwordx2 v[40:41], v21, s[56:59], s79 offen")
a("s_mov_b64 exec, -1")
if A.diagnum:
    a("v_mov_b32 v26, 0")
    a("buffer_load_dword v27, v26, s[64:67], 0 offen offset:32 sc0 sc1\ns_waitcnt vmcnt(0)")
    a("v_readfirstlane_b32 s84, v27\ns_bcnt1_i32_b32 s84, s84\ns_cmp_eq_u32 s84, 1\ns_cbranch_scc1 L_fin")
    a("s_memrealtime s[90:91]\ns_waitcnt lgkmcnt(0)\ns_add_u32 s85, s90, 10000")
    a("L_dly:\ns_memrealtime s[90:91]\ns_waitcnt lgkmcnt(0)\ns_sub_u32 s84, s85, s90\ns_cmp_lt_i32 s84, 0\ns_cbranch_scc0 L_dly")
a("L_fin:")
if A.stamp:
    a("s_waitcnt vmcnt(0)")
    a("s_memrealtime s[90:91]\ns_waitcnt lgkmcnt(0)\ns_mov_b32 s101, s90")
    a("s_add_u32 s48, s24, %d\ns_addc_u32 s49, s25, 0\ns_mov_b32 s50, 131072" % WS_STAMP)
    a("s_lshl_b32 s84, s2, 3\ns_add_u32 s84, s84, s26\ns_lshl_b32 s84, s84, 6")
    a("s_getreg_b32 s85, hwreg(HW_REG_XCC_ID)")
    a("v_mov_b32 v1, 0")
    a("s_mov_b64 exec, 1")
    for k in range(10):
        a("v_mov_b32 v2, s%d" % (92 + k))
        a("buffer_store_dword v2, v1, s[48:51], s84 offen offset:%d" % (4 * k))
    a("v_mov_b32 v2, s85")
    a("buffer_store_dword v2, v1, s[48:51], s84 offen offset:40")
    a("v_mov_b32 v2, s88")
    a("buffer_store_dword v2, v1, s[48:51], s84 offen offset:44")
    a("v_mov_b32 v2, s27")
    a("buffer_store_dword v2, v1, s[48:51], s84 offen offset:48")
    if A.dbgstamp:
        a("s_cmp_ge_u32 s27, 40\ns_cbranch_scc1 L_end\ns_cmp_lg_u32 s26, 0\ns_cbranch_scc1 L_end")
        a("s_not_b32 s86, s92")
        a("v_mov_b32 v2, s86")
        a("buffer_atomic_umax v2, v1, s[64:67], 0 offen offset:4 sc1")
        for k in (4, 5, 6, 7, 9):
            a("v_mov_b32 v2, s%d" % (92 + k))
            a("buffer_atomic_umax v2, v1, s[64:67], 0 offen offset:%d sc1" % (8 + 4 * k))
a("L_end:")
a("s_endpgm")
a("L_initslow:")
a("s_mov_b32 s88, 0")
a("L_initpoll:")
a("buffer_load_dword v12, v21, s[64:67], 0 offen sc0 sc1")
a("s_waitcnt vmcnt(0)")
a("v_readfirstlane_b32 s89, v12")
a("s_add_u32 s88, s88, 1")
a("s_cmp_gt_u32 s88, %d" % SPIN_MAX)
a("s_cbranch_scc1 L_initok")
a("s_cmp_eq_u32 s89, 8")
a("s_cbranch_scc0 L_initpoll")
a("s_branch L_initok")

body = a.render()
txt = HEADER + "; @launch grid=(256,1,1) block=(512,1,1) lds=%d\n" % LDS_BYTES
txt += """.amdgcn_target "amdgcn-amd-amdhsa--gfx950"
.text
.globl {n}_kernel
.p2align 8
.type {n}_kernel,@function
{n}_kernel:
{body}.section .rodata,"a"
.p2align 6
.amdhsa_kernel {n}_kernel
  .amdhsa_next_free_vgpr 256
  .amdhsa_next_free_sgpr 102
  .amdhsa_accum_offset 256
  .amdhsa_group_segment_fixed_size 0
  .amdhsa_kernarg_size 88
  .amdhsa_user_sgpr_count 2
  .amdhsa_user_sgpr_kernarg_segment_ptr 1
  .amdhsa_system_sgpr_workgroup_id_x 1
  .amdhsa_float_denorm_mode_32 3
.end_amdhsa_kernel
""".format(n=NAME, body=body)
open(A.o, "w").write(txt)
print("wrote", A.o, len(txt), "bytes,", body.count("\\n"), "lines")
```

```python
import sys, argparse
sys.path.insert(0, "work")
from asmlib import Asm

NAME = "sequential_preLN__sliding_block_cached__dense_activation_relu__decode"
HEADER = open("cdna_kernels/%s.s.ref" % NAME).read().split("; Override launch geometry")[0]

ap = argparse.ArgumentParser()
ap.add_argument("-o", default="cdna_kernels/%s.s" % NAME)
ap.add_argument("--stamp", action="store_true")
ap.add_argument("--dbgstamp", action="store_true")
ap.add_argument("--kvmod", default="nt")
ap.add_argument("--wmod", default="nt")
ap.add_argument("--dmod", default="nt")
ap.add_argument("--pmod", default="sc0 sc1")
ap.add_argument("--L", type=int, default=12)
ap.add_argument("--pat", type=int, default=1)
ap.add_argument("--qk", type=int, default=2)
ap.add_argument("--wo_start", type=int, default=12)
ap.add_argument("--wo_every", type=int, default=2)
ap.add_argument("--codepf", action="store_true")
ap.add_argument("--amp", type=int, default=-1)
ap.add_argument("--diagnum", action="store_true")
ap.add_argument("--LV", type=int, default=0)
ap.add_argument("--dma", default="stream")
ap.add_argument("--pf", type=int, default=0)
ap.add_argument("--pfmod", default="")
A = ap.parse_args()

L_PART = 0
L_QD = 4096
L_ST = 6144
L_YP = 6400
L_HN = 27136
HN_STRIDE = 1312
L_FP = 37888
L_W = 46080
LDS_BYTES = L_W + 81920
WS_H1 = 32768
WS_STAMP = 1 << 20
FFN1_N, FFN2_N = 27, 40
L_TK = 6208
SPIN_MAX = 400000

RING = 48; NRING = 32
WO = 176
def t4(r): return "v[%d:%d]" % (r, r + 3)
def soff(byte):
    hi, lo = byte // 4096, byte % 4096
    return ("0" if hi == 0 else "s%d" % (67 + hi)), lo

a = Asm()
stamp_idx = [0]
def stamp():
    if not A.stamp: return
    a("s_memrealtime s[90:91]\ns_waitcnt lgkmcnt(0)\ns_mov_b32 s%d, s90" % (92 + stamp_idx[0]))
    stamp_idx[0] += 1
    assert stamp_idx[0] <= 9

def wave_reduce(v, op, sdst):
    for m in ("quad_perm:[1,0,3,2] row_mask:0xf", "quad_perm:[2,3,0,1] row_mask:0xf", "row_half_mirror row_mask:0xf",
              "row_mirror row_mask:0xf", "row_bcast:15 row_mask:0xa", "row_bcast:31 row_mask:0xc"):
        a("%s_dpp %s, %s, %s %s bank_mask:0xf" % (op, v, v, v, m))
    a("v_readlane_b32 %s, %s, 63" % (sdst, v))

def ln_stats(vals, tmp, vmean_bf, vrinv):
    t0, t1, t2 = tmp
    a("v_add_f32 %s, %s, %s" % (t0, vals[0], vals[1]))
    a("v_add_f32 %s, %s, %s" % (t1, vals[2], vals[3]))
    for k in range(4, 10, 2):
        a("v_add_f32 %s, %s, %s" % (t0, t0, vals[k]))
        a("v_add_f32 %s, %s, %s" % (t1, t1, vals[k + 1]))
    a("v_add_f32 %s, %s, %s" % (t0, t0, t1))
    wave_reduce(t0, "v_add_f32", "s84")
    a("v_mov_b32 %s, 0x3acccccd" % t2)
    a("v_mul_f32 %s, s84, %s" % (vmean_bf, t2))
    a("v_sub_f32 %s, %s, %s" % (t1, vals[0], vmean_bf))
    a("v_mul_f32 %s, %s, %s" % (t0, t1, t1))
    for k in range(1, 10):
        a("v_sub_f32 %s, %s, %s" % (t1, vals[k], vmean_bf))
        a("v_fmac_f32 %s, %s, %s" % (t0, t1, t1))
    wave_reduce(t0, "v_add_f32", "s84")
    a("v_mul_f32 %s, s84, %s" % (t0, t2))
    a("v_cvt_pk_bf16_f32 %s, %s, %s" % (t0, t0, vmean_bf))
    a("v_and_b32 %s, 0xffff0000, %s" % (vmean_bf, t0))
    a("v_lshlrev_b32 %s, 16, %s" % (t0, t0))
    a("v_add_f32 %s, 0x3727c5ac, %s" % (t0, t0))
    a("v_cvt_pk_bf16_f32 %s, %s, %s" % (t0, t0, t0))
    a("v_lshlrev_b32 %s, 16, %s" % (t0, t0))
    a("v_sqrt_f32 %s, %s" % (t0, t0))
    a("v_cvt_pk_bf16_f32 %s, %s, %s" % (t0, t0, t0))
    a("v_lshlrev_b32 %s, 16, %s" % (t0, t0))
    a("v_rcp_f32 %s, %s" % (vrinv, t0))

def selector(abuf, src, lane):
    for r in range(4):
        a("v_and_b32_dpp v%d, %s, v%d row_newbcast:%d row_mask:0xf bank_mask:0xf" % (abuf + r, src, 6 + r, lane))

def srd(d, plo, nbytes):
    a("s_mov_b32 s%d, s%d\ns_mov_b32 s%d, s%d\ns_mov_b32 s%d, %s\ns_mov_b32 s%d, 0x20000" % (d, plo, d + 1, plo + 1, d + 2, nbytes, d + 3))

S = []
kv = [("k", n) for n in range(32)] + [("v", n) for n in range(32)]
qi = 0; ki = 0
while qi < 20:
    for _ in range(A.qk):
        if qi < 20: S.append(("q", qi)); qi += 1
    S.append(kv[ki]); ki += 1
oi = 0
while ki < 64:
    S.append(kv[ki]); ki += 1
    if ki >= A.wo_start and (ki - A.wo_start) % A.wo_every == 0 and oi < 20:
        S.append(("o", oi)); oi += 1
assert oi == 20
POS = {e: p for p, e in enumerate(S)}
free = list(range(NRING))
slot = {}
st = {"issued": 0, "maxpos": -1, "gate": len(S)}
def reg_of(e):
    if e[0] == "o": return WO + 4 * e[1]
    return RING + 4 * slot[e]
def issue(e):
    kind, n = e
    if kind in "qkv":
        if not free: return False
        slot[e] = free.pop(0)
    if kind == "q":
        so = "0"
        if n: a("s_mov_b32 s78, %d" % (n * 8192)); so = "s78"
        a("buffer_load_dwordx4 %s, v3, s[36:39], %s offen %s" % (t4(reg_of(e)), so, A.wmod))
    elif kind in "kv":
        sr = "s[28:31]" if kind == "k" else "s[32:35]"
        if A.pat == 0:
            so, im = soff(n * 1024)
        else:
            so, im = "0", 0
            if n: a("s_mov_b32 s78, %d" % (n * 8192)); so = "s78"
        a("buffer_load_dwordx4 %s, v2, %s, %s offen offset:%d %s" % (t4(reg_of(e)), sr, so, im, A.kvmod))
    elif kind == "o":
        so, im = soff(n * 256)
        a("buffer_load_dwordx4 %s, v4, s[40:43], %s offen offset:%d %s" % (t4(reg_of(e)), so, im, A.wmod))
    return True
def pump(upto):
    upto = min(upto, len(S) - 1, st["gate"] - 1)
    while st["issued"] <= upto:
        if not issue(S[st["issued"]]): break
        st["issued"] += 1
def ready(e):
    p = POS[e]
    st["maxpos"] = max(st["maxpos"], p)
    pump(st["maxpos"] + A.L)
    assert st["issued"] > p, (e, st)
    n = st["issued"] - 1 - p
    assert n <= 63
    a("s_waitcnt vmcnt(%d)" % n)
def done(e):
    free.append(slot.pop(e))

a("s_cmp_ge_u32 s2, 256")
a("s_cbranch_scc1 L_end")
a("s_load_dwordx16 s[4:19], s[0:1], 0")
a("s_load_dwordx4 s[20:23], s[0:1], 64")
a("s_load_dwordx2 s[24:25], s[0:1], 80")
if A.stamp:
    a("s_memrealtime s[90:91]")
a("v_and_b32 v1, 63, v0")
a("v_lshrrev_b32 v44, 6, v0")
a("v_lshrrev_b32 v45, 4, v1")
a("v_and_b32 v46, 15, v0")
a("v_readfirstlane_b32 s26, v44")
a("s_lshr_b32 s76, s2, 5")
a("s_and_b32 s77, s2, 31")
if A.pat == 0:
    a("v_lshlrev_b32 v2, 15, v44")
    a("v_lshl_add_u32 v2, v1, 4, v2")
else:
    a("v_lshlrev_b32 v2, 4, v0")
a("v_lshl_add_u32 v47, v44, 2, v45")
a("v_mul_u32_u24 v4, 5120, v47")
a("v_mul_u32_u24 v47, 20, v47")
a("v_lshlrev_b32 v3, 13, v47")
a("v_lshl_add_u32 v3, v46, 4, v3")
a("v_lshl_add_u32 v4, v46, 4, v4")
a("v_mul_u32_u24 v32, 20, v1")
a("v_add_lshl_u32 v33, v47, v46, 1")
a("v_and_b32 v34, 3, v0")
a("v_add_lshl_u32 v34, v47, v34, 1")
a("s_mul_i32 s84, s76, 1280")
a("s_lshl_b32 s85, s77, 8")
a("s_lshl_b32 s86, s2, 20")
a("s_add_u32 s86, s86, 786432")
a("s_mov_b32 s46, 10240\ns_mov_b32 s47, 0x20000")
a("s_sub_u32 s38, 5242880, s85\ns_mov_b32 s39, 0x20000")
a("s_mov_b32 s30, 262144\ns_mov_b32 s31, 0x20000")
for k in range(1, 8):
    a("s_movk_i32 s%d, %d" % (67 + k, 4096 * k))
a("s_waitcnt lgkmcnt(0)")
if A.stamp:
    a("s_mov_b32 s92, s90"); stamp_idx[0] = 1
a("s_mov_b32 s44, s4\ns_mov_b32 s45, s5")
a("s_add_u32 s36, s10, s85\ns_addc_u32 s37, s11, 0")
a("s_add_u32 s28, s6, s86\ns_addc_u32 s29, s7, 0")
a("s_cmp_ge_u32 s2, 8")
a("s_cbranch_scc1 L_noinit")
srd(48, 24, "66560")
a("s_lshl_b32 s87, s2, 12")
a("v_lshlrev_b32 v35, 3, v0")
a("v_mov_b32 v36, 0\nv_mov_b32 v37, 0\nv_mov_b32 v38, -1\nv_mov_b32 v39, -1")
a("buffer_store_dwordx2 v[36:37], v35, s[48:51], s87 offen sc0 sc1")
a("s_add_u32 s87, s87, %d" % WS_H1)
a("buffer_store_dwordx2 v[38:39], v35, s[48:51], s87 offen sc0 sc1")
a("s_lshl_b32 s87, s2, 7\ns_add_u32 s87, s87, 65536")
a("v_and_b32 v35, 0x78, v35")
a("buffer_store_dwordx2 v[36:37], v35, s[48:51], s87 offen sc0 sc1")
a("L_noinit:")
a("buffer_load_dwordx4 v[16:19], v32, s[44:47], s84 offen")
a("buffer_load_dword v20, v32, s[44:47], s84 offen offset:16")
a("buffer_load_ushort v22, v33, s[44:47], s84 offen")
a("buffer_load_ushort v23, v34, s[44:47], s84 offen offset:32")
st["gate"] = POS[("o", 0)]
pump(A.L)
n_first = st["issued"]
if A.codepf:
    a("s_getpc_b64 s[84:85]")
    a("L_pc:")
    a("s_sub_u32 s84, s84, L_pc-%s_kernel" % NAME)
    a("s_subb_u32 s85, s85, 0")
    a("v_lshlrev_b32 v35, 5, v0")
    a("global_load_dword v5, v35, s[84:85]")
a("s_add_u32 s32, s8, s86\ns_addc_u32 s33, s9, 0\ns_mov_b32 s34, 262144\ns_mov_b32 s35, 0x20000")
a("s_mul_i32 s85, s77, 163840")
a("s_add_u32 s40, s12, s85\ns_addc_u32 s41, s13, 0\ns_mov_b32 s42, 163840\ns_mov_b32 s43, 0x20000")
srd(48, 24, "66560")
srd(56, 20, "10240")
a("s_add_u32 s60, s24, %d\ns_addc_u32 s61, s25, 0\ns_mov_b32 s62, 27648\ns_mov_b32 s63, 0x20000" % WS_H1)
srd(64, 22, "256")
a("s_mov_b32 s80, 0xcccccccc\ns_mov_b32 s81, 0xcccccccc\ns_mov_b32 s82, 0xaaaaaaaa\ns_mov_b32 s83, 0xaaaaaaaa")
a("v_and_b32 v35, 1, v0")
a("v_lshlrev_b32 v35, 4, v35")
a("v_mov_b32 v38, 0xffff")
a("v_lshlrev_b32 v38, v35, v38")
a("v_lshrrev_b32 v37, 1, v46")
for r in range(4):
    a("v_cmp_eq_u32 vcc, %d, v37" % r)
    a("v_cndmask_b32 v%d, 0, v38, vcc" % (6 + r))
a("v_lshlrev_b32 v47, 9, v44")
a("v_lshl_add_u32 v47, v46, 5, v47")
a("v_lshl_add_u32 v47, v45, 4, v47")
st["gate"] = len(S)

a("s_waitcnt vmcnt(%d)" % (n_first + (1 if A.codepf else 0)))
for k in range(5):
    a("v_lshlrev_b32 v%d, 16, v%d" % (24 + 2 * k, 16 + k))
    a("v_and_b32 v%d, 0xffff0000, v%d" % (25 + 2 * k, 16 + k))
ln_stats(["v%d" % (24 + k) for k in range(10)], ["v34", "v35", "v37"], "v38", "v39")
for r in (22, 23):
    a("v_lshlrev_b32 v%d, 16, v%d" % (r, r))
    a("v_sub_f32 v%d, v%d, v38" % (r, r))
    a("v_cvt_pk_bf16_f32 v%d, v%d, v%d" % (r, r, r))
    a("v_lshlrev_b32 v%d, 16, v%d" % (r, r))
    a("v_mul_f32 v%d, v%d, v39" % (r, r))
    a("v_cvt_pk_bf16_f32 v%d, v%d, v%d" % (r, r, r))
for t in range(20):
    ab = 24 + 4 * (t & 1)
    selector(ab, "v22" if t < 16 else "v23", t & 15)
    e = ("q", t)
    ready(e)
    a("v_mfma_f32_16x16x32_bf16 v[40:43], %s, %s, %s" % (t4(ab), t4(reg_of(e)), "0" if t == 0 else "v[40:43]"))
    done(e)
a("s_mov_b32 exec_hi, 0")
a("ds_write_b128 v47, v[40:43] offset:%d" % L_PART)
a("s_mov_b64 exec, -1")
a("v_lshlrev_b32 v25, 3, v1")
a("s_waitcnt lgkmcnt(0)")
a("s_barrier")
a("s_cmp_ge_u32 s2, 8")
a("s_cbranch_scc1 L_nosig")
a("s_cmp_lg_u32 s26, 0")
a("s_cbranch_scc1 L_nosig")
a("v_mov_b32 v26, 0\nv_mov_b32 v27, 1")
a("s_mov_b64 exec, 1")
a("buffer_atomic_add v27, v26, s[64:67], 0 offen sc1")
a("s_mov_b64 exec, -1")
a("L_nosig:")
if A.diagnum:
    a("s_cmp_lg_u32 s26, 0\ns_cbranch_scc1 L_nodiag")
    a("s_getreg_b32 s84, hwreg(HW_REG_XCC_ID)\ns_sub_u32 s84, s84, s2\ns_and_b32 s84, s84, 7\ns_lshl_b32 s84, 1, s84")
    a("v_mov_b32 v26, 0\nv_mov_b32 v27, s84\ns_mov_b64 exec, 1")
    a("buffer_atomic_or v27, v26, s[64:67], 0 offen offset:32 sc1\ns_mov_b64 exec, -1")
    a("L_nodiag:")
for w in range(8):
    a("ds_read_b64 v[%d:%d], v25 offset:%d" % (28 + 2 * w, 29 + 2 * w, L_PART + 512 * w))
a("s_waitcnt lgkmcnt(0)")
for w in range(1, 8):
    a("v_add_f32 v28, v28, v%d" % (28 + 2 * w))
    a("v_add_f32 v29, v29, v%d" % (29 + 2 * w))
a("v_cvt_pk_bf16_f32 v28, v28, v29")
a("v_lshlrev_b32 v25, 2, v0")
a("ds_write_b32 v25, v28 offset:%d" % L_QD)
a("v_lshlrev_b32 v25, 8, v44")
a("v_lshl_add_u32 v25, v46, 4, v25")
a("s_waitcnt lgkmcnt(0)")
a("ds_read_b128 v[10:13], v25 offset:%d" % L_QD)
a("s_waitcnt lgkmcnt(0)")
stamp()

def reduce_scatter(dst):
    for n in range(8):
        a("v_add_f32_dpp v%d, v%d, v%d row_mirror row_mask:0xf bank_mask:0x3" % (16 + n, 16 + n, 16 + n))
    for n in range(8):
        a("v_add_f32_dpp v%d, v%d, v%d row_mirror row_mask:0xf bank_mask:0xc" % (16 + n, 24 + n, 24 + n))
    for n in range(4):
        a("v_add_f32_dpp v%d, v%d, v%d row_half_mirror row_mask:0xf bank_mask:0x5" % (16 + n, 16 + n, 16 + n))
    for n in range(4):
        a("v_add_f32_dpp v%d, v%d, v%d row_half_mirror row_mask:0xf bank_mask:0xa" % (16 + n, 20 + n, 20 + n))
    for n in range(4):
        a("v_add_f32_dpp v%d, v%d, v%d quad_perm:[3,2,1,0] row_mask:0xf bank_mask:0xf" % (16 + n, 16 + n, 16 + n))
    a("v_cndmask_b32 v16, v16, v18, s[80:81]")
    a("v_cndmask_b32 v17, v17, v19, s[80:81]")
    a("v_add_f32_dpp v16, v16, v16 quad_perm:[1,0,3,2] row_mask:0xf bank_mask:0xf")
    a("v_add_f32_dpp v17, v17, v17 quad_perm:[1,0,3,2] row_mask:0xf bank_mask:0xf")
    a("v_cndmask_b32 %s, v16, v17, s[82:83]" % dst)

for n in range(32):
    e = ("k", n)
    ready(e)
    acc = 16 + (n & 15)
    for r in range(4):
        a("v_dot2_f32_bf16 v%d, v%d, v%d, %s" % (acc, reg_of(e) + r, 10 + r, "0" if r == 0 else "v%d" % acc))
    done(e)
    if n == 15: reduce_scatter("v14")
    if n == 31: reduce_scatter("v15")
a("s_load_dword s89, s[22:23], 0")
stamp()

a("v_cvt_pk_bf16_f32 v16, v14, v15")
a("v_lshlrev_b32 v14, 16, v16")
a("v_and_b32 v15, 0xffff0000, v16")
a("v_mul_f32 v14, 0x3db504f3, v14")
a("v_mul_f32 v15, 0x3db504f3, v15")
a("v_cvt_pk_bf16_f32 v16, v14, v15")
a("v_lshlrev_b32 v14, 16, v16")
a("v_and_b32 v15, 0xffff0000, v16")
a("v_max_f32 v16, v14, v15")
wave_reduce("v16", "v_max_f32", "s84")
a("v_subrev_f32 v16, s84, v14")
a("v_subrev_f32 v17, s84, v15")
a("v_mul_f32 v16, 0x3fb8aa3b, v16")
a("v_mul_f32 v17, 0x3fb8aa3b, v17")
a("v_exp_f32 v16, v16")
a("v_exp_f32 v17, v17")
a("v_add_f32 v16, v16, v17")
wave_reduce("v16", "v_add_f32", "s85")
a("v_mov_b32 v16, s84")
a("v_mov_b32 v17, s85")
a("v_lshlrev_b32 v18, 3, v44")
a("s_mov_b64 exec, 1")
a("ds_write_b64 v18, v[16:17] offset:%d" % L_ST)
a("s_mov_b64 exec, -1")
a("v_and_b32 v18, 7, v0")
a("v_lshlrev_b32 v18, 3, v18")
a("s_waitcnt lgkmcnt(0)")
a("s_barrier")
a("ds_read_b64 v[16:17], v18 offset:%d" % L_ST)
a("s_waitcnt lgkmcnt(0)")
a("v_mov_b32 v18, v16")
for m in ("quad_perm:[1,0,3,2]", "quad_perm:[2,3,0,1]", "row_half_mirror"):
    a("v_max_f32_dpp v18, v18, v18 %s row_mask:0xf bank_mask:0xf" % m)
a("v_sub_f32 v16, v16, v18")
a("v_mul_f32 v16, 0x3fb8aa3b, v16")
a("v_exp_f32 v16, v16")
a("v_mul_f32 v16, v16, v17")
for m in ("quad_perm:[1,0,3,2]", "quad_perm:[2,3,0,1]", "row_half_mirror"):
    a("v_add_f32_dpp v16, v16, v16 %s row_mask:0xf bank_mask:0xf" % m)
a("v_rcp_f32 v16, v16")
a("v_sub_f32 v14, v14, v18")
a("v_sub_f32 v15, v15, v18")
a("v_mul_f32 v14, 0x3fb8aa3b, v14")
a("v_mul_f32 v15, 0x3fb8aa3b, v15")
a("v_exp_f32 v14, v14")
a("v_exp_f32 v15, v15")
a("v_mul_f32 v14, v14, v16")
a("v_mul_f32 v15, v15, v16")
a("v_cvt_pk_bf16_f32 v14, v14, v14")
a("v_cvt_pk_bf16_f32 v15, v15, v15")
stamp()

def pv(n):
    ab = 32 + 4 * (n & 1)
    selector(ab, "v14" if n < 16 else "v15", n & 15)
    e = ("v", n)
    ready(e)
    a("v_mfma_f32_16x16x32_bf16 v[40:43], %s, %s, %s" % (t4(ab), t4(reg_of(e)), "0" if n == 0 else "v[40:43]"))
    done(e)

a("v_lshrrev_b32 v16, 2, v46")
a("v_lshlrev_b32 v16, 10, v16")
a("v_lshl_add_u32 v16, v44, 6, v16")
a("v_lshl_add_u32 v16, v45, 4, v16")
a("v_and_b32 v17, 3, v0")
a("v_lshl_add_u32 v16, v17, 2, v16")
a("v_mul_u32_u24 v18, 2560, v44")
a("v_lshl_add_u32 v18, v46, 5, v18")
a("v_lshl_add_u32 v18, v45, 4, v18")
a("v_bfe_u32 v19, v0, 2, 6")
a("v_mul_u32_u24 v19, 5, v19")
a("v_lshrrev_b32 v20, 8, v0")
a("v_mul_u32_u24 v20, 3, v20")
a("v_add3_u32 v19, v19, v20, v17")
a("v_lshlrev_b32 v19, 3, v19")
a("v_lshlrev_b32 v20, 2, v0")
a("v_mov_b32 v21, 0\nv_mov_b32 v22, 1")
a("s_and_b32 s77, s2, 7\ns_lshl_b32 s75, s77, 7\ns_add_u32 s75, s75, 65536")
a("s_mov_b32 s86, 0x88888888\ns_mov_b32 s87, 0x88888888")
if A.pf:
    a("s_lshr_b32 s84, s2, 3")
    a("s_cmp_ge_u32 s26, 4")
    a("s_cselect_b32 s52, s18, s16\ns_cselect_b32 s53, s19, s17")
    a("s_mov_b32 s54, 2211840\ns_mov_b32 s55, 0x20000")
    a("v_mov_b32 v12, 0x7fffff00")
    a("s_cbranch_scc1 L_pf2")
    a("s_and_b32 s85, s84, 7\ns_mul_i32 s85, s85, 80")
    a("v_lshrrev_b32 v23, 1, v0")
    a("v_add_u32 v23, s85, v23")
    a("v_mul_u32_u24 v23, 3456, v23")
    a("v_and_b32 v13, 1, v0")
    a("v_lshl_add_u32 v23, v13, 6, v23")
    a("s_and_b32 s85, s84, 0x18\ns_add_u32 s85, s85, s77")
    a("s_cmp_lt_u32 s85, 27")
    a("s_cselect_b32 s84, 160, 0")
    a("s_lshl_b32 s85, s85, 7")
    a("v_add_u32 v23, s85, v23")
    a("v_cmp_gt_u32 vcc, s84, v0")
    a("v_cndmask_b32 v23, v12, v23, vcc")
    a("s_branch L_pfdone")
    a("L_pf2:")
    a("s_mul_i32 s84, s84, 54")
    a("v_bfe_u32 v23, v0, 2, 6")
    a("v_add_u32 v23, s84, v23")
    a("v_mul_u32_u24 v23, 1280, v23")
    a("v_lshl_add_u32 v23, v17, 6, v23")
    a("s_mul_i32 s85, s77, 160\ns_and_b32 s85, s85, 0xff80")
    a("v_add_u32 v23, s85, v23")
    a("v_cmp_gt_u32 vcc, %d, v0" % (256 + 216))
    a("v_cndmask_b32 v23, v12, v23, vcc")
    a("L_pfdone:")

if A.LV: A.L = A.LV
for n in range(32):
    pv(n)
assert st["issued"] == len(S)
stamp()
if A.pf == 2:
    a("buffer_load_dword v24, v23, s[52:55], 0 offen %s" % A.pfmod)
a("s_mov_b32 exec_hi, 0")
a("ds_write_b128 v47, v[40:43] offset:%d" % L_PART)
a("s_mov_b64 exec, -1")
a("s_waitcnt lgkmcnt(0)")
a("s_barrier")
a("ds_read2st64_b32 v[10:11], v16 offset0:%d offset1:%d" % (L_PART // 256, L_PART // 256 + 2))
if A.pf == 1:
    a("buffer_load_dword v24, v23, s[52:55], 0 offen %s" % A.pfmod)
a("s_cmp_eq_u32 s89, 8")
a("s_cbranch_scc0 L_initslow")
a("L_initok:")
a("s_cmp_lg_u32 s26, 0")
a("s_cbranch_scc1 L_notk")
a("s_mov_b64 exec, 1")
a("buffer_atomic_add v22, v21, s[48:51], s75 offen sc0 sc1")
a("s_mov_b64 exec, -1")
a("L_notk:")
a("s_waitcnt lgkmcnt(0)")
a("v_add_f32 v10, v10, v11")
a("v_add_f32_dpp v10, v10, v10 row_ror:4 row_mask:0xf bank_mask:0xf")
a("v_add_f32_dpp v10, v10, v10 row_ror:8 row_mask:0xf bank_mask:0xf")
a("v_cvt_pk_bf16_f32 v10, v10, v10")
YA = 128
for r4 in range(4):
    ab = 32 + 4 * (r4 & 1)
    selector(ab, "v10", r4)
    for cb in range(5):
        acc = t4(YA + 4 * cb)
        a("v_mfma_f32_16x16x32_bf16 %s, %s, %s, %s" % (acc, t4(ab), t4(WO + 4 * (5 * r4 + cb)), "0" if r4 == 0 else acc))
a("s_mov_b32 exec_hi, 0")
for cb in range(5):
    a("ds_write_b128 v18, %s offset:%d" % (t4(YA + 4 * cb), L_YP + 512 * cb))
a("s_mov_b64 exec, -1")
a("s_lshl_b32 s84, s76, 12")
a("s_waitcnt lgkmcnt(0)")
a("s_barrier")
YS = 148
for w in range(8):
    a("ds_read_b64 v[%d:%d], v19 offset:%d" % (YS + 2 * w, YS + 2 * w + 1, L_YP + 2560 * w))
for s_ in (4, 2, 1):
    for w in range(s_):
        if s_ == 4: a("s_waitcnt lgkmcnt(%d)" % (3 - w))
        a("v_pk_add_f32 v[%d:%d], v[%d:%d], v[%d:%d]" % (YS + 2 * w, YS + 2 * w + 1, YS + 2 * w, YS + 2 * w + 1, YS + 2 * (w + s_), YS + 2 * (w + s_) + 1))
a("v_cndmask_b32 v10, v%d, 1.0, s[86:87]" % YS)
a("v_cndmask_b32 v11, v%d, 1.0, s[86:87]" % (YS + 1))
a("buffer_atomic_add_f32 v10, v20, s[48:51], s84 offen")
a("buffer_atomic_add_f32 v11, v20, s[48:51], s84 offen offset:2048")
stamp()
a("s_cmp_lg_u32 s26, 0")
a("s_cbranch_scc1 L_notk2")
a("s_waitcnt vmcnt(2)")
a("s_mov_b64 exec, 1")
a("ds_write_b32 v21, v22 offset:%d" % L_TK)
a("s_mov_b64 exec, -1")
a("s_waitcnt lgkmcnt(0)")
a("L_notk2:")
a("s_barrier")
a("ds_read_b32 v22, v21 offset:%d" % L_TK)
a("s_mul_i32 s3, s26, 10240")
a("s_add_u32 s3, s3, %d" % L_W)
a("s_mov_b32 s54, 2211840\ns_mov_b32 s55, 0x20000")
a("s_mov_b32 s85, 0x42000000")
a("s_mov_b32 s88, 0")
a("v_and_b32 v10, 7, v0")
a("s_waitcnt lgkmcnt(0)")
a("v_readfirstlane_b32 s79, v22")
a("s_mul_i32 s27, s77, 5\ns_add_u32 s27, s27, s79")
a("s_cmp_lt_u32 s79, 5")
a("s_cbranch_scc1 L_ffn2")
a("s_min_u32 s79, s79, 64")
a("s_lshl_b32 s27, s79, 3\ns_add_u32 s27, s27, s77")
a("s_cmp_ge_u32 s27, %d" % (FFN2_N + FFN1_N))
a("s_cbranch_scc1 L_fin")

def dma(n, vregs, step):
    for t in range(n):
        a("s_mov_b32 m0, s3")
        a("buffer_load_dwordx4 %s, s[52:55], s77 offen %s lds" % (vregs[t % len(vregs)], A.dmod))
        if t < n - 1:
            a("s_add_u32 s3, s3, 1024")
            a("s_add_u32 s77, s77, %d" % step)

AF = 48; BF = 128; XF = 208; GR = 220
a("s_sub_u32 s79, s27, %d" % FFN2_N)
a("s_mov_b32 s52, s16\ns_mov_b32 s53, s17")
a("s_lshl_b32 s77, s79, 7")
a("v_mul_u32_u24 v5, 80, v44")
a("v_lshrrev_b32 v11, 3, v1")
a("v_add_u32 v5, v5, v11")
a("v_mul_u32_u24 v5, 3456, v5")
a("v_and_b32 v11, 2, v11")
a("v_xor_b32 v11, v10, v11")
a("v_lshl_add_u32 v12, v11, 4, v5")
a("v_xor_b32 v11, 4, v11")
a("v_lshl_add_u32 v13, v11, 4, v5")
dma(10, ["v12", "v13"], 27648)
a("v_mul_u32_u24 v23, 20, v1")
a("v_mul_u32_u24 v21, 1280, v44")
a("v_add_u32 v21, v21, v23")
a("buffer_load_dwordx4 v[24:27], v21, s[44:47], 0 offen")
a("buffer_load_dword v28, v21, s[44:47], 0 offen offset:16")
a("v_lshlrev_b32 v22, 12, v44")
a("v_lshl_add_u32 v22, v1, 4, v22")
def poll1_issue():
    for m in range(4):
        a("buffer_load_dwordx4 %s, v22, s[48:51], 0 offen offset:%d %s" % (t4(GR + 4 * m), 1024 * m, A.pmod))
poll1_issue()
a("v_mul_u32_u24 v11, %d, v44" % HN_STRIDE)
a("v_add_u32 v23, v23, v11")
a("v_mul_u32_u24 v29, %d, v10" % HN_STRIDE)
a("v_lshl_add_u32 v29, v45, 4, v29")
a("v_lshlrev_b32 v30, 4, v10")
a("v_lshl_add_u32 v30, v44, 8, v30")
a("v_lshrrev_b32 v11, 1, v45")
a("v_lshl_add_u32 v30, v11, 7, v30")
a("v_and_b32 v11, 1, v45")
a("v_lshl_add_u32 v30, v11, 3, v30")
a("v_lshrrev_b32 v12, 2, v46")
a("v_lshl_add_u32 v12, v45, 3, v12")
a("v_lshlrev_b32 v12, 7, v12")
a("v_lshrrev_b32 v13, 3, v46")
a("v_lshl_add_u32 v13, v11, 1, v13")
a("v_and_b32 v11, 3, v44")
a("v_xor_b32 v11, v11, v13")
a("v_lshl_add_u32 v12, v11, 5, v12")
a("v_lshl_add_u32 v12, v17, 3, v12")
a("v_add_u32 v12, %d, v12" % L_W)
a("v_add_u32 v13, 40960, v12")
a("s_waitcnt vmcnt(4)")
a("s_barrier")
a("s_cmp_ge_u32 s26, 4")
a("s_cbranch_scc1 L_notr")
for ks in range(20):
    base, off = ("v12", ks * 4096) if ks < 10 else ("v13", (ks - 10) * 4096)
    a("ds_read_b64_tr_b16 v[%d:%d], %s offset:%d" % (AF + 4 * ks, AF + 4 * ks + 1, base, off))
    a("ds_read_b64_tr_b16 v[%d:%d], %s offset:%d" % (AF + 4 * ks + 2, AF + 4 * ks + 3, base, off + 512))
a("L_notr:")
for k in range(5):
    a("v_lshlrev_b32 v%d, 16, v%d" % (XF + 2 * k, 24 + k))
    a("v_and_b32 v%d, 0xffff0000, v%d" % (XF + 2 * k + 1, 24 + k))
a("s_branch L_poll1_chk")
a("L_poll1:")
poll1_issue()
a("L_poll1_chk:")
a("s_add_u32 s88, s88, 1")
a("s_waitcnt vmcnt(0)")
a("v_min_f32 v31, v%d, v%d" % (GR + 3, GR + 7))
a("v_min3_f32 v31, v31, v%d, v%d" % (GR + 11, GR + 15))
a("v_cmp_ne_u32 vcc, s85, v31")
a("s_cmp_gt_u32 s88, %d" % SPIN_MAX)
a("s_cbranch_scc1 L_poll1_done")
a("s_cbranch_vccnz L_poll1")
a("L_poll1_done:")
stamp()
pairs = [(GR + 0, GR + 8), (GR + 1, GR + 9), (GR + 2, GR + 10), (GR + 4, GR + 12), (GR + 5, GR + 13)]
for k in range(5):
    a("v_cvt_pk_bf16_f32 v%d, v%d, v%d" % (24 + k, pairs[k][0], pairs[k][1]))
for k in range(5):
    a("v_lshlrev_b32 v%d, 16, v%d" % (GR + 2 * k, 24 + k))
    a("v_and_b32 v%d, 0xffff0000, v%d" % (GR + 2 * k + 1, 24 + k))
for k in range(10):
    a("v_add_f32 v%d, v%d, v%d" % (GR + k, GR + k, XF + k))
for k in range(5):
    a("v_cvt_pk_bf16_f32 v%d, v%d, v%d" % (24 + k, GR + 2 * k, GR + 2 * k + 1))
for k in range(5):
    a("v_lshlrev_b32 v%d, 16, v%d" % (XF + 2 * k, 24 + k))
    a("v_and_b32 v%d, 0xffff0000, v%d" % (XF + 2 * k + 1, 24 + k))
ln_stats(["v%d" % (XF + k) for k in range(10)], ["v31", "v32", "v33"], "v38", "v39")
for k in range(10):
    a("v_sub_f32 v%d, v%d, v38" % (XF + k, XF + k))
for k in range(5):
    a("v_cvt_pk_bf16_f32 v%d, v%d, v%d" % (24 + k, XF + 2 * k, XF + 2 * k + 1))
for k in range(5):
    a("v_lshlrev_b32 v%d, 16, v%d" % (XF + 2 * k, 24 + k))
    a("v_and_b32 v%d, 0xffff0000, v%d" % (XF + 2 * k + 1, 24 + k))
for k in range(10):
    a("v_mul_f32 v%d, v%d, v39" % (XF + k, XF + k))
for k in range(5):
    a("v_cvt_pk_bf16_f32 v%d, v%d, v%d" % (24 + k, XF + 2 * k, XF + 2 * k + 1))
    a("ds_write_b32 v23, v%d offset:%d" % (24 + k, L_HN + 4 * k))
a("s_waitcnt lgkmcnt(0)")
a("s_barrier")
if A.stamp:
    a("s_memrealtime s[90:91]\ns_waitcnt lgkmcnt(0)\ns_mov_b32 s100, s90")
a("s_cmp_ge_u32 s26, 4")
a("s_cbranch_scc1 L_fin")
for ks in range(20):
    a("ds_read_b128 %s, v29 offset:%d" % (t4(BF + 4 * ks), L_HN + 64 * ks))
for ks in range(20):
    a("s_waitcnt lgkmcnt(%d)" % min(15, 19 - ks))
    a("v_mfma_f32_16x16x32_bf16 v[40:43], %s, %s, %s" % (t4(AF + 4 * ks), t4(BF + 4 * ks), "0" if ks == 0 else "v[40:43]"))
a("s_lshl_b32 s84, s79, 10")
a("s_mov_b32 exec_lo, 0x00ff00ff\ns_mov_b32 exec_hi, 0x00ff00ff")
for r in range(4):
    a("v_max_f32 v%d, 0, v%d" % (40 + r, 40 + r))
a("v_cvt_pk_bf16_f32 v40, v40, v41")
a("v_cvt_pk_bf16_f32 v41, v42, v43")
a("buffer_store_dwordx2 v[40:41], v30, s[60:63], s84 offen %s" % A.pmod)
a("s_mov_b64 exec, -1")
stamp()
a("s_branch L_fin")

if A.stamp: stamp_idx[0] = 6
a("L_ffn2:")
a("s_mov_b32 s52, s18\ns_mov_b32 s53, s19")
a("s_lshl_b32 s77, s27, 5")
a("s_mov_b32 s79, s77")
a("v_lshrrev_b32 v5, 1, v0")
a("v_mul_u32_u24 v5, 1280, v5")
a("v_and_b32 v11, 1, v0")
a("v_lshl_add_u32 v5, v11, 4, v5")
dma(7, ["v5"], 327680)
a("v_mul_u32_u24 v21, 1280, v10")
a("v_lshl_add_u32 v21, v45, 3, v21")
a("buffer_load_dwordx2 v[24:25], v21, s[44:47], s79 offen")
a("v_mul_u32_u24 v12, 10240, v44")
a("v_lshl_add_u32 v12, v45, 8, v12")
a("v_lshl_add_u32 v12, v46, 3, v12")
a("v_add_u32 v12, %d, v12" % L_W)
a("v_lshlrev_b32 v22, 9, v44")
a("v_lshl_add_u32 v22, v45, 7, v22")
a("v_lshl_add_u32 v22, v10, 4, v22")
a("v_lshlrev_b32 v16, 4, v0")
a("v_lshlrev_b32 v17, 4, v1")
a("s_cmp_lg_u32 s26, 0")
a("s_cbranch_scc1 L_ffn2_noh")
a("s_lshl_b32 s84, s27, 4")
a("v_lshlrev_b32 v11, 2, v45")
a("v_add_u32 v11, s84, v11")
for r in range(4):
    a("v_add_u32 v13, %d, v11" % r)
    a("v_mul_u32_u24 v29, 205, v13")
    a("v_lshrrev_b32 v29, 11, v29")
    a("v_mul_u32_u24 v30, 10, v29")
    a("v_sub_u32 v13, v13, v30")
    a("v_and_b32 v30, 1, v13")
    a("v_lshrrev_b32 v13, 1, v13")
    a("v_mul_u32_u24 v31, 11, v13")
    a("v_lshrrev_b32 v31, 5, v31")
    a("v_lshl_add_u32 v30, v30, 1, v31")
    a("v_mul_u32_u24 v31, 3, v31")
    a("v_sub_u32 v%d, v13, v31" % (XF + 4 + r))
    a("v_lshl_add_u32 v29, v30, 6, v29")
    a("v_lshlrev_b32 v29, 4, v29")
    a("v_lshl_add_u32 v%d, v10, 12, v29" % (XF + r))
a("L_poll2h:")
for r in range(4):
    a("buffer_load_dwordx4 %s, v%d, s[48:51], 0 offen %s" % (t4(GR + 4 * r), XF + r, A.pmod))
a("s_add_u32 s88, s88, 1")
a("s_waitcnt vmcnt(0)")
a("v_min_f32 v31, v%d, v%d" % (GR + 3, GR + 7))
a("v_min3_f32 v31, v31, v%d, v%d" % (GR + 11, GR + 15))
a("v_cmp_ne_u32 vcc, s85, v31")
a("s_cmp_gt_u32 s88, %d" % SPIN_MAX)
a("s_cbranch_scc1 L_poll2h_done")
a("s_cbranch_vccnz L_poll2h")
a("L_poll2h_done:")
for r in range(4):
    a("v_cmp_eq_u32 vcc, 1, v%d" % (XF + 4 + r))
    a("v_cndmask_b32 v%d, v%d, v%d, vcc" % (GR + 4 * r, GR + 4 * r, GR + 4 * r + 1))
    a("v_cmp_eq_u32 vcc, 2, v%d" % (XF + 4 + r))
    a("v_cndmask_b32 v%d, v%d, v%d, vcc" % (GR + 4 * r, GR + 4 * r, GR + 4 * r + 2))
for k in range(2):
    a("v_cvt_pk_bf16_f32 v31, v%d, v%d" % (GR + 8 * k, GR + 8 * k + 4))
    a("v_lshlrev_b32 v32, 16, v31")
    a("v_and_b32 v33, 0xffff0000, v31")
    a("v_lshlrev_b32 v34, 16, v%d" % (24 + k))
    a("v_and_b32 v35, 0xffff0000, v%d" % (24 + k))
    a("v_add_f32 v32, v32, v34")
    a("v_add_f32 v33, v33, v35")
    a("v_cvt_pk_bf16_f32 v31, v32, v33")
    a("v_lshlrev_b32 v%d, 16, v31" % (XF + 2 * k))
    a("v_and_b32 v%d, 0xffff0000, v31" % (XF + 1 + 2 * k))
a("L_ffn2_noh:")
a("s_waitcnt vmcnt(0)")
for t in range(7):
    a("ds_read_b64_tr_b16 v[%d:%d], v12 offset:%d" % (AF + 4 * t, AF + 4 * t + 1, 1024 * t))
    a("ds_read_b64_tr_b16 v[%d:%d], v12 offset:%d" % (AF + 4 * t + 2, AF + 4 * t + 3, 1024 * t + 128))
stamp()
a("s_mov_b32 s88, 0")
a("L_poll2:")
for t in range(7):
    a("buffer_load_dwordx4 %s, v22, s[60:63], %s offen %s" % (t4(BF + 4 * t), soff(4096 * t)[0], A.pmod))
a("s_add_u32 s88, s88, 1")
a("s_waitcnt vmcnt(0) lgkmcnt(0)")
a("v_max_u32 v31, v%d, v%d" % (BF, BF + 1))
a("v_max_u32 v32, v%d, v%d" % (BF + 2, BF + 3))
for k in range(4, 28, 4):
    a("v_max3_u32 v31, v31, v%d, v%d" % (BF + k, BF + k + 1))
    a("v_max3_u32 v32, v32, v%d, v%d" % (BF + k + 2, BF + k + 3))
a("v_max_u32 v31, v31, v32")
a("v_cmp_eq_u32 vcc, -1, v31")
a("s_cmp_gt_u32 s88, %d" % SPIN_MAX)
a("s_cbranch_scc1 L_poll2_done")
a("s_cbranch_vccnz L_poll2")
a("L_poll2_done:")
stamp()
for t in range(7):
    a("v_mfma_f32_16x16x32_bf16 v[40:43], %s, %s, %s" % (t4(AF + 4 * t), t4(BF + 4 * t), "0" if t == 0 else "v[40:43]"))
a("ds_write_b128 v16, v[40:43] offset:%d" % L_FP)
a("s_waitcnt lgkmcnt(0)")
a("s_barrier")
a("s_cmp_lg_u32 s26, 0")
a("s_cbranch_scc1 L_fin")
for w in range(8):
    a("ds_read_b128 %s, v17 offset:%d" % (t4(AF + 4 * w), L_FP + 1024 * w))
a("s_waitcnt lgkmcnt(0)")
for s_ in (4, 2, 1):
    for w in range(s_):
        for r in range(0, 4, 2):
            a("v_pk_add_f32 v[%d:%d], v[%d:%d], v[%d:%d]" % (AF + 4 * w + r, AF + 4 * w + r + 1, AF + 4 * w + r, AF + 4 * w + r + 1, AF + 4 * (w + s_) + r, AF + 4 * (w + s_) + r + 1))
a("s_mov_b32 exec_lo, 0x00ff00ff\ns_mov_b32 exec_hi, 0x00ff00ff")
for k in range(2):
    a("v_cvt_pk_bf16_f32 v31, v%d, v%d" % (AF + 2 * k, AF + 2 * k + 1))
    a("v_lshlrev_b32 v32, 16, v31")
    a("v_and_b32 v33, 0xffff0000, v31")
    a("v_add_f32 v32, v32, v%d" % (XF + 2 * k))
    a("v_add_f32 v33, v33, v%d" % (XF + 1 + 2 * k))
    a("v_cvt_pk_bf16_f32 v%d, v32, v33" % (40 + k))
a("buffer_store_dwordx2 v[40:41], v21, s[56:59], s79 offen")
a("s_mov_b64 exec, -1")
if A.diagnum:
    a("v_mov_b32 v26, 0")
    a("buffer_load_dword v27, v26, s[64:67], 0 offen offset:32 sc0 sc1\ns_waitcnt vmcnt(0)")
    a("v_readfirstlane_b32 s84, v27\ns_bcnt1_i32_b32 s84, s84\ns_cmp_eq_u32 s84, 1\ns_cbranch_scc1 L_fin")
    a("s_memrealtime s[90:91]\ns_waitcnt lgkmcnt(0)\ns_add_u32 s85, s90, 10000")
    a("L_dly:\ns_memrealtime s[90:91]\ns_waitcnt lgkmcnt(0)\ns_sub_u32 s84, s85, s90\ns_cmp_lt_i32 s84, 0\ns_cbranch_scc0 L_dly")
if A.amp >= 0:
    a("s_memrealtime s[90:91]\ns_waitcnt lgkmcnt(0)\ns_mov_b32 s101, s90")
    a("s_sub_u32 s85, s%d, s92\ns_lshl_b32 s85, s85, 2\ns_add_u32 s85, s85, s90" % (92 + A.amp))
    a("L_dly2:\ns_memrealtime s[90:91]\ns_waitcnt lgkmcnt(0)\ns_sub_u32 s84, s85, s90\ns_cmp_lt_i32 s84, 0\ns_cbranch_scc0 L_dly2")
a("L_fin:")
if A.stamp and A.amp < 0:
    a("s_waitcnt vmcnt(0)")
    a("s_memrealtime s[90:91]\ns_waitcnt lgkmcnt(0)\ns_mov_b32 s101, s90")
    a("s_add_u32 s48, s24, %d\ns_addc_u32 s49, s25, 0\ns_mov_b32 s50, 131072" % WS_STAMP)
    a("s_lshl_b32 s84, s2, 3\ns_add_u32 s84, s84, s26\ns_lshl_b32 s84, s84, 6")
    a("s_getreg_b32 s85, hwreg(HW_REG_XCC_ID)")
    a("v_mov_b32 v1, 0")
    a("s_mov_b64 exec, 1")
    for k in range(10):
        a("v_mov_b32 v2, s%d" % (92 + k))
        a("buffer_store_dword v2, v1, s[48:51], s84 offen offset:%d" % (4 * k))
    a("v_mov_b32 v2, s85")
    a("buffer_store_dword v2, v1, s[48:51], s84 offen offset:40")
    a("v_mov_b32 v2, s88")
    a("buffer_store_dword v2, v1, s[48:51], s84 offen offset:44")
    a("v_mov_b32 v2, s27")
    a("buffer_store_dword v2, v1, s[48:51], s84 offen offset:48")
    if A.dbgstamp:
        a("s_cmp_ge_u32 s27, 40\ns_cbranch_scc1 L_end\ns_cmp_lg_u32 s26, 0\ns_cbranch_scc1 L_end")
        a("s_not_b32 s86, s92")
        a("v_mov_b32 v2, s86")
        a("buffer_atomic_umax v2, v1, s[64:67], 0 offen offset:4 sc1")
        for k in (4, 5, 6, 7, 9):
            a("v_mov_b32 v2, s%d" % (92 + k))
            a("buffer_atomic_umax v2, v1, s[64:67], 0 offen offset:%d sc1" % (8 + 4 * k))
a("L_end:")
a("s_endpgm")
a("L_initslow:")
a("s_mov_b32 s88, 0")
a("L_initpoll:")
a("buffer_load_dword v12, v21, s[64:67], 0 offen sc0 sc1")
a("s_waitcnt vmcnt(0)")
a("v_readfirstlane_b32 s89, v12")
a("s_add_u32 s88, s88, 1")
a("s_cmp_gt_u32 s88, %d" % SPIN_MAX)
a("s_cbranch_scc1 L_initok")
a("s_cmp_eq_u32 s89, 8")
a("s_cbranch_scc0 L_initpoll")
a("s_branch L_initok")

body = a.render()
txt = HEADER + "; @launch grid=(256,1,1) block=(512,1,1) lds=%d\n" % LDS_BYTES
txt += """.amdgcn_target "amdgcn-amd-amdhsa--gfx950"
.text
.globl {n}_kernel
.p2align 8
.type {n}_kernel,@function
{n}_kernel:
{body}.section .rodata,"a"
.p2align 6
.amdhsa_kernel {n}_kernel
  .amdhsa_next_free_vgpr 256
  .amdhsa_next_free_sgpr 102
  .amdhsa_accum_offset 256
  .amdhsa_group_segment_fixed_size 0
  .amdhsa_kernarg_size 88
  .amdhsa_user_sgpr_count 2
  .amdhsa_user_sgpr_kernarg_segment_ptr 1
  .amdhsa_system_sgpr_workgroup_id_x 1
  .amdhsa_float_denorm_mode_32 3
.end_amdhsa_kernel
""".format(n=NAME, body=body)
open(A.o, "w").write(txt)
print("wrote", A.o, len(txt), "bytes,", body.count("\\n"), "lines")
```

```python
import sys, argparse
sys.path.insert(0, "work")
from asmlib import Asm

NAME = "sequential_preLN__sliding_block_cached__dense_activation_relu__decode"
HEADER = open("cdna_kernels/%s.s.ref" % NAME).read().split("; Override launch geometry")[0]

ap = argparse.ArgumentParser()
ap.add_argument("-o", default="cdna_kernels/%s.s" % NAME)
ap.add_argument("--stamp", action="store_true")
ap.add_argument("--dbgstamp", action="store_true")
ap.add_argument("--kvmod", default="nt")
ap.add_argument("--wmod", default="nt")
ap.add_argument("--dmod", default="nt")
ap.add_argument("--pmod", default="sc0 sc1")
ap.add_argument("--L", type=int, default=12)
ap.add_argument("--pat", type=int, default=1)
ap.add_argument("--qk", type=int, default=2)
ap.add_argument("--wo_start", type=int, default=12)
ap.add_argument("--wo_every", type=int, default=2)
ap.add_argument("--codepf", action="store_true")
ap.add_argument("--outmod", default="")
ap.add_argument("--lds", type=int, default=0)
ap.add_argument("--edma", action="store_true")
ap.add_argument("--nopre", action="store_true")
ap.add_argument("--st8", default="hn")
ap.add_argument("--minrate", type=int, default=0)
ap.add_argument("--m2", action="store_true")
ap.add_argument("--D1", type=int, default=0)
ap.add_argument("--D2", type=int, default=0)
ap.add_argument("--pace", type=int, default=0)
ap.add_argument("--warm", action="store_true")
ap.add_argument("--tkpos", type=int, default=8)
ap.add_argument("--map", type=int, default=0)
ap.add_argument("--touch", action="store_true")
ap.add_argument("--qhead", type=int, default=0)
ap.add_argument("--codepf2", action="store_true")
ap.add_argument("--oobq", action="store_true")
ap.add_argument("--oobo", action="store_true")
ap.add_argument("--f2bar", action="store_true")
ap.add_argument("--light", type=int, default=0)
ap.add_argument("--sleep", type=int, default=0)
ap.add_argument("--amp", type=int, default=-1)
ap.add_argument("--diagnum", action="store_true")
ap.add_argument("--LV", type=int, default=0)
ap.add_argument("--dma", default="stream")
ap.add_argument("--pf", type=int, default=0)
ap.add_argument("--pfmod", default="")
A = ap.parse_args()

L_PART = 0
L_QD = 4096
L_ST = 6144
L_YP = 6400
L_HN = 27136
HN_STRIDE = 1312
L_FP = 37888
L_W = 46080
LDS_BYTES = L_W + 81920
WS_H1 = 32768
WS_STAMP = 1 << 20
FFN1_N, FFN2_N = 27, 40
L_TK = 6208
SPIN_MAX = 400000

RING = 48; NRING = 32
WO = 176
def t4(r): return "v[%d:%d]" % (r, r + 3)
def soff(byte):
    hi, lo = byte // 4096, byte % 4096
    return ("0" if hi == 0 else "s%d" % (67 + hi)), lo

a = Asm()
stamp_idx = [0]
def stamp():
    if not A.stamp: return
    a("s_memrealtime s[90:91]\ns_waitcnt lgkmcnt(0)\ns_mov_b32 s%d, s90" % (92 + stamp_idx[0]))
    stamp_idx[0] += 1
    assert stamp_idx[0] <= 9

def wave_reduce(v, op, sdst):
    for m in ("quad_perm:[1,0,3,2] row_mask:0xf", "quad_perm:[2,3,0,1] row_mask:0xf", "row_half_mirror row_mask:0xf",
              "row_mirror row_mask:0xf", "row_bcast:15 row_mask:0xa", "row_bcast:31 row_mask:0xc"):
        a("%s_dpp %s, %s, %s %s bank_mask:0xf" % (op, v, v, v, m))
    a("v_readlane_b32 %s, %s, 63" % (sdst, v))

def ln_stats(vals, tmp, vmean_bf, vrinv):
    t0, t1, t2 = tmp
    a("v_add_f32 %s, %s, %s" % (t0, vals[0], vals[1]))
    a("v_add_f32 %s, %s, %s" % (t1, vals[2], vals[3]))
    for k in range(4, 10, 2):
        a("v_add_f32 %s, %s, %s" % (t0, t0, vals[k]))
        a("v_add_f32 %s, %s, %s" % (t1, t1, vals[k + 1]))
    a("v_add_f32 %s, %s, %s" % (t0, t0, t1))
    wave_reduce(t0, "v_add_f32", "s84")
    a("v_mov_b32 %s, 0x3acccccd" % t2)
    a("v_mul_f32 %s, s84, %s" % (vmean_bf, t2))
    a("v_sub_f32 %s, %s, %s" % (t1, vals[0], vmean_bf))
    a("v_mul_f32 %s, %s, %s" % (t0, t1, t1))
    for k in range(1, 10):
        a("v_sub_f32 %s, %s, %s" % (t1, vals[k], vmean_bf))
        a("v_fmac_f32 %s, %s, %s" % (t0, t1, t1))
    wave_reduce(t0, "v_add_f32", "s84")
    a("v_mul_f32 %s, s84, %s" % (t0, t2))
    a("v_cvt_pk_bf16_f32 %s, %s, %s" % (t0, t0, vmean_bf))
    a("v_and_b32 %s, 0xffff0000, %s" % (vmean_bf, t0))
    a("v_lshlrev_b32 %s, 16, %s" % (t0, t0))
    a("v_add_f32 %s, 0x3727c5ac, %s" % (t0, t0))
    a("v_cvt_pk_bf16_f32 %s, %s, %s" % (t0, t0, t0))
    a("v_lshlrev_b32 %s, 16, %s" % (t0, t0))
    a("v_sqrt_f32 %s, %s" % (t0, t0))
    a("v_cvt_pk_bf16_f32 %s, %s, %s" % (t0, t0, t0))
    a("v_lshlrev_b32 %s, 16, %s" % (t0, t0))
    a("v_rcp_f32 %s, %s" % (vrinv, t0))

def selector(abuf, src, lane):
    for r in range(4):
        a("v_and_b32_dpp v%d, %s, v%d row_newbcast:%d row_mask:0xf bank_mask:0xf" % (abuf + r, src, 6 + r, lane))

def srd(d, plo, nbytes):
    a("s_mov_b32 s%d, s%d\ns_mov_b32 s%d, s%d\ns_mov_b32 s%d, %s\ns_mov_b32 s%d, 0x20000" % (d, plo, d + 1, plo + 1, d + 2, nbytes, d + 3))

S = []
kv = [("k", n) for n in range(32)] + [("v", n) for n in range(32)]
qi = 0; ki = 0
while qi < A.qhead:
    S.append(("q", qi)); qi += 1
while qi < 20:
    for _ in range(A.qk):
        if qi < 20: S.append(("q", qi)); qi += 1
    S.append(kv[ki]); ki += 1
oi = 0
while ki < 64:
    S.append(kv[ki]); ki += 1
    if ki >= A.wo_start and (ki - A.wo_start) % A.wo_every == 0 and oi < 20:
        S.append(("o", oi)); oi += 1
assert oi == 20
POS = {e: p for p, e in enumerate(S)}
free = list(range(NRING))
slot = {}
st = {"issued": 0, "maxpos": -1, "gate": len(S)}
def reg_of(e):
    if e[0] == "o": return WO + 4 * e[1]
    return RING + 4 * slot[e]
def issue(e):
    kind, n = e
    if kind in "qkv":
        if not free: return False
        slot[e] = free.pop(0)
    if kind == "q":
        so = "0"
        if n: a("s_mov_b32 s78, %d" % (n * 8192 if not (A.oobq and n >= 3) else 0x7f000000)); so = "s78"
        a("buffer_load_dwordx4 %s, v3, s[36:39], %s offen %s" % (t4(reg_of(e)), so, A.wmod))
    elif kind in "kv":
        sr = "s[28:31]" if kind == "k" else "s[32:35]"
        if A.pat == 0:
            so, im = soff(n * 1024)
        else:
            so, im = "0", 0
            if n: a("s_mov_b32 s78, %d" % (n * 8192)); so = "s78"
        a("buffer_load_dwordx4 %s, v2, %s, %s offen offset:%d %s" % (t4(reg_of(e)), sr, so, im, A.kvmod))
    elif kind == "o":
        so, im = soff(n * 256)
        if A.oobo and n >= 3:
            a("s_mov_b32 s78, 0x7f000000"); so = "s78"
        a("buffer_load_dwordx4 %s, v4, s[40:43], %s offen offset:%d %s" % (t4(reg_of(e)), so, im, A.wmod))
    return True
def pump(upto):
    upto = min(upto, len(S) - 1, st["gate"] - 1)
    while st["issued"] <= upto:
        if not issue(S[st["issued"]]): break
        st["issued"] += 1
def ready(e):
    p = POS[e]
    st["maxpos"] = max(st["maxpos"], p)
    before = st["issued"]
    pump(st["maxpos"] + A.L)
    if st["issued"] == before:
        st["idle"] = st.get("idle", 0) + 1
        if A.minrate and st["idle"] >= A.minrate:
            pump(st["issued"]); st["idle"] = 0
    else:
        st["idle"] = 0
    assert st["issued"] > p, (e, st)
    n = st["issued"] - 1 - p
    assert n <= 63
    a("s_waitcnt vmcnt(%d)" % n)
def done(e):
    free.append(slot.pop(e))

a("s_cmp_ge_u32 s2, 256")
a("s_cbranch_scc1 L_end")
a("s_load_dwordx16 s[4:19], s[0:1], 0")
a("s_load_dwordx4 s[20:23], s[0:1], 64")
a("s_load_dwordx2 s[24:25], s[0:1], 80")
if A.stamp:
    a("s_memrealtime s[90:91]")
a("v_and_b32 v1, 63, v0")
a("v_lshrrev_b32 v44, 6, v0")
a("v_lshrrev_b32 v45, 4, v1")
a("v_and_b32 v46, 15, v0")
a("v_readfirstlane_b32 s26, v44")
a("s_lshr_b32 s76, s2, 5")
if A.map == 0:
    a("s_and_b32 s77, s2, 31")
elif A.map == 1:
    a("s_and_b32 s77, s2, 7\ns_lshl_b32 s77, s77, 2\ns_bfe_u32 s84, s2, 0x20003\ns_or_b32 s77, s77, s84")
elif A.map == 2:
    a("s_and_b32 s77, s2, 7\ns_lshl_b32 s77, s77, 1\ns_bfe_u32 s84, s2, 0x10003\ns_or_b32 s77, s77, s84\ns_and_b32 s84, s2, 16\ns_or_b32 s77, s77, s84")
a("s_lshl_b32 s3, s76, 5\ns_or_b32 s3, s3, s77")
if A.pat == 0:
    a("v_lshlrev_b32 v2, 15, v44")
    a("v_lshl_add_u32 v2, v1, 4, v2")
else:
    a("v_lshlrev_b32 v2, 4, v0")
a("v_lshl_add_u32 v47, v44, 2, v45")
a("v_mul_u32_u24 v4, 5120, v47")
a("v_mul_u32_u24 v47, 20, v47")
a("v_lshlrev_b32 v3, 13, v47")
a("v_lshl_add_u32 v3, v46, 4, v3")
a("v_lshl_add_u32 v4, v46, 4, v4")
a("v_mul_u32_u24 v32, 20, v1")
a("v_add_lshl_u32 v33, v47, v46, 1")
a("v_and_b32 v34, 3, v0")
a("v_add_lshl_u32 v34, v47, v34, 1")
a("s_mul_i32 s84, s76, 1280")
a("s_lshl_b32 s85, s77, 8")
a("s_lshl_b32 s86, s3, 20")
a("s_add_u32 s86, s86, 786432")
a("s_mov_b32 s46, 10240\ns_mov_b32 s47, 0x20000")
a("s_sub_u32 s38, 5242880, s85\ns_mov_b32 s39, 0x20000")
a("s_mov_b32 s30, 262144\ns_mov_b32 s31, 0x20000")
for k in range(1, 8):
    a("s_movk_i32 s%d, %d" % (67 + k, 4096 * k))
a("s_waitcnt lgkmcnt(0)")
if A.stamp:
    a("s_mov_b32 s92, s90"); stamp_idx[0] = 1
a("s_mov_b32 s44, s4\ns_mov_b32 s45, s5")
a("s_add_u32 s36, s10, s85\ns_addc_u32 s37, s11, 0")
a("s_add_u32 s28, s6, s86\ns_addc_u32 s29, s7, 0")
if A.touch:
    a("s_load_dword s89, s[28:29], 0")
    a("s_add_u32 s32, s8, s86\ns_addc_u32 s33, s9, 0")
    a("s_load_dword s88, s[32:33], 0")
a("s_cmp_ge_u32 s2, 8")
a("s_cbranch_scc1 L_noinit")
srd(48, 24, "66560")
a("s_lshl_b32 s87, s2, 12")
a("v_lshlrev_b32 v35, 3, v0")
a("v_mov_b32 v36, 0\nv_mov_b32 v37, 0\nv_mov_b32 v38, -1\nv_mov_b32 v39, -1")
a("buffer_store_dwordx2 v[36:37], v35, s[48:51], s87 offen sc0 sc1")
a("s_add_u32 s87, s87, %d" % WS_H1)
a("buffer_store_dwordx2 v[38:39], v35, s[48:51], s87 offen sc0 sc1")
a("s_lshl_b32 s87, s2, 7\ns_add_u32 s87, s87, 65536")
a("v_and_b32 v35, 0x78, v35")
a("buffer_store_dwordx2 v[36:37], v35, s[48:51], s87 offen sc0 sc1")
a("L_noinit:")
a("buffer_load_dwordx4 v[16:19], v32, s[44:47], s84 offen")
a("buffer_load_dword v20, v32, s[44:47], s84 offen offset:16")
a("buffer_load_ushort v22, v33, s[44:47], s84 offen")
a("buffer_load_ushort v23, v34, s[44:47], s84 offen offset:32")
st["gate"] = POS[("o", 0)]
pump(A.L)
n_first = st["issued"]
if A.codepf:
    a("s_getpc_b64 s[84:85]")
    a("L_pc:")
    a("s_sub_u32 s84, s84, L_pc-%s_kernel" % NAME)
    a("s_subb_u32 s85, s85, 0")
    a("v_lshlrev_b32 v35, 5, v0")
    a("v_min_u32 v35, L_end-%s_kernel, v35" % NAME)
    a("global_load_dword v5, v35, s[84:85]")
a("s_add_u32 s32, s8, s86\ns_addc_u32 s33, s9, 0\ns_mov_b32 s34, 262144\ns_mov_b32 s35, 0x20000")
a("s_mul_i32 s85, s77, 163840")
a("s_add_u32 s40, s12, s85\ns_addc_u32 s41, s13, 0\ns_mov_b32 s42, 163840\ns_mov_b32 s43, 0x20000")
srd(48, 24, "66560")
srd(56, 20, "10240")
a("s_add_u32 s60, s24, %d\ns_addc_u32 s61, s25, 0\ns_mov_b32 s62, 27648\ns_mov_b32 s63, 0x20000" % WS_H1)
srd(64, 22, "256")
a("s_mov_b32 s80, 0xcccccccc\ns_mov_b32 s81, 0xcccccccc\ns_mov_b32 s82, 0xaaaaaaaa\ns_mov_b32 s83, 0xaaaaaaaa")
a("v_and_b32 v35, 1, v0")
a("v_lshlrev_b32 v35, 4, v35")
a("v_mov_b32 v38, 0xffff")
a("v_lshlrev_b32 v38, v35, v38")
a("v_lshrrev_b32 v37, 1, v46")
for r in range(4):
    a("v_cmp_eq_u32 vcc, %d, v37" % r)
    a("v_cndmask_b32 v%d, 0, v38, vcc" % (6 + r))
a("v_lshlrev_b32 v47, 9, v44")
a("v_lshl_add_u32 v47, v46, 5, v47")
a("v_lshl_add_u32 v47, v45, 4, v47")
st["gate"] = len(S)

a("s_waitcnt vmcnt(%d)" % (n_first + (1 if A.codepf else 0)))
for k in range(5):
    a("v_lshlrev_b32 v%d, 16, v%d" % (24 + 2 * k, 16 + k))
    a("v_and_b32 v%d, 0xffff0000, v%d" % (25 + 2 * k, 16 + k))
ln_stats(["v%d" % (24 + k) for k in range(10)], ["v34", "v35", "v37"], "v38", "v39")
for r in (22, 23):
    a("v_lshlrev_b32 v%d, 16, v%d" % (r, r))
    a("v_sub_f32 v%d, v%d, v38" % (r, r))
    a("v_cvt_pk_bf16_f32 v%d, v%d, v%d" % (r, r, r))
    a("v_lshlrev_b32 v%d, 16, v%d" % (r, r))
    a("v_mul_f32 v%d, v%d, v39" % (r, r))
    a("v_cvt_pk_bf16_f32 v%d, v%d, v%d" % (r, r, r))
for t in range(20):
    ab = 24 + 4 * (t & 1)
    selector(ab, "v22" if t < 16 else "v23", t & 15)
    e = ("q", t)
    ready(e)
    a("v_mfma_f32_16x16x32_bf16 v[40:43], %s, %s, %s" % (t4(ab), t4(reg_of(e)), "0" if t == 0 else "v[40:43]"))
    done(e)
a("s_mov_b32 exec_hi, 0")
a("ds_write_b128 v47, v[40:43] offset:%d" % L_PART)
a("s_mov_b64 exec, -1")
a("v_lshlrev_b32 v25, 3, v1")
a("s_waitcnt lgkmcnt(0)")
a("s_barrier")
a("s_cmp_ge_u32 s2, 8")
a("s_cbranch_scc1 L_nosig")
a("s_cmp_lg_u32 s26, 0")
a("s_cbranch_scc1 L_nosig")
a("v_mov_b32 v26, 0\nv_mov_b32 v27, 1")
a("s_mov_b64 exec, 1")
a("buffer_atomic_add v27, v26, s[64:67], 0 offen sc1")
a("s_mov_b64 exec, -1")
a("L_nosig:")
if A.diagnum:
    a("s_cmp_lg_u32 s26, 0\ns_cbranch_scc1 L_nodiag")
    a("s_getreg_b32 s84, hwreg(HW_REG_XCC_ID)\ns_sub_u32 s84, s84, s2\ns_and_b32 s84, s84, 7\ns_lshl_b32 s84, 1, s84")
    a("v_mov_b32 v26, 0\nv_mov_b32 v27, s84\ns_mov_b64 exec, 1")
    a("buffer_atomic_or v27, v26, s[64:67], 0 offen offset:32 sc1\ns_mov_b64 exec, -1")
    a("L_nodiag:")
for w in range(8):
    a("ds_read_b64 v[%d:%d], v25 offset:%d" % (28 + 2 * w, 29 + 2 * w, L_PART + 512 * w))
a("s_waitcnt lgkmcnt(0)")
for w in range(1, 8):
    a("v_add_f32 v28, v28, v%d" % (28 + 2 * w))
    a("v_add_f32 v29, v29, v%d" % (29 + 2 * w))
a("v_cvt_pk_bf16_f32 v28, v28, v29")
a("v_lshlrev_b32 v25, 2, v0")
a("ds_write_b32 v25, v28 offset:%d" % L_QD)
a("v_lshlrev_b32 v25, 8, v44")
a("v_lshl_add_u32 v25, v46, 4, v25")
a("s_waitcnt lgkmcnt(0)")
a("ds_read_b128 v[10:13], v25 offset:%d" % L_QD)
a("s_waitcnt lgkmcnt(0)")
stamp()

def reduce_scatter(dst):
    for n in range(8):
        a("v_add_f32_dpp v%d, v%d, v%d row_mirror row_mask:0xf bank_mask:0x3" % (16 + n, 16 + n, 16 + n))
    for n in range(8):
        a("v_add_f32_dpp v%d, v%d, v%d row_mirror row_mask:0xf bank_mask:0xc" % (16 + n, 24 + n, 24 + n))
    for n in range(4):
        a("v_add_f32_dpp v%d, v%d, v%d row_half_mirror row_mask:0xf bank_mask:0x5" % (16 + n, 16 + n, 16 + n))
    for n in range(4):
        a("v_add_f32_dpp v%d, v%d, v%d row_half_mirror row_mask:0xf bank_mask:0xa" % (16 + n, 20 + n, 20 + n))
    for n in range(4):
        a("v_add_f32_dpp v%d, v%d, v%d quad_perm:[3,2,1,0] row_mask:0xf bank_mask:0xf" % (16 + n, 16 + n, 16 + n))
    a("v_cndmask_b32 v16, v16, v18, s[80:81]")
    a("v_cndmask_b32 v17, v17, v19, s[80:81]")
    a("v_add_f32_dpp v16, v16, v16 quad_perm:[1,0,3,2] row_mask:0xf bank_mask:0xf")
    a("v_add_f32_dpp v17, v17, v17 quad_perm:[1,0,3,2] row_mask:0xf bank_mask:0xf")
    a("v_cndmask_b32 %s, v16, v17, s[82:83]" % dst)

for n in range(32):
    e = ("k", n)
    ready(e)
    acc = 16 + (n & 15)
    for r in range(4):
        a("v_dot2_f32_bf16 v%d, v%d, v%d, %s" % (acc, reg_of(e) + r, 10 + r, "0" if r == 0 else "v%d" % acc))
    done(e)
    if n == 15: reduce_scatter("v14")
    if n == 31: reduce_scatter("v15")
stamp()

a("v_cvt_pk_bf16_f32 v16, v14, v15")
a("v_lshlrev_b32 v14, 16, v16")
a("v_and_b32 v15, 0xffff0000, v16")
a("v_mul_f32 v14, 0x3db504f3, v14")
a("v_mul_f32 v15, 0x3db504f3, v15")
a("v_cvt_pk_bf16_f32 v16, v14, v15")
a("v_lshlrev_b32 v14, 16, v16")
a("v_and_b32 v15, 0xffff0000, v16")
a("v_max_f32 v16, v14, v15")
wave_reduce("v16", "v_max_f32", "s84")
a("v_subrev_f32 v16, s84, v14")
a("v_subrev_f32 v17, s84, v15")
a("v_mul_f32 v16, 0x3fb8aa3b, v16")
a("v_mul_f32 v17, 0x3fb8aa3b, v17")
a("v_exp_f32 v16, v16")
a("v_exp_f32 v17, v17")
a("v_add_f32 v16, v16, v17")
wave_reduce("v16", "v_add_f32", "s85")
a("v_mov_b32 v16, s84")
a("v_mov_b32 v17, s85")
a("v_lshlrev_b32 v18, 3, v44")
a("s_mov_b64 exec, 1")
a("ds_write_b64 v18, v[16:17] offset:%d" % L_ST)
a("s_mov_b64 exec, -1")
a("v_and_b32 v18, 7, v0")
a("v_lshlrev_b32 v18, 3, v18")
a("s_waitcnt lgkmcnt(0)")
a("s_barrier")
a("ds_read_b64 v[16:17], v18 offset:%d" % L_ST)
a("s_waitcnt lgkmcnt(0)")
a("v_mov_b32 v18, v16")
for m in ("quad_perm:[1,0,3,2]", "quad_perm:[2,3,0,1]", "row_half_mirror"):
    a("v_max_f32_dpp v18, v18, v18 %s row_mask:0xf bank_mask:0xf" % m)
a("v_sub_f32 v16, v16, v18")
a("v_mul_f32 v16, 0x3fb8aa3b, v16")
a("v_exp_f32 v16, v16")
a("v_mul_f32 v16, v16, v17")
for m in ("quad_perm:[1,0,3,2]", "quad_perm:[2,3,0,1]", "row_half_mirror"):
    a("v_add_f32_dpp v16, v16, v16 %s row_mask:0xf bank_mask:0xf" % m)
a("v_rcp_f32 v16, v16")
a("v_sub_f32 v14, v14, v18")
a("v_sub_f32 v15, v15, v18")
a("v_mul_f32 v14, 0x3fb8aa3b, v14")
a("v_mul_f32 v15, 0x3fb8aa3b, v15")
a("v_exp_f32 v14, v14")
a("v_exp_f32 v15, v15")
a("v_mul_f32 v14, v14, v16")
a("v_mul_f32 v15, v15, v16")
a("v_cvt_pk_bf16_f32 v14, v14, v14")
a("v_cvt_pk_bf16_f32 v15, v15, v15")
stamp()

def pv(n):
    ab = 32 + 4 * (n & 1)
    selector(ab, "v14" if n < 16 else "v15", n & 15)
    e = ("v", n)
    ready(e)
    a("v_mfma_f32_16x16x32_bf16 v[40:43], %s, %s, %s" % (t4(ab), t4(reg_of(e)), "0" if n == 0 else "v[40:43]"))
    done(e)

def dma(n, vregs, step):
    for t in range(n):
        a("s_mov_b32 m0, s3")
        a("buffer_load_dwordx4 %s, s[52:55], s13 offen %s lds" % (vregs[t % len(vregs)], A.dmod))
        if t < n - 1:
            a("s_add_u32 s3, s3, 1024")
            a("s_add_u32 s13, s13, %d" % step)

a("v_lshrrev_b32 v16, 2, v46")
a("v_lshlrev_b32 v16, 10, v16")
a("v_lshl_add_u32 v16, v44, 6, v16")
a("v_lshl_add_u32 v16, v45, 4, v16")
a("v_and_b32 v17, 3, v0")
a("v_lshl_add_u32 v16, v17, 2, v16")
a("v_mul_u32_u24 v18, 2560, v44")
a("v_lshl_add_u32 v18, v46, 5, v18")
a("v_lshl_add_u32 v18, v45, 4, v18")
a("v_bfe_u32 v19, v0, 2, 6")
a("v_mul_u32_u24 v19, 5, v19")
a("v_lshrrev_b32 v20, 8, v0")
a("v_mul_u32_u24 v20, 3, v20")
a("v_add3_u32 v19, v19, v20, v17")
a("v_lshlrev_b32 v19, 3, v19")
a("v_lshlrev_b32 v20, 2, v0")
a("v_mov_b32 v21, 0\nv_mov_b32 v22, 1")
a("s_and_b32 s77, s2, 7\ns_lshl_b32 s75, s77, 7\ns_add_u32 s75, s75, 65536")
a("s_mov_b32 s86, 0x88888888\ns_mov_b32 s87, 0x88888888")
a("v_mul_u32_u24 v5, 80, v44")
a("v_lshrrev_b32 v11, 3, v1")
a("v_add_u32 v5, v5, v11")
a("v_mul_u32_u24 v5, 3456, v5")
a("v_and_b32 v11, 2, v11")
a("v_and_b32 v10, 7, v0")
a("v_xor_b32 v11, v10, v11")
a("v_lshl_add_u32 v25, v11, 4, v5")
a("v_xor_b32 v11, 4, v11")
a("v_lshl_add_u32 v26, v11, 4, v5")
a("s_mul_i32 s3, s26, 10240")
a("s_add_u32 s3, s3, %d" % L_W)
if A.pf:
    a("s_lshr_b32 s84, s2, 3")
    a("s_cmp_ge_u32 s26, 4")
    a("s_cselect_b32 s52, s18, s16\ns_cselect_b32 s53, s19, s17")
    a("s_mov_b32 s54, 2211840\ns_mov_b32 s55, 0x20000")
    a("v_mov_b32 v12, 0x7fffff00")
    a("s_cbranch_scc1 L_pf2")
    a("s_and_b32 s85, s84, 7\ns_mul_i32 s85, s85, 80")
    a("v_lshrrev_b32 v23, 1, v0")
    a("v_add_u32 v23, s85, v23")
    a("v_mul_u32_u24 v23, 3456, v23")
    a("v_and_b32 v13, 1, v0")
    a("v_lshl_add_u32 v23, v13, 6, v23")
    a("s_and_b32 s85, s84, 0x18\ns_add_u32 s85, s85, s77")
    a("s_cmp_lt_u32 s85, 27")
    a("s_cselect_b32 s84, 160, 0")
    a("s_lshl_b32 s85, s85, 7")
    a("v_add_u32 v23, s85, v23")
    a("v_cmp_gt_u32 vcc, s84, v0")
    a("v_cndmask_b32 v23, v12, v23, vcc")
    a("s_branch L_pfdone")
    a("L_pf2:")
    a("s_mul_i32 s84, s84, 54")
    a("v_bfe_u32 v23, v0, 2, 6")
    a("v_add_u32 v23, s84, v23")
    a("v_mul_u32_u24 v23, 1280, v23")
    a("v_lshl_add_u32 v23, v17, 6, v23")
    a("s_mul_i32 s85, s77, 160\ns_and_b32 s85, s85, 0xff80")
    a("v_add_u32 v23, s85, v23")
    a("v_cmp_gt_u32 vcc, %d, v0" % (256 + 216))
    a("v_cndmask_b32 v23, v12, v23, vcc")
    a("L_pfdone:")

if A.codepf2:
    a("s_getpc_b64 s[84:85]")
    a("L_pc2:")
    a("v_lshlrev_b32 v12, 4, v0")
    a("v_add_u32 v12, 1792, v12")
    a("v_min_u32 v12, L_end-L_pc2, v12")
    a("global_load_dword v13, v12, s[84:85]")
if A.LV: A.L = A.LV
for n in range(32):
    pv(n)
    if A.pf >= 10 and n == A.pf - 10:
        a("buffer_load_dword v24, v23, s[52:55], 0 offen %s" % A.pfmod)
    if n == A.tkpos - 4: a("s_load_dword s89, s[22:23], 0")
    if n == A.tkpos:
        a("s_waitcnt lgkmcnt(0)")
        a("s_cmp_eq_u32 s89, 8")
        a("s_cbranch_scc0 L_initslow")
        a("L_initok:")
        a("s_cmp_lg_u32 s26, 0")
        a("s_cbranch_scc1 L_notk")
        a("s_mov_b64 exec, 1")
        a("buffer_atomic_add v22, v21, s[48:51], s75 offen sc0 sc1")
        a("s_mov_b64 exec, -1")
        a("L_notk:")
assert st["issued"] == len(S)
stamp()
if A.pf == 2:
    a("buffer_load_dword v24, v23, s[52:55], 0 offen %s" % A.pfmod)
a("s_mov_b32 exec_hi, 0")
a("ds_write_b128 v47, v[40:43] offset:%d" % L_PART)
a("s_cmp_lg_u32 s26, 0")
a("s_cbranch_scc1 L_notk2")
a("s_waitcnt vmcnt(0)")
a("s_mov_b64 exec, 1")
a("ds_write_b32 v21, v22 offset:%d" % L_TK)
a("L_notk2:")
a("s_mov_b64 exec, -1")
a("s_waitcnt lgkmcnt(0)")
a("s_barrier")
a("ds_read2st64_b32 v[10:11], v16 offset0:%d offset1:%d" % (L_PART // 256, L_PART // 256 + 2))
if A.pf == 1:
    a("buffer_load_dword v24, v23, s[52:55], 0 offen %s" % A.pfmod)
a("ds_read_b32 v12, v21 offset:%d" % L_TK)
a("s_waitcnt lgkmcnt(0)")
a("v_add_f32 v10, v10, v11")
a("v_readfirstlane_b32 s79, v12")
if A.edma:
    a("s_lshl_b32 s84, s79, 3\ns_add_u32 s84, s84, s77\ns_sub_u32 s84, s84, %d" % FFN2_N)
    a("s_min_u32 s85, s79, 9\ns_cmp_lt_u32 s85, 9\ns_cselect_b32 s84, s84, 99")
    a("s_cmp_ge_u32 s84, %d" % FFN1_N)
    a("s_cbranch_scc1 L_noedma")
    a("s_mov_b32 s52, s16\ns_mov_b32 s53, s17\ns_mov_b32 s54, 2211840\ns_mov_b32 s55, 0x20000")
    a("s_lshl_b32 s13, s84, 7")
    dma(10, ["v25", "v26"], 27648)
    a("L_noedma:")
a("v_add_f32_dpp v10, v10, v10 row_ror:4 row_mask:0xf bank_mask:0xf")
a("v_add_f32_dpp v10, v10, v10 row_ror:8 row_mask:0xf bank_mask:0xf")
a("v_cvt_pk_bf16_f32 v10, v10, v10")
YA = 128
for r4 in range(4):
    ab = 32 + 4 * (r4 & 1)
    selector(ab, "v10", r4)
    for cb in range(5):
        acc = t4(YA + 4 * cb)
        a("v_mfma_f32_16x16x32_bf16 %s, %s, %s, %s" % (acc, t4(ab), t4(WO + 4 * (5 * r4 + cb)), "0" if r4 == 0 else acc))
a("s_mov_b32 exec_hi, 0")
for cb in range(5):
    a("ds_write_b128 v18, %s offset:%d" % (t4(YA + 4 * cb), L_YP + 512 * cb))
a("s_mov_b64 exec, -1")
a("s_lshl_b32 s84, s76, 12")
a("s_waitcnt lgkmcnt(0)")
a("s_barrier")
YS = 148
for w in range(8):
    a("ds_read_b64 v[%d:%d], v19 offset:%d" % (YS + 2 * w, YS + 2 * w + 1, L_YP + 2560 * w))
for s_ in (4, 2, 1):
    for w in range(s_):
        if s_ == 4: a("s_waitcnt lgkmcnt(%d)" % (3 - w))
        a("v_pk_add_f32 v[%d:%d], v[%d:%d], v[%d:%d]" % (YS + 2 * w, YS + 2 * w + 1, YS + 2 * w, YS + 2 * w + 1, YS + 2 * (w + s_), YS + 2 * (w + s_) + 1))
a("v_cndmask_b32 v10, v%d, 1.0, s[86:87]" % YS)
a("v_cndmask_b32 v11, v%d, 1.0, s[86:87]" % (YS + 1))
a("buffer_atomic_add_f32 v10, v20, s[48:51], s84 offen")
a("buffer_atomic_add_f32 v11, v20, s[48:51], s84 offen offset:2048")
stamp()
a("s_mov_b32 s27, 99")
a("s_cmp_ge_u32 s79, 9")
a("s_cbranch_scc1 L_fin")
a("s_barrier")
a("s_mov_b32 s54, 2211840\ns_mov_b32 s55, 0x20000")
a("s_mov_b32 s85, 0x42000000")
a("s_mov_b32 s88, 0")
a("v_and_b32 v10, 7, v0")
a("s_mul_i32 s27, s77, 5\ns_add_u32 s27, s27, s79")
a("s_cmp_lt_u32 s79, 5")
a("s_cbranch_scc1 L_ffn2")
a("s_lshl_b32 s27, s79, 3\ns_add_u32 s27, s27, s77")
a("s_cmp_ge_u32 s27, %d" % (FFN2_N + FFN1_N))
a("s_cbranch_scc1 L_fin")

AF = 48; BF = 128; XF = 208; GR = 220
a("s_sub_u32 s79, s27, %d" % FFN2_N)
a("s_mov_b32 s52, s16\ns_mov_b32 s53, s17")
a("s_lshl_b32 s13, s79, 7")
if not A.edma:
    dma(10, ["v25", "v26"], 27648)
a("v_mul_u32_u24 v23, 20, v1")
a("v_mul_u32_u24 v21, 1280, v44")
a("v_add_u32 v21, v21, v23")
a("buffer_load_dwordx4 v[24:27], v21, s[44:47], 0 offen")
a("buffer_load_dword v28, v21, s[44:47], 0 offen offset:16")
a("v_lshlrev_b32 v22, 12, v44")
a("v_lshl_add_u32 v22, v1, 4, v22")
def poll1_issue():
    for m in range(4):
        a("buffer_load_dwordx4 %s, v22, s[48:51], 0 offen offset:%d %s" % (t4(GR + 4 * m), 1024 * m, A.pmod))
if not A.nopre: poll1_issue()
a("v_mul_u32_u24 v11, %d, v44" % HN_STRIDE)
a("v_add_u32 v23, v23, v11")
a("v_mul_u32_u24 v29, %d, v10" % HN_STRIDE)
a("v_lshl_add_u32 v29, v45, 4, v29")
a("v_lshlrev_b32 v30, 4, v10")
a("v_lshl_add_u32 v30, v44, 8, v30")
a("v_lshrrev_b32 v11, 1, v45")
a("v_lshl_add_u32 v30, v11, 7, v30")
a("v_and_b32 v11, 1, v45")
a("v_lshl_add_u32 v30, v11, 3, v30")
a("v_lshrrev_b32 v12, 2, v46")
a("v_lshl_add_u32 v12, v45, 3, v12")
a("v_lshlrev_b32 v12, 7, v12")
a("v_lshrrev_b32 v13, 3, v46")
a("v_lshl_add_u32 v13, v11, 1, v13")
a("v_and_b32 v11, 3, v44")
a("v_xor_b32 v11, v11, v13")
a("v_lshl_add_u32 v12, v11, 5, v12")
a("v_lshl_add_u32 v12, v17, 3, v12")
a("v_add_u32 v12, %d, v12" % L_W)
a("v_add_u32 v13, 40960, v12")
a("s_waitcnt vmcnt(%d)" % ((0 if A.nopre else 4) + (4 if A.edma else 0)))
if A.stamp and A.st8 == "dma":
    a("s_memrealtime s[90:91]\ns_waitcnt lgkmcnt(0)\ns_mov_b32 s100, s90")
a("s_barrier")
a("s_cmp_ge_u32 s26, 4")
a("s_cbranch_scc1 L_notr")
for ks in range(20):
    base, off = ("v12", ks * 4096) if ks < 10 else ("v13", (ks - 10) * 4096)
    a("ds_read_b64_tr_b16 v[%d:%d], %s offset:%d" % (AF + 4 * ks, AF + 4 * ks + 1, base, off))
    a("ds_read_b64_tr_b16 v[%d:%d], %s offset:%d" % (AF + 4 * ks + 2, AF + 4 * ks + 3, base, off + 512))
a("L_notr:")
if A.nopre: poll1_issue()
if A.edma: a("s_waitcnt vmcnt(4)")
for k in range(5):
    a("v_lshlrev_b32 v%d, 16, v%d" % (XF + 2 * k, 24 + k))
    a("v_and_b32 v%d, 0xffff0000, v%d" % (XF + 2 * k + 1, 24 + k))
if A.light:
    import struct as _st
    a("s_mov_b32 s84, 0x%08x" % _st.unpack("<I", _st.pack("<f", float(A.light)))[0])
    a("s_waitcnt vmcnt(0)")
    a("s_mov_b32 s78, 1")
    a("s_mov_b64 exec, 1")
    a("L_light:")
    a("v_cmp_gt_f32 vcc, s84, v%d" % (GR + 3))
    a("s_add_u32 s88, s88, 1")
    a("s_cmp_gt_u32 s88, %d" % SPIN_MAX)
    a("s_cbranch_scc1 L_light_done")
    a("s_cbranch_vccz L_light_done")
    if A.sleep: a("s_sleep %d" % A.sleep)
    a("buffer_load_dword v%d, v22, s[48:51], 0 offen offset:12 %s" % (GR + 3, A.pmod))
    a("s_waitcnt vmcnt(0)")
    a("s_branch L_light")
    a("L_light_done:")
    a("s_mov_b64 exec, -1")
elif A.warm:
    a("s_mov_b32 s78, 0")
    a("s_waitcnt vmcnt(0)")
    a("s_branch L_f1_body")
else:
    a("s_mov_b32 s78, 1")
    a("s_branch L_poll1_chk")
if A.D1:
    sets = [GR] + [BF + 16 * k for k in range(A.D1 - 1)]
    def p1(g):
        for m in range(4):
            a("buffer_load_dwordx4 %s, v22, s[48:51], 0 offen offset:%d %s" % (t4(g + 4 * m), 1024 * m, A.pmod))
    a("L_poll1_chk:")
    for g in sets[1:]:
        if A.pace: a("s_sleep %d" % A.pace)
        p1(g)
    a("L_poll1:")
    for k, g in enumerate(sets):
        a("s_waitcnt vmcnt(%d)" % (4 * (A.D1 - 1)))
        a("v_min_f32 v31, v%d, v%d" % (g + 3, g + 7))
        a("v_min3_f32 v31, v31, v%d, v%d" % (g + 11, g + 15))
        a("v_cmp_ne_u32 vcc, s85, v31")
        a("s_cbranch_vccz L_p1x%d" % k)
        if A.pace: a("s_sleep %d" % A.pace)
        p1(g)
    a("s_add_u32 s88, s88, 1")
    a("s_cmp_gt_u32 s88, %d" % SPIN_MAX)
    a("s_cbranch_scc0 L_poll1")
    for k, g in reversed(list(enumerate(sets))):
        a("L_p1x%d:" % k)
        for q, (x, y) in enumerate([(0, 8), (1, 9), (2, 10), (4, 12), (5, 13)]):
            a("v_cvt_pk_bf16_f32 v%d, v%d, v%d" % (24 + q, g + x, g + y))
        if k: a("s_branch L_p1done")
    a("L_p1done:")
    stamp()
    XH = 238
    GR = 10
else:
    a("L_poll1:")
    poll1_issue()
    a("L_poll1_chk:")
    a("s_add_u32 s88, s88, 1")
    a("s_waitcnt vmcnt(0)")
    a("v_min_f32 v31, v%d, v%d" % (GR + 3, GR + 7))
    a("v_min3_f32 v31, v31, v%d, v%d" % (GR + 11, GR + 15))
    a("v_cmp_ne_u32 vcc, s85, v31")
    a("s_cmp_gt_u32 s88, %d" % SPIN_MAX)
    a("s_cbranch_scc1 L_poll1_done")
    a("s_cbranch_vccnz L_poll1")
    a("L_poll1_done:")
    stamp()
    a("L_f1_body:")
    XH = 238
    pairs = [(GR + 0, GR + 8), (GR + 1, GR + 9), (GR + 2, GR + 10), (GR + 4, GR + 12), (GR + 5, GR + 13)]
    for k in range(5):
        a("v_cvt_pk_bf16_f32 v%d, v%d, v%d" % (24 + k, pairs[k][0], pairs[k][1]))
for k in range(5):
    a("v_lshlrev_b32 v%d, 16, v%d" % (GR + 2 * k, 24 + k))
    a("v_and_b32 v%d, 0xffff0000, v%d" % (GR + 2 * k + 1, 24 + k))
for k in range(10):
    a("v_add_f32 v%d, v%d, v%d" % (GR + k, GR + k, XF + k))
for k in range(5):
    a("v_cvt_pk_bf16_f32 v%d, v%d, v%d" % (24 + k, GR + 2 * k, GR + 2 * k + 1))
for k in range(5):
    a("v_lshlrev_b32 v%d, 16, v%d" % (XH + 2 * k, 24 + k))
    a("v_and_b32 v%d, 0xffff0000, v%d" % (XH + 2 * k + 1, 24 + k))
ln_stats(["v%d" % (XH + k) for k in range(10)], ["v31", "v32", "v33"], "v38", "v39")
for k in range(10):
    a("v_sub_f32 v%d, v%d, v38" % (XH + k, XH + k))
for k in range(5):
    a("v_cvt_pk_bf16_f32 v%d, v%d, v%d" % (24 + k, XH + 2 * k, XH + 2 * k + 1))
for k in range(5):
    a("v_lshlrev_b32 v%d, 16, v%d" % (XH + 2 * k, 24 + k))
    a("v_and_b32 v%d, 0xffff0000, v%d" % (XH + 2 * k + 1, 24 + k))
for k in range(10):
    a("v_mul_f32 v%d, v%d, v39" % (XH + k, XH + k))
for k in range(5):
    a("v_cvt_pk_bf16_f32 v%d, v%d, v%d" % (24 + k, XH + 2 * k, XH + 2 * k + 1))
    a("ds_write_b32 v23, v%d offset:%d" % (24 + k, L_HN + 4 * k))
a("s_waitcnt lgkmcnt(0)")
a("s_barrier")
if A.stamp and A.st8 == "hn":
    a("s_memrealtime s[90:91]\ns_waitcnt lgkmcnt(0)\ns_mov_b32 s100, s90")
a("s_cmp_ge_u32 s26, 4")
a("s_cbranch_scc1 L_f1_skip")
if A.D1: a("s_waitcnt vmcnt(0)")
GR = 220
for ks in range(20):
    a("ds_read_b128 %s, v29 offset:%d" % (t4(BF + 4 * ks), L_HN + 64 * ks))
for ks in range(20):
    a("s_waitcnt lgkmcnt(%d)" % min(15, 19 - ks))
    a("v_mfma_f32_16x16x32_bf16 v[40:43], %s, %s, %s" % (t4(AF + 4 * ks), t4(BF + 4 * ks), "0" if ks == 0 else "v[40:43]"))
a("s_lshl_b32 s84, s79, 10")
a("s_mov_b32 exec_lo, 0x00ff00ff\ns_mov_b32 exec_hi, 0x00ff00ff")
for r in range(4):
    a("v_max_f32 v%d, 0, v%d" % (40 + r, 40 + r))
a("v_cvt_pk_bf16_f32 v40, v40, v41")
a("v_cvt_pk_bf16_f32 v41, v42, v43")
a("s_cmp_eq_u32 s78, 0")
a("s_cbranch_scc1 L_f1_nost")
a("buffer_store_dwordx2 v[40:41], v30, s[60:63], s84 offen %s" % A.pmod)
a("L_f1_nost:")
a("s_mov_b64 exec, -1")
stamp()
a("L_f1_skip:")
a("s_cmp_eq_u32 s78, 0")
a("s_cbranch_scc0 L_fin")
a("s_mov_b32 s78, 1")
a("s_barrier")
a("s_branch L_poll1")

if A.stamp: stamp_idx[0] = 6
a("L_ffn2:")
a("s_mov_b32 s52, s18\ns_mov_b32 s53, s19")
a("s_lshl_b32 s13, s27, 5")
a("s_mov_b32 s79, s13")
a("v_lshrrev_b32 v5, 1, v0")
a("v_mul_u32_u24 v5, 1280, v5")
a("v_and_b32 v11, 1, v0")
a("v_lshl_add_u32 v5, v11, 4, v5")
dma(7, ["v5"], 327680)
a("v_mul_u32_u24 v21, 1280, v10")
a("v_lshl_add_u32 v21, v45, 3, v21")
a("buffer_load_dwordx2 v[24:25], v21, s[44:47], s79 offen")
a("v_mul_u32_u24 v12, 10240, v44")
a("v_lshl_add_u32 v12, v45, 8, v12")
a("v_lshl_add_u32 v12, v46, 3, v12")
a("v_add_u32 v12, %d, v12" % L_W)
a("v_lshlrev_b32 v22, 9, v44")
a("v_lshl_add_u32 v22, v45, 7, v22")
a("v_lshl_add_u32 v22, v10, 4, v22")
a("v_lshlrev_b32 v16, 4, v0")
a("v_lshlrev_b32 v17, 4, v1")
a("s_mov_b32 s78, 1")
if A.warm:
    a("s_mov_b32 s78, 0")
    a("s_branch L_f2_body")
    a("L_f2_real:")
    a("s_mov_b32 s78, 1")
a("s_cmp_lg_u32 s26, 0")
a("s_cbranch_scc1 L_ffn2_noh")
a("s_lshl_b32 s84, s27, 4")
a("v_lshlrev_b32 v11, 2, v45")
a("v_add_u32 v11, s84, v11")
for r in range(4):
    a("v_add_u32 v13, %d, v11" % r)
    a("v_mul_u32_u24 v29, 205, v13")
    a("v_lshrrev_b32 v29, 11, v29")
    a("v_mul_u32_u24 v30, 10, v29")
    a("v_sub_u32 v13, v13, v30")
    a("v_and_b32 v30, 1, v13")
    a("v_lshrrev_b32 v13, 1, v13")
    a("v_mul_u32_u24 v31, 11, v13")
    a("v_lshrrev_b32 v31, 5, v31")
    a("v_lshl_add_u32 v30, v30, 1, v31")
    a("v_mul_u32_u24 v31, 3, v31")
    a("v_sub_u32 v%d, v13, v31" % (XF + 4 + r))
    a("v_lshl_add_u32 v29, v30, 6, v29")
    a("v_lshlrev_b32 v29, 4, v29")
    a("v_lshl_add_u32 v%d, v10, 12, v29" % (XF + r))
a("L_poll2h:")
if A.sleep: a("s_sleep %d" % A.sleep)
for r in range(4):
    a("buffer_load_dwordx4 %s, v%d, s[48:51], 0 offen %s" % (t4(GR + 4 * r), XF + r, A.pmod))
a("s_add_u32 s88, s88, 1")
a("s_waitcnt vmcnt(0)")
a("v_min_f32 v31, v%d, v%d" % (GR + 3, GR + 7))
a("v_min3_f32 v31, v31, v%d, v%d" % (GR + 11, GR + 15))
a("v_cmp_ne_u32 vcc, s85, v31")
a("s_cmp_gt_u32 s88, %d" % SPIN_MAX)
a("s_cbranch_scc1 L_poll2h_done")
a("s_cbranch_vccnz L_poll2h")
a("L_poll2h_done:")
for r in range(4):
    a("v_cmp_eq_u32 vcc, 1, v%d" % (XF + 4 + r))
    a("v_cndmask_b32 v%d, v%d, v%d, vcc" % (GR + 4 * r, GR + 4 * r, GR + 4 * r + 1))
    a("v_cmp_eq_u32 vcc, 2, v%d" % (XF + 4 + r))
    a("v_cndmask_b32 v%d, v%d, v%d, vcc" % (GR + 4 * r, GR + 4 * r, GR + 4 * r + 2))
for k in range(2):
    a("v_cvt_pk_bf16_f32 v31, v%d, v%d" % (GR + 8 * k, GR + 8 * k + 4))
    a("v_lshlrev_b32 v32, 16, v31")
    a("v_and_b32 v33, 0xffff0000, v31")
    a("v_lshlrev_b32 v34, 16, v%d" % (24 + k))
    a("v_and_b32 v35, 0xffff0000, v%d" % (24 + k))
    a("v_add_f32 v32, v32, v34")
    a("v_add_f32 v33, v33, v35")
    a("v_cvt_pk_bf16_f32 v31, v32, v33")
    a("v_lshlrev_b32 v%d, 16, v31" % (XF + 2 * k))
    a("v_and_b32 v%d, 0xffff0000, v31" % (XF + 1 + 2 * k))
a("L_ffn2_noh:")
a("s_waitcnt vmcnt(0)")
for t in range(7):
    a("ds_read_b64_tr_b16 v[%d:%d], v12 offset:%d" % (AF + 4 * t, AF + 4 * t + 1, 1024 * t))
    a("ds_read_b64_tr_b16 v[%d:%d], v12 offset:%d" % (AF + 4 * t + 2, AF + 4 * t + 3, 1024 * t + 128))
stamp()
if A.f2bar:
    a("s_barrier")
a("s_mov_b32 s88, 0")
if A.D2:
    sets = [80 + 28 * k for k in range(A.D2)]
    assert sets[-1] + 28 <= XF
    def p2(g):
        for t in range(7):
            a("buffer_load_dwordx4 %s, v22, s[60:63], %s offen %s" % (t4(g + 4 * t), soff(4096 * t)[0], A.pmod))
    for k, g in enumerate(sets):
        if A.pace and k: a("s_sleep %d" % A.pace)
        p2(g)
    a("s_waitcnt lgkmcnt(0)")
    a("L_poll2:")
    for k, g in enumerate(sets):
        a("s_waitcnt vmcnt(%d)" % (7 * (A.D2 - 1)))
        a("v_max3_u32 v31, v%d, v%d, v%d" % (g, g + 1, g + 2))
        a("v_max3_u32 v32, v%d, v%d, v%d" % (g + 3, g + 4, g + 5))
        for q in range(6, 26, 4):
            a("v_max3_u32 v31, v31, v%d, v%d" % (g + q, g + q + 1))
            a("v_max3_u32 v32, v32, v%d, v%d" % (g + q + 2, g + q + 3))
        a("v_max3_u32 v31, v31, v%d, v%d" % (g + 26, g + 27))
        a("v_max_u32 v31, v31, v32")
        a("v_cmp_eq_u32 vcc, -1, v31")
        a("s_cbranch_vccz L_p2x%d" % k)
        if A.pace: a("s_sleep %d" % A.pace)
        p2(g)
    a("s_add_u32 s88, s88, 1")
    a("s_cmp_gt_u32 s88, %d" % SPIN_MAX)
    a("s_cbranch_scc0 L_poll2")
    for k, g in reversed(list(enumerate(sets))):
        a("L_p2x%d:" % k)
        for t in range(7):
            a("v_mfma_f32_16x16x32_bf16 v[40:43], %s, %s, %s" % (t4(AF + 4 * t), t4(g + 4 * t), "0" if t == 0 else "v[40:43]"))
        if k: a("s_branch L_p2done")
    a("L_p2done:")
    a("s_nop 7")
    stamp()
else:
    if A.m2:
        for q in range(28): a("v_mov_b32 v%d, 0" % (BF + q))
        a("s_mov_b32 exec_lo, 0x00ff00ff\ns_mov_b32 exec_hi, 0x00ff00ff")
    a("L_poll2:")
    for t in range(7):
        a("buffer_load_dwordx4 %s, v22, s[60:63], %s offen %s" % (t4(BF + 4 * t), soff(4096 * t)[0], A.pmod))
    a("s_add_u32 s88, s88, 1")
    a("s_waitcnt vmcnt(0) lgkmcnt(0)")
    a("v_max_u32 v31, v%d, v%d" % (BF, BF + 1))
    a("v_max_u32 v32, v%d, v%d" % (BF + 2, BF + 3))
    for k in range(4, 28, 4):
        a("v_max3_u32 v31, v31, v%d, v%d" % (BF + k, BF + k + 1))
        a("v_max3_u32 v32, v32, v%d, v%d" % (BF + k + 2, BF + k + 3))
    a("v_max_u32 v31, v31, v32")
    a("v_cmp_eq_u32 vcc, -1, v31")
    a("s_cmp_gt_u32 s88, %d" % SPIN_MAX)
    a("s_cbranch_scc1 L_poll2_done")
    a("s_cbranch_vccnz L_poll2")
    a("L_poll2_done:")
    if A.m2: a("s_mov_b64 exec, -1")
    stamp()
    a("L_f2_body:")
    for t in range(7):
        a("v_mfma_f32_16x16x32_bf16 v[40:43], %s, %s, %s" % (t4(AF + 4 * t), t4(BF + 4 * t), "0" if t == 0 else "v[40:43]"))
a("ds_write_b128 v16, v[40:43] offset:%d" % L_FP)
a("s_waitcnt lgkmcnt(0)")
a("s_barrier")
a("s_cmp_lg_u32 s26, 0")
a("s_cbranch_scc1 L_f2_skip")
for w in range(8):
    a("ds_read_b128 %s, v17 offset:%d" % (t4(AF + 4 * w), L_FP + 1024 * w))
a("s_waitcnt lgkmcnt(0)")
for s_ in (4, 2, 1):
    for w in range(s_):
        for r in range(0, 4, 2):
            a("v_pk_add_f32 v[%d:%d], v[%d:%d], v[%d:%d]" % (AF + 4 * w + r, AF + 4 * w + r + 1, AF + 4 * w + r, AF + 4 * w + r + 1, AF + 4 * (w + s_) + r, AF + 4 * (w + s_) + r + 1))
a("s_mov_b32 exec_lo, 0x00ff00ff\ns_mov_b32 exec_hi, 0x00ff00ff")
for k in range(2):
    a("v_cvt_pk_bf16_f32 v31, v%d, v%d" % (AF + 2 * k, AF + 2 * k + 1))
    a("v_lshlrev_b32 v32, 16, v31")
    a("v_and_b32 v33, 0xffff0000, v31")
    a("v_add_f32 v32, v32, v%d" % (XF + 2 * k))
    a("v_add_f32 v33, v33, v%d" % (XF + 1 + 2 * k))
    a("v_cvt_pk_bf16_f32 v%d, v32, v33" % (40 + k))
a("s_cmp_eq_u32 s78, 0")
a("s_cbranch_scc1 L_f2_nost")
a("buffer_store_dwordx2 v[40:41], v21, s[56:59], s79 offen %s" % A.outmod)
a("L_f2_nost:")
a("s_mov_b64 exec, -1")
a("L_f2_skip:")
if A.warm:
    a("s_cmp_eq_u32 s78, 0")
    a("s_cbranch_scc1 L_f2_real")
if A.diagnum:
    a("v_mov_b32 v26, 0")
    a("buffer_load_dword v27, v26, s[64:67], 0 offen offset:32 sc0 sc1\ns_waitcnt vmcnt(0)")
    a("v_readfirstlane_b32 s84, v27\ns_bcnt1_i32_b32 s84, s84\ns_cmp_eq_u32 s84, 1\ns_cbranch_scc1 L_fin")
    a("s_memrealtime s[90:91]\ns_waitcnt lgkmcnt(0)\ns_add_u32 s85, s90, 10000")
    a("L_dly:\ns_memrealtime s[90:91]\ns_waitcnt lgkmcnt(0)\ns_sub_u32 s84, s85, s90\ns_cmp_lt_i32 s84, 0\ns_cbranch_scc0 L_dly")
if A.amp >= 0:
    a("s_memrealtime s[90:91]\ns_waitcnt lgkmcnt(0)\ns_mov_b32 s101, s90")
    a("s_sub_u32 s85, s%d, s92\ns_lshl_b32 s85, s85, 2\ns_add_u32 s85, s85, s90" % (92 + A.amp))
    a("L_dly2:\ns_memrealtime s[90:91]\ns_waitcnt lgkmcnt(0)\ns_sub_u32 s84, s85, s90\ns_cmp_lt_i32 s84, 0\ns_cbranch_scc0 L_dly2")
a("L_fin:")
if A.stamp and A.amp < 0:
    a("s_waitcnt vmcnt(0)")
    a("s_memrealtime s[90:91]\ns_waitcnt lgkmcnt(0)\ns_mov_b32 s101, s90")
    a("s_add_u32 s48, s24, %d\ns_addc_u32 s49, s25, 0\ns_mov_b32 s50, 131072" % WS_STAMP)
    a("s_lshl_b32 s84, s2, 3\ns_add_u32 s84, s84, s26\ns_lshl_b32 s84, s84, 6")
    a("s_getreg_b32 s85, hwreg(HW_REG_XCC_ID)")
    a("v_mov_b32 v1, 0")
    a("s_mov_b64 exec, 1")
    for k in range(10):
        a("v_mov_b32 v2, s%d" % (92 + k))
        a("buffer_store_dword v2, v1, s[48:51], s84 offen offset:%d" % (4 * k))
    a("v_mov_b32 v2, s85")
    a("buffer_store_dword v2, v1, s[48:51], s84 offen offset:40")
    a("v_mov_b32 v2, s88")
    a("buffer_store_dword v2, v1, s[48:51], s84 offen offset:44")
    a("v_mov_b32 v2, s27")
    a("buffer_store_dword v2, v1, s[48:51], s84 offen offset:48")
    if A.dbgstamp:
        a("s_cmp_ge_u32 s27, 40\ns_cbranch_scc1 L_end\ns_cmp_lg_u32 s26, 0\ns_cbranch_scc1 L_end")
        a("s_not_b32 s86, s92")
        a("v_mov_b32 v2, s86")
        a("buffer_atomic_umax v2, v1, s[64:67], 0 offen offset:4 sc1")
        for k in (4, 5, 6, 7, 9):
            a("v_mov_b32 v2, s%d" % (92 + k))
            a("buffer_atomic_umax v2, v1, s[64:67], 0 offen offset:%d sc1" % (8 + 4 * k))
a("L_end:")
a("s_endpgm")
a("L_initslow:")
a("s_mov_b32 s88, 0")
a("L_initpoll:")
a("buffer_load_dword v12, v21, s[64:67], 0 offen sc0 sc1")
a("s_waitcnt vmcnt(0)")
a("v_readfirstlane_b32 s89, v12")
a("s_add_u32 s88, s88, 1")
a("s_cmp_gt_u32 s88, %d" % SPIN_MAX)
a("s_cbranch_scc1 L_initok")
a("s_cmp_eq_u32 s89, 8")
a("s_cbranch_scc0 L_initpoll")
a("s_branch L_initok")

body = a.render()
txt = HEADER + "; @launch grid=(256,1,1) block=(512,1,1) lds=%d\n" % (A.lds or LDS_BYTES)
txt += """.amdgcn_target "amdgcn-amd-amdhsa--gfx950"
.text
.globl {n}_kernel
.p2align 8
.type {n}_kernel,@function
{n}_kernel:
{body}.section .rodata,"a"
.p2align 6
.amdhsa_kernel {n}_kernel
  .amdhsa_next_free_vgpr 256
  .amdhsa_next_free_sgpr 102
  .amdhsa_accum_offset 256
  .amdhsa_group_segment_fixed_size 0
  .amdhsa_kernarg_size 88
  .amdhsa_user_sgpr_count 2
  .amdhsa_user_sgpr_kernarg_segment_ptr 1
  .amdhsa_system_sgpr_workgroup_id_x 1
  .amdhsa_float_denorm_mode_32 3
.end_amdhsa_kernel
""".format(n=NAME, body=body)
open(A.o, "w").write(txt)
print("wrote", A.o, len(txt), "bytes,", body.count("\\n"), "lines")
```

```python
import sys, argparse
sys.path.insert(0, "work")
from asmlib import Asm

NAME = "sequential_preLN__sliding_block_cached__dense_activation_relu__decode"
HEADER = open("cdna_kernels/%s.s.ref" % NAME).read().split("; Override launch geometry")[0]

ap = argparse.ArgumentParser()
ap.add_argument("-o", default="cdna_kernels/%s.s" % NAME)
ap.add_argument("--stamp", action="store_true")
ap.add_argument("--dbgstamp", action="store_true")
ap.add_argument("--kvmod", default="nt")
ap.add_argument("--wmod", default="nt")
ap.add_argument("--dmod", default="nt")
ap.add_argument("--pmod", default="sc0 sc1")
ap.add_argument("--L", type=int, default=12)
ap.add_argument("--pat", type=int, default=1)
ap.add_argument("--qk", type=int, default=2)
ap.add_argument("--wo_start", type=int, default=12)
ap.add_argument("--wo_every", type=int, default=2)
ap.add_argument("--codepf", action="store_true")
ap.add_argument("--ampsh", type=int, default=2)
ap.add_argument("--qspan", type=int, default=0)
ap.add_argument("--ospan", type=int, nargs=2, default=None)
ap.add_argument("--fine", action="store_true")
ap.add_argument("--op2", action="store_true")
ap.add_argument("--ln1", action="store_true")
ap.add_argument("--qrow", type=int, default=0)
ap.add_argument("--rot", type=int, default=0)
ap.add_argument("--outmod", default="")
ap.add_argument("--lds", type=int, default=0)
ap.add_argument("--edma", action="store_true")
ap.add_argument("--nopre", action="store_true")
ap.add_argument("--st8", default="hn")
ap.add_argument("--minrate", type=int, default=0)
ap.add_argument("--m2", action="store_true")
ap.add_argument("--D1", type=int, default=0)
ap.add_argument("--D2", type=int, default=0)
ap.add_argument("--pace", type=int, default=0)
ap.add_argument("--warm", action="store_true")
ap.add_argument("--tkpos", type=int, default=8)
ap.add_argument("--map", type=int, default=0)
ap.add_argument("--touch", action="store_true")
ap.add_argument("--qhead", type=int, default=0)
ap.add_argument("--codepf2", action="store_true")
ap.add_argument("--oobq", action="store_true")
ap.add_argument("--oobo", action="store_true")
ap.add_argument("--f2bar", action="store_true")
ap.add_argument("--light", type=int, default=0)
ap.add_argument("--sleep", type=int, default=0)
ap.add_argument("--amp", type=int, default=-1)
ap.add_argument("--diagnum", action="store_true")
ap.add_argument("--LV", type=int, default=0)
ap.add_argument("--dma", default="stream")
ap.add_argument("--pf", type=int, default=0)
ap.add_argument("--pfmod", default="")
A = ap.parse_args()

L_PART = 0
L_QD = 4096
L_ST = 6144
L_YP = 6400
L_HN = 27136
HN_STRIDE = 1312
L_FP = 37888
L_W = 46080
LDS_BYTES = L_W + 81920
WS_H1 = 32768
WS_STAMP = 1 << 20
FFN1_N, FFN2_N = 27, 40
L_TK = 6208
SPIN_MAX = 400000

RING = 48; NRING = 32
WO = 176
def t4(r): return "v[%d:%d]" % (r, r + 3)
def soff(byte):
    hi, lo = byte // 4096, byte % 4096
    return ("0" if hi == 0 else "s%d" % (67 + hi)), lo

a = Asm()
stamp_idx = [0]
def stamp():
    if not A.stamp: return
    a("s_memrealtime s[90:91]\ns_waitcnt lgkmcnt(0)\ns_mov_b32 s%d, s90" % (92 + stamp_idx[0]))
    stamp_idx[0] += 1
    assert stamp_idx[0] <= 9

FINE = [4, 6, 8, 10, 14, 36, 38]
fine_i = [0]
def fine():
    if not A.fine: return
    r = FINE[fine_i[0]]; fine_i[0] += 1
    a("s_memtime s[%d:%d]" % (r, r + 1))

def wave_reduce(v, op, sdst):
    for m in ("quad_perm:[1,0,3,2] row_mask:0xf", "quad_perm:[2,3,0,1] row_mask:0xf", "row_half_mirror row_mask:0xf",
              "row_mirror row_mask:0xf", "row_bcast:15 row_mask:0xa", "row_bcast:31 row_mask:0xc"):
        a("%s_dpp %s, %s, %s %s bank_mask:0xf" % (op, v, v, v, m))
    a("v_readlane_b32 %s, %s, 63" % (sdst, v))

def ln_stats(vals, tmp, vmean_bf, vrinv):
    t0, t1, t2 = tmp
    a("v_add_f32 %s, %s, %s" % (t0, vals[0], vals[1]))
    a("v_add_f32 %s, %s, %s" % (t1, vals[2], vals[3]))
    for k in range(4, 10, 2):
        a("v_add_f32 %s, %s, %s" % (t0, t0, vals[k]))
        a("v_add_f32 %s, %s, %s" % (t1, t1, vals[k + 1]))
    a("v_add_f32 %s, %s, %s" % (t0, t0, t1))
    wave_reduce(t0, "v_add_f32", "s84")
    a("v_mov_b32 %s, 0x3acccccd" % t2)
    a("v_mul_f32 %s, s84, %s" % (vmean_bf, t2))
    a("v_sub_f32 %s, %s, %s" % (t1, vals[0], vmean_bf))
    a("v_mul_f32 %s, %s, %s" % (t0, t1, t1))
    for k in range(1, 10):
        a("v_sub_f32 %s, %s, %s" % (t1, vals[k], vmean_bf))
        a("v_fmac_f32 %s, %s, %s" % (t0, t1, t1))
    wave_reduce(t0, "v_add_f32", "s84")
    a("v_mul_f32 %s, s84, %s" % (t0, t2))
    a("v_cvt_pk_bf16_f32 %s, %s, %s" % (t0, t0, vmean_bf))
    a("v_and_b32 %s, 0xffff0000, %s" % (vmean_bf, t0))
    a("v_lshlrev_b32 %s, 16, %s" % (t0, t0))
    a("v_add_f32 %s, 0x3727c5ac, %s" % (t0, t0))
    a("v_cvt_pk_bf16_f32 %s, %s, %s" % (t0, t0, t0))
    a("v_lshlrev_b32 %s, 16, %s" % (t0, t0))
    a("v_sqrt_f32 %s, %s" % (t0, t0))
    a("v_cvt_pk_bf16_f32 %s, %s, %s" % (t0, t0, t0))
    a("v_lshlrev_b32 %s, 16, %s" % (t0, t0))
    a("v_rcp_f32 %s, %s" % (vrinv, t0))

def selector(abuf, src, lane):
    for r in range(4):
        a("v_and_b32_dpp v%d, %s, v%d row_newbcast:%d row_mask:0xf bank_mask:0xf" % (abuf + r, src, 6 + r, lane))

def srd(d, plo, nbytes):
    a("s_mov_b32 s%d, s%d\ns_mov_b32 s%d, s%d\ns_mov_b32 s%d, %s\ns_mov_b32 s%d, 0x20000" % (d, plo, d + 1, plo + 1, d + 2, nbytes, d + 3))

S = []
kv = [("k", n) for n in range(32)] + [("v", n) for n in range(32)]
if A.qspan:
    oa, ob = A.ospan
    qpos = [(t * A.qspan) // 20 for t in range(20)]
    opos = [oa + (t * (ob - oa)) // 20 for t in range(20)]
    for ki in range(64):
        S += [("q", t) for t in range(20) if qpos[t] == ki]
        S += [("o", t) for t in range(20) if opos[t] == ki]
        S.append(kv[ki])
else:
    qi = 0; ki = 0
    while qi < A.qhead:
        S.append(("q", qi)); qi += 1
    while qi < 20:
        for _ in range(A.qk):
            if qi < 20: S.append(("q", qi)); qi += 1
        S.append(kv[ki]); ki += 1
    oi = 0
    while ki < 64:
        S.append(kv[ki]); ki += 1
        if ki >= A.wo_start and (ki - A.wo_start) % A.wo_every == 0 and oi < 20:
            S.append(("o", oi)); oi += 1
    assert oi == 20
POS = {e: p for p, e in enumerate(S)}
free = list(range(NRING))
slot = {}
lend = list(range(32, 52))
st = {"issued": 0, "maxpos": -1, "gate": len(S)}
def reg_of(e):
    if e[0] == "o": return WO + 4 * e[1]
    return RING + 4 * slot[e]
def issue(e):
    kind, n = e
    if kind in "qkv":
        if free: slot[e] = free.pop(0)
        elif lend and kind != "v": slot[e] = lend.pop()
        else: return False
    if kind == "o":
        if (32 + n) not in lend: return False
        lend.remove(32 + n)
    if kind == "q":
        so = "0"
        if n: a("s_mov_b32 s78, %d" % (n * 8192 * (1, 4, 32)[A.qrow] if not (A.oobq and n >= 3) else 0x7f000000)); so = "s78"
        a("buffer_load_dwordx4 %s, v3, s[36:39], %s offen %s" % (t4(reg_of(e)), so, A.wmod))
    elif kind in "kv":
        sr = "s[28:31]" if kind == "k" else "s[32:35]"
        if A.pat == 0:
            so, im = soff(n * 1024)
        elif A.pat == 3:
            so, im = "0", (n & 1) * 1024
            if n >> 1: a("s_mov_b32 s78, %d" % ((n >> 1) * 8192)); so = "s78"
        elif A.pat == 4:
            so, im = "0", (n & 3) * 1024
            if n >> 2: a("s_mov_b32 s78, %d" % ((n >> 2) * 16384)); so = "s78"
        else:
            so, im = "0", 0
            if n: a("s_mov_b32 s78, %d" % (n * (8192 if A.pat == 1 else 4096))); so = "s78"
        a("buffer_load_dwordx4 %s, v2, %s, %s offen offset:%d %s" % (t4(reg_of(e)), sr, so, im, A.kvmod))
    elif kind == "o":
        so, im = soff(n * 256)
        if A.oobo and n >= 3:
            a("s_mov_b32 s78, 0x7f000000"); so = "s78"
        a("buffer_load_dwordx4 %s, v4, s[40:43], %s offen offset:%d %s" % (t4(reg_of(e)), so, im, A.wmod))
    return True
def pump(upto):
    upto = min(upto, len(S) - 1, st["gate"] - 1)
    while st["issued"] <= upto:
        if not issue(S[st["issued"]]): break
        st["issued"] += 1
def ready(e):
    p = POS[e]
    st["maxpos"] = max(st["maxpos"], p)
    before = st["issued"]
    pump(st["maxpos"] + A.L)
    if st["issued"] == before:
        st["idle"] = st.get("idle", 0) + 1
        if A.minrate and st["idle"] >= A.minrate:
            pump(st["issued"]); st["idle"] = 0
    else:
        st["idle"] = 0
    assert st["issued"] > p, (e, st)
    n = st["issued"] - 1 - p
    assert n <= 63
    a("s_waitcnt vmcnt(%d)" % n)
def done(e):
    sl = slot.pop(e)
    if sl >= 32:
        lend.append(sl); lend.sort()
    else:
        free.append(sl)

a("s_cmp_ge_u32 s2, 256")
a("s_cbranch_scc1 L_end")
a("s_load_dwordx16 s[4:19], s[0:1], 0")
a("s_load_dwordx4 s[20:23], s[0:1], 64")
a("s_load_dwordx2 s[24:25], s[0:1], 80")
if A.stamp:
    a("s_memrealtime s[90:91]")
a("v_and_b32 v1, 63, v0")
a("v_lshrrev_b32 v44, 6, v0")
a("v_lshrrev_b32 v45, 4, v1")
a("v_and_b32 v46, 15, v0")
a("v_readfirstlane_b32 s26, v44")
a("s_lshr_b32 s76, s2, 5")
if A.map == 0:
    a("s_and_b32 s77, s2, 31")
elif A.map == 1:
    a("s_and_b32 s77, s2, 7\ns_lshl_b32 s77, s77, 2\ns_bfe_u32 s84, s2, 0x20003\ns_or_b32 s77, s77, s84")
elif A.map == 2:
    a("s_and_b32 s77, s2, 7\ns_lshl_b32 s77, s77, 1\ns_bfe_u32 s84, s2, 0x10003\ns_or_b32 s77, s77, s84\ns_and_b32 s84, s2, 16\ns_or_b32 s77, s77, s84")
a("s_lshl_b32 s3, s76, 5\ns_or_b32 s3, s3, s77")
if A.pat == 0:
    a("v_lshlrev_b32 v2, 15, v44")
    a("v_lshl_add_u32 v2, v1, 4, v2")
elif A.pat == 1:
    a("v_lshlrev_b32 v2, 4, v0")
else:
    a("v_lshrrev_b32 v2, 8, v0\nv_lshlrev_b32 v2, 17, v2\nv_lshl_add_u32 v2, v1, 4, v2\nv_and_b32 v3, 3, v44")
    a("v_lshl_add_u32 v2, v3, %d, v2" % {2: 10, 3: 11, 4: 12}[A.pat])
a("v_lshl_add_u32 v47, v44, 2, v45")
if A.rot:
    a("s_lshl_b32 s84, s76, 2")
    a("v_add_u32 v5, s84, v47")
    a("v_and_b32 v5, 31, v5")
a("v_mul_u32_u24 v4, 5120, %s" % ("v5" if A.rot >= 2 else "v47"))
if A.rot: a("v_mov_b32 v47, v5")
if A.qrow == 0:
    a("v_mul_u32_u24 v47, 20, v47")
elif A.qrow == 1:
    a("v_lshrrev_b32 v47, 2, v47\nv_mul_u32_u24 v47, 80, v47\nv_add_u32 v47, v47, v45")
a("v_lshlrev_b32 v3, 13, v47")
a("v_lshl_add_u32 v3, v46, 4, v3")
a("v_lshl_add_u32 v4, v46, 4, v4")
a("v_mul_u32_u24 v32, 20, v1")
QS = (0, 2, 5)[A.qrow]
a("v_lshlrev_b32 v33, %d, v46" % QS)
a("v_add_lshl_u32 v33, v47, v33, 1")
a("v_and_b32 v34, 3, v0")
a("v_lshlrev_b32 v34, %d, v34" % QS)
a("v_add_lshl_u32 v34, v47, v34, 1")
a("s_mul_i32 s84, s76, 1280")
a("s_lshl_b32 s85, s77, 8")
a("s_lshl_b32 s86, s3, 20")
a("s_add_u32 s86, s86, 786432")
a("s_mov_b32 s46, 10240\ns_mov_b32 s47, 0x20000")
a("s_sub_u32 s38, 5242880, s85\ns_mov_b32 s39, 0x20000")
a("s_mov_b32 s30, 262144\ns_mov_b32 s31, 0x20000")
for k in range(1, 8):
    a("s_movk_i32 s%d, %d" % (67 + k, 4096 * k))
a("s_waitcnt lgkmcnt(0)")
if A.stamp:
    a("s_mov_b32 s92, s90"); stamp_idx[0] = 1
    if A.st8 == "karg":
        a("s_memrealtime s[90:91]\ns_waitcnt lgkmcnt(0)\ns_mov_b32 s100, s90")
a("s_mov_b32 s44, s4\ns_mov_b32 s45, s5")
a("s_add_u32 s36, s10, s85\ns_addc_u32 s37, s11, 0")
a("s_add_u32 s28, s6, s86\ns_addc_u32 s29, s7, 0")
if A.touch:
    a("s_load_dword s89, s[28:29], 0")
    a("s_add_u32 s32, s8, s86\ns_addc_u32 s33, s9, 0")
    a("s_load_dword s88, s[32:33], 0")
a("s_cmp_ge_u32 s2, 8")
a("s_cbranch_scc1 L_noinit")
srd(48, 24, "66560")
a("s_lshl_b32 s87, s2, 12")
a("v_lshlrev_b32 v35, 3, v0")
a("v_mov_b32 v36, 0\nv_mov_b32 v37, 0\nv_mov_b32 v38, -1\nv_mov_b32 v39, -1")
a("buffer_store_dwordx2 v[36:37], v35, s[48:51], s87 offen sc0 sc1")
a("s_add_u32 s87, s87, %d" % WS_H1)
a("buffer_store_dwordx2 v[38:39], v35, s[48:51], s87 offen sc0 sc1")
a("s_lshl_b32 s87, s2, 7\ns_add_u32 s87, s87, 65536")
a("v_and_b32 v35, 0x78, v35")
a("buffer_store_dwordx2 v[36:37], v35, s[48:51], s87 offen sc0 sc1")
a("L_noinit:")
a("buffer_load_dwordx4 v[16:19], v32, s[44:47], s84 offen")
a("buffer_load_dword v20, v32, s[44:47], s84 offen offset:16")
a("buffer_load_ushort v22, v33, s[44:47], s84 offen")
a("buffer_load_ushort v23, v34, s[44:47], s84 offen offset:%d" % (32 << QS))
st["gate"] = POS[("o", 0)]
pump(A.L)
n_first = st["issued"]
if A.codepf:
    a("s_getpc_b64 s[84:85]")
    a("L_pc:")
    a("s_sub_u32 s84, s84, L_pc-%s_kernel" % NAME)
    a("s_subb_u32 s85, s85, 0")
    a("v_lshlrev_b32 v35, 5, v0")
    a("v_min_u32 v35, L_end-%s_kernel, v35" % NAME)
    a("global_load_dword v5, v35, s[84:85]")
a("s_add_u32 s32, s8, s86\ns_addc_u32 s33, s9, 0\ns_mov_b32 s34, 262144\ns_mov_b32 s35, 0x20000")
a("s_mul_i32 s85, s77, 163840")
a("s_add_u32 s40, s12, s85\ns_addc_u32 s41, s13, 0\ns_mov_b32 s42, 163840\ns_mov_b32 s43, 0x20000")
srd(48, 24, "66560")
srd(56, 20, "10240")
a("s_add_u32 s60, s24, %d\ns_addc_u32 s61, s25, 0\ns_mov_b32 s62, 27648\ns_mov_b32 s63, 0x20000" % WS_H1)
srd(64, 22, "256")
a("s_mov_b32 s80, 0xcccccccc\ns_mov_b32 s81, 0xcccccccc\ns_mov_b32 s82, 0xaaaaaaaa\ns_mov_b32 s83, 0xaaaaaaaa")
a("v_and_b32 v35, 1, v0")
a("v_lshlrev_b32 v35, 4, v35")
a("v_mov_b32 v38, 0xffff")
a("v_lshlrev_b32 v38, v35, v38")
a("v_lshrrev_b32 v37, 1, v46")
for r in range(4):
    a("v_cmp_eq_u32 vcc, %d, v37" % r)
    a("v_cndmask_b32 v%d, 0, v38, vcc" % (6 + r))
a("v_lshlrev_b32 v47, 9, v44")
a("v_lshl_add_u32 v47, v46, 5, v47")
a("v_lshl_add_u32 v47, v45, 4, v47")
st["gate"] = len(S)

a("s_waitcnt vmcnt(%d)" % (n_first + (1 if A.codepf else 0)))
if A.stamp and A.st8 == "x":
    a("s_memrealtime s[90:91]\ns_waitcnt lgkmcnt(0)\ns_mov_b32 s100, s90")
for k in range(5):
    a("v_lshlrev_b32 v%d, 16, v%d" % (24 + 2 * k, 16 + k))
    a("v_and_b32 v%d, 0xffff0000, v%d" % (25 + 2 * k, 16 + k))
ln_stats(["v%d" % (24 + k) for k in range(10)], ["v34", "v35", "v37"], "v38", "v39")
for r in (22, 23):
    a("v_lshlrev_b32 v%d, 16, v%d" % (r, r))
    a("v_sub_f32 v%d, v%d, v38" % (r, r))
    a("v_cvt_pk_bf16_f32 v%d, v%d, v%d" % (r, r, r))
    a("v_lshlrev_b32 v%d, 16, v%d" % (r, r))
    a("v_mul_f32 v%d, v%d, v39" % (r, r))
    a("v_cvt_pk_bf16_f32 v%d, v%d, v%d" % (r, r, r))
for t in range(20):
    ab = 24 + 4 * (t & 1)
    selector(ab, "v22" if t < 16 else "v23", t & 15)
    e = ("q", t)
    ready(e)
    if A.stamp and A.st8 == "q%d" % t:
        a("s_memrealtime s[90:91]\ns_waitcnt lgkmcnt(0)\ns_mov_b32 s100, s90")
    a("v_mfma_f32_16x16x32_bf16 v[40:43], %s, %s, %s" % (t4(ab), t4(reg_of(e)), "0" if t == 0 else "v[40:43]"))
    done(e)
a("s_mov_b32 exec_hi, 0")
a("ds_write_b128 v47, v[40:43] offset:%d" % L_PART)
a("s_mov_b64 exec, -1")
a("v_lshlrev_b32 v25, 3, v1")
a("s_waitcnt lgkmcnt(0)")
a("s_barrier")
a("s_cmp_ge_u32 s2, 8")
a("s_cbranch_scc1 L_nosig")
a("s_cmp_lg_u32 s26, 0")
a("s_cbranch_scc1 L_nosig")
a("v_mov_b32 v26, 0\nv_mov_b32 v27, 1")
a("s_mov_b64 exec, 1")
a("buffer_atomic_add v27, v26, s[64:67], 0 offen sc1")
a("s_mov_b64 exec, -1")
a("L_nosig:")
if A.diagnum:
    a("s_cmp_lg_u32 s26, 0\ns_cbranch_scc1 L_nodiag")
    a("s_getreg_b32 s84, hwreg(HW_REG_XCC_ID)\ns_sub_u32 s84, s84, s2\ns_and_b32 s84, s84, 7\ns_lshl_b32 s84, 1, s84")
    a("v_mov_b32 v26, 0\nv_mov_b32 v27, s84\ns_mov_b64 exec, 1")
    a("buffer_atomic_or v27, v26, s[64:67], 0 offen offset:32 sc1\ns_mov_b64 exec, -1")
    a("L_nodiag:")
for w in range(8):
    a("ds_read_b64 v[%d:%d], v25 offset:%d" % (28 + 2 * w, 29 + 2 * w, L_PART + 512 * w))
a("s_waitcnt lgkmcnt(0)")
for w in range(1, 8):
    a("v_add_f32 v28, v28, v%d" % (28 + 2 * w))
    a("v_add_f32 v29, v29, v%d" % (29 + 2 * w))
a("v_cvt_pk_bf16_f32 v28, v28, v29")
a("v_lshlrev_b32 v25, 2, v0")
a("ds_write_b32 v25, v28 offset:%d" % L_QD)
a("v_lshlrev_b32 v25, 8, v44")
a("v_lshl_add_u32 v25, v46, 4, v25")
a("s_waitcnt lgkmcnt(0)")
a("ds_read_b128 v[10:13], v25 offset:%d" % L_QD)
a("s_waitcnt lgkmcnt(0)")
stamp()

def reduce_scatter(dst):
    for n in range(8):
        a("v_add_f32_dpp v%d, v%d, v%d row_mirror row_mask:0xf bank_mask:0x3" % (16 + n, 16 + n, 16 + n))
    for n in range(8):
        a("v_add_f32_dpp v%d, v%d, v%d row_mirror row_mask:0xf bank_mask:0xc" % (16 + n, 24 + n, 24 + n))
    for n in range(4):
        a("v_add_f32_dpp v%d, v%d, v%d row_half_mirror row_mask:0xf bank_mask:0x5" % (16 + n, 16 + n, 16 + n))
    for n in range(4):
        a("v_add_f32_dpp v%d, v%d, v%d row_half_mirror row_mask:0xf bank_mask:0xa" % (16 + n, 20 + n, 20 + n))
    for n in range(4):
        a("v_add_f32_dpp v%d, v%d, v%d quad_perm:[3,2,1,0] row_mask:0xf bank_mask:0xf" % (16 + n, 16 + n, 16 + n))
    a("v_cndmask_b32 v16, v16, v18, s[80:81]")
    a("v_cndmask_b32 v17, v17, v19, s[80:81]")
    a("v_add_f32_dpp v16, v16, v16 quad_perm:[1,0,3,2] row_mask:0xf bank_mask:0xf")
    a("v_add_f32_dpp v17, v17, v17 quad_perm:[1,0,3,2] row_mask:0xf bank_mask:0xf")
    a("v_cndmask_b32 %s, v16, v17, s[82:83]" % dst)

for n in range(32):
    e = ("k", n)
    ready(e)
    acc = 16 + (n & 15)
    for r in range(4):
        a("v_dot2_f32_bf16 v%d, v%d, v%d, %s" % (acc, reg_of(e) + r, 10 + r, "0" if r == 0 else "v%d" % acc))
    done(e)
    if n == 15: reduce_scatter("v14")
    if n == 31: reduce_scatter("v15")
stamp()

a("v_cvt_pk_bf16_f32 v16, v14, v15")
a("v_lshlrev_b32 v14, 16, v16")
a("v_and_b32 v15, 0xffff0000, v16")
a("v_mul_f32 v14, 0x3db504f3, v14")
a("v_mul_f32 v15, 0x3db504f3, v15")
a("v_cvt_pk_bf16_f32 v16, v14, v15")
a("v_lshlrev_b32 v14, 16, v16")
a("v_and_b32 v15, 0xffff0000, v16")
a("v_max_f32 v16, v14, v15")
wave_reduce("v16", "v_max_f32", "s84")
a("v_subrev_f32 v16, s84, v14")
a("v_subrev_f32 v17, s84, v15")
a("v_mul_f32 v16, 0x3fb8aa3b, v16")
a("v_mul_f32 v17, 0x3fb8aa3b, v17")
a("v_exp_f32 v16, v16")
a("v_exp_f32 v17, v17")
a("v_add_f32 v16, v16, v17")
wave_reduce("v16", "v_add_f32", "s85")
a("v_mov_b32 v16, s84")
a("v_mov_b32 v17, s85")
a("v_lshlrev_b32 v18, 3, v44")
a("s_mov_b64 exec, 1")
a("ds_write_b64 v18, v[16:17] offset:%d" % L_ST)
a("s_mov_b64 exec, -1")
a("v_and_b32 v18, 7, v0")
a("v_lshlrev_b32 v18, 3, v18")
a("s_waitcnt lgkmcnt(0)")
a("s_barrier")
a("ds_read_b64 v[16:17], v18 offset:%d" % L_ST)
a("s_waitcnt lgkmcnt(0)")
a("v_mov_b32 v18, v16")
for m in ("quad_perm:[1,0,3,2]", "quad_perm:[2,3,0,1]", "row_half_mirror"):
    a("v_max_f32_dpp v18, v18, v18 %s row_mask:0xf bank_mask:0xf" % m)
a("v_sub_f32 v16, v16, v18")
a("v_mul_f32 v16, 0x3fb8aa3b, v16")
a("v_exp_f32 v16, v16")
a("v_mul_f32 v16, v16, v17")
for m in ("quad_perm:[1,0,3,2]", "quad_perm:[2,3,0,1]", "row_half_mirror"):
    a("v_add_f32_dpp v16, v16, v16 %s row_mask:0xf bank_mask:0xf" % m)
a("v_rcp_f32 v16, v16")
a("v_sub_f32 v14, v14, v18")
a("v_sub_f32 v15, v15, v18")
a("v_mul_f32 v14, 0x3fb8aa3b, v14")
a("v_mul_f32 v15, 0x3fb8aa3b, v15")
a("v_exp_f32 v14, v14")
a("v_exp_f32 v15, v15")
a("v_mul_f32 v14, v14, v16")
a("v_mul_f32 v15, v15, v16")
a("v_cvt_pk_bf16_f32 v14, v14, v14")
a("v_cvt_pk_bf16_f32 v15, v15, v15")
stamp()

def pv(n):
    ab = 32 + 4 * (n & 1)
    selector(ab, "v14" if n < 16 else "v15", n & 15)
    e = ("v", n)
    ready(e)
    a("v_mfma_f32_16x16x32_bf16 v[40:43], %s, %s, %s" % (t4(ab), t4(reg_of(e)), "0" if n == 0 else "v[40:43]"))
    done(e)

def dma(n, vregs, step):
    for t in range(n):
        a("s_mov_b32 m0, s3")
        a("buffer_load_dwordx4 %s, s[52:55], s13 offen %s lds" % (vregs[t % len(vregs)], A.dmod))
        if t < n - 1:
            a("s_add_u32 s3, s3, 1024")
            a("s_add_u32 s13, s13, %d" % step)

a("v_lshrrev_b32 v16, 2, v46")
a("v_lshlrev_b32 v16, 10, v16")
if A.rot >= 2:
    a("v_add_u32 v17, s76, v44")
    a("v_and_b32 v17, 7, v17")
    a("v_lshl_add_u32 v16, v17, 6, v16")
else:
    a("v_lshl_add_u32 v16, v44, 6, v16")
a("v_lshl_add_u32 v16, v45, 4, v16")
a("v_and_b32 v17, 3, v0")
a("v_lshl_add_u32 v16, v17, 2, v16")
a("v_mul_u32_u24 v18, 2560, v44")
a("v_lshl_add_u32 v18, v46, 5, v18")
a("v_lshl_add_u32 v18, v45, 4, v18")
a("v_bfe_u32 v19, v0, 2, 6")
a("v_mul_u32_u24 v19, 5, v19")
a("v_lshrrev_b32 v20, 8, v0")
a("v_mul_u32_u24 v20, 3, v20")
a("v_add3_u32 v19, v19, v20, v17")
a("v_lshlrev_b32 v19, 3, v19")
a("v_lshlrev_b32 v20, 2, v0")
a("v_mov_b32 v21, 0\nv_mov_b32 v22, 1")
a("s_and_b32 s77, s2, 7\ns_lshl_b32 s75, s77, 7\ns_add_u32 s75, s75, 65536")
a("s_mov_b32 s86, 0x88888888\ns_mov_b32 s87, 0x88888888")
if A.op2:
    for r in range(4):
        a("v_mov_b32_dpp v%d, v%d row_ror:8 row_mask:0xf bank_mask:0xf" % (27 + r, 6 + r))
    a("v_mul_u32_u24 v31, 2560, v44")
    a("v_lshrrev_b32 v11, 1, v45")
    a("v_lshl_add_u32 v31, v11, 9, v31")
    a("v_lshl_add_u32 v31, v46, 5, v31")
    a("v_and_b32 v11, 1, v45")
    a("v_lshl_add_u32 v31, v11, 4, v31")
a("v_mul_u32_u24 v5, 80, v44")
a("v_lshrrev_b32 v11, 3, v1")
a("v_add_u32 v5, v5, v11")
a("v_mul_u32_u24 v5, 3456, v5")
a("v_and_b32 v11, 2, v11")
a("v_and_b32 v10, 7, v0")
a("v_xor_b32 v11, v10, v11")
a("v_lshl_add_u32 v25, v11, 4, v5")
a("v_xor_b32 v11, 4, v11")
a("v_lshl_add_u32 v26, v11, 4, v5")
a("s_mul_i32 s3, s26, 10240")
a("s_add_u32 s3, s3, %d" % L_W)
if A.pf:
    a("s_lshr_b32 s84, s2, 3")
    a("s_cmp_ge_u32 s26, 4")
    a("s_cselect_b32 s52, s18, s16\ns_cselect_b32 s53, s19, s17")
    a("s_mov_b32 s54, 2211840\ns_mov_b32 s55, 0x20000")
    a("v_mov_b32 v12, 0x7fffff00")
    a("s_cbranch_scc1 L_pf2")
    a("s_and_b32 s85, s84, 7\ns_mul_i32 s85, s85, 80")
    a("v_lshrrev_b32 v23, 1, v0")
    a("v_add_u32 v23, s85, v23")
    a("v_mul_u32_u24 v23, 3456, v23")
    a("v_and_b32 v13, 1, v0")
    a("v_lshl_add_u32 v23, v13, 6, v23")
    a("s_and_b32 s85, s84, 0x18\ns_add_u32 s85, s85, s77")
    a("s_cmp_lt_u32 s85, 27")
    a("s_cselect_b32 s84, 160, 0")
    a("s_lshl_b32 s85, s85, 7")
    a("v_add_u32 v23, s85, v23")
    a("v_cmp_gt_u32 vcc, s84, v0")
    a("v_cndmask_b32 v23, v12, v23, vcc")
    a("s_branch L_pfdone")
    a("L_pf2:")
    a("s_mul_i32 s84, s84, 54")
    a("v_bfe_u32 v23, v0, 2, 6")
    a("v_add_u32 v23, s84, v23")
    a("v_mul_u32_u24 v23, 1280, v23")
    a("v_lshl_add_u32 v23, v17, 6, v23")
    a("s_mul_i32 s85, s77, 160\ns_and_b32 s85, s85, 0xff80")
    a("v_add_u32 v23, s85, v23")
    a("v_cmp_gt_u32 vcc, %d, v0" % (256 + 216))
    a("v_cndmask_b32 v23, v12, v23, vcc")
    a("L_pfdone:")

if A.codepf2:
    a("s_getpc_b64 s[84:85]")
    a("L_pc2:")
    a("v_lshlrev_b32 v12, 4, v0")
    a("v_add_u32 v12, 1792, v12")
    a("v_min_u32 v12, L_end-L_pc2, v12")
    a("global_load_dword v13, v12, s[84:85]")
if A.LV: A.L = A.LV
for n in range(32):
    pv(n)
    if A.pf >= 10 and n == A.pf - 10:
        a("buffer_load_dword v24, v23, s[52:55], 0 offen %s" % A.pfmod)
    if n == A.tkpos - 4: a("s_load_dword s89, s[22:23], 0")
    if n == A.tkpos:
        a("s_waitcnt lgkmcnt(0)")
        a("s_cmp_ge_u32 s89, 8")
        a("s_cbranch_scc0 L_initslow")
        a("L_initok:")
        a("s_cmp_lg_u32 s26, 0")
        a("s_cbranch_scc1 L_notk")
        a("s_mov_b64 exec, 1")
        a("buffer_atomic_add v22, v21, s[48:51], s75 offen sc0 sc1")
        a("s_mov_b64 exec, -1")
        a("L_notk:")
assert st["issued"] == len(S)
stamp()
fine()
if A.pf == 2:
    a("buffer_load_dword v24, v23, s[52:55], 0 offen %s" % A.pfmod)
a("s_mov_b32 exec_hi, 0")
a("ds_write_b128 v47, v[40:43] offset:%d" % L_PART)
a("s_cmp_lg_u32 s26, 0")
a("s_cbranch_scc1 L_notk2")
a("s_waitcnt vmcnt(0)")
a("s_mov_b64 exec, 1")
a("ds_write_b32 v21, v22 offset:%d" % L_TK)
a("L_notk2:")
a("s_mov_b64 exec, -1")
a("s_waitcnt lgkmcnt(0)")
a("s_barrier")
fine()
a("ds_read2st64_b32 v[10:11], v16 offset0:%d offset1:%d" % (L_PART // 256, L_PART // 256 + 2))
if A.pf == 1:
    a("buffer_load_dword v24, v23, s[52:55], 0 offen %s" % A.pfmod)
a("ds_read_b32 v12, v21 offset:%d" % L_TK)
a("s_waitcnt lgkmcnt(0)")
a("v_add_f32 v10, v10, v11")
a("v_readfirstlane_b32 s79, v12")
if A.edma:
    a("s_lshl_b32 s84, s79, 3\ns_add_u32 s84, s84, s77\ns_sub_u32 s84, s84, %d" % FFN2_N)
    a("s_min_u32 s85, s79, 9\ns_cmp_lt_u32 s85, 9\ns_cselect_b32 s84, s84, 99")
    a("s_cmp_ge_u32 s84, %d" % FFN1_N)
    a("s_cbranch_scc1 L_noedma")
    a("s_mov_b32 s52, s16\ns_mov_b32 s53, s17\ns_mov_b32 s54, 2211840\ns_mov_b32 s55, 0x20000")
    a("s_lshl_b32 s13, s84, 7")
    dma(10, ["v25", "v26"], 27648)
    a("L_noedma:")
a("v_add_f32_dpp v10, v10, v10 row_ror:4 row_mask:0xf bank_mask:0xf")
a("v_add_f32_dpp v10, v10, v10 row_ror:8 row_mask:0xf bank_mask:0xf")
a("v_cvt_pk_bf16_f32 v10, v10, v10")
fine()
YA = 128
if A.op2:
    def sel2(r4, hi):
        for r in range(4):
            a("v_and_b32_dpp v%d, v10, v%d row_newbcast:%d row_mask:0xf bank_mask:0xf" % (48 + 8 * r4 + 4 * hi + r, (27 if hi else 6) + r, r4))
    def mm(acc, r4, hi, cb, first):
        a("v_mfma_f32_16x16x32_bf16 %s, %s, %s, %s" % (t4(acc), t4(48 + 8 * r4 + 4 * hi), t4(WO + 4 * (5 * r4 + cb)), "0" if first else t4(acc)))
    sel2(0, 0); sel2(0, 1)
    for r4 in range(4):
        mm(YA, r4, 0, 0, r4 == 0)
        if r4 < 3: sel2(r4 + 1, 0)
        mm(YA, r4, 1, 1, False)
        if r4 < 3: sel2(r4 + 1, 1)
    for r4 in range(4):
        mm(YA + 4, r4, 0, 2, r4 == 0)
        mm(YA + 4, r4, 1, 3, False)
    a("ds_write_b128 v31, %s offset:%d" % (t4(YA), L_YP))
    for r4 in range(4):
        mm(YA + 8, r4, 0, 4, r4 == 0)
    a("ds_write_b128 v31, %s offset:%d" % (t4(YA + 4), L_YP + 1024))
    a("s_mov_b32 exec_hi, 0")
    a("ds_write_b128 v31, %s offset:%d" % (t4(YA + 8), L_YP + 2048))
    a("s_mov_b64 exec, -1")
else:
    for r4 in range(4):
        ab = 32 + 4 * (r4 & 1)
        selector(ab, "v10", r4)
        for cb in range(5):
            acc = t4(YA + 4 * cb)
            a("v_mfma_f32_16x16x32_bf16 %s, %s, %s, %s" % (acc, t4(ab), t4(WO + 4 * (5 * r4 + cb)), "0" if r4 == 0 else acc))
    a("s_mov_b32 exec_hi, 0")
    for cb in range(5):
        a("ds_write_b128 v18, %s offset:%d" % (t4(YA + 4 * cb), L_YP + 512 * cb))
    a("s_mov_b64 exec, -1")
if A.pf == 3:
    a("buffer_load_dword v24, v23, s[52:55], 0 offen %s" % A.pfmod)
fine()
a("s_lshl_b32 s84, s76, 12")
a("s_waitcnt lgkmcnt(0)")
fine()
if A.fine: a("s_waitcnt lgkmcnt(0)")
a("s_barrier")
fine()
if A.fine: a("s_waitcnt lgkmcnt(0)")
YS = 148
for w in range(8):
    a("ds_read_b64 v[%d:%d], v19 offset:%d" % (YS + 2 * w, YS + 2 * w + 1, L_YP + 2560 * w))
for s_ in (4, 2, 1):
    for w in range(s_):
        if s_ == 4: a("s_waitcnt lgkmcnt(%d)" % (3 - w))
        a("v_pk_add_f32 v[%d:%d], v[%d:%d], v[%d:%d]" % (YS + 2 * w, YS + 2 * w + 1, YS + 2 * w, YS + 2 * w + 1, YS + 2 * (w + s_), YS + 2 * (w + s_) + 1))
a("v_cndmask_b32 v10, v%d, 1.0, s[86:87]" % YS)
a("v_cndmask_b32 v11, v%d, 1.0, s[86:87]" % (YS + 1))
a("buffer_atomic_add_f32 v10, v20, s[48:51], s84 offen")
a("buffer_atomic_add_f32 v11, v20, s[48:51], s84 offen offset:2048")
if A.pf == 4:
    a("buffer_load_dword v24, v23, s[52:55], 0 offen %s" % A.pfmod)
fine()
stamp()
if A.fine:
    for k, sl in enumerate((93, 94, 95, 98, 99, 100)):
        a("s_sub_u32 s%d, s%d, s%d" % (sl, FINE[k + 1], FINE[k]))
    a("s_mov_b32 s27, 99\ns_branch L_fin")
a("s_mov_b32 s27, 99")
a("s_cmp_ge_u32 s79, 9")
a("s_cbranch_scc1 L_fin")
a("s_barrier")
a("s_mov_b32 s54, 2211840\ns_mov_b32 s55, 0x20000")
a("s_mov_b32 s85, 0x42000000")
a("s_mov_b32 s88, 0")
a("v_and_b32 v10, 7, v0")
a("s_mul_i32 s27, s77, 5\ns_add_u32 s27, s27, s79")
a("s_cmp_lt_u32 s79, 5")
a("s_cbranch_scc1 L_ffn2")
a("s_lshl_b32 s27, s79, 3\ns_add_u32 s27, s27, s77")
a("s_cmp_ge_u32 s27, %d" % (FFN2_N + FFN1_N))
a("s_cbranch_scc1 L_fin")

AF = 48; BF = 128; XF = 208; GR = 220
a("s_sub_u32 s79, s27, %d" % FFN2_N)
a("s_mov_b32 s52, s16\ns_mov_b32 s53, s17")
a("s_lshl_b32 s13, s79, 7")
if not A.edma:
    dma(10, ["v25", "v26"], 27648)
a("v_mul_u32_u24 v23, 20, v1")
a("v_mul_u32_u24 v21, 1280, v44")
a("v_add_u32 v21, v21, v23")
a("buffer_load_dwordx4 v[24:27], v21, s[44:47], 0 offen")
a("buffer_load_dword v28, v21, s[44:47], 0 offen offset:16")
a("v_lshlrev_b32 v22, 12, v44")
a("v_lshl_add_u32 v22, v1, 4, v22")
def poll1_issue():
    for m in range(4):
        a("buffer_load_dwordx4 %s, v22, s[48:51], 0 offen offset:%d %s" % (t4(GR + 4 * m), 1024 * m, A.pmod))
if not A.nopre: poll1_issue()
a("v_mul_u32_u24 v11, %d, v44" % HN_STRIDE)
a("v_add_u32 v23, v23, v11")
a("v_add_u32 v35, %d, v23" % L_HN)
a("v_mul_u32_u24 v29, %d, v10" % HN_STRIDE)
a("v_lshl_add_u32 v29, v45, 4, v29")
a("v_lshlrev_b32 v30, 4, v10")
a("v_lshl_add_u32 v30, v44, 8, v30")
a("v_lshrrev_b32 v11, 1, v45")
a("v_lshl_add_u32 v30, v11, 7, v30")
a("v_and_b32 v11, 1, v45")
a("v_lshl_add_u32 v30, v11, 3, v30")
a("v_lshrrev_b32 v12, 2, v46")
a("v_lshl_add_u32 v12, v45, 3, v12")
a("v_lshlrev_b32 v12, 7, v12")
a("v_lshrrev_b32 v13, 3, v46")
a("v_lshl_add_u32 v13, v11, 1, v13")
a("v_and_b32 v11, 3, v44")
a("v_xor_b32 v11, v11, v13")
a("v_lshl_add_u32 v12, v11, 5, v12")
a("v_lshl_add_u32 v12, v17, 3, v12")
a("v_add_u32 v12, %d, v12" % L_W)
a("v_add_u32 v13, 40960, v12")
a("s_waitcnt vmcnt(%d)" % ((0 if A.nopre else 4) + (4 if A.edma else 0)))
if A.stamp and A.st8 == "dma":
    a("s_memrealtime s[90:91]\ns_waitcnt lgkmcnt(0)\ns_mov_b32 s100, s90")
a("s_barrier")
a("s_cmp_ge_u32 s26, 4")
a("s_cbranch_scc1 L_notr")
for ks in range(20):
    base, off = ("v12", ks * 4096) if ks < 10 else ("v13", (ks - 10) * 4096)
    a("ds_read_b64_tr_b16 v[%d:%d], %s offset:%d" % (AF + 4 * ks, AF + 4 * ks + 1, base, off))
    a("ds_read_b64_tr_b16 v[%d:%d], %s offset:%d" % (AF + 4 * ks + 2, AF + 4 * ks + 3, base, off + 512))
a("L_notr:")
if A.nopre and not A.light: poll1_issue()
if A.light: a("v_mov_b32 v%d, 0" % (GR + 3))
if A.edma: a("s_waitcnt vmcnt(4)")
for k in range(5):
    a("v_lshlrev_b32 v%d, 16, v%d" % (XF + 2 * k, 24 + k))
    a("v_and_b32 v%d, 0xffff0000, v%d" % (XF + 2 * k + 1, 24 + k))
if A.light:
    import struct as _st
    a("s_mov_b32 s84, 0x%08x" % _st.unpack("<I", _st.pack("<f", float(A.light)))[0])
    a("s_waitcnt vmcnt(0)")
    a("s_mov_b32 s78, 1")
    a("s_mov_b64 exec, 1")
    a("L_light:")
    a("v_cmp_gt_f32 vcc, s84, v%d" % (GR + 3))
    a("s_add_u32 s88, s88, 1")
    a("s_cmp_gt_u32 s88, %d" % SPIN_MAX)
    a("s_cbranch_scc1 L_light_done")
    a("s_cbranch_vccz L_light_done")
    if A.sleep: a("s_sleep %d" % A.sleep)
    a("buffer_load_dword v%d, v22, s[48:51], 0 offen offset:12 %s" % (GR + 3, A.pmod))
    a("s_waitcnt vmcnt(0)")
    a("s_branch L_light")
    a("L_light_done:")
    a("s_mov_b64 exec, -1")
elif A.warm:
    a("s_mov_b32 s78, 0")
    a("s_waitcnt vmcnt(0)")
    a("s_branch L_f1_body")
else:
    a("s_mov_b32 s78, 1")
    a("s_branch L_poll1_chk")
if A.D1:
    sets = [GR] + [BF + 16 * k for k in range(A.D1 - 1)]
    def p1(g):
        for m in range(4):
            a("buffer_load_dwordx4 %s, v22, s[48:51], 0 offen offset:%d %s" % (t4(g + 4 * m), 1024 * m, A.pmod))
    a("L_poll1_chk:")
    for g in sets[1:]:
        if A.pace: a("s_sleep %d" % A.pace)
        p1(g)
    a("L_poll1:")
    for k, g in enumerate(sets):
        a("s_waitcnt vmcnt(%d)" % (4 * (A.D1 - 1)))
        a("v_min_f32 v31, v%d, v%d" % (g + 3, g + 7))
        a("v_min3_f32 v31, v31, v%d, v%d" % (g + 11, g + 15))
        a("v_cmp_ne_u32 vcc, s85, v31")
        a("s_cbranch_vccz L_p1x%d" % k)
        if A.pace: a("s_sleep %d" % A.pace)
        p1(g)
    a("s_add_u32 s88, s88, 1")
    a("s_cmp_gt_u32 s88, %d" % SPIN_MAX)
    a("s_cbranch_scc0 L_poll1")
    for k, g in reversed(list(enumerate(sets))):
        a("L_p1x%d:" % k)
        for q, (x, y) in enumerate([(0, 8), (1, 9), (2, 10), (4, 12), (5, 13)]):
            a("v_cvt_pk_bf16_f32 v%d, v%d, v%d" % (24 + q, g + x, g + y))
        if k: a("s_branch L_p1done")
    a("L_p1done:")
    stamp()
    XH = 238
    GR = 10
else:
    a("L_poll1:")
    poll1_issue()
    a("L_poll1_chk:")
    a("s_add_u32 s88, s88, 1")
    a("s_waitcnt vmcnt(0)")
    a("v_min_f32 v31, v%d, v%d" % (GR + 3, GR + 7))
    a("v_min3_f32 v31, v31, v%d, v%d" % (GR + 11, GR + 15))
    a("v_cmp_ne_u32 vcc, s85, v31")
    a("s_cmp_gt_u32 s88, %d" % SPIN_MAX)
    a("s_cbranch_scc1 L_poll1_done")
    a("s_cbranch_vccnz L_poll1")
    a("L_poll1_done:")
    stamp()
    a("L_f1_body:")
    XH = 238
    pairs = [(GR + 0, GR + 8), (GR + 1, GR + 9), (GR + 2, GR + 10), (GR + 4, GR + 12), (GR + 5, GR + 13)]
    for k in range(5):
        a("v_cvt_pk_bf16_f32 v%d, v%d, v%d" % (24 + k, pairs[k][0], pairs[k][1]))
if A.ln1:
    def pk(op, d, x, y, extra=""):
        a("%s v[%d:%d], v[%d:%d], v[%d:%d]%s" % (op, d, d + 1, x, x + 1, y, y + 1, extra))
    def unpack(d, src):
        a("v_lshlrev_b32 v%d, 16, v%d" % (d, src)); a("v_and_b32 v%d, 0xffff0000, v%d" % (d + 1, src))
    for k in range(5): unpack(GR + 2 * k, 24 + k)
    for k in range(5): pk("v_pk_add_f32", GR + 2 * k, GR + 2 * k, XF + 2 * k)
    for k in range(5): a("v_cvt_pk_bf16_f32 v%d, v%d, v%d" % (24 + k, GR + 2 * k, GR + 2 * k + 1))
    a("s_mov_b32 s12, 0x3f803f80")
    for k in range(5):
        a("v_dot2_f32_bf16 v32, v%d, s12, %s" % (24 + k, "0" if k == 0 else "v32"))
        a("v_dot2_f32_bf16 v33, v%d, v%d, %s" % (24 + k, 24 + k, "0" if k == 0 else "v33"))
    fill = [("v_lshlrev_b32 v%d, 16, v%d" % (XH + 2 * k, 24 + k), "v_and_b32 v%d, 0xffff0000, v%d" % (XH + 2 * k + 1, 24 + k)) for k in range(5)]
    fill = [x for pr in fill for x in pr]
    a(fill.pop(0)); a(fill.pop(0)); a(fill.pop(0))
    for m in ("quad_perm:[1,0,3,2] row_mask:0xf", "quad_perm:[2,3,0,1] row_mask:0xf", "row_half_mirror row_mask:0xf",
              "row_mirror row_mask:0xf", "row_bcast:15 row_mask:0xa", "row_bcast:31 row_mask:0xc"):
        a("v_add_f32_dpp v32, v32, v32 %s bank_mask:0xf" % m)
        a("v_add_f32_dpp v33, v33, v33 %s bank_mask:0xf" % m)
        a(fill.pop(0))
    a("v_readlane_b32 s84, v32, 63")
    a("v_readlane_b32 s12, v33, 63")
    a(fill.pop(0))
    a("v_mov_b32 v33, 0x3acccccd")
    a("v_mul_f32 v38, s84, v33")
    a("v_mul_f32 v32, s12, v33")
    a("v_fma_f32 v32, -v38, v38, v32")
    a("v_max_f32 v32, 0, v32")
    a("v_cvt_pk_bf16_f32 v32, v32, v38")
    a("v_and_b32 v38, 0xffff0000, v32")
    a("v_lshlrev_b32 v32, 16, v32")
    a("v_add_f32 v32, 0x3727c5ac, v32")
    a("v_mov_b32 v39, v38")
    a("v_cvt_pk_bf16_f32 v32, v32, v32")
    for k in range(2): pk("v_pk_add_f32", XH + 2 * k, XH + 2 * k, 38, " neg_lo:[0,1] neg_hi:[0,1]")
    a("v_lshlrev_b32 v32, 16, v32")
    a("v_sqrt_f32 v32, v32")
    for k in range(2, 5): pk("v_pk_add_f32", XH + 2 * k, XH + 2 * k, 38, " neg_lo:[0,1] neg_hi:[0,1]")
    a("v_cvt_pk_bf16_f32 v32, v32, v32")
    for k in range(5): a("v_cvt_pk_bf16_f32 v%d, v%d, v%d" % (24 + k, XH + 2 * k, XH + 2 * k + 1))
    a("v_lshlrev_b32 v32, 16, v32")
    a("v_rcp_f32 v36, v32")
    for k in range(5): unpack(XH + 2 * k, 24 + k)
    a("v_mov_b32 v37, v36")
    for k in range(5): pk("v_pk_mul_f32", XH + 2 * k, XH + 2 * k, 36)
    for k in range(5): a("v_cvt_pk_bf16_f32 v%d, v%d, v%d" % (24 + k, XH + 2 * k, XH + 2 * k + 1))
    a("v_add_u32 v23, %d, v23" % L_HN) if False else None
    a("ds_write2_b32 v35, v24, v25 offset0:0 offset1:1")
    a("ds_write2_b32 v35, v26, v27 offset0:2 offset1:3")
    a("ds_write_b32 v35, v28 offset:16")
else:
    for k in range(5):
        a("v_lshlrev_b32 v%d, 16, v%d" % (GR + 2 * k, 24 + k))
        a("v_and_b32 v%d, 0xffff0000, v%d" % (GR + 2 * k + 1, 24 + k))
    for k in range(10):
        a("v_add_f32 v%d, v%d, v%d" % (GR + k, GR + k, XF + k))
    for k in range(5):
        a("v_cvt_pk_bf16_f32 v%d, v%d, v%d" % (24 + k, GR + 2 * k, GR + 2 * k + 1))
    for k in range(5):
        a("v_lshlrev_b32 v%d, 16, v%d" % (XH + 2 * k, 24 + k))
        a("v_and_b32 v%d, 0xffff0000, v%d" % (XH + 2 * k + 1, 24 + k))
    ln_stats(["v%d" % (XH + k) for k in range(10)], ["v31", "v32", "v33"], "v38", "v39")
    for k in range(10):
        a("v_sub_f32 v%d, v%d, v38" % (XH + k, XH + k))
    for k in range(5):
        a("v_cvt_pk_bf16_f32 v%d, v%d, v%d" % (24 + k, XH + 2 * k, XH + 2 * k + 1))
    for k in range(5):
        a("v_lshlrev_b32 v%d, 16, v%d" % (XH + 2 * k, 24 + k))
        a("v_and_b32 v%d, 0xffff0000, v%d" % (XH + 2 * k + 1, 24 + k))
    for k in range(10):
        a("v_mul_f32 v%d, v%d, v39" % (XH + k, XH + k))
    for k in range(5):
        a("v_cvt_pk_bf16_f32 v%d, v%d, v%d" % (24 + k, XH + 2 * k, XH + 2 * k + 1))
        a("ds_write_b32 v23, v%d offset:%d" % (24 + k, L_HN + 4 * k))
a("s_waitcnt lgkmcnt(0)")
a("s_barrier")
if A.stamp and A.st8 == "hn":
    a("s_memrealtime s[90:91]\ns_waitcnt lgkmcnt(0)\ns_mov_b32 s100, s90")
a("s_cmp_ge_u32 s26, 4")
a("s_cbranch_scc1 L_f1_skip")
if A.D1: a("s_waitcnt vmcnt(0)")
GR = 220
for ks in range(20):
    a("ds_read_b128 %s, v29 offset:%d" % (t4(BF + 4 * ks), L_HN + 64 * ks))
for ks in range(20):
    a("s_waitcnt lgkmcnt(%d)" % min(15, 19 - ks))
    a("v_mfma_f32_16x16x32_bf16 v[40:43], %s, %s, %s" % (t4(AF + 4 * ks), t4(BF + 4 * ks), "0" if ks == 0 else "v[40:43]"))
a("s_lshl_b32 s84, s79, 10")
a("s_mov_b32 exec_lo, 0x00ff00ff\ns_mov_b32 exec_hi, 0x00ff00ff")
for r in range(4):
    a("v_max_f32 v%d, 0, v%d" % (40 + r, 40 + r))
a("v_cvt_pk_bf16_f32 v40, v40, v41")
a("v_cvt_pk_bf16_f32 v41, v42, v43")
a("s_cmp_eq_u32 s78, 0")
a("s_cbranch_scc1 L_f1_nost")
a("buffer_store_dwordx2 v[40:41], v30, s[60:63], s84 offen %s" % A.pmod)
a("L_f1_nost:")
a("s_mov_b64 exec, -1")
stamp()
a("L_f1_skip:")
a("s_cmp_eq_u32 s78, 0")
a("s_cbranch_scc0 L_fin")
a("s_mov_b32 s78, 1")
a("s_barrier")
a("s_branch L_poll1")

if A.stamp: stamp_idx[0] = 6
a("L_ffn2:")
a("s_mov_b32 s52, s18\ns_mov_b32 s53, s19")
a("s_lshl_b32 s13, s27, 5")
a("s_mov_b32 s79, s13")
a("v_lshrrev_b32 v5, 1, v0")
a("v_mul_u32_u24 v5, 1280, v5")
a("v_and_b32 v11, 1, v0")
a("v_lshl_add_u32 v5, v11, 4, v5")
dma(7, ["v5"], 327680)
a("v_mul_u32_u24 v21, 1280, v10")
a("v_lshl_add_u32 v21, v45, 3, v21")
a("buffer_load_dwordx2 v[24:25], v21, s[44:47], s79 offen")
a("v_mul_u32_u24 v12, 10240, v44")
a("v_lshl_add_u32 v12, v45, 8, v12")
a("v_lshl_add_u32 v12, v46, 3, v12")
a("v_add_u32 v12, %d, v12" % L_W)
a("v_lshlrev_b32 v22, 9, v44")
a("v_lshl_add_u32 v22, v45, 7, v22")
a("v_lshl_add_u32 v22, v10, 4, v22")
a("v_lshlrev_b32 v16, 4, v0")
a("v_lshlrev_b32 v17, 4, v1")
a("s_mov_b32 s78, 1")
if A.warm:
    a("s_mov_b32 s78, 0")
    a("s_branch L_f2_body")
    a("L_f2_real:")
    a("s_mov_b32 s78, 1")
a("s_cmp_lg_u32 s26, 0")
a("s_cbranch_scc1 L_ffn2_noh")
a("s_lshl_b32 s84, s27, 4")
a("v_lshlrev_b32 v11, 2, v45")
a("v_add_u32 v11, s84, v11")
for r in range(4):
    a("v_add_u32 v13, %d, v11" % r)
    a("v_mul_u32_u24 v29, 205, v13")
    a("v_lshrrev_b32 v29, 11, v29")
    a("v_mul_u32_u24 v30, 10, v29")
    a("v_sub_u32 v13, v13, v30")
    a("v_and_b32 v30, 1, v13")
    a("v_lshrrev_b32 v13, 1, v13")
    a("v_mul_u32_u24 v31, 11, v13")
    a("v_lshrrev_b32 v31, 5, v31")
    a("v_lshl_add_u32 v30, v30, 1, v31")
    a("v_mul_u32_u24 v31, 3, v31")
    a("v_sub_u32 v%d, v13, v31" % (XF + 4 + r))
    a("v_lshl_add_u32 v29, v30, 6, v29")
    a("v_lshlrev_b32 v29, 4, v29")
    a("v_lshl_add_u32 v%d, v10, 12, v29" % (XF + r))
if A.light:
    a("v_lshlrev_b32 v29, 12, v10")
    a("s_mov_b32 s84, 0x%08x" % _st.unpack("<I", _st.pack("<f", float(A.light)))[0])
    a("s_mov_b64 exec, 0xff")
    a("L_light2:")
    a("buffer_load_dword v30, v29, s[48:51], 0 offen offset:12 %s" % A.pmod)
    a("s_add_u32 s88, s88, 1")
    a("s_waitcnt vmcnt(0)")
    a("v_cmp_gt_f32 vcc, s84, v30")
    a("s_cmp_gt_u32 s88, %d" % SPIN_MAX)
    a("s_cbranch_scc1 L_light2_done")
    a("s_cbranch_vccnz L_light2")
    a("L_light2_done:")
    a("s_mov_b64 exec, -1")
a("L_poll2h:")
if A.sleep: a("s_sleep %d" % A.sleep)
for r in range(4):
    a("buffer_load_dwordx4 %s, v%d, s[48:51], 0 offen %s" % (t4(GR + 4 * r), XF + r, A.pmod))
a("s_add_u32 s88, s88, 1")
a("s_waitcnt vmcnt(0)")
a("v_min_f32 v31, v%d, v%d" % (GR + 3, GR + 7))
a("v_min3_f32 v31, v31, v%d, v%d" % (GR + 11, GR + 15))
a("v_cmp_ne_u32 vcc, s85, v31")
a("s_cmp_gt_u32 s88, %d" % SPIN_MAX)
a("s_cbranch_scc1 L_poll2h_done")
a("s_cbranch_vccnz L_poll2h")
a("L_poll2h_done:")
for r in range(4):
    a("v_cmp_eq_u32 vcc, 1, v%d" % (XF + 4 + r))
    a("v_cndmask_b32 v%d, v%d, v%d, vcc" % (GR + 4 * r, GR + 4 * r, GR + 4 * r + 1))
    a("v_cmp_eq_u32 vcc, 2, v%d" % (XF + 4 + r))
    a("v_cndmask_b32 v%d, v%d, v%d, vcc" % (GR + 4 * r, GR + 4 * r, GR + 4 * r + 2))
for k in range(2):
    a("v_cvt_pk_bf16_f32 v31, v%d, v%d" % (GR + 8 * k, GR + 8 * k + 4))
    a("v_lshlrev_b32 v32, 16, v31")
    a("v_and_b32 v33, 0xffff0000, v31")
    a("v_lshlrev_b32 v34, 16, v%d" % (24 + k))
    a("v_and_b32 v35, 0xffff0000, v%d" % (24 + k))
    a("v_add_f32 v32, v32, v34")
    a("v_add_f32 v33, v33, v35")
    a("v_cvt_pk_bf16_f32 v31, v32, v33")
    a("v_lshlrev_b32 v%d, 16, v31" % (XF + 2 * k))
    a("v_and_b32 v%d, 0xffff0000, v31" % (XF + 1 + 2 * k))
a("L_ffn2_noh:")
a("s_waitcnt vmcnt(0)")
for t in range(7):
    a("ds_read_b64_tr_b16 v[%d:%d], v12 offset:%d" % (AF + 4 * t, AF + 4 * t + 1, 1024 * t))
    a("ds_read_b64_tr_b16 v[%d:%d], v12 offset:%d" % (AF + 4 * t + 2, AF + 4 * t + 3, 1024 * t + 128))
stamp()
if A.f2bar:
    a("s_barrier")
a("s_mov_b32 s88, 0")
if A.D2:
    sets = [80 + 28 * k for k in range(A.D2)]
    assert sets[-1] + 28 <= XF
    def p2(g):
        for t in range(7):
            a("buffer_load_dwordx4 %s, v22, s[60:63], %s offen %s" % (t4(g + 4 * t), soff(4096 * t)[0], A.pmod))
    for k, g in enumerate(sets):
        if A.pace and k: a("s_sleep %d" % A.pace)
        p2(g)
    a("s_waitcnt lgkmcnt(0)")
    a("L_poll2:")
    for k, g in enumerate(sets):
        a("s_waitcnt vmcnt(%d)" % (7 * (A.D2 - 1)))
        a("v_max3_u32 v31, v%d, v%d, v%d" % (g, g + 1, g + 2))
        a("v_max3_u32 v32, v%d, v%d, v%d" % (g + 3, g + 4, g + 5))
        for q in range(6, 26, 4):
            a("v_max3_u32 v31, v31, v%d, v%d" % (g + q, g + q + 1))
            a("v_max3_u32 v32, v32, v%d, v%d" % (g + q + 2, g + q + 3))
        a("v_max3_u32 v31, v31, v%d, v%d" % (g + 26, g + 27))
        a("v_max_u32 v31, v31, v32")
        a("v_cmp_eq_u32 vcc, -1, v31")
        a("s_cbranch_vccz L_p2x%d" % k)
        if A.pace: a("s_sleep %d" % A.pace)
        p2(g)
    a("s_add_u32 s88, s88, 1")
    a("s_cmp_gt_u32 s88, %d" % SPIN_MAX)
    a("s_cbranch_scc0 L_poll2")
    for k, g in reversed(list(enumerate(sets))):
        a("L_p2x%d:" % k)
        for t in range(7):
            a("v_mfma_f32_16x16x32_bf16 v[40:43], %s, %s, %s" % (t4(AF + 4 * t), t4(g + 4 * t), "0" if t == 0 else "v[40:43]"))
        if k: a("s_branch L_p2done")
    a("L_p2done:")
    a("s_nop 7")
    stamp()
else:
    if A.m2:
        for q in range(28): a("v_mov_b32 v%d, 0" % (BF + q))
        a("s_mov_b32 exec_lo, 0x00ff00ff\ns_mov_b32 exec_hi, 0x00ff00ff")
    a("L_poll2:")
    for t in range(7):
        a("buffer_load_dwordx4 %s, v22, s[60:63], %s offen %s" % (t4(BF + 4 * t), soff(4096 * t)[0], A.pmod))
    a("s_add_u32 s88, s88, 1")
    a("s_waitcnt vmcnt(0) lgkmcnt(0)")
    a("v_max_u32 v31, v%d, v%d" % (BF, BF + 1))
    a("v_max_u32 v32, v%d, v%d" % (BF + 2, BF + 3))
    for k in range(4, 28, 4):
        a("v_max3_u32 v31, v31, v%d, v%d" % (BF + k, BF + k + 1))
        a("v_max3_u32 v32, v32, v%d, v%d" % (BF + k + 2, BF + k + 3))
    a("v_max_u32 v31, v31, v32")
    a("v_cmp_eq_u32 vcc, -1, v31")
    a("s_cmp_gt_u32 s88, %d" % SPIN_MAX)
    a("s_cbranch_scc1 L_poll2_done")
    a("s_cbranch_vccnz L_poll2")
    a("L_poll2_done:")
    if A.m2: a("s_mov_b64 exec, -1")
    stamp()
    a("L_f2_body:")
    for t in range(7):
        a("v_mfma_f32_16x16x32_bf16 v[40:43], %s, %s, %s" % (t4(AF + 4 * t), t4(BF + 4 * t), "0" if t == 0 else "v[40:43]"))
a("ds_write_b128 v16, v[40:43] offset:%d" % L_FP)
a("s_waitcnt lgkmcnt(0)")
a("s_barrier")
a("s_cmp_lg_u32 s26, 0")
a("s_cbranch_scc1 L_f2_skip")
for w in range(8):
    a("ds_read_b128 %s, v17 offset:%d" % (t4(AF + 4 * w), L_FP + 1024 * w))
a("s_waitcnt lgkmcnt(0)")
for s_ in (4, 2, 1):
    for w in range(s_):
        for r in range(0, 4, 2):
            a("v_pk_add_f32 v[%d:%d], v[%d:%d], v[%d:%d]" % (AF + 4 * w + r, AF + 4 * w + r + 1, AF + 4 * w + r, AF + 4 * w + r + 1, AF + 4 * (w + s_) + r, AF + 4 * (w + s_) + r + 1))
a("s_mov_b32 exec_lo, 0x00ff00ff\ns_mov_b32 exec_hi, 0x00ff00ff")
for k in range(2):
    a("v_cvt_pk_bf16_f32 v31, v%d, v%d" % (AF + 2 * k, AF + 2 * k + 1))
    a("v_lshlrev_b32 v32, 16, v31")
    a("v_and_b32 v33, 0xffff0000, v31")
    a("v_add_f32 v32, v32, v%d" % (XF + 2 * k))
    a("v_add_f32 v33, v33, v%d" % (XF + 1 + 2 * k))
    a("v_cvt_pk_bf16_f32 v%d, v32, v33" % (40 + k))
a("s_cmp_eq_u32 s78, 0")
a("s_cbranch_scc1 L_f2_nost")
a("buffer_store_dwordx2 v[40:41], v21, s[56:59], s79 offen %s" % A.outmod)
a("L_f2_nost:")
a("s_mov_b64 exec, -1")
a("L_f2_skip:")
if A.warm:
    a("s_cmp_eq_u32 s78, 0")
    a("s_cbranch_scc1 L_f2_real")
if A.diagnum:
    a("v_mov_b32 v26, 0")
    a("buffer_load_dword v27, v26, s[64:67], 0 offen offset:32 sc0 sc1\ns_waitcnt vmcnt(0)")
    a("v_readfirstlane_b32 s84, v27\ns_bcnt1_i32_b32 s84, s84\ns_cmp_eq_u32 s84, 1\ns_cbranch_scc1 L_fin")
    a("s_memrealtime s[90:91]\ns_waitcnt lgkmcnt(0)\ns_add_u32 s85, s90, 10000")
    a("L_dly:\ns_memrealtime s[90:91]\ns_waitcnt lgkmcnt(0)\ns_sub_u32 s84, s85, s90\ns_cmp_lt_i32 s84, 0\ns_cbranch_scc0 L_dly")
if A.amp >= 0:
    a("s_cmp_lg_u32 s26, 0\ns_cbranch_scc1 L_fin")
    a("s_memrealtime s[90:91]\ns_waitcnt lgkmcnt(0)\ns_mov_b32 s101, s90")
    a("s_sub_u32 s85, s%d, s92\ns_lshl_b32 s85, s85, %d\ns_add_u32 s85, s85, s90" % (92 + A.amp, A.ampsh))
    a("L_dly2:\ns_memrealtime s[90:91]\ns_waitcnt lgkmcnt(0)\ns_sub_u32 s84, s85, s90\ns_cmp_lt_i32 s84, 0\ns_cbranch_scc0 L_dly2")
a("L_fin:")
if A.stamp and A.amp < 0:
    a("s_waitcnt vmcnt(0)")
    a("s_memrealtime s[90:91]\ns_waitcnt lgkmcnt(0)\ns_mov_b32 s101, s90")
    a("s_add_u32 s48, s24, %d\ns_addc_u32 s49, s25, 0\ns_mov_b32 s50, 131072" % WS_STAMP)
    a("s_lshl_b32 s84, s2, 3\ns_add_u32 s84, s84, s26\ns_lshl_b32 s84, s84, 6")
    a("s_getreg_b32 s85, hwreg(HW_REG_XCC_ID)")
    a("v_mov_b32 v1, 0")
    a("s_mov_b64 exec, 1")
    for k in range(10):
        a("v_mov_b32 v2, s%d" % (92 + k))
        a("buffer_store_dword v2, v1, s[48:51], s84 offen offset:%d" % (4 * k))
    a("v_mov_b32 v2, s85")
    a("buffer_store_dword v2, v1, s[48:51], s84 offen offset:40")
    a("v_mov_b32 v2, s88")
    a("buffer_store_dword v2, v1, s[48:51], s84 offen offset:44")
    a("v_mov_b32 v2, s27")
    a("buffer_store_dword v2, v1, s[48:51], s84 offen offset:48")
    if A.dbgstamp:
        a("s_cmp_ge_u32 s27, 40\ns_cbranch_scc1 L_end\ns_cmp_lg_u32 s26, 0\ns_cbranch_scc1 L_end")
        a("s_not_b32 s86, s92")
        a("v_mov_b32 v2, s86")
        a("buffer_atomic_umax v2, v1, s[64:67], 0 offen offset:4 sc1")
        for k in (4, 5, 6, 7, 9):
            a("v_mov_b32 v2, s%d" % (92 + k))
            a("buffer_atomic_umax v2, v1, s[64:67], 0 offen offset:%d sc1" % (8 + 4 * k))
a("L_end:")
a("s_endpgm")
a("L_initslow:")
a("s_mov_b32 s88, 0")
a("L_initpoll:")
a("buffer_load_dword v12, v21, s[64:67], 0 offen sc0 sc1")
a("s_waitcnt vmcnt(0)")
a("v_readfirstlane_b32 s89, v12")
a("s_add_u32 s88, s88, 1")
a("s_cmp_gt_u32 s88, %d" % SPIN_MAX)
a("s_cbranch_scc1 L_initok")
a("s_cmp_ge_u32 s89, 8")
a("s_cbranch_scc0 L_initpoll")
a("s_branch L_initok")

body = a.render()
txt = HEADER + "; @launch grid=(256,1,1) block=(512,1,1) lds=%d\n" % (A.lds or LDS_BYTES)
txt += """.amdgcn_target "amdgcn-amd-amdhsa--gfx950"
.text
.globl {n}_kernel
.p2align 8
.type {n}_kernel,@function
{n}_kernel:
{body}.section .rodata,"a"
.p2align 6
.amdhsa_kernel {n}_kernel
  .amdhsa_next_free_vgpr 256
  .amdhsa_next_free_sgpr 102
  .amdhsa_accum_offset 256
  .amdhsa_group_segment_fixed_size 0
  .amdhsa_kernarg_size 88
  .amdhsa_user_sgpr_count 2
  .amdhsa_user_sgpr_kernarg_segment_ptr 1
  .amdhsa_system_sgpr_workgroup_id_x 1
  .amdhsa_float_denorm_mode_32 3
.end_amdhsa_kernel
""".format(n=NAME, body=body)
open(A.o, "w").write(txt)
print("wrote", A.o, len(txt), "bytes,", body.count("\\n"), "lines")
```

```python
import sys, argparse
sys.path.insert(0, "work")
from asmlib import Asm

NAME = "sequential_preLN__sliding_block_cached__dense_activation_relu__decode"
HEADER = open("cdna_kernels/%s.s.ref" % NAME).read().split("; Override launch geometry")[0]

ap = argparse.ArgumentParser()
ap.add_argument("-o", default="cdna_kernels/%s.s" % NAME)
ap.add_argument("--stamp", action="store_true")
ap.add_argument("--dbgstamp", action="store_true")
ap.add_argument("--kvmod", default="nt")
ap.add_argument("--wmod", default="nt")
ap.add_argument("--dmod", default="nt")
ap.add_argument("--pmod", default="sc0 sc1")
ap.add_argument("--L", type=int, default=12)
ap.add_argument("--pat", type=int, default=1)
ap.add_argument("--qk", type=int, default=2)
ap.add_argument("--wo_start", type=int, default=12)
ap.add_argument("--wo_every", type=int, default=2)
ap.add_argument("--codepf", action="store_true")
ap.add_argument("--align12", type=int, default=-1)
ap.add_argument("--warm1", action="store_true")
ap.add_argument("--warm2", action="store_true")
ap.add_argument("--pad", type=int, default=0)
ap.add_argument("--sthr", type=int, nargs=2, default=None)
ap.add_argument("--tk2", action="store_true")
ap.add_argument("--static", action="store_true")
ap.add_argument("--tkwave", type=int, default=0)
ap.add_argument("--thr", type=int, default=0)
ap.add_argument("--thrT", type=int, default=1)
ap.add_argument("--thr0", type=int, default=256)
ap.add_argument("--qpf", action="store_true")
ap.add_argument("--qstart", type=int, default=0)
ap.add_argument("--krot", type=int, default=0)
ap.add_argument("--light2", action="store_true")
ap.add_argument("--defer2", type=int, default=0)
ap.add_argument("--bo2", type=int, default=0)
ap.add_argument("--first2", type=int, default=0)
ap.add_argument("--ampsh", type=int, default=2)
ap.add_argument("--qspan", type=int, default=0)
ap.add_argument("--ospan", type=int, nargs=2, default=None)
ap.add_argument("--fine", action="store_true")
ap.add_argument("--op2", action="store_true")
ap.add_argument("--ln1", action="store_true")
ap.add_argument("--qrow", type=int, default=0)
ap.add_argument("--rot", type=int, default=0)
ap.add_argument("--outmod", default="")
ap.add_argument("--lds", type=int, default=0)
ap.add_argument("--edma", action="store_true")
ap.add_argument("--nopre", action="store_true")
ap.add_argument("--st8", default="hn")
ap.add_argument("--minrate", type=int, default=0)
ap.add_argument("--m2", action="store_true")
ap.add_argument("--D1", type=int, default=0)
ap.add_argument("--D2", type=int, default=0)
ap.add_argument("--pace", type=int, default=0)
ap.add_argument("--warm", action="store_true")
ap.add_argument("--tkpos", type=int, default=8)
ap.add_argument("--map", type=int, default=0)
ap.add_argument("--touch", action="store_true")
ap.add_argument("--qhead", type=int, default=0)
ap.add_argument("--codepf2", action="store_true")
ap.add_argument("--oobq", action="store_true")
ap.add_argument("--oobo", action="store_true")
ap.add_argument("--f2bar", action="store_true")
ap.add_argument("--light", type=int, default=0)
ap.add_argument("--sleep", type=int, default=0)
ap.add_argument("--amp", type=int, default=-1)
ap.add_argument("--diagnum", action="store_true")
ap.add_argument("--LV", type=int, default=0)
ap.add_argument("--dma", default="stream")
ap.add_argument("--pf", type=int, default=0)
ap.add_argument("--pfmod", default="")
A = ap.parse_args()

L_PART = 0
L_QD = 4096
L_ST = 6144
L_YP = 6400
L_HN = 27136
HN_STRIDE = 1312
L_FP = 37888
L_W = 46080
LDS_BYTES = L_W + 81920
WS_H1 = 32768
WS_STAMP = 1 << 20
FFN1_N, FFN2_N = 27, 40
L_TK = 6208
SPIN_MAX = 400000

RING = 48; NRING = 32
WO = 176
def t4(r): return "v[%d:%d]" % (r, r + 3)
def soff(byte):
    hi, lo = byte // 4096, byte % 4096
    return ("0" if hi == 0 else "s%d" % (67 + hi)), lo

a = Asm()
stamp_idx = [0]
def stamp():
    if not A.stamp: return
    a("s_memrealtime s[90:91]\ns_waitcnt lgkmcnt(0)\ns_mov_b32 s%d, s90" % (92 + stamp_idx[0]))
    stamp_idx[0] += 1
    assert stamp_idx[0] <= 9

FINE = [4, 6, 8, 10, 14, 36, 38]
fine_i = [0]
def fine():
    if not A.fine: return
    r = FINE[fine_i[0]]; fine_i[0] += 1
    a("s_memtime s[%d:%d]" % (r, r + 1))

def wave_reduce(v, op, sdst):
    for m in ("quad_perm:[1,0,3,2] row_mask:0xf", "quad_perm:[2,3,0,1] row_mask:0xf", "row_half_mirror row_mask:0xf",
              "row_mirror row_mask:0xf", "row_bcast:15 row_mask:0xa", "row_bcast:31 row_mask:0xc"):
        a("%s_dpp %s, %s, %s %s bank_mask:0xf" % (op, v, v, v, m))
    a("v_readlane_b32 %s, %s, 63" % (sdst, v))

def ln_stats(vals, tmp, vmean_bf, vrinv):
    t0, t1, t2 = tmp
    a("v_add_f32 %s, %s, %s" % (t0, vals[0], vals[1]))
    a("v_add_f32 %s, %s, %s" % (t1, vals[2], vals[3]))
    for k in range(4, 10, 2):
        a("v_add_f32 %s, %s, %s" % (t0, t0, vals[k]))
        a("v_add_f32 %s, %s, %s" % (t1, t1, vals[k + 1]))
    a("v_add_f32 %s, %s, %s" % (t0, t0, t1))
    wave_reduce(t0, "v_add_f32", "s84")
    a("v_mov_b32 %s, 0x3acccccd" % t2)
    a("v_mul_f32 %s, s84, %s" % (vmean_bf, t2))
    a("v_sub_f32 %s, %s, %s" % (t1, vals[0], vmean_bf))
    a("v_mul_f32 %s, %s, %s" % (t0, t1, t1))
    for k in range(1, 10):
        a("v_sub_f32 %s, %s, %s" % (t1, vals[k], vmean_bf))
        a("v_fmac_f32 %s, %s, %s" % (t0, t1, t1))
    wave_reduce(t0, "v_add_f32", "s84")
    a("v_mul_f32 %s, s84, %s" % (t0, t2))
    a("v_cvt_pk_bf16_f32 %s, %s, %s" % (t0, t0, vmean_bf))
    a("v_and_b32 %s, 0xffff0000, %s" % (vmean_bf, t0))
    a("v_lshlrev_b32 %s, 16, %s" % (t0, t0))
    a("v_add_f32 %s, 0x3727c5ac, %s" % (t0, t0))
    a("v_cvt_pk_bf16_f32 %s, %s, %s" % (t0, t0, t0))
    a("v_lshlrev_b32 %s, 16, %s" % (t0, t0))
    a("v_sqrt_f32 %s, %s" % (t0, t0))
    a("v_cvt_pk_bf16_f32 %s, %s, %s" % (t0, t0, t0))
    a("v_lshlrev_b32 %s, 16, %s" % (t0, t0))
    a("v_rcp_f32 %s, %s" % (vrinv, t0))

def selector(abuf, src, lane):
    for r in range(4):
        a("v_and_b32_dpp v%d, %s, v%d row_newbcast:%d row_mask:0xf bank_mask:0xf" % (abuf + r, src, 6 + r, lane))

def srd(d, plo, nbytes):
    a("s_mov_b32 s%d, s%d\ns_mov_b32 s%d, s%d\ns_mov_b32 s%d, %s\ns_mov_b32 s%d, 0x20000" % (d, plo, d + 1, plo + 1, d + 2, nbytes, d + 3))

S = []
kv = [("k", n) for n in range(32)] + [("v", n) for n in range(32)]
if A.qspan:
    oa, ob = A.ospan
    qpos = [A.qstart + (t * (A.qspan - A.qstart)) // 20 for t in range(20)]
    opos = [oa + (t * (ob - oa)) // 20 for t in range(20)]
    for ki in range(64):
        S += [("q", t) for t in range(20) if qpos[t] == ki]
        S += [("o", t) for t in range(20) if opos[t] == ki]
        S.append(kv[ki])
else:
    qi = 0; ki = 0
    while qi < A.qhead:
        S.append(("q", qi)); qi += 1
    while qi < 20:
        for _ in range(A.qk):
            if qi < 20: S.append(("q", qi)); qi += 1
        S.append(kv[ki]); ki += 1
    oi = 0
    while ki < 64:
        S.append(kv[ki]); ki += 1
        if ki >= A.wo_start and (ki - A.wo_start) % A.wo_every == 0 and oi < 20:
            S.append(("o", oi)); oi += 1
    assert oi == 20
if A.tk2: S.append(("t", 0))
POS = {e: p for p, e in enumerate(S)}
free = list(range(NRING))
slot = {}
lend = list(range(32, 52))
st = {"issued": 0, "maxpos": -1, "gate": len(S)}
def reg_of(e):
    if e[0] == "o": return WO + 4 * e[1]
    return RING + 4 * slot[e]
def issue(e):
    kind, n = e
    if kind in "qkv":
        if free: slot[e] = free.pop(0)
        elif lend and kind != "v": slot[e] = lend.pop()
        else: return False
    if kind == "o":
        if (32 + n) not in lend: return False
        lend.remove(32 + n)
    if kind == "q":
        so = "0"
        if n: a("s_mov_b32 s78, %d" % (n * 8192 * (1, 4, 32)[A.qrow] if not (A.oobq and n >= 3) else 0x7f000000)); so = "s78"
        a("buffer_load_dwordx4 %s, v3, s[36:39], %s offen %s" % (t4(reg_of(e)), so, A.wmod))
    elif kind in "kv":
        sr = "s[28:31]" if kind == "k" else "s[32:35]"
        if A.pat == 0:
            so, im = soff(n * 1024)
        elif A.krot:
            sr_ = "s14" if kind == "k" else "s15"
            so, im = sr_, 0
            if n: a("s_add_u32 %s, %s, 8192\ns_and_b32 %s, %s, 0x3ffff" % (sr_, sr_, sr_, sr_))
        elif A.pat == 3:
            so, im = "0", (n & 1) * 1024
            if n >> 1: a("s_mov_b32 s78, %d" % ((n >> 1) * 8192)); so = "s78"
        elif A.pat == 4:
            so, im = "0", (n & 3) * 1024
            if n >> 2: a("s_mov_b32 s78, %d" % ((n >> 2) * 16384)); so = "s78"
        else:
            so, im = "0", 0
            if n: a("s_mov_b32 s78, %d" % (n * (8192 if A.pat == 1 else 4096))); so = "s78"
        a("buffer_load_dwordx4 %s, v2, %s, %s offen offset:%d %s" % (t4(reg_of(e)), sr, so, im, A.kvmod))
    elif kind == "t":
        a("s_mov_b64 exec, 1")
        a("buffer_atomic_add v22, v21, s[48:51], s11 offen sc0 sc1")
        a("s_mov_b64 exec, -1")
    elif kind == "o":
        so, im = soff(n * 256)
        if A.oobo and n >= 3:
            a("s_mov_b32 s78, 0x7f000000"); so = "s78"
        a("buffer_load_dwordx4 %s, v4, s[40:43], %s offen offset:%d %s" % (t4(reg_of(e)), so, im, A.wmod))
    return True
def pump(upto):
    upto = min(upto, len(S) - 1, st["gate"] - 1)
    while st["issued"] <= upto:
        if not issue(S[st["issued"]]): break
        st["issued"] += 1
def ready(e):
    p = POS[e]
    st["maxpos"] = max(st["maxpos"], p)
    before = st["issued"]
    pump(st["maxpos"] + A.L)
    if st["issued"] == before:
        st["idle"] = st.get("idle", 0) + 1
        if A.minrate and st["idle"] >= A.minrate:
            pump(st["issued"]); st["idle"] = 0
    else:
        st["idle"] = 0
    assert st["issued"] > p, (e, st)
    n = st["issued"] - 1 - p
    assert n <= 63
    a("s_waitcnt vmcnt(%d)" % n)
def done(e):
    sl = slot.pop(e)
    if sl >= 32:
        lend.append(sl); lend.sort()
    else:
        free.append(sl)

a("s_cmp_ge_u32 s2, 256")
a("s_cbranch_scc1 L_end")
a("s_load_dwordx16 s[4:19], s[0:1], 0")
a("s_load_dwordx4 s[20:23], s[0:1], 64")
a("s_load_dwordx2 s[24:25], s[0:1], 80")
if A.stamp:
    a("s_memrealtime s[90:91]")
a("v_and_b32 v1, 63, v0")
a("v_lshrrev_b32 v44, 6, v0")
a("v_lshrrev_b32 v45, 4, v1")
a("v_and_b32 v46, 15, v0")
a("v_readfirstlane_b32 s26, v44")
a("s_lshr_b32 s76, s2, 5")
if A.map == 0:
    a("s_and_b32 s77, s2, 31")
elif A.map == 1:
    a("s_and_b32 s77, s2, 7\ns_lshl_b32 s77, s77, 2\ns_bfe_u32 s84, s2, 0x20003\ns_or_b32 s77, s77, s84")
elif A.map == 2:
    a("s_and_b32 s77, s2, 7\ns_lshl_b32 s77, s77, 1\ns_bfe_u32 s84, s2, 0x10003\ns_or_b32 s77, s77, s84\ns_and_b32 s84, s2, 16\ns_or_b32 s77, s77, s84")
a("s_lshl_b32 s3, s76, 5\ns_or_b32 s3, s3, s77")
if A.pat == 0:
    a("v_lshlrev_b32 v2, 15, v44")
    a("v_lshl_add_u32 v2, v1, 4, v2")
elif A.pat == 1:
    a("v_lshlrev_b32 v2, 4, v0")
else:
    a("v_lshrrev_b32 v2, 8, v0\nv_lshlrev_b32 v2, 17, v2\nv_lshl_add_u32 v2, v1, 4, v2\nv_and_b32 v3, 3, v44")
    a("v_lshl_add_u32 v2, v3, %d, v2" % {2: 10, 3: 11, 4: 12}[A.pat])
a("v_lshl_add_u32 v47, v44, 2, v45")
if A.rot:
    a("s_lshl_b32 s84, s76, 2")
    a("v_add_u32 v5, s84, v47")
    a("v_and_b32 v5, 31, v5")
a("v_mul_u32_u24 v4, 5120, %s" % ("v5" if A.rot >= 2 else "v47"))
if A.rot: a("v_mov_b32 v47, v5")
if A.qrow == 0:
    a("v_mul_u32_u24 v47, 20, v47")
elif A.qrow == 1:
    a("v_lshrrev_b32 v47, 2, v47\nv_mul_u32_u24 v47, 80, v47\nv_add_u32 v47, v47, v45")
a("v_lshlrev_b32 v3, 13, v47")
a("v_lshl_add_u32 v3, v46, 4, v3")
a("v_lshl_add_u32 v4, v46, 4, v4")
a("v_mul_u32_u24 v32, 20, v1")
QS = (0, 2, 5)[A.qrow]
a("v_lshlrev_b32 v33, %d, v46" % QS)
a("v_add_lshl_u32 v33, v47, v33, 1")
a("v_and_b32 v34, 3, v0")
a("v_lshlrev_b32 v34, %d, v34" % QS)
a("v_add_lshl_u32 v34, v47, v34, 1")
a("s_mul_i32 s84, s76, 1280")
a("s_lshl_b32 s85, s77, 8")
a("s_lshl_b32 s86, s3, 20")
a("s_add_u32 s86, s86, 786432")
a("s_mov_b32 s46, 10240\ns_mov_b32 s47, 0x20000")
a("s_sub_u32 s38, 5242880, s85\ns_mov_b32 s39, 0x20000")
a("s_mov_b32 s30, 262144\ns_mov_b32 s31, 0x20000")
for k in range(1, 8):
    a("s_movk_i32 s%d, %d" % (67 + k, 4096 * k))
a("s_waitcnt lgkmcnt(0)")
if A.stamp:
    a("s_mov_b32 s92, s90"); stamp_idx[0] = 1
    if A.st8 == "karg":
        a("s_memrealtime s[90:91]\ns_waitcnt lgkmcnt(0)\ns_mov_b32 s100, s90")
if A.krot == 1:
    a("s_mul_i32 s14, s2, 0x9e3779b1\ns_lshr_b32 s14, s14, 27\ns_lshl_b32 s14, s14, 13\ns_mov_b32 s15, s14")
elif A.krot == 2:
    a("s_and_b32 s14, s2, 31\ns_lshl_b32 s14, s14, 13\ns_mov_b32 s15, s14")
elif A.krot == 3:
    a("s_lshr_b32 s14, s2, 3\ns_lshl_b32 s14, s14, 13\ns_mov_b32 s15, s14")
if A.krot == 4:
    a("s_and_b32 s14, s2, 1\ns_lshl_b32 s14, s14, 17\ns_mov_b32 s15, s14")
elif A.krot == 5:
    a("s_lshr_b32 s14, s2, 5\ns_lshl_b32 s14, s14, 15\ns_mov_b32 s15, s14")
elif A.krot == 6:
    a("s_and_b32 s14, s2, 7\ns_lshl_b32 s14, s14, 15\ns_mov_b32 s15, s14")
elif A.krot == 7:
    a("s_brev_b32 s14, s2\ns_lshr_b32 s14, s14, 27\ns_lshl_b32 s14, s14, 13\ns_mov_b32 s15, s14")
elif A.krot == 8:
    a("s_lshr_b32 s14, s2, 5\ns_lshl_b32 s14, s14, 13\ns_mov_b32 s15, s14")
a("s_mov_b32 s44, s4\ns_mov_b32 s45, s5")
a("s_add_u32 s36, s10, s85\ns_addc_u32 s37, s11, 0")
a("s_add_u32 s28, s6, s86\ns_addc_u32 s29, s7, 0")
if A.touch:
    a("s_load_dword s89, s[28:29], 0")
    a("s_add_u32 s32, s8, s86\ns_addc_u32 s33, s9, 0")
    a("s_load_dword s88, s[32:33], 0")
a("s_cmp_ge_u32 s2, 8")
a("s_cbranch_scc1 L_noinit")
srd(48, 24, "66560")
a("s_lshl_b32 s87, s2, 12")
a("v_lshlrev_b32 v35, 3, v0")
a("v_mov_b32 v36, 0\nv_mov_b32 v37, 0\nv_mov_b32 v38, -1\nv_mov_b32 v39, -1")
a("buffer_store_dwordx2 v[36:37], v35, s[48:51], s87 offen sc0 sc1")
a("s_add_u32 s87, s87, %d" % WS_H1)
a("buffer_store_dwordx2 v[38:39], v35, s[48:51], s87 offen sc0 sc1")
if not A.static:
    a("s_lshl_b32 s87, s2, 7\ns_add_u32 s87, s87, 65536")
    a("v_and_b32 v35, 0x78, v35")
    a("buffer_store_dwordx2 v[36:37], v35, s[48:51], s87 offen sc0 sc1")
a("L_noinit:")
a("buffer_load_dwordx4 v[16:19], v32, s[44:47], s84 offen")
a("buffer_load_dword v20, v32, s[44:47], s84 offen offset:16")
a("buffer_load_ushort v22, v33, s[44:47], s84 offen")
a("buffer_load_ushort v23, v34, s[44:47], s84 offen offset:%d" % (32 << QS))
if A.qpf:
    srd(52, 10, "5242880")
    a("s_lshr_b32 s87, s2, 3\ns_mul_i32 s87, s87, %d" % (20 * 8192))
    a("s_and_b32 s88, s2, 7")
    a("v_lshrrev_b32 v35, 4, v0\nv_lshlrev_b32 v35, 13, v35")
    if A.map == 1:
        a("s_lshl_b32 s88, s88, 10\ns_add_u32 s87, s87, s88")
        a("v_lshl_add_u32 v35, v46, 6, v35")
    else:
        a("s_lshl_b32 s88, s88, 8\ns_add_u32 s87, s87, s88")
        a("v_and_b32 v36, 3, v0\nv_lshl_add_u32 v35, v36, 6, v35\nv_bfe_u32 v36, v0, 2, 2\nv_lshl_add_u32 v35, v36, 11, v35")
    a("s_cmp_ge_u32 s26, 4")
    a("s_cbranch_scc1 L_noqpf")
    a("buffer_load_dword v21, v35, s[52:55], s87 offen")
    a("s_cmp_lg_u32 s26, 0")
    a("s_cbranch_scc1 L_noqpf")
    a("s_add_u32 s87, s87, %d" % (16 * 8192))
    a("buffer_load_dword v21, v35, s[52:55], s87 offen")
    a("L_noqpf:")
st["gate"] = POS[("o", 0)]
pump(A.L)
n_first = st["issued"]
if A.codepf:
    a("s_getpc_b64 s[84:85]")
    a("L_pc:")
    a("s_sub_u32 s84, s84, L_pc-%s_kernel" % NAME)
    a("s_subb_u32 s85, s85, 0")
    a("v_lshlrev_b32 v35, 5, v0")
    a("v_min_u32 v35, L_end-%s_kernel, v35" % NAME)
    a("global_load_dword v5, v35, s[84:85]")
a("s_add_u32 s32, s8, s86\ns_addc_u32 s33, s9, 0\ns_mov_b32 s34, 262144\ns_mov_b32 s35, 0x20000")
a("s_mul_i32 s85, s77, 163840")
a("s_add_u32 s40, s12, s85\ns_addc_u32 s41, s13, 0\ns_mov_b32 s42, 163840\ns_mov_b32 s43, 0x20000")
srd(48, 24, "66560")
srd(56, 20, "10240")
a("s_add_u32 s60, s24, %d\ns_addc_u32 s61, s25, 0\ns_mov_b32 s62, 27648\ns_mov_b32 s63, 0x20000" % WS_H1)
srd(64, 22, "256")
a("s_mov_b32 s80, 0xcccccccc\ns_mov_b32 s81, 0xcccccccc\ns_mov_b32 s82, 0xaaaaaaaa\ns_mov_b32 s83, 0xaaaaaaaa")
a("v_and_b32 v35, 1, v0")
a("v_lshlrev_b32 v35, 4, v35")
a("v_mov_b32 v38, 0xffff")
a("v_lshlrev_b32 v38, v35, v38")
a("v_lshrrev_b32 v37, 1, v46")
for r in range(4):
    a("v_cmp_eq_u32 vcc, %d, v37" % r)
    a("v_cndmask_b32 v%d, 0, v38, vcc" % (6 + r))
a("v_lshlrev_b32 v47, 9, v44")
a("v_lshl_add_u32 v47, v46, 5, v47")
a("v_lshl_add_u32 v47, v45, 4, v47")
st["gate"] = len(S)

a("s_waitcnt vmcnt(%d)" % (n_first + (1 if A.codepf else 0)))
if A.stamp and A.st8 == "x":
    a("s_memrealtime s[90:91]\ns_waitcnt lgkmcnt(0)\ns_mov_b32 s100, s90")
for k in range(5):
    a("v_lshlrev_b32 v%d, 16, v%d" % (24 + 2 * k, 16 + k))
    a("v_and_b32 v%d, 0xffff0000, v%d" % (25 + 2 * k, 16 + k))
ln_stats(["v%d" % (24 + k) for k in range(10)], ["v34", "v35", "v37"], "v38", "v39")
for r in (22, 23):
    a("v_lshlrev_b32 v%d, 16, v%d" % (r, r))
    a("v_sub_f32 v%d, v%d, v38" % (r, r))
    a("v_cvt_pk_bf16_f32 v%d, v%d, v%d" % (r, r, r))
    a("v_lshlrev_b32 v%d, 16, v%d" % (r, r))
    a("v_mul_f32 v%d, v%d, v39" % (r, r))
    a("v_cvt_pk_bf16_f32 v%d, v%d, v%d" % (r, r, r))
for t in range(20):
    ab = 24 + 4 * (t & 1)
    selector(ab, "v22" if t < 16 else "v23", t & 15)
    e = ("q", t)
    ready(e)
    if A.stamp and A.st8 == "q%d" % t:
        a("s_memrealtime s[90:91]\ns_waitcnt lgkmcnt(0)\ns_mov_b32 s100, s90")
    a("v_mfma_f32_16x16x32_bf16 v[40:43], %s, %s, %s" % (t4(ab), t4(reg_of(e)), "0" if t == 0 else "v[40:43]"))
    done(e)
a("s_mov_b32 exec_hi, 0")
a("ds_write_b128 v47, v[40:43] offset:%d" % L_PART)
a("s_mov_b64 exec, -1")
a("v_lshlrev_b32 v25, 3, v1")
a("s_waitcnt lgkmcnt(0)")
a("s_barrier")
a("s_cmp_ge_u32 s2, 8")
a("s_cbranch_scc1 L_nosig")
a("s_cmp_lg_u32 s26, 0")
a("s_cbranch_scc1 L_nosig")
a("v_mov_b32 v26, 0\nv_mov_b32 v27, 1")
a("s_mov_b64 exec, 1")
a("buffer_atomic_add v27, v26, s[64:67], 0 offen sc1")
a("s_mov_b64 exec, -1")
a("L_nosig:")
if A.thr:
    a("s_cmp_lg_u32 s26, 0\ns_cbranch_scc1 L_norank")
    a("v_mov_b32 v26, 0\nv_mov_b32 v5, 1\ns_mov_b64 exec, 1")
    a("buffer_atomic_add v5, v26, s[64:67], 0 offen offset:128 sc0 sc1\ns_mov_b64 exec, -1")
    a("L_norank:")
    RANK_POS = st["issued"]
if A.diagnum:
    a("s_cmp_lg_u32 s26, 0\ns_cbranch_scc1 L_nodiag")
    a("s_getreg_b32 s84, hwreg(HW_REG_XCC_ID)\ns_sub_u32 s84, s84, s2\ns_and_b32 s84, s84, 7\ns_lshl_b32 s84, 1, s84")
    a("v_mov_b32 v26, 0\nv_mov_b32 v27, s84\ns_mov_b64 exec, 1")
    a("buffer_atomic_or v27, v26, s[64:67], 0 offen offset:32 sc1\ns_mov_b64 exec, -1")
    a("L_nodiag:")
for w in range(8):
    a("ds_read_b64 v[%d:%d], v25 offset:%d" % (28 + 2 * w, 29 + 2 * w, L_PART + 512 * w))
a("s_waitcnt lgkmcnt(0)")
for w in range(1, 8):
    a("v_add_f32 v28, v28, v%d" % (28 + 2 * w))
    a("v_add_f32 v29, v29, v%d" % (29 + 2 * w))
a("v_cvt_pk_bf16_f32 v28, v28, v29")
a("v_lshlrev_b32 v25, 2, v0")
a("ds_write_b32 v25, v28 offset:%d" % L_QD)
a("v_lshlrev_b32 v25, 8, v44")
a("v_lshl_add_u32 v25, v46, 4, v25")
a("s_waitcnt lgkmcnt(0)")
a("ds_read_b128 v[10:13], v25 offset:%d" % L_QD)
a("s_waitcnt lgkmcnt(0)")
stamp()

for _ in range(A.pad): a("s_nop 0")
def reduce_scatter(dst):
    for n in range(8):
        a("v_add_f32_dpp v%d, v%d, v%d row_mirror row_mask:0xf bank_mask:0x3" % (16 + n, 16 + n, 16 + n))
    for n in range(8):
        a("v_add_f32_dpp v%d, v%d, v%d row_mirror row_mask:0xf bank_mask:0xc" % (16 + n, 24 + n, 24 + n))
    for n in range(4):
        a("v_add_f32_dpp v%d, v%d, v%d row_half_mirror row_mask:0xf bank_mask:0x5" % (16 + n, 16 + n, 16 + n))
    for n in range(4):
        a("v_add_f32_dpp v%d, v%d, v%d row_half_mirror row_mask:0xf bank_mask:0xa" % (16 + n, 20 + n, 20 + n))
    for n in range(4):
        a("v_add_f32_dpp v%d, v%d, v%d quad_perm:[3,2,1,0] row_mask:0xf bank_mask:0xf" % (16 + n, 16 + n, 16 + n))
    a("v_cndmask_b32 v16, v16, v18, s[80:81]")
    a("v_cndmask_b32 v17, v17, v19, s[80:81]")
    a("v_add_f32_dpp v16, v16, v16 quad_perm:[1,0,3,2] row_mask:0xf bank_mask:0xf")
    a("v_add_f32_dpp v17, v17, v17 quad_perm:[1,0,3,2] row_mask:0xf bank_mask:0xf")
    a("v_cndmask_b32 %s, v16, v17, s[82:83]" % dst)

for n in range(32):
    e = ("k", n)
    ready(e)
    acc = 16 + (n & 15)
    for r in range(4):
        a("v_dot2_f32_bf16 v%d, v%d, v%d, %s" % (acc, reg_of(e) + r, 10 + r, "0" if r == 0 else "v%d" % acc))
    done(e)
    if n == 15: reduce_scatter("v14")
    if n == 31: reduce_scatter("v15")
stamp()

a("v_cvt_pk_bf16_f32 v16, v14, v15")
a("v_lshlrev_b32 v14, 16, v16")
a("v_and_b32 v15, 0xffff0000, v16")
a("v_mul_f32 v14, 0x3db504f3, v14")
a("v_mul_f32 v15, 0x3db504f3, v15")
a("v_cvt_pk_bf16_f32 v16, v14, v15")
a("v_lshlrev_b32 v14, 16, v16")
a("v_and_b32 v15, 0xffff0000, v16")
a("v_max_f32 v16, v14, v15")
wave_reduce("v16", "v_max_f32", "s84")
a("v_subrev_f32 v16, s84, v14")
a("v_subrev_f32 v17, s84, v15")
a("v_mul_f32 v16, 0x3fb8aa3b, v16")
a("v_mul_f32 v17, 0x3fb8aa3b, v17")
a("v_exp_f32 v16, v16")
a("v_exp_f32 v17, v17")
a("v_add_f32 v16, v16, v17")
wave_reduce("v16", "v_add_f32", "s85")
a("v_mov_b32 v16, s84")
a("v_mov_b32 v17, s85")
a("v_lshlrev_b32 v18, 3, v44")
a("s_mov_b64 exec, 1")
a("ds_write_b64 v18, v[16:17] offset:%d" % L_ST)
if A.thr:
    a("s_cmp_lg_u32 s26, 0\ns_cbranch_scc1 L_norank2")
    a("s_waitcnt vmcnt(%d)" % min(63, st["issued"] - RANK_POS))
    a("ds_write_b32 v18, v5 offset:%d" % (L_TK + 4))
    a("L_norank2:")
a("s_mov_b64 exec, -1")
a("v_and_b32 v18, 7, v0")
a("v_lshlrev_b32 v18, 3, v18")
a("s_waitcnt lgkmcnt(0)")
a("s_barrier")
a("ds_read_b64 v[16:17], v18 offset:%d" % L_ST)
if A.thr:
    a("v_mov_b32 v19, 0")
    a("ds_read_b32 v19, v19 offset:%d" % (L_TK + 4))
a("s_waitcnt lgkmcnt(0)")
if A.thr:
    a("v_readfirstlane_b32 s10, v19")
    a("s_min_u32 s10, s10, %d" % A.thr0)
    a("s_sub_u32 s10, %d, s10\ns_mul_i32 s10, s10, %d\ns_lshr_b32 s10, s10, 16" % (A.thr0, (A.thr << 16) // A.thr0))
a("v_mov_b32 v18, v16")
for m in ("quad_perm:[1,0,3,2]", "quad_perm:[2,3,0,1]", "row_half_mirror"):
    a("v_max_f32_dpp v18, v18, v18 %s row_mask:0xf bank_mask:0xf" % m)
a("v_sub_f32 v16, v16, v18")
a("v_mul_f32 v16, 0x3fb8aa3b, v16")
a("v_exp_f32 v16, v16")
a("v_mul_f32 v16, v16, v17")
for m in ("quad_perm:[1,0,3,2]", "quad_perm:[2,3,0,1]", "row_half_mirror"):
    a("v_add_f32_dpp v16, v16, v16 %s row_mask:0xf bank_mask:0xf" % m)
a("v_rcp_f32 v16, v16")
a("v_sub_f32 v14, v14, v18")
a("v_sub_f32 v15, v15, v18")
a("v_mul_f32 v14, 0x3fb8aa3b, v14")
a("v_mul_f32 v15, 0x3fb8aa3b, v15")
a("v_exp_f32 v14, v14")
a("v_exp_f32 v15, v15")
a("v_mul_f32 v14, v14, v16")
a("v_mul_f32 v15, v15, v16")
a("v_cvt_pk_bf16_f32 v14, v14, v14")
a("v_cvt_pk_bf16_f32 v15, v15, v15")
stamp()

def pv(n):
    ab = 32 + 4 * (n & 1)
    selector(ab, "v14" if n < 16 else "v15", n & 15)
    e = ("v", n)
    if A.sthr and A.sthr[0] <= n < A.sthr[1]:
        a("s_cmp_eq_u32 s10, 1\ns_cbranch_scc1 L_nt%d\ns_waitcnt vmcnt(%d)\nL_nt%d:" % (n, A.thrT, n))
    if A.thr and n < A.thr:
        a("s_cmp_le_u32 s10, %d\ns_cbranch_scc1 L_nt%d\ns_waitcnt vmcnt(%d)\nL_nt%d:" % (n, n, A.thrT, n))
    ready(e)
    a("v_mfma_f32_16x16x32_bf16 v[40:43], %s, %s, %s" % (t4(ab), t4(reg_of(e)), "0" if n == 0 else "v[40:43]"))
    done(e)

def dma(n, vregs, step):
    for t in range(n):
        a("s_mov_b32 m0, s3")
        a("buffer_load_dwordx4 %s, s[52:55], s13 offen %s lds" % (vregs[t % len(vregs)], A.dmod))
        if t < n - 1:
            a("s_add_u32 s3, s3, 1024")
            a("s_add_u32 s13, s13, %d" % step)

a("v_lshrrev_b32 v16, 2, v46")
a("v_lshlrev_b32 v16, 10, v16")
if A.rot >= 2:
    a("v_add_u32 v17, s76, v44")
    a("v_and_b32 v17, 7, v17")
    a("v_lshl_add_u32 v16, v17, 6, v16")
else:
    a("v_lshl_add_u32 v16, v44, 6, v16")
a("v_lshl_add_u32 v16, v45, 4, v16")
a("v_and_b32 v17, 3, v0")
a("v_lshl_add_u32 v16, v17, 2, v16")
a("v_mul_u32_u24 v18, 2560, v44")
a("v_lshl_add_u32 v18, v46, 5, v18")
a("v_lshl_add_u32 v18, v45, 4, v18")
a("v_bfe_u32 v19, v0, 2, 6")
a("v_mul_u32_u24 v19, 5, v19")
a("v_lshrrev_b32 v20, 8, v0")
a("v_mul_u32_u24 v20, 3, v20")
a("v_add3_u32 v19, v19, v20, v17")
a("v_lshlrev_b32 v19, 3, v19")
a("v_lshlrev_b32 v20, 2, v0")
a("v_mov_b32 v21, 0\nv_mov_b32 v22, 1")
a("s_and_b32 s77, s2, 7\ns_lshl_b32 s75, s77, 7\ns_add_u32 s75, s75, 65536")
a("s_mov_b32 s86, 0x88888888\ns_mov_b32 s87, 0x88888888")
if A.op2:
    for r in range(4):
        a("v_mov_b32_dpp v%d, v%d row_ror:8 row_mask:0xf bank_mask:0xf" % (27 + r, 6 + r))
    a("v_mul_u32_u24 v31, 2560, v44")
    a("v_lshrrev_b32 v11, 1, v45")
    a("v_lshl_add_u32 v31, v11, 9, v31")
    a("v_lshl_add_u32 v31, v46, 5, v31")
    a("v_and_b32 v11, 1, v45")
    a("v_lshl_add_u32 v31, v11, 4, v31")
a("v_mul_u32_u24 v5, 80, v44")
a("v_lshrrev_b32 v11, 3, v1")
a("v_add_u32 v5, v5, v11")
a("v_mul_u32_u24 v5, 3456, v5")
a("v_and_b32 v11, 2, v11")
a("v_and_b32 v10, 7, v0")
a("v_xor_b32 v11, v10, v11")
a("v_lshl_add_u32 v25, v11, 4, v5")
a("v_xor_b32 v11, 4, v11")
a("v_lshl_add_u32 v26, v11, 4, v5")
a("s_mul_i32 s3, s26, 10240")
a("s_add_u32 s3, s3, %d" % L_W)
if A.pf:
    a("s_lshr_b32 s84, s2, 3")
    a("s_cmp_ge_u32 s26, 4")
    a("s_cselect_b32 s52, s18, s16\ns_cselect_b32 s53, s19, s17")
    a("s_mov_b32 s54, 2211840\ns_mov_b32 s55, 0x20000")
    a("v_mov_b32 v12, 0x7fffff00")
    a("s_cbranch_scc1 L_pf2")
    a("s_and_b32 s85, s84, 7\ns_mul_i32 s85, s85, 80")
    a("v_lshrrev_b32 v23, 1, v0")
    a("v_add_u32 v23, s85, v23")
    a("v_mul_u32_u24 v23, 3456, v23")
    a("v_and_b32 v13, 1, v0")
    a("v_lshl_add_u32 v23, v13, 6, v23")
    a("s_and_b32 s85, s84, 0x18\ns_add_u32 s85, s85, s77")
    a("s_cmp_lt_u32 s85, 27")
    a("s_cselect_b32 s84, 160, 0")
    a("s_lshl_b32 s85, s85, 7")
    a("v_add_u32 v23, s85, v23")
    a("v_cmp_gt_u32 vcc, s84, v0")
    a("v_cndmask_b32 v23, v12, v23, vcc")
    a("s_branch L_pfdone")
    a("L_pf2:")
    a("s_mul_i32 s84, s84, 54")
    a("v_bfe_u32 v23, v0, 2, 6")
    a("v_add_u32 v23, s84, v23")
    a("v_mul_u32_u24 v23, 1280, v23")
    a("v_lshl_add_u32 v23, v17, 6, v23")
    a("s_mul_i32 s85, s77, 160\ns_and_b32 s85, s85, 0xff80")
    a("v_add_u32 v23, s85, v23")
    a("v_cmp_gt_u32 vcc, %d, v0" % (256 + 216))
    a("v_cndmask_b32 v23, v12, v23, vcc")
    a("L_pfdone:")

if A.codepf2:
    a("s_getpc_b64 s[84:85]")
    a("L_pc2:")
    a("v_lshlrev_b32 v12, 4, v0")
    a("v_add_u32 v12, 1792, v12")
    a("v_min_u32 v12, L_end-L_pc2, v12")
    a("global_load_dword v13, v12, s[84:85]")
if A.sthr:
    a("s_bfe_u32 s10, s36, 0x20008")
if A.LV: A.L = A.LV
if A.tk2:
    st["gate"] = POS[("t", 0)]
    a("s_cmp_eq_u32 s26, %d\ns_cselect_b32 s11, s75, 0x7ffff000" % A.tkwave)
for n in range(32):
    pv(n)
    if A.pf >= 10 and n == A.pf - 10:
        a("buffer_load_dword v24, v23, s[52:55], 0 offen %s" % A.pfmod)
    if n == A.tkpos - 4: a("s_load_dword s89, s[22:23], 0")
    if n == A.tkpos:
        a("s_waitcnt lgkmcnt(0)")
        a("s_cmp_ge_u32 s89, 8")
        a("s_cbranch_scc0 L_initslow")
        a("L_initok:")
        if A.tk2:
            st["gate"] = len(S)
            continue
        if A.static:
            a("s_lshr_b32 s79, s2, 3\ns_xor_b32 s79, s79, 16")
            continue
        a("s_cmp_lg_u32 s26, %d" % A.tkwave)
        a("s_cbranch_scc1 L_notk")
        a("s_mov_b64 exec, 1")
        if A.static:
            a("s_lshr_b32 s84, s2, 3\ns_xor_b32 s84, s84, 16\nv_mov_b32 v22, s84")
        else:
            a("buffer_atomic_add v22, v21, s[48:51], s75 offen sc0 sc1")
        a("s_mov_b64 exec, -1")
        a("L_notk:")
assert st["issued"] == len(S)
stamp()
fine()
if A.pf == 2:
    a("buffer_load_dword v24, v23, s[52:55], 0 offen %s" % A.pfmod)
a("s_mov_b32 exec_hi, 0")
a("ds_write_b128 v47, v[40:43] offset:%d" % L_PART)
if not (A.tk2 or A.static):
    a("s_cmp_lg_u32 s26, %d" % A.tkwave)
    a("s_cbranch_scc1 L_notk2")
    a("s_waitcnt vmcnt(0)")
    a("s_mov_b64 exec, 1")
    a("ds_write_b32 v21, v22 offset:%d" % L_TK)
    a("L_notk2:")
a("s_mov_b64 exec, -1")
a("s_waitcnt lgkmcnt(0)")
a("s_barrier")
fine()
a("ds_read2st64_b32 v[10:11], v16 offset0:%d offset1:%d" % (L_PART // 256, L_PART // 256 + 2))
if A.pf == 1:
    a("buffer_load_dword v24, v23, s[52:55], 0 offen %s" % A.pfmod)
if not (A.tk2 or A.static): a("ds_read_b32 v12, v21 offset:%d" % L_TK)
a("s_waitcnt lgkmcnt(0)")
a("v_add_f32 v10, v10, v11")
if not (A.tk2 or A.static): a("v_readfirstlane_b32 s79, v12")
if A.edma:
    a("s_lshl_b32 s84, s79, 3\ns_add_u32 s84, s84, s77\ns_sub_u32 s84, s84, %d" % FFN2_N)
    a("s_min_u32 s85, s79, 9\ns_cmp_lt_u32 s85, 9\ns_cselect_b32 s84, s84, 99")
    a("s_cmp_ge_u32 s84, %d" % FFN1_N)
    a("s_cbranch_scc1 L_noedma")
    a("s_mov_b32 s52, s16\ns_mov_b32 s53, s17\ns_mov_b32 s54, 2211840\ns_mov_b32 s55, 0x20000")
    a("s_lshl_b32 s13, s84, 7")
    dma(10, ["v25", "v26"], 27648)
    a("L_noedma:")
a("v_add_f32_dpp v10, v10, v10 row_ror:4 row_mask:0xf bank_mask:0xf")
a("v_add_f32_dpp v10, v10, v10 row_ror:8 row_mask:0xf bank_mask:0xf")
a("v_cvt_pk_bf16_f32 v10, v10, v10")
fine()
YA = 128
if A.op2:
    def sel2(r4, hi):
        for r in range(4):
            a("v_and_b32_dpp v%d, v10, v%d row_newbcast:%d row_mask:0xf bank_mask:0xf" % (48 + 8 * r4 + 4 * hi + r, (27 if hi else 6) + r, r4))
    def mm(acc, r4, hi, cb, first):
        a("v_mfma_f32_16x16x32_bf16 %s, %s, %s, %s" % (t4(acc), t4(48 + 8 * r4 + 4 * hi), t4(WO + 4 * (5 * r4 + cb)), "0" if first else t4(acc)))
    sel2(0, 0); sel2(0, 1)
    for r4 in range(4):
        mm(YA, r4, 0, 0, r4 == 0)
        if r4 < 3: sel2(r4 + 1, 0)
        mm(YA, r4, 1, 1, False)
        if r4 < 3: sel2(r4 + 1, 1)
    for r4 in range(4):
        mm(YA + 4, r4, 0, 2, r4 == 0)
        mm(YA + 4, r4, 1, 3, False)
    a("ds_write_b128 v31, %s offset:%d" % (t4(YA), L_YP))
    for r4 in range(4):
        mm(YA + 8, r4, 0, 4, r4 == 0)
    a("ds_write_b128 v31, %s offset:%d" % (t4(YA + 4), L_YP + 1024))
    a("s_mov_b32 exec_hi, 0")
    a("ds_write_b128 v31, %s offset:%d" % (t4(YA + 8), L_YP + 2048))
    a("s_mov_b64 exec, -1")
else:
    for r4 in range(4):
        ab = 32 + 4 * (r4 & 1)
        selector(ab, "v10", r4)
        for cb in range(5):
            acc = t4(YA + 4 * cb)
            a("v_mfma_f32_16x16x32_bf16 %s, %s, %s, %s" % (acc, t4(ab), t4(WO + 4 * (5 * r4 + cb)), "0" if r4 == 0 else acc))
    a("s_mov_b32 exec_hi, 0")
    for cb in range(5):
        a("ds_write_b128 v18, %s offset:%d" % (t4(YA + 4 * cb), L_YP + 512 * cb))
    a("s_mov_b64 exec, -1")
if A.pf == 3:
    a("buffer_load_dword v24, v23, s[52:55], 0 offen %s" % A.pfmod)
fine()
a("s_lshl_b32 s84, s76, 12")
a("s_waitcnt lgkmcnt(0)")
fine()
if A.fine: a("s_waitcnt lgkmcnt(0)")
a("s_barrier")
fine()
if A.fine: a("s_waitcnt lgkmcnt(0)")
YS = 148
for w in range(8):
    a("ds_read_b64 v[%d:%d], v19 offset:%d" % (YS + 2 * w, YS + 2 * w + 1, L_YP + 2560 * w))
for s_ in (4, 2, 1):
    for w in range(s_):
        if s_ == 4: a("s_waitcnt lgkmcnt(%d)" % (3 - w))
        a("v_pk_add_f32 v[%d:%d], v[%d:%d], v[%d:%d]" % (YS + 2 * w, YS + 2 * w + 1, YS + 2 * w, YS + 2 * w + 1, YS + 2 * (w + s_), YS + 2 * (w + s_) + 1))
a("v_cndmask_b32 v10, v%d, 1.0, s[86:87]" % YS)
a("v_cndmask_b32 v11, v%d, 1.0, s[86:87]" % (YS + 1))
a("buffer_atomic_add_f32 v10, v20, s[48:51], s84 offen")
a("buffer_atomic_add_f32 v11, v20, s[48:51], s84 offen offset:2048")
if A.pf == 4:
    a("buffer_load_dword v24, v23, s[52:55], 0 offen %s" % A.pfmod)
fine()
stamp()
if A.fine:
    for k, sl in enumerate((93, 94, 95, 98, 99, 100)):
        a("s_sub_u32 s%d, s%d, s%d" % (sl, FINE[k + 1], FINE[k]))
    a("s_mov_b32 s27, 99\ns_branch L_fin")
a("s_mov_b32 s27, 99")
if A.tk2:
    a("s_cmp_lg_u32 s26, %d" % A.tkwave)
    a("s_cbranch_scc1 L_notk2")
    a("s_waitcnt vmcnt(%d)" % (3 if A.pf in (1, 2, 3, 4) else 2))
    a("s_mov_b64 exec, 1")
    a("ds_write_b32 v21, v22 offset:%d" % L_TK)
    a("s_mov_b64 exec, -1")
    a("s_waitcnt lgkmcnt(0)")
    a("L_notk2:")
    a("s_barrier")
    a("ds_read_b32 v12, v21 offset:%d" % L_TK)
    a("s_waitcnt lgkmcnt(0)")
    a("v_readfirstlane_b32 s79, v12")
    a("s_cmp_ge_u32 s79, 9")
    a("s_cbranch_scc1 L_fin")
else:
    a("s_cmp_ge_u32 s79, 9")
    a("s_cbranch_scc1 L_fin")
    a("s_barrier")
a("s_mov_b32 s54, 2211840\ns_mov_b32 s55, 0x20000")
a("s_mov_b32 s85, 0x42000000")
a("s_mov_b32 s88, 0")
a("v_and_b32 v10, 7, v0")
a("s_mul_i32 s27, s77, 5\ns_add_u32 s27, s27, s79")
a("s_cmp_lt_u32 s79, 5")
a("s_cbranch_scc1 L_ffn2")
a("s_lshl_b32 s27, s79, 3\ns_add_u32 s27, s27, s77")
a("s_cmp_ge_u32 s27, %d" % (FFN2_N + FFN1_N))
a("s_cbranch_scc1 L_fin")

AF = 48; BF = 128; XF = 208; GR = 220
a("s_sub_u32 s79, s27, %d" % FFN2_N)
a("s_mov_b32 s52, s16\ns_mov_b32 s53, s17")
a("s_lshl_b32 s13, s79, 7")
if not A.edma:
    dma(10, ["v25", "v26"], 27648)
a("v_mul_u32_u24 v23, 20, v1")
a("v_mul_u32_u24 v21, 1280, v44")
a("v_add_u32 v21, v21, v23")
XR = 248
a("buffer_load_dwordx4 v[%d:%d], v21, s[44:47], 0 offen" % (XR, XR + 3))
a("buffer_load_dword v%d, v21, s[44:47], 0 offen offset:16" % (XR + 4))
a("v_lshlrev_b32 v22, 12, v44")
a("v_lshl_add_u32 v22, v1, 4, v22")
def poll1_issue():
    for m in range(4):
        a("buffer_load_dwordx4 %s, v22, s[48:51], 0 offen offset:%d %s" % (t4(GR + 4 * m), 1024 * m, A.pmod))
if not A.nopre: poll1_issue()
a("v_mul_u32_u24 v11, %d, v44" % HN_STRIDE)
a("v_add_u32 v23, v23, v11")
a("v_add_u32 v35, %d, v23" % L_HN)
a("v_mul_u32_u24 v29, %d, v10" % HN_STRIDE)
a("v_lshl_add_u32 v29, v45, 4, v29")
a("v_lshlrev_b32 v30, 4, v10")
a("v_lshl_add_u32 v30, v44, 8, v30")
a("v_lshrrev_b32 v11, 1, v45")
a("v_lshl_add_u32 v30, v11, 7, v30")
a("v_and_b32 v11, 1, v45")
a("v_lshl_add_u32 v30, v11, 3, v30")
a("v_lshrrev_b32 v12, 2, v46")
a("v_lshl_add_u32 v12, v45, 3, v12")
a("v_lshlrev_b32 v12, 7, v12")
a("v_lshrrev_b32 v13, 3, v46")
a("v_lshl_add_u32 v13, v11, 1, v13")
a("v_and_b32 v11, 3, v44")
a("v_xor_b32 v11, v11, v13")
a("v_lshl_add_u32 v12, v11, 5, v12")
a("v_lshl_add_u32 v12, v17, 3, v12")
a("v_add_u32 v12, %d, v12" % L_W)
a("v_add_u32 v13, 40960, v12")
if A.warm1:
    a("s_mov_b32 s78, 0")
    a("s_branch L_f1_body")
    a("L_f1_resume:")
a("s_waitcnt vmcnt(%d)" % ((0 if A.nopre else 4) + (4 if A.edma else 0)))
if A.stamp and A.st8 == "dma":
    a("s_memrealtime s[90:91]\ns_waitcnt lgkmcnt(0)\ns_mov_b32 s100, s90")
a("s_barrier")
a("s_cmp_ge_u32 s26, 4")
a("s_cbranch_scc1 L_notr")
for ks in range(20):
    base, off = ("v12", ks * 4096) if ks < 10 else ("v13", (ks - 10) * 4096)
    a("ds_read_b64_tr_b16 v[%d:%d], %s offset:%d" % (AF + 4 * ks, AF + 4 * ks + 1, base, off))
    a("ds_read_b64_tr_b16 v[%d:%d], %s offset:%d" % (AF + 4 * ks + 2, AF + 4 * ks + 3, base, off + 512))
a("L_notr:")
if A.nopre and not A.light: poll1_issue()
if A.light: a("v_mov_b32 v%d, 0" % (GR + 3))
if A.edma: a("s_waitcnt vmcnt(4)")
for k in range(5):
    a("v_lshlrev_b32 v%d, 16, v%d" % (XF + 2 * k, XR + k))
    a("v_and_b32 v%d, 0xffff0000, v%d" % (XF + 2 * k + 1, XR + k))
if A.light:
    import struct as _st
    a("s_mov_b32 s84, 0x%08x" % _st.unpack("<I", _st.pack("<f", float(A.light)))[0])
    a("s_waitcnt vmcnt(0)")
    a("s_mov_b32 s78, 1")
    a("s_mov_b64 exec, 1")
    a("L_light:")
    a("v_cmp_gt_f32 vcc, s84, v%d" % (GR + 3))
    a("s_add_u32 s88, s88, 1")
    a("s_cmp_gt_u32 s88, %d" % SPIN_MAX)
    a("s_cbranch_scc1 L_light_done")
    a("s_cbranch_vccz L_light_done")
    if A.sleep: a("s_sleep %d" % A.sleep)
    a("buffer_load_dword v%d, v22, s[48:51], 0 offen offset:12 %s" % (GR + 3, A.pmod))
    a("s_waitcnt vmcnt(0)")
    a("s_branch L_light")
    a("L_light_done:")
    a("s_mov_b64 exec, -1")
elif A.warm:
    a("s_mov_b32 s78, 0")
    a("s_waitcnt vmcnt(0)")
    a("s_branch L_f1_body")
else:
    a("s_mov_b32 s78, 1")
    a("s_branch L_poll1_chk")
if A.D1:
    sets = [GR] + [BF + 16 * k for k in range(A.D1 - 1)]
    def p1(g):
        for m in range(4):
            a("buffer_load_dwordx4 %s, v22, s[48:51], 0 offen offset:%d %s" % (t4(g + 4 * m), 1024 * m, A.pmod))
    a("L_poll1_chk:")
    for g in sets[1:]:
        if A.pace: a("s_sleep %d" % A.pace)
        p1(g)
    a("L_poll1:")
    for k, g in enumerate(sets):
        a("s_waitcnt vmcnt(%d)" % (4 * (A.D1 - 1)))
        a("v_min_f32 v31, v%d, v%d" % (g + 3, g + 7))
        a("v_min3_f32 v31, v31, v%d, v%d" % (g + 11, g + 15))
        a("v_cmp_ne_u32 vcc, s85, v31")
        a("s_cbranch_vccz L_p1x%d" % k)
        if A.pace: a("s_sleep %d" % A.pace)
        p1(g)
    a("s_add_u32 s88, s88, 1")
    a("s_cmp_gt_u32 s88, %d" % SPIN_MAX)
    a("s_cbranch_scc0 L_poll1")
    for k, g in reversed(list(enumerate(sets))):
        a("L_p1x%d:" % k)
        for q, (x, y) in enumerate([(0, 8), (1, 9), (2, 10), (4, 12), (5, 13)]):
            a("v_cvt_pk_bf16_f32 v%d, v%d, v%d" % (24 + q, g + x, g + y))
        if k: a("s_branch L_p1done")
    a("L_p1done:")
    stamp()
    XH = 238
    GR = 10
else:
    a("L_poll1:")
    poll1_issue()
    a("L_poll1_chk:")
    a("s_add_u32 s88, s88, 1")
    a("s_waitcnt vmcnt(0)")
    a("v_min_f32 v31, v%d, v%d" % (GR + 3, GR + 7))
    a("v_min3_f32 v31, v31, v%d, v%d" % (GR + 11, GR + 15))
    a("v_cmp_ne_u32 vcc, s85, v31")
    a("s_cmp_gt_u32 s88, %d" % SPIN_MAX)
    a("s_cbranch_scc1 L_poll1_done")
    a("s_cbranch_vccnz L_poll1")
    a("L_poll1_done:")
    stamp()
    a("L_f1_body:")
    XH = 238
    pairs = [(GR + 0, GR + 8), (GR + 1, GR + 9), (GR + 2, GR + 10), (GR + 4, GR + 12), (GR + 5, GR + 13)]
    for k in range(5):
        a("v_cvt_pk_bf16_f32 v%d, v%d, v%d" % (24 + k, pairs[k][0], pairs[k][1]))
if A.ln1:
    def pk(op, d, x, y, extra=""):
        a("%s v[%d:%d], v[%d:%d], v[%d:%d]%s" % (op, d, d + 1, x, x + 1, y, y + 1, extra))
    def unpack(d, src):
        a("v_lshlrev_b32 v%d, 16, v%d" % (d, src)); a("v_and_b32 v%d, 0xffff0000, v%d" % (d + 1, src))
    for k in range(5): unpack(GR + 2 * k, 24 + k)
    for k in range(5): pk("v_pk_add_f32", GR + 2 * k, GR + 2 * k, XF + 2 * k)
    for k in range(5): a("v_cvt_pk_bf16_f32 v%d, v%d, v%d" % (24 + k, GR + 2 * k, GR + 2 * k + 1))
    a("s_mov_b32 s12, 0x3f803f80")
    for k in range(5):
        a("v_dot2_f32_bf16 v32, v%d, s12, %s" % (24 + k, "0" if k == 0 else "v32"))
        a("v_dot2_f32_bf16 v33, v%d, v%d, %s" % (24 + k, 24 + k, "0" if k == 0 else "v33"))
    fill = [("v_lshlrev_b32 v%d, 16, v%d" % (XH + 2 * k, 24 + k), "v_and_b32 v%d, 0xffff0000, v%d" % (XH + 2 * k + 1, 24 + k)) for k in range(5)]
    fill = [x for pr in fill for x in pr]
    a(fill.pop(0)); a(fill.pop(0)); a(fill.pop(0))
    for m in ("quad_perm:[1,0,3,2] row_mask:0xf", "quad_perm:[2,3,0,1] row_mask:0xf", "row_half_mirror row_mask:0xf",
              "row_mirror row_mask:0xf", "row_bcast:15 row_mask:0xa", "row_bcast:31 row_mask:0xc"):
        a("v_add_f32_dpp v32, v32, v32 %s bank_mask:0xf" % m)
        a("v_add_f32_dpp v33, v33, v33 %s bank_mask:0xf" % m)
        a(fill.pop(0))
    a("v_readlane_b32 s84, v32, 63")
    a("v_readlane_b32 s12, v33, 63")
    a(fill.pop(0))
    a("v_mov_b32 v33, 0x3acccccd")
    a("v_mul_f32 v38, s84, v33")
    a("v_mul_f32 v32, s12, v33")
    a("v_fma_f32 v32, -v38, v38, v32")
    a("v_max_f32 v32, 0, v32")
    a("v_cvt_pk_bf16_f32 v32, v32, v38")
    a("v_and_b32 v38, 0xffff0000, v32")
    a("v_lshlrev_b32 v32, 16, v32")
    a("v_add_f32 v32, 0x3727c5ac, v32")
    a("v_mov_b32 v39, v38")
    a("v_cvt_pk_bf16_f32 v32, v32, v32")
    for k in range(2): pk("v_pk_add_f32", XH + 2 * k, XH + 2 * k, 38, " neg_lo:[0,1] neg_hi:[0,1]")
    a("v_lshlrev_b32 v32, 16, v32")
    a("v_sqrt_f32 v32, v32")
    for k in range(2, 5): pk("v_pk_add_f32", XH + 2 * k, XH + 2 * k, 38, " neg_lo:[0,1] neg_hi:[0,1]")
    a("v_cvt_pk_bf16_f32 v32, v32, v32")
    for k in range(5): a("v_cvt_pk_bf16_f32 v%d, v%d, v%d" % (24 + k, XH + 2 * k, XH + 2 * k + 1))
    a("v_lshlrev_b32 v32, 16, v32")
    a("v_rcp_f32 v36, v32")
    for k in range(5): unpack(XH + 2 * k, 24 + k)
    a("v_mov_b32 v37, v36")
    for k in range(5): pk("v_pk_mul_f32", XH + 2 * k, XH + 2 * k, 36)
    for k in range(5): a("v_cvt_pk_bf16_f32 v%d, v%d, v%d" % (24 + k, XH + 2 * k, XH + 2 * k + 1))
    a("v_add_u32 v23, %d, v23" % L_HN) if False else None
    a("ds_write2_b32 v35, v24, v25 offset0:0 offset1:1")
    a("ds_write2_b32 v35, v26, v27 offset0:2 offset1:3")
    a("ds_write_b32 v35, v28 offset:16")
else:
    for k in range(5):
        a("v_lshlrev_b32 v%d, 16, v%d" % (GR + 2 * k, 24 + k))
        a("v_and_b32 v%d, 0xffff0000, v%d" % (GR + 2 * k + 1, 24 + k))
    for k in range(10):
        a("v_add_f32 v%d, v%d, v%d" % (GR + k, GR + k, XF + k))
    for k in range(5):
        a("v_cvt_pk_bf16_f32 v%d, v%d, v%d" % (24 + k, GR + 2 * k, GR + 2 * k + 1))
    for k in range(5):
        a("v_lshlrev_b32 v%d, 16, v%d" % (XH + 2 * k, 24 + k))
        a("v_and_b32 v%d, 0xffff0000, v%d" % (XH + 2 * k + 1, 24 + k))
    ln_stats(["v%d" % (XH + k) for k in range(10)], ["v31", "v32", "v33"], "v38", "v39")
    for k in range(10):
        a("v_sub_f32 v%d, v%d, v38" % (XH + k, XH + k))
    for k in range(5):
        a("v_cvt_pk_bf16_f32 v%d, v%d, v%d" % (24 + k, XH + 2 * k, XH + 2 * k + 1))
    for k in range(5):
        a("v_lshlrev_b32 v%d, 16, v%d" % (XH + 2 * k, 24 + k))
        a("v_and_b32 v%d, 0xffff0000, v%d" % (XH + 2 * k + 1, 24 + k))
    for k in range(10):
        a("v_mul_f32 v%d, v%d, v39" % (XH + k, XH + k))
    for k in range(5):
        a("v_cvt_pk_bf16_f32 v%d, v%d, v%d" % (24 + k, XH + 2 * k, XH + 2 * k + 1))
        a("ds_write_b32 v23, v%d offset:%d" % (24 + k, L_HN + 4 * k))
a("s_waitcnt lgkmcnt(0)")
a("s_barrier")
if A.stamp and A.st8 == "hn":
    a("s_memrealtime s[90:91]\ns_waitcnt lgkmcnt(0)\ns_mov_b32 s100, s90")
a("s_cmp_ge_u32 s26, 4")
a("s_cbranch_scc1 L_f1_skip")
if A.D1: a("s_waitcnt vmcnt(0)")
GR = 220
for ks in range(20):
    a("ds_read_b128 %s, v29 offset:%d" % (t4(BF + 4 * ks), L_HN + 64 * ks))
for ks in range(20):
    a("s_waitcnt lgkmcnt(%d)" % min(15, 19 - ks))
    a("v_mfma_f32_16x16x32_bf16 v[40:43], %s, %s, %s" % (t4(AF + 4 * ks), t4(BF + 4 * ks), "0" if ks == 0 else "v[40:43]"))
a("s_lshl_b32 s84, s79, 10")
a("s_mov_b32 exec_lo, 0x00ff00ff\ns_mov_b32 exec_hi, 0x00ff00ff")
for r in range(4):
    a("v_max_f32 v%d, 0, v%d" % (40 + r, 40 + r))
a("v_cvt_pk_bf16_f32 v40, v40, v41")
a("v_cvt_pk_bf16_f32 v41, v42, v43")
a("s_cmp_eq_u32 s78, 0")
a("s_cbranch_scc1 L_f1_nost")
a("buffer_store_dwordx2 v[40:41], v30, s[60:63], s84 offen %s" % A.pmod)
a("L_f1_nost:")
a("s_mov_b64 exec, -1")
stamp()
a("L_f1_skip:")
a("s_cmp_eq_u32 s78, 0")
a("s_cbranch_scc0 L_fin")
if A.warm1:
    a("s_branch L_f1_resume")
else:
    a("s_mov_b32 s78, 1")
    a("s_barrier")
    a("s_branch L_poll1")

if A.stamp: stamp_idx[0] = 6
a("L_ffn2:")
a("s_mov_b32 s52, s18\ns_mov_b32 s53, s19")
a("s_lshl_b32 s13, s27, 5")
a("s_mov_b32 s79, s13")
a("v_lshrrev_b32 v5, 1, v0")
a("v_mul_u32_u24 v5, 1280, v5")
a("v_and_b32 v11, 1, v0")
a("v_lshl_add_u32 v5, v11, 4, v5")
dma(7, ["v5"], 327680)
a("v_mul_u32_u24 v21, 1280, v10")
a("v_lshl_add_u32 v21, v45, 3, v21")
a("buffer_load_dwordx2 v[24:25], v21, s[44:47], s79 offen")
a("v_mul_u32_u24 v12, 10240, v44")
a("v_lshl_add_u32 v12, v45, 8, v12")
a("v_lshl_add_u32 v12, v46, 3, v12")
a("v_add_u32 v12, %d, v12" % L_W)
a("v_lshlrev_b32 v22, 9, v44")
a("v_lshl_add_u32 v22, v45, 7, v22")
a("v_lshl_add_u32 v22, v10, 4, v22")
a("v_lshlrev_b32 v16, 4, v0")
a("v_lshlrev_b32 v17, 4, v1")
a("s_mov_b32 s78, 1")
if A.warm or A.warm2:
    a("s_mov_b32 s78, 0")
    a("s_branch L_f2_body")
    a("L_f2_real:")
    a("s_mov_b32 s78, 1")
a("s_cmp_lg_u32 s26, 0")
a("s_cbranch_scc1 L_ffn2_noh")
a("s_lshl_b32 s84, s27, 4")
a("v_lshlrev_b32 v11, 2, v45")
a("v_add_u32 v11, s84, v11")
for r in range(4):
    a("v_add_u32 v13, %d, v11" % r)
    a("v_mul_u32_u24 v29, 205, v13")
    a("v_lshrrev_b32 v29, 11, v29")
    a("v_mul_u32_u24 v30, 10, v29")
    a("v_sub_u32 v13, v13, v30")
    a("v_and_b32 v30, 1, v13")
    a("v_lshrrev_b32 v13, 1, v13")
    a("v_mul_u32_u24 v31, 11, v13")
    a("v_lshrrev_b32 v31, 5, v31")
    a("v_lshl_add_u32 v30, v30, 1, v31")
    a("v_mul_u32_u24 v31, 3, v31")
    a("v_sub_u32 v%d, v13, v31" % (XF + 4 + r))
    a("v_lshl_add_u32 v29, v30, 6, v29")
    a("v_lshlrev_b32 v29, 4, v29")
    a("v_lshl_add_u32 v%d, v10, 12, v29" % (XF + r))
if A.light or A.light2:
    a("v_lshlrev_b32 v29, 12, v10")
    a("s_mov_b32 s84, 0x42000000")
    a("s_mov_b64 exec, 0xff")
    a("L_light2:")
    a("buffer_load_dword v30, v29, s[48:51], 0 offen offset:12 %s" % A.pmod)
    a("s_add_u32 s88, s88, 1")
    a("s_waitcnt vmcnt(0)")
    a("v_cmp_gt_f32 vcc, s84, v30")
    a("s_cmp_gt_u32 s88, %d" % SPIN_MAX)
    a("s_cbranch_scc1 L_light2_done")
    a("s_cbranch_vccnz L_light2")
    a("L_light2_done:")
    a("s_mov_b64 exec, -1")
a("L_poll2h:")
if A.sleep: a("s_sleep %d" % A.sleep)
for r in range(4):
    a("buffer_load_dwordx4 %s, v%d, s[48:51], 0 offen %s" % (t4(GR + 4 * r), XF + r, A.pmod))
a("s_add_u32 s88, s88, 1")
a("s_waitcnt vmcnt(0)")
a("v_min_f32 v31, v%d, v%d" % (GR + 3, GR + 7))
a("v_min3_f32 v31, v31, v%d, v%d" % (GR + 11, GR + 15))
a("v_cmp_ne_u32 vcc, s85, v31")
a("s_cmp_gt_u32 s88, %d" % SPIN_MAX)
a("s_cbranch_scc1 L_poll2h_done")
a("s_cbranch_vccnz L_poll2h")
a("L_poll2h_done:")
for r in range(4):
    a("v_cmp_eq_u32 vcc, 1, v%d" % (XF + 4 + r))
    a("v_cndmask_b32 v%d, v%d, v%d, vcc" % (GR + 4 * r, GR + 4 * r, GR + 4 * r + 1))
    a("v_cmp_eq_u32 vcc, 2, v%d" % (XF + 4 + r))
    a("v_cndmask_b32 v%d, v%d, v%d, vcc" % (GR + 4 * r, GR + 4 * r, GR + 4 * r + 2))
for k in range(2):
    a("v_cvt_pk_bf16_f32 v31, v%d, v%d" % (GR + 8 * k, GR + 8 * k + 4))
    a("v_lshlrev_b32 v32, 16, v31")
    a("v_and_b32 v33, 0xffff0000, v31")
    a("v_lshlrev_b32 v34, 16, v%d" % (24 + k))
    a("v_and_b32 v35, 0xffff0000, v%d" % (24 + k))
    a("v_add_f32 v32, v32, v34")
    a("v_add_f32 v33, v33, v35")
    a("v_cvt_pk_bf16_f32 v31, v32, v33")
    a("v_lshlrev_b32 v%d, 16, v31" % (XF + 2 * k))
    a("v_and_b32 v%d, 0xffff0000, v31" % (XF + 1 + 2 * k))
a("L_ffn2_noh:")
a("s_waitcnt vmcnt(0)")
def f2_frags():
    for t in range(7):
        a("ds_read_b64_tr_b16 v[%d:%d], v12 offset:%d" % (AF + 4 * t, AF + 4 * t + 1, 1024 * t))
        a("ds_read_b64_tr_b16 v[%d:%d], v12 offset:%d" % (AF + 4 * t + 2, AF + 4 * t + 3, 1024 * t + 128))
if not A.defer2: f2_frags()
stamp()
if A.f2bar:
    a("s_barrier")
if A.defer2:
    f2_frags()
    a("s_waitcnt lgkmcnt(0)")
a("s_mov_b32 s88, 0")
if A.D2:
    sets = [80 + 28 * k for k in range(A.D2)]
    assert sets[-1] + 28 <= XF
    def p2(g):
        for t in range(7):
            a("buffer_load_dwordx4 %s, v22, s[60:63], %s offen %s" % (t4(g + 4 * t), soff(4096 * t)[0], A.pmod))
    if A.m2:
        a("s_mov_b32 exec_lo, 0x00ff00ff\ns_mov_b32 exec_hi, 0x00ff00ff")
    for k, g in enumerate(sets):
        if A.pace and k: a("s_sleep %d" % A.pace)
        p2(g)
    a("s_waitcnt lgkmcnt(0)")
    a("L_poll2:")
    for k, g in enumerate(sets):
        a("s_waitcnt vmcnt(%d)" % (7 * (A.D2 - 1)))
        a("v_max3_u32 v31, v%d, v%d, v%d" % (g, g + 1, g + 2))
        a("v_max3_u32 v32, v%d, v%d, v%d" % (g + 3, g + 4, g + 5))
        for q in range(6, 26, 4):
            a("v_max3_u32 v31, v31, v%d, v%d" % (g + q, g + q + 1))
            a("v_max3_u32 v32, v32, v%d, v%d" % (g + q + 2, g + q + 3))
        a("v_max3_u32 v31, v31, v%d, v%d" % (g + 26, g + 27))
        a("v_max_u32 v31, v31, v32")
        a("v_cmp_eq_u32 vcc, -1, v31")
        a("s_cbranch_vccz L_p2x%d" % k)
        if A.pace: a("s_sleep %d" % A.pace)
        p2(g)
    a("s_add_u32 s88, s88, 1")
    a("s_cmp_gt_u32 s88, %d" % SPIN_MAX)
    a("s_cbranch_scc0 L_poll2")
    for k, g in reversed(list(enumerate(sets))):
        a("L_p2x%d:" % k)
        if A.m2: a("s_mov_b64 exec, -1")
        for t in range(7):
            a("v_mfma_f32_16x16x32_bf16 v[40:43], %s, %s, %s" % (t4(AF + 4 * t), t4(g + 4 * t), "0" if t == 0 else "v[40:43]"))
        if k: a("s_branch L_p2done")
    a("L_p2done:")
    a("s_nop 7")
    stamp()
else:
    if A.m2:
        for q in range(28): a("v_mov_b32 v%d, 0" % (BF + q))
        a("s_mov_b32 exec_lo, 0x00ff00ff\ns_mov_b32 exec_hi, 0x00ff00ff")
    if A.first2: a("s_sleep %d" % A.first2)
    a("L_poll2:")
    if A.bo2: a("s_sleep %d" % A.bo2)
    for t in range(7):
        a("buffer_load_dwordx4 %s, v22, s[60:63], %s offen %s" % (t4(BF + 4 * t), soff(4096 * t)[0], A.pmod))
    a("s_add_u32 s88, s88, 1")
    a("s_waitcnt vmcnt(0) lgkmcnt(0)")
    a("v_max_u32 v31, v%d, v%d" % (BF, BF + 1))
    a("v_max_u32 v32, v%d, v%d" % (BF + 2, BF + 3))
    for k in range(4, 28, 4):
        a("v_max3_u32 v31, v31, v%d, v%d" % (BF + k, BF + k + 1))
        a("v_max3_u32 v32, v32, v%d, v%d" % (BF + k + 2, BF + k + 3))
    a("v_max_u32 v31, v31, v32")
    a("v_cmp_eq_u32 vcc, -1, v31")
    a("s_cmp_gt_u32 s88, %d" % SPIN_MAX)
    a("s_cbranch_scc1 L_poll2_done")
    a("s_cbranch_vccnz L_poll2")
    a("L_poll2_done:")
    if A.m2: a("s_mov_b64 exec, -1")
    stamp()
    a("L_f2_body:")
    for t in range(7):
        a("v_mfma_f32_16x16x32_bf16 v[40:43], %s, %s, %s" % (t4(AF + 4 * t), t4(BF + 4 * t), "0" if t == 0 else "v[40:43]"))
a("ds_write_b128 v16, v[40:43] offset:%d" % L_FP)
a("s_waitcnt lgkmcnt(0)")
a("s_barrier")
a("s_cmp_lg_u32 s26, 0")
a("s_cbranch_scc1 L_f2_skip")
for w in range(8):
    a("ds_read_b128 %s, v17 offset:%d" % (t4(AF + 4 * w), L_FP + 1024 * w))
a("s_waitcnt lgkmcnt(0)")
for s_ in (4, 2, 1):
    for w in range(s_):
        for r in range(0, 4, 2):
            a("v_pk_add_f32 v[%d:%d], v[%d:%d], v[%d:%d]" % (AF + 4 * w + r, AF + 4 * w + r + 1, AF + 4 * w + r, AF + 4 * w + r + 1, AF + 4 * (w + s_) + r, AF + 4 * (w + s_) + r + 1))
a("s_mov_b32 exec_lo, 0x00ff00ff\ns_mov_b32 exec_hi, 0x00ff00ff")
for k in range(2):
    a("v_cvt_pk_bf16_f32 v31, v%d, v%d" % (AF + 2 * k, AF + 2 * k + 1))
    a("v_lshlrev_b32 v32, 16, v31")
    a("v_and_b32 v33, 0xffff0000, v31")
    a("v_add_f32 v32, v32, v%d" % (XF + 2 * k))
    a("v_add_f32 v33, v33, v%d" % (XF + 1 + 2 * k))
    a("v_cvt_pk_bf16_f32 v%d, v32, v33" % (40 + k))
a("s_cmp_eq_u32 s78, 0")
a("s_cbranch_scc1 L_f2_nost")
a("buffer_store_dwordx2 v[40:41], v21, s[56:59], s79 offen %s" % A.outmod)
a("L_f2_nost:")
a("s_mov_b64 exec, -1")
a("L_f2_skip:")
if A.warm or A.warm2:
    a("s_cmp_eq_u32 s78, 0")
    a("s_cbranch_scc1 L_f2_real")
if A.diagnum:
    a("v_mov_b32 v26, 0")
    a("buffer_load_dword v27, v26, s[64:67], 0 offen offset:32 sc0 sc1\ns_waitcnt vmcnt(0)")
    a("v_readfirstlane_b32 s84, v27\ns_bcnt1_i32_b32 s84, s84\ns_cmp_eq_u32 s84, 1\ns_cbranch_scc1 L_fin")
    a("s_memrealtime s[90:91]\ns_waitcnt lgkmcnt(0)\ns_add_u32 s85, s90, 10000")
    a("L_dly:\ns_memrealtime s[90:91]\ns_waitcnt lgkmcnt(0)\ns_sub_u32 s84, s85, s90\ns_cmp_lt_i32 s84, 0\ns_cbranch_scc0 L_dly")
if A.amp >= 0:
    a("s_cmp_lg_u32 s26, 0\ns_cbranch_scc1 L_fin")
    a("s_memrealtime s[90:91]\ns_waitcnt lgkmcnt(0)\ns_mov_b32 s101, s90")
    a("s_sub_u32 s85, s%d, s92\ns_lshl_b32 s85, s85, %d\ns_add_u32 s85, s85, s90" % (92 + A.amp, A.ampsh))
    a("L_dly2:\ns_memrealtime s[90:91]\ns_waitcnt lgkmcnt(0)\ns_sub_u32 s84, s85, s90\ns_cmp_lt_i32 s84, 0\ns_cbranch_scc0 L_dly2")
a("L_fin:")
if A.stamp and A.amp < 0:
    a("s_waitcnt vmcnt(0)")
    a("s_memrealtime s[90:91]\ns_waitcnt lgkmcnt(0)\ns_mov_b32 s101, s90")
    a("s_add_u32 s48, s24, %d\ns_addc_u32 s49, s25, 0\ns_mov_b32 s50, 131072" % WS_STAMP)
    a("s_lshl_b32 s84, s2, 3\ns_add_u32 s84, s84, s26\ns_lshl_b32 s84, s84, 6")
    a("s_getreg_b32 s85, hwreg(HW_REG_XCC_ID)")
    a("v_mov_b32 v1, 0")
    a("s_mov_b64 exec, 1")
    for k in range(10):
        a("v_mov_b32 v2, s%d" % (92 + k))
        a("buffer_store_dword v2, v1, s[48:51], s84 offen offset:%d" % (4 * k))
    a("v_mov_b32 v2, s85")
    a("buffer_store_dword v2, v1, s[48:51], s84 offen offset:40")
    a("v_mov_b32 v2, s88")
    a("buffer_store_dword v2, v1, s[48:51], s84 offen offset:44")
    a("v_mov_b32 v2, s27")
    a("buffer_store_dword v2, v1, s[48:51], s84 offen offset:48")
    if A.dbgstamp:
        a("s_cmp_ge_u32 s27, 40\ns_cbranch_scc1 L_end\ns_cmp_lg_u32 s26, 0\ns_cbranch_scc1 L_end")
        a("s_not_b32 s86, s92")
        a("v_mov_b32 v2, s86")
        a("buffer_atomic_umax v2, v1, s[64:67], 0 offen offset:4 sc1")
        for k in (4, 5, 6, 7, 9):
            a("v_mov_b32 v2, s%d" % (92 + k))
            a("buffer_atomic_umax v2, v1, s[64:67], 0 offen offset:%d sc1" % (8 + 4 * k))
a("L_end:")
a("s_endpgm")
a("L_initslow:")
a("s_mov_b32 s88, 0")
a("L_initpoll:")
a("buffer_load_dword v12, v21, s[64:67], 0 offen sc0 sc1")
a("s_waitcnt vmcnt(0)")
a("v_readfirstlane_b32 s89, v12")
a("s_add_u32 s88, s88, 1")
a("s_cmp_gt_u32 s88, %d" % SPIN_MAX)
a("s_cbranch_scc1 L_initok")
a("s_cmp_ge_u32 s89, 8")
a("s_cbranch_scc0 L_initpoll")
a("s_branch L_initok")

body = a.render()
txt = HEADER + "; @launch grid=(256,1,1) block=(512,1,1) lds=%d\n" % (A.lds or LDS_BYTES)
txt += """.amdgcn_target "amdgcn-amd-amdhsa--gfx950"
.text
.globl {n}_kernel
{al}.p2align 8
.type {n}_kernel,@function
{n}_kernel:
{body}.section .rodata,"a"
.p2align 6
.amdhsa_kernel {n}_kernel
  .amdhsa_next_free_vgpr 256
  .amdhsa_next_free_sgpr 102
  .amdhsa_accum_offset 256
  .amdhsa_group_segment_fixed_size 0
  .amdhsa_kernarg_size 88
  .amdhsa_user_sgpr_count 2
  .amdhsa_user_sgpr_kernarg_segment_ptr 1
  .amdhsa_system_sgpr_workgroup_id_x 1
  .amdhsa_float_denorm_mode_32 3
.end_amdhsa_kernel
""".format(n=NAME, body=body, al=(".p2align 12\n" + (".fill %d, 4, 0xbf800000\n" % (64 * A.align12) if A.align12 else "")) if A.align12 >= 0 else "")
open(A.o, "w").write(txt)
print("wrote", A.o, len(txt), "bytes,", body.count("\\n"), "lines")
```

```python
import sys, argparse
sys.path.insert(0, "work")
from asmlib import Asm

NAME = "sequential_preLN__sliding_block_cached__dense_activation_relu__decode"
HEADER = open("cdna_kernels/%s.s.ref" % NAME).read().split("; Override launch geometry")[0]

ap = argparse.ArgumentParser()
ap.add_argument("-o", default="cdna_kernels/%s.s" % NAME)
ap.add_argument("--stamp", action="store_true")
ap.add_argument("--dbgstamp", action="store_true")
ap.add_argument("--kvmod", default="nt")
ap.add_argument("--wmod", default="nt")
ap.add_argument("--dmod", default="nt")
ap.add_argument("--pmod", default="sc0 sc1")
ap.add_argument("--L", type=int, default=12)
ap.add_argument("--pat", type=int, default=1)
ap.add_argument("--qk", type=int, default=2)
ap.add_argument("--wo_start", type=int, default=12)
ap.add_argument("--wo_every", type=int, default=2)
ap.add_argument("--codepf", action="store_true")
ap.add_argument("--fin2", action="store_true")
ap.add_argument("--late2", type=int, default=0)
ap.add_argument("--align12", type=int, default=-1)
ap.add_argument("--warm1", action="store_true")
ap.add_argument("--warm2", action="store_true")
ap.add_argument("--pad", type=int, default=0)
ap.add_argument("--sthr", type=int, nargs=2, default=None)
ap.add_argument("--tk2", action="store_true")
ap.add_argument("--static", action="store_true")
ap.add_argument("--tkwave", type=int, default=0)
ap.add_argument("--thr", type=int, default=0)
ap.add_argument("--thrT", type=int, default=1)
ap.add_argument("--thr0", type=int, default=256)
ap.add_argument("--qpf", action="store_true")
ap.add_argument("--qstart", type=int, default=0)
ap.add_argument("--krot", type=int, default=0)
ap.add_argument("--light2", action="store_true")
ap.add_argument("--defer2", type=int, default=0)
ap.add_argument("--bo2", type=int, default=0)
ap.add_argument("--first2", type=int, default=0)
ap.add_argument("--ampsh", type=int, default=2)
ap.add_argument("--qspan", type=int, default=0)
ap.add_argument("--ospan", type=int, nargs=2, default=None)
ap.add_argument("--fine", action="store_true")
ap.add_argument("--op2", action="store_true")
ap.add_argument("--ln1", action="store_true")
ap.add_argument("--qrow", type=int, default=0)
ap.add_argument("--rot", type=int, default=0)
ap.add_argument("--outmod", default="")
ap.add_argument("--lds", type=int, default=0)
ap.add_argument("--edma", action="store_true")
ap.add_argument("--nopre", action="store_true")
ap.add_argument("--st8", default="hn")
ap.add_argument("--minrate", type=int, default=0)
ap.add_argument("--m2", action="store_true")
ap.add_argument("--D1", type=int, default=0)
ap.add_argument("--D2", type=int, default=0)
ap.add_argument("--pace", type=int, default=0)
ap.add_argument("--warm", action="store_true")
ap.add_argument("--tkpos", type=int, default=8)
ap.add_argument("--map", type=int, default=0)
ap.add_argument("--touch", action="store_true")
ap.add_argument("--qhead", type=int, default=0)
ap.add_argument("--codepf2", action="store_true")
ap.add_argument("--oobq", action="store_true")
ap.add_argument("--oobo", action="store_true")
ap.add_argument("--f2bar", action="store_true")
ap.add_argument("--light", type=int, default=0)
ap.add_argument("--sleep", type=int, default=0)
ap.add_argument("--amp", type=int, default=-1)
ap.add_argument("--diagnum", action="store_true")
ap.add_argument("--LV", type=int, default=0)
ap.add_argument("--dma", default="stream")
ap.add_argument("--pf", type=int, default=0)
ap.add_argument("--pfmod", default="")
A = ap.parse_args()

L_PART = 0
L_QD = 4096
L_ST = 6144
L_YP = 6400
L_HN = 27136
HN_STRIDE = 1312
L_FP = 37888
L_W = 46080
LDS_BYTES = L_W + 81920
WS_H1 = 32768
WS_STAMP = 1 << 20
FFN1_N, FFN2_N = 27, 40
L_TK = 6208
SPIN_MAX = 400000

RING = 48; NRING = 32
WO = 176
def t4(r): return "v[%d:%d]" % (r, r + 3)
def soff(byte):
    hi, lo = byte // 4096, byte % 4096
    return ("0" if hi == 0 else "s%d" % (67 + hi)), lo

a = Asm()
stamp_idx = [0]
def stamp():
    if not A.stamp: return
    a("s_memrealtime s[90:91]\ns_waitcnt lgkmcnt(0)\ns_mov_b32 s%d, s90" % (92 + stamp_idx[0]))
    stamp_idx[0] += 1
    assert stamp_idx[0] <= 9

FINE = [4, 6, 8, 10, 14, 36, 38]
fine_i = [0]
def fine():
    if not A.fine: return
    r = FINE[fine_i[0]]; fine_i[0] += 1
    a("s_memtime s[%d:%d]" % (r, r + 1))

def wave_reduce(v, op, sdst):
    for m in ("quad_perm:[1,0,3,2] row_mask:0xf", "quad_perm:[2,3,0,1] row_mask:0xf", "row_half_mirror row_mask:0xf",
              "row_mirror row_mask:0xf", "row_bcast:15 row_mask:0xa", "row_bcast:31 row_mask:0xc"):
        a("%s_dpp %s, %s, %s %s bank_mask:0xf" % (op, v, v, v, m))
    a("v_readlane_b32 %s, %s, 63" % (sdst, v))

def ln_stats(vals, tmp, vmean_bf, vrinv):
    t0, t1, t2 = tmp
    a("v_add_f32 %s, %s, %s" % (t0, vals[0], vals[1]))
    a("v_add_f32 %s, %s, %s" % (t1, vals[2], vals[3]))
    for k in range(4, 10, 2):
        a("v_add_f32 %s, %s, %s" % (t0, t0, vals[k]))
        a("v_add_f32 %s, %s, %s" % (t1, t1, vals[k + 1]))
    a("v_add_f32 %s, %s, %s" % (t0, t0, t1))
    wave_reduce(t0, "v_add_f32", "s84")
    a("v_mov_b32 %s, 0x3acccccd" % t2)
    a("v_mul_f32 %s, s84, %s" % (vmean_bf, t2))
    a("v_sub_f32 %s, %s, %s" % (t1, vals[0], vmean_bf))
    a("v_mul_f32 %s, %s, %s" % (t0, t1, t1))
    for k in range(1, 10):
        a("v_sub_f32 %s, %s, %s" % (t1, vals[k], vmean_bf))
        a("v_fmac_f32 %s, %s, %s" % (t0, t1, t1))
    wave_reduce(t0, "v_add_f32", "s84")
    a("v_mul_f32 %s, s84, %s" % (t0, t2))
    a("v_cvt_pk_bf16_f32 %s, %s, %s" % (t0, t0, vmean_bf))
    a("v_and_b32 %s, 0xffff0000, %s" % (vmean_bf, t0))
    a("v_lshlrev_b32 %s, 16, %s" % (t0, t0))
    a("v_add_f32 %s, 0x3727c5ac, %s" % (t0, t0))
    a("v_cvt_pk_bf16_f32 %s, %s, %s" % (t0, t0, t0))
    a("v_lshlrev_b32 %s, 16, %s" % (t0, t0))
    a("v_sqrt_f32 %s, %s" % (t0, t0))
    a("v_cvt_pk_bf16_f32 %s, %s, %s" % (t0, t0, t0))
    a("v_lshlrev_b32 %s, 16, %s" % (t0, t0))
    a("v_rcp_f32 %s, %s" % (vrinv, t0))

def selector(abuf, src, lane):
    for r in range(4):
        a("v_and_b32_dpp v%d, %s, v%d row_newbcast:%d row_mask:0xf bank_mask:0xf" % (abuf + r, src, 6 + r, lane))

def srd(d, plo, nbytes):
    a("s_mov_b32 s%d, s%d\ns_mov_b32 s%d, s%d\ns_mov_b32 s%d, %s\ns_mov_b32 s%d, 0x20000" % (d, plo, d + 1, plo + 1, d + 2, nbytes, d + 3))

S = []
kv = [("k", n) for n in range(32)] + [("v", n) for n in range(32)]
if A.qspan:
    oa, ob = A.ospan
    qpos = [A.qstart + (t * (A.qspan - A.qstart)) // 20 for t in range(20)]
    opos = [oa + (t * (ob - oa)) // 20 for t in range(20)]
    for ki in range(64):
        S += [("q", t) for t in range(20) if qpos[t] == ki]
        S += [("o", t) for t in range(20) if opos[t] == ki]
        S.append(kv[ki])
else:
    qi = 0; ki = 0
    while qi < A.qhead:
        S.append(("q", qi)); qi += 1
    while qi < 20:
        for _ in range(A.qk):
            if qi < 20: S.append(("q", qi)); qi += 1
        S.append(kv[ki]); ki += 1
    oi = 0
    while ki < 64:
        S.append(kv[ki]); ki += 1
        if ki >= A.wo_start and (ki - A.wo_start) % A.wo_every == 0 and oi < 20:
            S.append(("o", oi)); oi += 1
    assert oi == 20
if A.tk2: S.append(("t", 0))
POS = {e: p for p, e in enumerate(S)}
free = list(range(NRING))
slot = {}
lend = list(range(32, 52))
st = {"issued": 0, "maxpos": -1, "gate": len(S)}
def reg_of(e):
    if e[0] == "o": return WO + 4 * e[1]
    return RING + 4 * slot[e]
def issue(e):
    kind, n = e
    if kind in "qkv":
        if free: slot[e] = free.pop(0)
        elif lend and kind != "v": slot[e] = lend.pop()
        else: return False
    if kind == "o":
        if (32 + n) not in lend: return False
        lend.remove(32 + n)
    if kind == "q":
        so = "0"
        if n: a("s_mov_b32 s78, %d" % (n * 8192 * (1, 4, 32)[A.qrow] if not (A.oobq and n >= 3) else 0x7f000000)); so = "s78"
        a("buffer_load_dwordx4 %s, v3, s[36:39], %s offen %s" % (t4(reg_of(e)), so, A.wmod))
    elif kind in "kv":
        sr = "s[28:31]" if kind == "k" else "s[32:35]"
        if A.pat == 0:
            so, im = soff(n * 1024)
        elif A.krot:
            sr_ = "s14" if kind == "k" else "s15"
            so, im = sr_, 0
            if n: a("s_add_u32 %s, %s, 8192\ns_and_b32 %s, %s, 0x3ffff" % (sr_, sr_, sr_, sr_))
        elif A.pat == 3:
            so, im = "0", (n & 1) * 1024
            if n >> 1: a("s_mov_b32 s78, %d" % ((n >> 1) * 8192)); so = "s78"
        elif A.pat == 4:
            so, im = "0", (n & 3) * 1024
            if n >> 2: a("s_mov_b32 s78, %d" % ((n >> 2) * 16384)); so = "s78"
        else:
            so, im = "0", 0
            if n: a("s_mov_b32 s78, %d" % (n * (8192 if A.pat == 1 else 4096))); so = "s78"
        a("buffer_load_dwordx4 %s, v2, %s, %s offen offset:%d %s" % (t4(reg_of(e)), sr, so, im, A.kvmod))
    elif kind == "t":
        a("s_mov_b64 exec, 1")
        a("buffer_atomic_add v22, v21, s[48:51], s11 offen sc0 sc1")
        a("s_mov_b64 exec, -1")
    elif kind == "o":
        so, im = soff(n * 256)
        if A.oobo and n >= 3:
            a("s_mov_b32 s78, 0x7f000000"); so = "s78"
        a("buffer_load_dwordx4 %s, v4, s[40:43], %s offen offset:%d %s" % (t4(reg_of(e)), so, im, A.wmod))
    return True
def pump(upto):
    upto = min(upto, len(S) - 1, st["gate"] - 1)
    while st["issued"] <= upto:
        if not issue(S[st["issued"]]): break
        st["issued"] += 1
def ready(e):
    p = POS[e]
    st["maxpos"] = max(st["maxpos"], p)
    before = st["issued"]
    pump(st["maxpos"] + A.L)
    if st["issued"] == before:
        st["idle"] = st.get("idle", 0) + 1
        if A.minrate and st["idle"] >= A.minrate:
            pump(st["issued"]); st["idle"] = 0
    else:
        st["idle"] = 0
    assert st["issued"] > p, (e, st)
    n = st["issued"] - 1 - p
    assert n <= 63
    a("s_waitcnt vmcnt(%d)" % n)
def done(e):
    sl = slot.pop(e)
    if sl >= 32:
        lend.append(sl); lend.sort()
    else:
        free.append(sl)

a("s_cmp_ge_u32 s2, 256")
a("s_cbranch_scc1 L_end")
a("s_load_dwordx16 s[4:19], s[0:1], 0")
a("s_load_dwordx4 s[20:23], s[0:1], 64")
a("s_load_dwordx2 s[24:25], s[0:1], 80")
if A.stamp:
    a("s_memrealtime s[90:91]")
a("v_and_b32 v1, 63, v0")
a("v_lshrrev_b32 v44, 6, v0")
a("v_lshrrev_b32 v45, 4, v1")
a("v_and_b32 v46, 15, v0")
a("v_readfirstlane_b32 s26, v44")
a("s_lshr_b32 s76, s2, 5")
if A.map == 0:
    a("s_and_b32 s77, s2, 31")
elif A.map == 1:
    a("s_and_b32 s77, s2, 7\ns_lshl_b32 s77, s77, 2\ns_bfe_u32 s84, s2, 0x20003\ns_or_b32 s77, s77, s84")
elif A.map == 2:
    a("s_and_b32 s77, s2, 7\ns_lshl_b32 s77, s77, 1\ns_bfe_u32 s84, s2, 0x10003\ns_or_b32 s77, s77, s84\ns_and_b32 s84, s2, 16\ns_or_b32 s77, s77, s84")
a("s_lshl_b32 s3, s76, 5\ns_or_b32 s3, s3, s77")
if A.pat == 0:
    a("v_lshlrev_b32 v2, 15, v44")
    a("v_lshl_add_u32 v2, v1, 4, v2")
elif A.pat == 1:
    a("v_lshlrev_b32 v2, 4, v0")
else:
    a("v_lshrrev_b32 v2, 8, v0\nv_lshlrev_b32 v2, 17, v2\nv_lshl_add_u32 v2, v1, 4, v2\nv_and_b32 v3, 3, v44")
    a("v_lshl_add_u32 v2, v3, %d, v2" % {2: 10, 3: 11, 4: 12}[A.pat])
a("v_lshl_add_u32 v47, v44, 2, v45")
if A.rot:
    a("s_lshl_b32 s84, s76, 2")
    a("v_add_u32 v5, s84, v47")
    a("v_and_b32 v5, 31, v5")
a("v_mul_u32_u24 v4, 5120, %s" % ("v5" if A.rot >= 2 else "v47"))
if A.rot: a("v_mov_b32 v47, v5")
if A.qrow == 0:
    a("v_mul_u32_u24 v47, 20, v47")
elif A.qrow == 1:
    a("v_lshrrev_b32 v47, 2, v47\nv_mul_u32_u24 v47, 80, v47\nv_add_u32 v47, v47, v45")
a("v_lshlrev_b32 v3, 13, v47")
a("v_lshl_add_u32 v3, v46, 4, v3")
a("v_lshl_add_u32 v4, v46, 4, v4")
a("v_mul_u32_u24 v32, 20, v1")
QS = (0, 2, 5)[A.qrow]
a("v_lshlrev_b32 v33, %d, v46" % QS)
a("v_add_lshl_u32 v33, v47, v33, 1")
a("v_and_b32 v34, 3, v0")
a("v_lshlrev_b32 v34, %d, v34" % QS)
a("v_add_lshl_u32 v34, v47, v34, 1")
a("s_mul_i32 s84, s76, 1280")
a("s_lshl_b32 s85, s77, 8")
a("s_lshl_b32 s86, s3, 20")
a("s_add_u32 s86, s86, 786432")
a("s_mov_b32 s46, 10240\ns_mov_b32 s47, 0x20000")
a("s_sub_u32 s38, 5242880, s85\ns_mov_b32 s39, 0x20000")
a("s_mov_b32 s30, 262144\ns_mov_b32 s31, 0x20000")
for k in range(1, 8):
    a("s_movk_i32 s%d, %d" % (67 + k, 4096 * k))
a("s_waitcnt lgkmcnt(0)")
if A.stamp:
    a("s_mov_b32 s92, s90"); stamp_idx[0] = 1
    if A.st8 == "karg":
        a("s_memrealtime s[90:91]\ns_waitcnt lgkmcnt(0)\ns_mov_b32 s100, s90")
if A.krot == 1:
    a("s_mul_i32 s14, s2, 0x9e3779b1\ns_lshr_b32 s14, s14, 27\ns_lshl_b32 s14, s14, 13\ns_mov_b32 s15, s14")
elif A.krot == 2:
    a("s_and_b32 s14, s2, 31\ns_lshl_b32 s14, s14, 13\ns_mov_b32 s15, s14")
elif A.krot == 3:
    a("s_lshr_b32 s14, s2, 3\ns_lshl_b32 s14, s14, 13\ns_mov_b32 s15, s14")
if A.krot == 4:
    a("s_and_b32 s14, s2, 1\ns_lshl_b32 s14, s14, 17\ns_mov_b32 s15, s14")
elif A.krot == 5:
    a("s_lshr_b32 s14, s2, 5\ns_lshl_b32 s14, s14, 15\ns_mov_b32 s15, s14")
elif A.krot == 6:
    a("s_and_b32 s14, s2, 7\ns_lshl_b32 s14, s14, 15\ns_mov_b32 s15, s14")
elif A.krot == 7:
    a("s_brev_b32 s14, s2\ns_lshr_b32 s14, s14, 27\ns_lshl_b32 s14, s14, 13\ns_mov_b32 s15, s14")
elif A.krot == 8:
    a("s_lshr_b32 s14, s2, 5\ns_lshl_b32 s14, s14, 13\ns_mov_b32 s15, s14")
a("s_mov_b32 s44, s4\ns_mov_b32 s45, s5")
a("s_add_u32 s36, s10, s85\ns_addc_u32 s37, s11, 0")
a("s_add_u32 s28, s6, s86\ns_addc_u32 s29, s7, 0")
if A.touch:
    a("s_load_dword s89, s[28:29], 0")
    a("s_add_u32 s32, s8, s86\ns_addc_u32 s33, s9, 0")
    a("s_load_dword s88, s[32:33], 0")
a("s_cmp_ge_u32 s2, 8")
a("s_cbranch_scc1 L_noinit")
srd(48, 24, "66560")
a("s_lshl_b32 s87, s2, 12")
a("v_lshlrev_b32 v35, 3, v0")
a("v_mov_b32 v36, 0\nv_mov_b32 v37, 0\nv_mov_b32 v38, -1\nv_mov_b32 v39, -1")
a("buffer_store_dwordx2 v[36:37], v35, s[48:51], s87 offen sc0 sc1")
a("s_add_u32 s87, s87, %d" % WS_H1)
a("buffer_store_dwordx2 v[38:39], v35, s[48:51], s87 offen sc0 sc1")
if not A.static:
    a("s_lshl_b32 s87, s2, 7\ns_add_u32 s87, s87, 65536")
    a("v_and_b32 v35, 0x78, v35")
    a("buffer_store_dwordx2 v[36:37], v35, s[48:51], s87 offen sc0 sc1")
a("L_noinit:")
a("buffer_load_dwordx4 v[16:19], v32, s[44:47], s84 offen")
a("buffer_load_dword v20, v32, s[44:47], s84 offen offset:16")
a("buffer_load_ushort v22, v33, s[44:47], s84 offen")
a("buffer_load_ushort v23, v34, s[44:47], s84 offen offset:%d" % (32 << QS))
if A.qpf:
    srd(52, 10, "5242880")
    a("s_lshr_b32 s87, s2, 3\ns_mul_i32 s87, s87, %d" % (20 * 8192))
    a("s_and_b32 s88, s2, 7")
    a("v_lshrrev_b32 v35, 4, v0\nv_lshlrev_b32 v35, 13, v35")
    if A.map == 1:
        a("s_lshl_b32 s88, s88, 10\ns_add_u32 s87, s87, s88")
        a("v_lshl_add_u32 v35, v46, 6, v35")
    else:
        a("s_lshl_b32 s88, s88, 8\ns_add_u32 s87, s87, s88")
        a("v_and_b32 v36, 3, v0\nv_lshl_add_u32 v35, v36, 6, v35\nv_bfe_u32 v36, v0, 2, 2\nv_lshl_add_u32 v35, v36, 11, v35")
    a("s_cmp_ge_u32 s26, 4")
    a("s_cbranch_scc1 L_noqpf")
    a("buffer_load_dword v21, v35, s[52:55], s87 offen")
    a("s_cmp_lg_u32 s26, 0")
    a("s_cbranch_scc1 L_noqpf")
    a("s_add_u32 s87, s87, %d" % (16 * 8192))
    a("buffer_load_dword v21, v35, s[52:55], s87 offen")
    a("L_noqpf:")
st["gate"] = POS[("o", 0)]
pump(A.L)
n_first = st["issued"]
if A.codepf:
    a("s_getpc_b64 s[84:85]")
    a("L_pc:")
    a("s_sub_u32 s84, s84, L_pc-%s_kernel" % NAME)
    a("s_subb_u32 s85, s85, 0")
    a("v_lshlrev_b32 v35, 5, v0")
    a("v_min_u32 v35, L_end-%s_kernel, v35" % NAME)
    a("global_load_dword v5, v35, s[84:85]")
a("s_add_u32 s32, s8, s86\ns_addc_u32 s33, s9, 0\ns_mov_b32 s34, 262144\ns_mov_b32 s35, 0x20000")
a("s_mul_i32 s85, s77, 163840")
a("s_add_u32 s40, s12, s85\ns_addc_u32 s41, s13, 0\ns_mov_b32 s42, 163840\ns_mov_b32 s43, 0x20000")
srd(48, 24, "66560")
srd(56, 20, "10240")
a("s_add_u32 s60, s24, %d\ns_addc_u32 s61, s25, 0\ns_mov_b32 s62, 27648\ns_mov_b32 s63, 0x20000" % WS_H1)
srd(64, 22, "256")
a("s_mov_b32 s80, 0xcccccccc\ns_mov_b32 s81, 0xcccccccc\ns_mov_b32 s82, 0xaaaaaaaa\ns_mov_b32 s83, 0xaaaaaaaa")
a("v_and_b32 v35, 1, v0")
a("v_lshlrev_b32 v35, 4, v35")
a("v_mov_b32 v38, 0xffff")
a("v_lshlrev_b32 v38, v35, v38")
a("v_lshrrev_b32 v37, 1, v46")
for r in range(4):
    a("v_cmp_eq_u32 vcc, %d, v37" % r)
    a("v_cndmask_b32 v%d, 0, v38, vcc" % (6 + r))
a("v_lshlrev_b32 v47, 9, v44")
a("v_lshl_add_u32 v47, v46, 5, v47")
a("v_lshl_add_u32 v47, v45, 4, v47")
st["gate"] = len(S)

a("s_waitcnt vmcnt(%d)" % (n_first + (1 if A.codepf else 0)))
if A.stamp and A.st8 == "x":
    a("s_memrealtime s[90:91]\ns_waitcnt lgkmcnt(0)\ns_mov_b32 s100, s90")
for k in range(5):
    a("v_lshlrev_b32 v%d, 16, v%d" % (24 + 2 * k, 16 + k))
    a("v_and_b32 v%d, 0xffff0000, v%d" % (25 + 2 * k, 16 + k))
ln_stats(["v%d" % (24 + k) for k in range(10)], ["v34", "v35", "v37"], "v38", "v39")
for r in (22, 23):
    a("v_lshlrev_b32 v%d, 16, v%d" % (r, r))
    a("v_sub_f32 v%d, v%d, v38" % (r, r))
    a("v_cvt_pk_bf16_f32 v%d, v%d, v%d" % (r, r, r))
    a("v_lshlrev_b32 v%d, 16, v%d" % (r, r))
    a("v_mul_f32 v%d, v%d, v39" % (r, r))
    a("v_cvt_pk_bf16_f32 v%d, v%d, v%d" % (r, r, r))
for t in range(20):
    ab = 24 + 4 * (t & 1)
    selector(ab, "v22" if t < 16 else "v23", t & 15)
    e = ("q", t)
    ready(e)
    if A.stamp and A.st8 == "q%d" % t:
        a("s_memrealtime s[90:91]\ns_waitcnt lgkmcnt(0)\ns_mov_b32 s100, s90")
    a("v_mfma_f32_16x16x32_bf16 v[40:43], %s, %s, %s" % (t4(ab), t4(reg_of(e)), "0" if t == 0 else "v[40:43]"))
    done(e)
a("s_mov_b32 exec_hi, 0")
a("ds_write_b128 v47, v[40:43] offset:%d" % L_PART)
a("s_mov_b64 exec, -1")
a("v_lshlrev_b32 v25, 3, v1")
a("s_waitcnt lgkmcnt(0)")
a("s_barrier")
a("s_cmp_ge_u32 s2, 8")
a("s_cbranch_scc1 L_nosig")
a("s_cmp_lg_u32 s26, 0")
a("s_cbranch_scc1 L_nosig")
a("v_mov_b32 v26, 0\nv_mov_b32 v27, 1")
a("s_mov_b64 exec, 1")
a("buffer_atomic_add v27, v26, s[64:67], 0 offen sc1")
a("s_mov_b64 exec, -1")
a("L_nosig:")
if A.thr:
    a("s_cmp_lg_u32 s26, 0\ns_cbranch_scc1 L_norank")
    a("v_mov_b32 v26, 0\nv_mov_b32 v5, 1\ns_mov_b64 exec, 1")
    a("buffer_atomic_add v5, v26, s[64:67], 0 offen offset:128 sc0 sc1\ns_mov_b64 exec, -1")
    a("L_norank:")
    RANK_POS = st["issued"]
if A.diagnum:
    a("s_cmp_lg_u32 s26, 0\ns_cbranch_scc1 L_nodiag")
    a("s_getreg_b32 s84, hwreg(HW_REG_XCC_ID)\ns_sub_u32 s84, s84, s2\ns_and_b32 s84, s84, 7\ns_lshl_b32 s84, 1, s84")
    a("v_mov_b32 v26, 0\nv_mov_b32 v27, s84\ns_mov_b64 exec, 1")
    a("buffer_atomic_or v27, v26, s[64:67], 0 offen offset:32 sc1\ns_mov_b64 exec, -1")
    a("L_nodiag:")
for w in range(8):
    a("ds_read_b64 v[%d:%d], v25 offset:%d" % (28 + 2 * w, 29 + 2 * w, L_PART + 512 * w))
a("s_waitcnt lgkmcnt(0)")
for w in range(1, 8):
    a("v_add_f32 v28, v28, v%d" % (28 + 2 * w))
    a("v_add_f32 v29, v29, v%d" % (29 + 2 * w))
a("v_cvt_pk_bf16_f32 v28, v28, v29")
a("v_lshlrev_b32 v25, 2, v0")
a("ds_write_b32 v25, v28 offset:%d" % L_QD)
a("v_lshlrev_b32 v25, 8, v44")
a("v_lshl_add_u32 v25, v46, 4, v25")
a("s_waitcnt lgkmcnt(0)")
a("ds_read_b128 v[10:13], v25 offset:%d" % L_QD)
a("s_waitcnt lgkmcnt(0)")
stamp()

for _ in range(A.pad): a("s_nop 0")
def reduce_scatter(dst):
    for n in range(8):
        a("v_add_f32_dpp v%d, v%d, v%d row_mirror row_mask:0xf bank_mask:0x3" % (16 + n, 16 + n, 16 + n))
    for n in range(8):
        a("v_add_f32_dpp v%d, v%d, v%d row_mirror row_mask:0xf bank_mask:0xc" % (16 + n, 24 + n, 24 + n))
    for n in range(4):
        a("v_add_f32_dpp v%d, v%d, v%d row_half_mirror row_mask:0xf bank_mask:0x5" % (16 + n, 16 + n, 16 + n))
    for n in range(4):
        a("v_add_f32_dpp v%d, v%d, v%d row_half_mirror row_mask:0xf bank_mask:0xa" % (16 + n, 20 + n, 20 + n))
    for n in range(4):
        a("v_add_f32_dpp v%d, v%d, v%d quad_perm:[3,2,1,0] row_mask:0xf bank_mask:0xf" % (16 + n, 16 + n, 16 + n))
    a("v_cndmask_b32 v16, v16, v18, s[80:81]")
    a("v_cndmask_b32 v17, v17, v19, s[80:81]")
    a("v_add_f32_dpp v16, v16, v16 quad_perm:[1,0,3,2] row_mask:0xf bank_mask:0xf")
    a("v_add_f32_dpp v17, v17, v17 quad_perm:[1,0,3,2] row_mask:0xf bank_mask:0xf")
    a("v_cndmask_b32 %s, v16, v17, s[82:83]" % dst)

for n in range(32):
    e = ("k", n)
    ready(e)
    acc = 16 + (n & 15)
    for r in range(4):
        a("v_dot2_f32_bf16 v%d, v%d, v%d, %s" % (acc, reg_of(e) + r, 10 + r, "0" if r == 0 else "v%d" % acc))
    done(e)
    if n == 15: reduce_scatter("v14")
    if n == 31: reduce_scatter("v15")
stamp()

a("v_cvt_pk_bf16_f32 v16, v14, v15")
a("v_lshlrev_b32 v14, 16, v16")
a("v_and_b32 v15, 0xffff0000, v16")
a("v_mul_f32 v14, 0x3db504f3, v14")
a("v_mul_f32 v15, 0x3db504f3, v15")
a("v_cvt_pk_bf16_f32 v16, v14, v15")
a("v_lshlrev_b32 v14, 16, v16")
a("v_and_b32 v15, 0xffff0000, v16")
a("v_max_f32 v16, v14, v15")
wave_reduce("v16", "v_max_f32", "s84")
a("v_subrev_f32 v16, s84, v14")
a("v_subrev_f32 v17, s84, v15")
a("v_mul_f32 v16, 0x3fb8aa3b, v16")
a("v_mul_f32 v17, 0x3fb8aa3b, v17")
a("v_exp_f32 v16, v16")
a("v_exp_f32 v17, v17")
a("v_add_f32 v16, v16, v17")
wave_reduce("v16", "v_add_f32", "s85")
a("v_mov_b32 v16, s84")
a("v_mov_b32 v17, s85")
a("v_lshlrev_b32 v18, 3, v44")
a("s_mov_b64 exec, 1")
a("ds_write_b64 v18, v[16:17] offset:%d" % L_ST)
if A.thr:
    a("s_cmp_lg_u32 s26, 0\ns_cbranch_scc1 L_norank2")
    a("s_waitcnt vmcnt(%d)" % min(63, st["issued"] - RANK_POS))
    a("ds_write_b32 v18, v5 offset:%d" % (L_TK + 4))
    a("L_norank2:")
a("s_mov_b64 exec, -1")
a("v_and_b32 v18, 7, v0")
a("v_lshlrev_b32 v18, 3, v18")
a("s_waitcnt lgkmcnt(0)")
a("s_barrier")
a("ds_read_b64 v[16:17], v18 offset:%d" % L_ST)
if A.thr:
    a("v_mov_b32 v19, 0")
    a("ds_read_b32 v19, v19 offset:%d" % (L_TK + 4))
a("s_waitcnt lgkmcnt(0)")
if A.thr:
    a("v_readfirstlane_b32 s10, v19")
    a("s_min_u32 s10, s10, %d" % A.thr0)
    a("s_sub_u32 s10, %d, s10\ns_mul_i32 s10, s10, %d\ns_lshr_b32 s10, s10, 16" % (A.thr0, (A.thr << 16) // A.thr0))
a("v_mov_b32 v18, v16")
for m in ("quad_perm:[1,0,3,2]", "quad_perm:[2,3,0,1]", "row_half_mirror"):
    a("v_max_f32_dpp v18, v18, v18 %s row_mask:0xf bank_mask:0xf" % m)
a("v_sub_f32 v16, v16, v18")
a("v_mul_f32 v16, 0x3fb8aa3b, v16")
a("v_exp_f32 v16, v16")
a("v_mul_f32 v16, v16, v17")
for m in ("quad_perm:[1,0,3,2]", "quad_perm:[2,3,0,1]", "row_half_mirror"):
    a("v_add_f32_dpp v16, v16, v16 %s row_mask:0xf bank_mask:0xf" % m)
a("v_rcp_f32 v16, v16")
a("v_sub_f32 v14, v14, v18")
a("v_sub_f32 v15, v15, v18")
a("v_mul_f32 v14, 0x3fb8aa3b, v14")
a("v_mul_f32 v15, 0x3fb8aa3b, v15")
a("v_exp_f32 v14, v14")
a("v_exp_f32 v15, v15")
a("v_mul_f32 v14, v14, v16")
a("v_mul_f32 v15, v15, v16")
a("v_cvt_pk_bf16_f32 v14, v14, v14")
a("v_cvt_pk_bf16_f32 v15, v15, v15")
stamp()

def pv(n):
    ab = 32 + 4 * (n & 1)
    selector(ab, "v14" if n < 16 else "v15", n & 15)
    e = ("v", n)
    if A.sthr and A.sthr[0] <= n < A.sthr[1]:
        a("s_cmp_eq_u32 s10, 1\ns_cbranch_scc1 L_nt%d\ns_waitcnt vmcnt(%d)\nL_nt%d:" % (n, A.thrT, n))
    if A.thr and n < A.thr:
        a("s_cmp_le_u32 s10, %d\ns_cbranch_scc1 L_nt%d\ns_waitcnt vmcnt(%d)\nL_nt%d:" % (n, n, A.thrT, n))
    ready(e)
    a("v_mfma_f32_16x16x32_bf16 v[40:43], %s, %s, %s" % (t4(ab), t4(reg_of(e)), "0" if n == 0 else "v[40:43]"))
    done(e)

def dma(n, vregs, step):
    for t in range(n):
        a("s_mov_b32 m0, s3")
        a("buffer_load_dwordx4 %s, s[52:55], s13 offen %s lds" % (vregs[t % len(vregs)], A.dmod))
        if t < n - 1:
            a("s_add_u32 s3, s3, 1024")
            a("s_add_u32 s13, s13, %d" % step)

a("v_lshrrev_b32 v16, 2, v46")
a("v_lshlrev_b32 v16, 10, v16")
if A.rot >= 2:
    a("v_add_u32 v17, s76, v44")
    a("v_and_b32 v17, 7, v17")
    a("v_lshl_add_u32 v16, v17, 6, v16")
else:
    a("v_lshl_add_u32 v16, v44, 6, v16")
a("v_lshl_add_u32 v16, v45, 4, v16")
a("v_and_b32 v17, 3, v0")
a("v_lshl_add_u32 v16, v17, 2, v16")
a("v_mul_u32_u24 v18, 2560, v44")
a("v_lshl_add_u32 v18, v46, 5, v18")
a("v_lshl_add_u32 v18, v45, 4, v18")
a("v_bfe_u32 v19, v0, 2, 6")
a("v_mul_u32_u24 v19, 5, v19")
a("v_lshrrev_b32 v20, 8, v0")
a("v_mul_u32_u24 v20, 3, v20")
a("v_add3_u32 v19, v19, v20, v17")
a("v_lshlrev_b32 v19, 3, v19")
a("v_lshlrev_b32 v20, 2, v0")
a("v_mov_b32 v21, 0\nv_mov_b32 v22, 1")
a("s_and_b32 s77, s2, 7\ns_lshl_b32 s75, s77, 7\ns_add_u32 s75, s75, 65536")
a("s_mov_b32 s86, 0x88888888\ns_mov_b32 s87, 0x88888888")
if A.op2:
    for r in range(4):
        a("v_mov_b32_dpp v%d, v%d row_ror:8 row_mask:0xf bank_mask:0xf" % (27 + r, 6 + r))
    a("v_mul_u32_u24 v31, 2560, v44")
    a("v_lshrrev_b32 v11, 1, v45")
    a("v_lshl_add_u32 v31, v11, 9, v31")
    a("v_lshl_add_u32 v31, v46, 5, v31")
    a("v_and_b32 v11, 1, v45")
    a("v_lshl_add_u32 v31, v11, 4, v31")
a("v_mul_u32_u24 v5, 80, v44")
a("v_lshrrev_b32 v11, 3, v1")
a("v_add_u32 v5, v5, v11")
a("v_mul_u32_u24 v5, 3456, v5")
a("v_and_b32 v11, 2, v11")
a("v_and_b32 v10, 7, v0")
a("v_xor_b32 v11, v10, v11")
a("v_lshl_add_u32 v25, v11, 4, v5")
a("v_xor_b32 v11, 4, v11")
a("v_lshl_add_u32 v26, v11, 4, v5")
a("s_mul_i32 s3, s26, 10240")
a("s_add_u32 s3, s3, %d" % L_W)
if A.pf:
    a("s_lshr_b32 s84, s2, 3")
    a("s_cmp_ge_u32 s26, 4")
    a("s_cselect_b32 s52, s18, s16\ns_cselect_b32 s53, s19, s17")
    a("s_mov_b32 s54, 2211840\ns_mov_b32 s55, 0x20000")
    a("v_mov_b32 v12, 0x7fffff00")
    a("s_cbranch_scc1 L_pf2")
    a("s_and_b32 s85, s84, 7\ns_mul_i32 s85, s85, 80")
    a("v_lshrrev_b32 v23, 1, v0")
    a("v_add_u32 v23, s85, v23")
    a("v_mul_u32_u24 v23, 3456, v23")
    a("v_and_b32 v13, 1, v0")
    a("v_lshl_add_u32 v23, v13, 6, v23")
    a("s_and_b32 s85, s84, 0x18\ns_add_u32 s85, s85, s77")
    a("s_cmp_lt_u32 s85, 27")
    a("s_cselect_b32 s84, 160, 0")
    a("s_lshl_b32 s85, s85, 7")
    a("v_add_u32 v23, s85, v23")
    a("v_cmp_gt_u32 vcc, s84, v0")
    a("v_cndmask_b32 v23, v12, v23, vcc")
    a("s_branch L_pfdone")
    a("L_pf2:")
    a("s_mul_i32 s84, s84, 54")
    a("v_bfe_u32 v23, v0, 2, 6")
    a("v_add_u32 v23, s84, v23")
    a("v_mul_u32_u24 v23, 1280, v23")
    a("v_lshl_add_u32 v23, v17, 6, v23")
    a("s_mul_i32 s85, s77, 160\ns_and_b32 s85, s85, 0xff80")
    a("v_add_u32 v23, s85, v23")
    a("v_cmp_gt_u32 vcc, %d, v0" % (256 + 216))
    a("v_cndmask_b32 v23, v12, v23, vcc")
    a("L_pfdone:")

if A.codepf2:
    a("s_getpc_b64 s[84:85]")
    a("L_pc2:")
    a("v_lshlrev_b32 v12, 4, v0")
    a("v_add_u32 v12, 1792, v12")
    a("v_min_u32 v12, L_end-L_pc2, v12")
    a("global_load_dword v13, v12, s[84:85]")
if A.sthr:
    a("s_bfe_u32 s10, s36, 0x20008")
if A.LV: A.L = A.LV
if A.tk2:
    st["gate"] = POS[("t", 0)]
    a("s_cmp_eq_u32 s26, %d\ns_cselect_b32 s11, s75, 0x7ffff000" % A.tkwave)
for n in range(32):
    pv(n)
    if A.pf >= 10 and n == A.pf - 10:
        a("buffer_load_dword v24, v23, s[52:55], 0 offen %s" % A.pfmod)
    if n == A.tkpos - 4: a("s_load_dword s89, s[22:23], 0")
    if n == A.tkpos:
        a("s_waitcnt lgkmcnt(0)")
        a("s_cmp_ge_u32 s89, 8")
        a("s_cbranch_scc0 L_initslow")
        a("L_initok:")
        if A.tk2:
            st["gate"] = len(S)
            continue
        if A.static:
            a("s_lshr_b32 s79, s2, 3\ns_xor_b32 s79, s79, 16")
            continue
        a("s_cmp_lg_u32 s26, %d" % A.tkwave)
        a("s_cbranch_scc1 L_notk")
        a("s_mov_b64 exec, 1")
        if A.static:
            a("s_lshr_b32 s84, s2, 3\ns_xor_b32 s84, s84, 16\nv_mov_b32 v22, s84")
        else:
            a("buffer_atomic_add v22, v21, s[48:51], s75 offen sc0 sc1")
        a("s_mov_b64 exec, -1")
        a("L_notk:")
assert st["issued"] == len(S)
stamp()
fine()
if A.pf == 2:
    a("buffer_load_dword v24, v23, s[52:55], 0 offen %s" % A.pfmod)
a("s_mov_b32 exec_hi, 0")
a("ds_write_b128 v47, v[40:43] offset:%d" % L_PART)
if not (A.tk2 or A.static):
    a("s_cmp_lg_u32 s26, %d" % A.tkwave)
    a("s_cbranch_scc1 L_notk2")
    a("s_waitcnt vmcnt(0)")
    a("s_mov_b64 exec, 1")
    a("ds_write_b32 v21, v22 offset:%d" % L_TK)
    a("L_notk2:")
a("s_mov_b64 exec, -1")
a("s_waitcnt lgkmcnt(0)")
a("s_barrier")
fine()
a("ds_read2st64_b32 v[10:11], v16 offset0:%d offset1:%d" % (L_PART // 256, L_PART // 256 + 2))
if A.pf == 1:
    a("buffer_load_dword v24, v23, s[52:55], 0 offen %s" % A.pfmod)
if not (A.tk2 or A.static): a("ds_read_b32 v12, v21 offset:%d" % L_TK)
a("s_waitcnt lgkmcnt(0)")
a("v_add_f32 v10, v10, v11")
if not (A.tk2 or A.static): a("v_readfirstlane_b32 s79, v12")
if A.edma:
    a("s_lshl_b32 s84, s79, 3\ns_add_u32 s84, s84, s77\ns_sub_u32 s84, s84, %d" % FFN2_N)
    a("s_min_u32 s85, s79, 9\ns_cmp_lt_u32 s85, 9\ns_cselect_b32 s84, s84, 99")
    a("s_cmp_ge_u32 s84, %d" % FFN1_N)
    a("s_cbranch_scc1 L_noedma")
    a("s_mov_b32 s52, s16\ns_mov_b32 s53, s17\ns_mov_b32 s54, 2211840\ns_mov_b32 s55, 0x20000")
    a("s_lshl_b32 s13, s84, 7")
    dma(10, ["v25", "v26"], 27648)
    a("L_noedma:")
a("v_add_f32_dpp v10, v10, v10 row_ror:4 row_mask:0xf bank_mask:0xf")
a("v_add_f32_dpp v10, v10, v10 row_ror:8 row_mask:0xf bank_mask:0xf")
a("v_cvt_pk_bf16_f32 v10, v10, v10")
fine()
YA = 128
if A.op2:
    def sel2(r4, hi):
        for r in range(4):
            a("v_and_b32_dpp v%d, v10, v%d row_newbcast:%d row_mask:0xf bank_mask:0xf" % (48 + 8 * r4 + 4 * hi + r, (27 if hi else 6) + r, r4))
    def mm(acc, r4, hi, cb, first):
        a("v_mfma_f32_16x16x32_bf16 %s, %s, %s, %s" % (t4(acc), t4(48 + 8 * r4 + 4 * hi), t4(WO + 4 * (5 * r4 + cb)), "0" if first else t4(acc)))
    sel2(0, 0); sel2(0, 1)
    for r4 in range(4):
        mm(YA, r4, 0, 0, r4 == 0)
        if r4 < 3: sel2(r4 + 1, 0)
        mm(YA, r4, 1, 1, False)
        if r4 < 3: sel2(r4 + 1, 1)
    for r4 in range(4):
        mm(YA + 4, r4, 0, 2, r4 == 0)
        mm(YA + 4, r4, 1, 3, False)
    a("ds_write_b128 v31, %s offset:%d" % (t4(YA), L_YP))
    for r4 in range(4):
        mm(YA + 8, r4, 0, 4, r4 == 0)
    a("ds_write_b128 v31, %s offset:%d" % (t4(YA + 4), L_YP + 1024))
    a("s_mov_b32 exec_hi, 0")
    a("ds_write_b128 v31, %s offset:%d" % (t4(YA + 8), L_YP + 2048))
    a("s_mov_b64 exec, -1")
else:
    for r4 in range(4):
        ab = 32 + 4 * (r4 & 1)
        selector(ab, "v10", r4)
        for cb in range(5):
            acc = t4(YA + 4 * cb)
            a("v_mfma_f32_16x16x32_bf16 %s, %s, %s, %s" % (acc, t4(ab), t4(WO + 4 * (5 * r4 + cb)), "0" if r4 == 0 else acc))
    a("s_mov_b32 exec_hi, 0")
    for cb in range(5):
        a("ds_write_b128 v18, %s offset:%d" % (t4(YA + 4 * cb), L_YP + 512 * cb))
    a("s_mov_b64 exec, -1")
if A.pf == 3:
    a("buffer_load_dword v24, v23, s[52:55], 0 offen %s" % A.pfmod)
fine()
a("s_lshl_b32 s84, s76, 12")
a("s_waitcnt lgkmcnt(0)")
fine()
if A.fine: a("s_waitcnt lgkmcnt(0)")
a("s_barrier")
fine()
if A.fine: a("s_waitcnt lgkmcnt(0)")
YS = 148
for w in range(8):
    a("ds_read_b64 v[%d:%d], v19 offset:%d" % (YS + 2 * w, YS + 2 * w + 1, L_YP + 2560 * w))
for s_ in (4, 2, 1):
    for w in range(s_):
        if s_ == 4: a("s_waitcnt lgkmcnt(%d)" % (3 - w))
        a("v_pk_add_f32 v[%d:%d], v[%d:%d], v[%d:%d]" % (YS + 2 * w, YS + 2 * w + 1, YS + 2 * w, YS + 2 * w + 1, YS + 2 * (w + s_), YS + 2 * (w + s_) + 1))
a("v_cndmask_b32 v10, v%d, 1.0, s[86:87]" % YS)
a("v_cndmask_b32 v11, v%d, 1.0, s[86:87]" % (YS + 1))
a("buffer_atomic_add_f32 v10, v20, s[48:51], s84 offen")
a("buffer_atomic_add_f32 v11, v20, s[48:51], s84 offen offset:2048")
if A.pf == 4:
    a("buffer_load_dword v24, v23, s[52:55], 0 offen %s" % A.pfmod)
fine()
stamp()
if A.fine:
    for k, sl in enumerate((93, 94, 95, 98, 99, 100)):
        a("s_sub_u32 s%d, s%d, s%d" % (sl, FINE[k + 1], FINE[k]))
    a("s_mov_b32 s27, 99\ns_branch L_fin")
a("s_mov_b32 s27, 99")
if A.tk2:
    a("s_cmp_lg_u32 s26, %d" % A.tkwave)
    a("s_cbranch_scc1 L_notk2")
    a("s_waitcnt vmcnt(%d)" % (3 if A.pf in (1, 2, 3, 4) else 2))
    a("s_mov_b64 exec, 1")
    a("ds_write_b32 v21, v22 offset:%d" % L_TK)
    a("s_mov_b64 exec, -1")
    a("s_waitcnt lgkmcnt(0)")
    a("L_notk2:")
    a("s_barrier")
    a("ds_read_b32 v12, v21 offset:%d" % L_TK)
    a("s_waitcnt lgkmcnt(0)")
    a("v_readfirstlane_b32 s79, v12")
    a("s_cmp_ge_u32 s79, 9")
    a("s_cbranch_scc1 L_fin")
else:
    a("s_cmp_ge_u32 s79, 9")
    a("s_cbranch_scc1 L_fin")
    a("s_barrier")
a("s_mov_b32 s54, 2211840\ns_mov_b32 s55, 0x20000")
a("s_mov_b32 s85, 0x42000000")
a("s_mov_b32 s88, 0")
a("v_and_b32 v10, 7, v0")
a("s_mul_i32 s27, s77, 5\ns_add_u32 s27, s27, s79")
a("s_cmp_lt_u32 s79, 5")
a("s_cbranch_scc1 L_ffn2")
a("s_lshl_b32 s27, s79, 3\ns_add_u32 s27, s27, s77")
a("s_cmp_ge_u32 s27, %d" % (FFN2_N + FFN1_N))
a("s_cbranch_scc1 L_fin")

AF = 48; BF = 128; XF = 208; GR = 220
a("s_sub_u32 s79, s27, %d" % FFN2_N)
a("s_mov_b32 s52, s16\ns_mov_b32 s53, s17")
a("s_lshl_b32 s13, s79, 7")
if not A.edma:
    dma(10, ["v25", "v26"], 27648)
a("v_mul_u32_u24 v23, 20, v1")
a("v_mul_u32_u24 v21, 1280, v44")
a("v_add_u32 v21, v21, v23")
XR = 248
a("buffer_load_dwordx4 v[%d:%d], v21, s[44:47], 0 offen" % (XR, XR + 3))
a("buffer_load_dword v%d, v21, s[44:47], 0 offen offset:16" % (XR + 4))
a("v_lshlrev_b32 v22, 12, v44")
a("v_lshl_add_u32 v22, v1, 4, v22")
def poll1_issue():
    for m in range(4):
        a("buffer_load_dwordx4 %s, v22, s[48:51], 0 offen offset:%d %s" % (t4(GR + 4 * m), 1024 * m, A.pmod))
if not A.nopre: poll1_issue()
a("v_mul_u32_u24 v11, %d, v44" % HN_STRIDE)
a("v_add_u32 v23, v23, v11")
a("v_add_u32 v35, %d, v23" % L_HN)
a("v_mul_u32_u24 v29, %d, v10" % HN_STRIDE)
a("v_lshl_add_u32 v29, v45, 4, v29")
a("v_lshlrev_b32 v30, 4, v10")
a("v_lshl_add_u32 v30, v44, 8, v30")
a("v_lshrrev_b32 v11, 1, v45")
a("v_lshl_add_u32 v30, v11, 7, v30")
a("v_and_b32 v11, 1, v45")
a("v_lshl_add_u32 v30, v11, 3, v30")
a("v_lshrrev_b32 v12, 2, v46")
a("v_lshl_add_u32 v12, v45, 3, v12")
a("v_lshlrev_b32 v12, 7, v12")
a("v_lshrrev_b32 v13, 3, v46")
a("v_lshl_add_u32 v13, v11, 1, v13")
a("v_and_b32 v11, 3, v44")
a("v_xor_b32 v11, v11, v13")
a("v_lshl_add_u32 v12, v11, 5, v12")
a("v_lshl_add_u32 v12, v17, 3, v12")
a("v_add_u32 v12, %d, v12" % L_W)
a("v_add_u32 v13, 40960, v12")
if A.warm1:
    a("s_mov_b32 s78, 0")
    a("s_branch L_f1_body")
    a("L_f1_resume:")
a("s_waitcnt vmcnt(%d)" % ((0 if A.nopre else 4) + (4 if A.edma else 0)))
if A.stamp and A.st8 == "dma":
    a("s_memrealtime s[90:91]\ns_waitcnt lgkmcnt(0)\ns_mov_b32 s100, s90")
a("s_barrier")
a("s_cmp_ge_u32 s26, 4")
a("s_cbranch_scc1 L_notr")
for ks in range(20):
    base, off = ("v12", ks * 4096) if ks < 10 else ("v13", (ks - 10) * 4096)
    a("ds_read_b64_tr_b16 v[%d:%d], %s offset:%d" % (AF + 4 * ks, AF + 4 * ks + 1, base, off))
    a("ds_read_b64_tr_b16 v[%d:%d], %s offset:%d" % (AF + 4 * ks + 2, AF + 4 * ks + 3, base, off + 512))
a("L_notr:")
if A.nopre and not A.light: poll1_issue()
if A.light: a("v_mov_b32 v%d, 0" % (GR + 3))
if A.edma: a("s_waitcnt vmcnt(4)")
for k in range(5):
    a("v_lshlrev_b32 v%d, 16, v%d" % (XF + 2 * k, XR + k))
    a("v_and_b32 v%d, 0xffff0000, v%d" % (XF + 2 * k + 1, XR + k))
if A.light:
    import struct as _st
    a("s_mov_b32 s84, 0x%08x" % _st.unpack("<I", _st.pack("<f", float(A.light)))[0])
    a("s_waitcnt vmcnt(0)")
    a("s_mov_b32 s78, 1")
    a("s_mov_b64 exec, 1")
    a("L_light:")
    a("v_cmp_gt_f32 vcc, s84, v%d" % (GR + 3))
    a("s_add_u32 s88, s88, 1")
    a("s_cmp_gt_u32 s88, %d" % SPIN_MAX)
    a("s_cbranch_scc1 L_light_done")
    a("s_cbranch_vccz L_light_done")
    if A.sleep: a("s_sleep %d" % A.sleep)
    a("buffer_load_dword v%d, v22, s[48:51], 0 offen offset:12 %s" % (GR + 3, A.pmod))
    a("s_waitcnt vmcnt(0)")
    a("s_branch L_light")
    a("L_light_done:")
    a("s_mov_b64 exec, -1")
elif A.warm:
    a("s_mov_b32 s78, 0")
    a("s_waitcnt vmcnt(0)")
    a("s_branch L_f1_body")
else:
    a("s_mov_b32 s78, 1")
    a("s_branch L_poll1_chk")
if A.D1:
    sets = [GR] + [BF + 16 * k for k in range(A.D1 - 1)]
    def p1(g):
        for m in range(4):
            a("buffer_load_dwordx4 %s, v22, s[48:51], 0 offen offset:%d %s" % (t4(g + 4 * m), 1024 * m, A.pmod))
    a("L_poll1_chk:")
    for g in sets[1:]:
        if A.pace: a("s_sleep %d" % A.pace)
        p1(g)
    a("L_poll1:")
    for k, g in enumerate(sets):
        a("s_waitcnt vmcnt(%d)" % (4 * (A.D1 - 1)))
        a("v_min_f32 v31, v%d, v%d" % (g + 3, g + 7))
        a("v_min3_f32 v31, v31, v%d, v%d" % (g + 11, g + 15))
        a("v_cmp_ne_u32 vcc, s85, v31")
        a("s_cbranch_vccz L_p1x%d" % k)
        if A.pace: a("s_sleep %d" % A.pace)
        p1(g)
    a("s_add_u32 s88, s88, 1")
    a("s_cmp_gt_u32 s88, %d" % SPIN_MAX)
    a("s_cbranch_scc0 L_poll1")
    for k, g in reversed(list(enumerate(sets))):
        a("L_p1x%d:" % k)
        for q, (x, y) in enumerate([(0, 8), (1, 9), (2, 10), (4, 12), (5, 13)]):
            a("v_cvt_pk_bf16_f32 v%d, v%d, v%d" % (24 + q, g + x, g + y))
        if k: a("s_branch L_p1done")
    a("L_p1done:")
    stamp()
    XH = 238
    GR = 10
else:
    a("L_poll1:")
    poll1_issue()
    a("L_poll1_chk:")
    a("s_add_u32 s88, s88, 1")
    a("s_waitcnt vmcnt(0)")
    a("v_min_f32 v31, v%d, v%d" % (GR + 3, GR + 7))
    a("v_min3_f32 v31, v31, v%d, v%d" % (GR + 11, GR + 15))
    a("v_cmp_ne_u32 vcc, s85, v31")
    a("s_cmp_gt_u32 s88, %d" % SPIN_MAX)
    a("s_cbranch_scc1 L_poll1_done")
    a("s_cbranch_vccnz L_poll1")
    a("L_poll1_done:")
    stamp()
    a("L_f1_body:")
    XH = 238
    pairs = [(GR + 0, GR + 8), (GR + 1, GR + 9), (GR + 2, GR + 10), (GR + 4, GR + 12), (GR + 5, GR + 13)]
    for k in range(5):
        a("v_cvt_pk_bf16_f32 v%d, v%d, v%d" % (24 + k, pairs[k][0], pairs[k][1]))
if A.ln1:
    def pk(op, d, x, y, extra=""):
        a("%s v[%d:%d], v[%d:%d], v[%d:%d]%s" % (op, d, d + 1, x, x + 1, y, y + 1, extra))
    def unpack(d, src):
        a("v_lshlrev_b32 v%d, 16, v%d" % (d, src)); a("v_and_b32 v%d, 0xffff0000, v%d" % (d + 1, src))
    for k in range(5): unpack(GR + 2 * k, 24 + k)
    for k in range(5): pk("v_pk_add_f32", GR + 2 * k, GR + 2 * k, XF + 2 * k)
    for k in range(5): a("v_cvt_pk_bf16_f32 v%d, v%d, v%d" % (24 + k, GR + 2 * k, GR + 2 * k + 1))
    a("s_mov_b32 s12, 0x3f803f80")
    for k in range(5):
        a("v_dot2_f32_bf16 v32, v%d, s12, %s" % (24 + k, "0" if k == 0 else "v32"))
        a("v_dot2_f32_bf16 v33, v%d, v%d, %s" % (24 + k, 24 + k, "0" if k == 0 else "v33"))
    fill = [("v_lshlrev_b32 v%d, 16, v%d" % (XH + 2 * k, 24 + k), "v_and_b32 v%d, 0xffff0000, v%d" % (XH + 2 * k + 1, 24 + k)) for k in range(5)]
    fill = [x for pr in fill for x in pr]
    a(fill.pop(0)); a(fill.pop(0)); a(fill.pop(0))
    for m in ("quad_perm:[1,0,3,2] row_mask:0xf", "quad_perm:[2,3,0,1] row_mask:0xf", "row_half_mirror row_mask:0xf",
              "row_mirror row_mask:0xf", "row_bcast:15 row_mask:0xa", "row_bcast:31 row_mask:0xc"):
        a("v_add_f32_dpp v32, v32, v32 %s bank_mask:0xf" % m)
        a("v_add_f32_dpp v33, v33, v33 %s bank_mask:0xf" % m)
        a(fill.pop(0))
    a("v_readlane_b32 s84, v32, 63")
    a("v_readlane_b32 s12, v33, 63")
    a(fill.pop(0))
    a("v_mov_b32 v33, 0x3acccccd")
    a("v_mul_f32 v38, s84, v33")
    a("v_mul_f32 v32, s12, v33")
    a("v_fma_f32 v32, -v38, v38, v32")
    a("v_max_f32 v32, 0, v32")
    a("v_cvt_pk_bf16_f32 v32, v32, v38")
    a("v_and_b32 v38, 0xffff0000, v32")
    a("v_lshlrev_b32 v32, 16, v32")
    a("v_add_f32 v32, 0x3727c5ac, v32")
    a("v_mov_b32 v39, v38")
    a("v_cvt_pk_bf16_f32 v32, v32, v32")
    for k in range(2): pk("v_pk_add_f32", XH + 2 * k, XH + 2 * k, 38, " neg_lo:[0,1] neg_hi:[0,1]")
    a("v_lshlrev_b32 v32, 16, v32")
    a("v_sqrt_f32 v32, v32")
    for k in range(2, 5): pk("v_pk_add_f32", XH + 2 * k, XH + 2 * k, 38, " neg_lo:[0,1] neg_hi:[0,1]")
    a("v_cvt_pk_bf16_f32 v32, v32, v32")
    for k in range(5): a("v_cvt_pk_bf16_f32 v%d, v%d, v%d" % (24 + k, XH + 2 * k, XH + 2 * k + 1))
    a("v_lshlrev_b32 v32, 16, v32")
    a("v_rcp_f32 v36, v32")
    for k in range(5): unpack(XH + 2 * k, 24 + k)
    a("v_mov_b32 v37, v36")
    for k in range(5): pk("v_pk_mul_f32", XH + 2 * k, XH + 2 * k, 36)
    for k in range(5): a("v_cvt_pk_bf16_f32 v%d, v%d, v%d" % (24 + k, XH + 2 * k, XH + 2 * k + 1))
    a("v_add_u32 v23, %d, v23" % L_HN) if False else None
    a("ds_write2_b32 v35, v24, v25 offset0:0 offset1:1")
    a("ds_write2_b32 v35, v26, v27 offset0:2 offset1:3")
    a("ds_write_b32 v35, v28 offset:16")
else:
    for k in range(5):
        a("v_lshlrev_b32 v%d, 16, v%d" % (GR + 2 * k, 24 + k))
        a("v_and_b32 v%d, 0xffff0000, v%d" % (GR + 2 * k + 1, 24 + k))
    for k in range(10):
        a("v_add_f32 v%d, v%d, v%d" % (GR + k, GR + k, XF + k))
    for k in range(5):
        a("v_cvt_pk_bf16_f32 v%d, v%d, v%d" % (24 + k, GR + 2 * k, GR + 2 * k + 1))
    for k in range(5):
        a("v_lshlrev_b32 v%d, 16, v%d" % (XH + 2 * k, 24 + k))
        a("v_and_b32 v%d, 0xffff0000, v%d" % (XH + 2 * k + 1, 24 + k))
    ln_stats(["v%d" % (XH + k) for k in range(10)], ["v31", "v32", "v33"], "v38", "v39")
    for k in range(10):
        a("v_sub_f32 v%d, v%d, v38" % (XH + k, XH + k))
    for k in range(5):
        a("v_cvt_pk_bf16_f32 v%d, v%d, v%d" % (24 + k, XH + 2 * k, XH + 2 * k + 1))
    for k in range(5):
        a("v_lshlrev_b32 v%d, 16, v%d" % (XH + 2 * k, 24 + k))
        a("v_and_b32 v%d, 0xffff0000, v%d" % (XH + 2 * k + 1, 24 + k))
    for k in range(10):
        a("v_mul_f32 v%d, v%d, v39" % (XH + k, XH + k))
    for k in range(5):
        a("v_cvt_pk_bf16_f32 v%d, v%d, v%d" % (24 + k, XH + 2 * k, XH + 2 * k + 1))
        a("ds_write_b32 v23, v%d offset:%d" % (24 + k, L_HN + 4 * k))
a("s_waitcnt lgkmcnt(0)")
a("s_barrier")
if A.stamp and A.st8 == "hn":
    a("s_memrealtime s[90:91]\ns_waitcnt lgkmcnt(0)\ns_mov_b32 s100, s90")
a("s_cmp_ge_u32 s26, 4")
a("s_cbranch_scc1 L_f1_skip")
if A.D1: a("s_waitcnt vmcnt(0)")
GR = 220
for ks in range(20):
    a("ds_read_b128 %s, v29 offset:%d" % (t4(BF + 4 * ks), L_HN + 64 * ks))
for ks in range(20):
    a("s_waitcnt lgkmcnt(%d)" % min(15, 19 - ks))
    a("v_mfma_f32_16x16x32_bf16 v[40:43], %s, %s, %s" % (t4(AF + 4 * ks), t4(BF + 4 * ks), "0" if ks == 0 else "v[40:43]"))
a("s_lshl_b32 s84, s79, 10")
a("s_mov_b32 exec_lo, 0x00ff00ff\ns_mov_b32 exec_hi, 0x00ff00ff")
for r in range(4):
    a("v_max_f32 v%d, 0, v%d" % (40 + r, 40 + r))
a("v_cvt_pk_bf16_f32 v40, v40, v41")
a("v_cvt_pk_bf16_f32 v41, v42, v43")
a("s_cmp_eq_u32 s78, 0")
a("s_cbranch_scc1 L_f1_nost")
a("buffer_store_dwordx2 v[40:41], v30, s[60:63], s84 offen %s" % A.pmod)
a("L_f1_nost:")
a("s_mov_b64 exec, -1")
stamp()
a("L_f1_skip:")
a("s_cmp_eq_u32 s78, 0")
a("s_cbranch_scc0 L_fin")
if A.warm1:
    a("s_branch L_f1_resume")
else:
    a("s_mov_b32 s78, 1")
    a("s_barrier")
    a("s_branch L_poll1")

if A.stamp: stamp_idx[0] = 6
a("L_ffn2:")
a("s_mov_b32 s52, s18\ns_mov_b32 s53, s19")
a("s_lshl_b32 s13, s27, 5")
a("s_mov_b32 s79, s13")
a("v_lshrrev_b32 v5, 1, v0")
a("v_mul_u32_u24 v5, 1280, v5")
a("v_and_b32 v11, 1, v0")
a("v_lshl_add_u32 v5, v11, 4, v5")
dma(7 - A.late2, ["v5"], 327680)
a("v_mul_u32_u24 v21, 1280, v10")
a("v_lshl_add_u32 v21, v45, 3, v21")
a("buffer_load_dwordx2 v[24:25], v21, s[44:47], s79 offen")
a("v_mul_u32_u24 v12, 10240, v44")
a("v_lshl_add_u32 v12, v45, 8, v12")
a("v_lshl_add_u32 v12, v46, 3, v12")
a("v_add_u32 v12, %d, v12" % L_W)
a("v_lshlrev_b32 v22, 9, v44")
a("v_lshl_add_u32 v22, v45, 7, v22")
a("v_lshl_add_u32 v22, v10, 4, v22")
a("v_lshlrev_b32 v16, 4, v0")
a("v_lshlrev_b32 v17, 4, v1")
if A.fin2:
    a("v_bfe_u32 v11, v0, 3, 1")
    a("v_mul_u32_u24 v11, %d, v11" % (4096 - 128))
    a("v_add_u32 v17, v17, v11")
a("s_mov_b32 s78, 1")
if A.warm or A.warm2:
    a("s_mov_b32 s78, 0")
    a("s_branch L_f2_body")
    a("L_f2_real:")
    a("s_mov_b32 s78, 1")
a("s_cmp_lg_u32 s26, 0")
a("s_cbranch_scc1 L_ffn2_noh")
a("s_lshl_b32 s84, s27, 4")
a("v_lshlrev_b32 v11, 2, v45")
a("v_add_u32 v11, s84, v11")
for r in range(4):
    a("v_add_u32 v13, %d, v11" % r)
    a("v_mul_u32_u24 v29, 205, v13")
    a("v_lshrrev_b32 v29, 11, v29")
    a("v_mul_u32_u24 v30, 10, v29")
    a("v_sub_u32 v13, v13, v30")
    a("v_and_b32 v30, 1, v13")
    a("v_lshrrev_b32 v13, 1, v13")
    a("v_mul_u32_u24 v31, 11, v13")
    a("v_lshrrev_b32 v31, 5, v31")
    a("v_lshl_add_u32 v30, v30, 1, v31")
    a("v_mul_u32_u24 v31, 3, v31")
    a("v_sub_u32 v%d, v13, v31" % (XF + 4 + r))
    a("v_lshl_add_u32 v29, v30, 6, v29")
    a("v_lshlrev_b32 v29, 4, v29")
    a("v_lshl_add_u32 v%d, v10, 12, v29" % (XF + r))
if A.light or A.light2:
    a("v_lshlrev_b32 v29, 12, v10")
    a("s_mov_b32 s84, 0x42000000")
    a("s_mov_b64 exec, 0xff")
    a("L_light2:")
    a("buffer_load_dword v30, v29, s[48:51], 0 offen offset:12 %s" % A.pmod)
    a("s_add_u32 s88, s88, 1")
    a("s_waitcnt vmcnt(0)")
    a("v_cmp_gt_f32 vcc, s84, v30")
    a("s_cmp_gt_u32 s88, %d" % SPIN_MAX)
    a("s_cbranch_scc1 L_light2_done")
    a("s_cbranch_vccnz L_light2")
    a("L_light2_done:")
    a("s_mov_b64 exec, -1")
a("L_poll2h:")
if A.sleep: a("s_sleep %d" % A.sleep)
for r in range(4):
    a("buffer_load_dwordx4 %s, v%d, s[48:51], 0 offen %s" % (t4(GR + 4 * r), XF + r, A.pmod))
a("s_add_u32 s88, s88, 1")
a("s_waitcnt vmcnt(0)")
a("v_min_f32 v31, v%d, v%d" % (GR + 3, GR + 7))
a("v_min3_f32 v31, v31, v%d, v%d" % (GR + 11, GR + 15))
a("v_cmp_ne_u32 vcc, s85, v31")
a("s_cmp_gt_u32 s88, %d" % SPIN_MAX)
a("s_cbranch_scc1 L_poll2h_done")
a("s_cbranch_vccnz L_poll2h")
a("L_poll2h_done:")
for r in range(4):
    a("v_cmp_eq_u32 vcc, 1, v%d" % (XF + 4 + r))
    a("v_cndmask_b32 v%d, v%d, v%d, vcc" % (GR + 4 * r, GR + 4 * r, GR + 4 * r + 1))
    a("v_cmp_eq_u32 vcc, 2, v%d" % (XF + 4 + r))
    a("v_cndmask_b32 v%d, v%d, v%d, vcc" % (GR + 4 * r, GR + 4 * r, GR + 4 * r + 2))
for k in range(2):
    a("v_cvt_pk_bf16_f32 v31, v%d, v%d" % (GR + 8 * k, GR + 8 * k + 4))
    a("v_lshlrev_b32 v32, 16, v31")
    a("v_and_b32 v33, 0xffff0000, v31")
    a("v_lshlrev_b32 v34, 16, v%d" % (24 + k))
    a("v_and_b32 v35, 0xffff0000, v%d" % (24 + k))
    a("v_add_f32 v32, v32, v34")
    a("v_add_f32 v33, v33, v35")
    a("v_cvt_pk_bf16_f32 v31, v32, v33")
    a("v_lshlrev_b32 v%d, 16, v31" % (XF + 2 * k))
    a("v_and_b32 v%d, 0xffff0000, v31" % (XF + 1 + 2 * k))
a("L_ffn2_noh:")
a("s_waitcnt vmcnt(0)")
def f2_frags(rng=None):
    for t in (rng if rng is not None else range(7 - A.late2)):
        a("ds_read_b64_tr_b16 v[%d:%d], v12 offset:%d" % (AF + 4 * t, AF + 4 * t + 1, 1024 * t))
        a("ds_read_b64_tr_b16 v[%d:%d], v12 offset:%d" % (AF + 4 * t + 2, AF + 4 * t + 3, 1024 * t + 128))
if not A.defer2: f2_frags()
stamp()
if A.f2bar:
    a("s_barrier")
if A.late2:
    a("s_add_u32 s3, s3, 1024\ns_add_u32 s13, s13, 327680")
    dma(A.late2, ["v5"], 327680)
if A.defer2:
    f2_frags()
    a("s_waitcnt lgkmcnt(0)")
a("s_mov_b32 s88, 0")
if A.D2:
    sets = [80 + 28 * k for k in range(A.D2)]
    assert sets[-1] + 28 <= XF
    def p2(g):
        for t in range(7):
            a("buffer_load_dwordx4 %s, v22, s[60:63], %s offen %s" % (t4(g + 4 * t), soff(4096 * t)[0], A.pmod))
    if A.m2:
        a("s_mov_b32 exec_lo, 0x00ff00ff\ns_mov_b32 exec_hi, 0x00ff00ff")
    for k, g in enumerate(sets):
        if A.pace and k: a("s_sleep %d" % A.pace)
        p2(g)
    a("s_waitcnt lgkmcnt(0)")
    a("L_poll2:")
    for k, g in enumerate(sets):
        a("s_waitcnt vmcnt(%d)" % (7 * (A.D2 - 1)))
        a("v_max3_u32 v31, v%d, v%d, v%d" % (g, g + 1, g + 2))
        a("v_max3_u32 v32, v%d, v%d, v%d" % (g + 3, g + 4, g + 5))
        for q in range(6, 26, 4):
            a("v_max3_u32 v31, v31, v%d, v%d" % (g + q, g + q + 1))
            a("v_max3_u32 v32, v32, v%d, v%d" % (g + q + 2, g + q + 3))
        a("v_max3_u32 v31, v31, v%d, v%d" % (g + 26, g + 27))
        a("v_max_u32 v31, v31, v32")
        a("v_cmp_eq_u32 vcc, -1, v31")
        a("s_cbranch_vccz L_p2x%d" % k)
        if A.pace: a("s_sleep %d" % A.pace)
        p2(g)
    a("s_add_u32 s88, s88, 1")
    a("s_cmp_gt_u32 s88, %d" % SPIN_MAX)
    a("s_cbranch_scc0 L_poll2")
    for k, g in reversed(list(enumerate(sets))):
        a("L_p2x%d:" % k)
        if A.m2: a("s_mov_b64 exec, -1")
        for t in range(7):
            a("v_mfma_f32_16x16x32_bf16 v[40:43], %s, %s, %s" % (t4(AF + 4 * t), t4(g + 4 * t), "0" if t == 0 else "v[40:43]"))
        if k: a("s_branch L_p2done")
    a("L_p2done:")
    a("s_nop 7")
    stamp()
else:
    if A.m2:
        for q in range(28): a("v_mov_b32 v%d, 0" % (BF + q))
        a("s_mov_b32 exec_lo, 0x00ff00ff\ns_mov_b32 exec_hi, 0x00ff00ff")
    if A.first2: a("s_sleep %d" % A.first2)
    a("L_poll2:")
    if A.bo2: a("s_sleep %d" % A.bo2)
    for t in range(7):
        a("buffer_load_dwordx4 %s, v22, s[60:63], %s offen %s" % (t4(BF + 4 * t), soff(4096 * t)[0], A.pmod))
    a("s_add_u32 s88, s88, 1")
    a("s_waitcnt lgkmcnt(0)" if A.fin2 else "s_waitcnt vmcnt(0) lgkmcnt(0)")
    if A.fin2:
        a("s_mov_b64 exec, -1")
        for t in range(7):
            a("s_waitcnt vmcnt(%d)" % (6 - t))
            a("v_mfma_f32_16x16x32_bf16 v[40:43], %s, %s, %s" % (t4(AF + 4 * t), t4(BF + 4 * t), "0" if t == 0 else "v[40:43]"))
            if t == 0: a("v_max3_u32 v31, v%d, v%d, v%d\nv_mov_b32 v32, v%d" % (BF, BF + 1, BF + 2, BF + 3))
            else: a("v_max3_u32 v31, v31, v%d, v%d\nv_max3_u32 v32, v32, v%d, v%d" % (BF + 4 * t, BF + 4 * t + 1, BF + 4 * t + 2, BF + 4 * t + 3))
        a("v_max_u32 v31, v31, v32")
        a("v_cmp_eq_u32 vcc, -1, v31")
        a("s_mov_b32 exec_lo, 0x00ff00ff\ns_mov_b32 exec_hi, 0x00ff00ff")
        a("s_cmp_gt_u32 s88, %d" % SPIN_MAX)
        a("s_cbranch_scc1 L_poll2_done")
        a("s_cbranch_vccnz L_poll2")
        a("L_poll2_done:")
        a("s_mov_b64 exec, -1")
        stamp()
        a("L_f2_body:")
    else:
        a("v_max_u32 v31, v%d, v%d" % (BF, BF + 1))
        a("v_max_u32 v32, v%d, v%d" % (BF + 2, BF + 3))
        for k in range(4, 28, 4):
            a("v_max3_u32 v31, v31, v%d, v%d" % (BF + k, BF + k + 1))
            a("v_max3_u32 v32, v32, v%d, v%d" % (BF + k + 2, BF + k + 3))
        a("v_max_u32 v31, v31, v32")
        a("v_cmp_eq_u32 vcc, -1, v31")
        a("s_cmp_gt_u32 s88, %d" % SPIN_MAX)
        a("s_cbranch_scc1 L_poll2_done")
        a("s_cbranch_vccnz L_poll2")
        a("L_poll2_done:")
        if A.m2: a("s_mov_b64 exec, -1")
        if A.late2:
            f2_frags(range(7 - A.late2, 7))
        stamp()
        a("L_f2_body:")
        for t in range(7):
            if A.late2 and t >= 7 - A.late2: a("s_waitcnt lgkmcnt(%d)" % (2 * (6 - t)))
            a("v_mfma_f32_16x16x32_bf16 v[40:43], %s, %s, %s" % (t4(AF + 4 * t), t4(BF + 4 * t), "0" if t == 0 else "v[40:43]"))
a("ds_write_b128 v16, v[40:43] offset:%d" % L_FP)
a("s_waitcnt lgkmcnt(0)")
a("s_barrier")
a("s_cmp_lg_u32 s26, 0")
a("s_cbranch_scc1 L_f2_skip")
if A.fin2:
    for w in range(4):
        a("ds_read_b128 %s, v17 offset:%d" % (t4(AF + 4 * w), L_FP + 1024 * w))
    for w in range(2):
        a("s_waitcnt lgkmcnt(%d)" % (2 - 2 * w))
        for r in (0, 2):
            a("v_pk_add_f32 v[%d:%d], v[%d:%d], v[%d:%d]" % (AF + 8 * w + r, AF + 8 * w + r + 1, AF + 8 * w + r, AF + 8 * w + r + 1, AF + 8 * w + 4 + r, AF + 8 * w + 4 + r + 1))
    for r in (0, 2):
        a("v_pk_add_f32 v[%d:%d], v[%d:%d], v[%d:%d]" % (AF + r, AF + r + 1, AF + r, AF + r + 1, AF + 8 + r, AF + 8 + r + 1))
    for r in range(4):
        a("v_add_f32_dpp v%d, v%d, v%d row_ror:8 row_mask:0xf bank_mask:0xf" % (AF + r, AF + r, AF + r))
else:
    for w in range(8):
        a("ds_read_b128 %s, v17 offset:%d" % (t4(AF + 4 * w), L_FP + 1024 * w))
    a("s_waitcnt lgkmcnt(0)")
    for s_ in (4, 2, 1):
        for w in range(s_):
            for r in range(0, 4, 2):
                a("v_pk_add_f32 v[%d:%d], v[%d:%d], v[%d:%d]" % (AF + 4 * w + r, AF + 4 * w + r + 1, AF + 4 * w + r, AF + 4 * w + r + 1, AF + 4 * (w + s_) + r, AF + 4 * (w + s_) + r + 1))
a("s_mov_b32 exec_lo, 0x00ff00ff\ns_mov_b32 exec_hi, 0x00ff00ff")
for k in range(2):
    a("v_cvt_pk_bf16_f32 v31, v%d, v%d" % (AF + 2 * k, AF + 2 * k + 1))
    a("v_lshlrev_b32 v32, 16, v31")
    a("v_and_b32 v33, 0xffff0000, v31")
    a("v_add_f32 v32, v32, v%d" % (XF + 2 * k))
    a("v_add_f32 v33, v33, v%d" % (XF + 1 + 2 * k))
    a("v_cvt_pk_bf16_f32 v%d, v32, v33" % (40 + k))
a("s_cmp_eq_u32 s78, 0")
a("s_cbranch_scc1 L_f2_nost")
a("buffer_store_dwordx2 v[40:41], v21, s[56:59], s79 offen %s" % A.outmod)
a("L_f2_nost:")
a("s_mov_b64 exec, -1")
a("L_f2_skip:")
if A.warm or A.warm2:
    a("s_cmp_eq_u32 s78, 0")
    a("s_cbranch_scc1 L_f2_real")
if A.diagnum:
    a("v_mov_b32 v26, 0")
    a("buffer_load_dword v27, v26, s[64:67], 0 offen offset:32 sc0 sc1\ns_waitcnt vmcnt(0)")
    a("v_readfirstlane_b32 s84, v27\ns_bcnt1_i32_b32 s84, s84\ns_cmp_eq_u32 s84, 1\ns_cbranch_scc1 L_fin")
    a("s_memrealtime s[90:91]\ns_waitcnt lgkmcnt(0)\ns_add_u32 s85, s90, 10000")
    a("L_dly:\ns_memrealtime s[90:91]\ns_waitcnt lgkmcnt(0)\ns_sub_u32 s84, s85, s90\ns_cmp_lt_i32 s84, 0\ns_cbranch_scc0 L_dly")
if A.amp >= 0:
    a("s_cmp_lg_u32 s26, 0\ns_cbranch_scc1 L_fin")
    a("s_memrealtime s[90:91]\ns_waitcnt lgkmcnt(0)\ns_mov_b32 s101, s90")
    a("s_sub_u32 s85, s%d, s92\ns_lshl_b32 s85, s85, %d\ns_add_u32 s85, s85, s90" % (92 + A.amp, A.ampsh))
    a("L_dly2:\ns_memrealtime s[90:91]\ns_waitcnt lgkmcnt(0)\ns_sub_u32 s84, s85, s90\ns_cmp_lt_i32 s84, 0\ns_cbranch_scc0 L_dly2")
a("L_fin:")
if A.stamp and A.amp < 0:
    a("s_waitcnt vmcnt(0)")
    a("s_memrealtime s[90:91]\ns_waitcnt lgkmcnt(0)\ns_mov_b32 s101, s90")
    a("s_add_u32 s48, s24, %d\ns_addc_u32 s49, s25, 0\ns_mov_b32 s50, 131072" % WS_STAMP)
    a("s_lshl_b32 s84, s2, 3\ns_add_u32 s84, s84, s26\ns_lshl_b32 s84, s84, 6")
    a("s_getreg_b32 s85, hwreg(HW_REG_XCC_ID)")
    a("v_mov_b32 v1, 0")
    a("s_mov_b64 exec, 1")
    for k in range(10):
        a("v_mov_b32 v2, s%d" % (92 + k))
        a("buffer_store_dword v2, v1, s[48:51], s84 offen offset:%d" % (4 * k))
    a("v_mov_b32 v2, s85")
    a("buffer_store_dword v2, v1, s[48:51], s84 offen offset:40")
    a("v_mov_b32 v2, s88")
    a("buffer_store_dword v2, v1, s[48:51], s84 offen offset:44")
    a("v_mov_b32 v2, s27")
    a("buffer_store_dword v2, v1, s[48:51], s84 offen offset:48")
    if A.dbgstamp:
        a("s_cmp_ge_u32 s27, 40\ns_cbranch_scc1 L_end\ns_cmp_lg_u32 s26, 0\ns_cbranch_scc1 L_end")
        a("s_not_b32 s86, s92")
        a("v_mov_b32 v2, s86")
        a("buffer_atomic_umax v2, v1, s[64:67], 0 offen offset:4 sc1")
        for k in (4, 5, 6, 7, 9):
            a("v_mov_b32 v2, s%d" % (92 + k))
            a("buffer_atomic_umax v2, v1, s[64:67], 0 offen offset:%d sc1" % (8 + 4 * k))
a("L_end:")
a("s_endpgm")
a("L_initslow:")
a("s_mov_b32 s88, 0")
a("L_initpoll:")
a("buffer_load_dword v12, v21, s[64:67], 0 offen sc0 sc1")
a("s_waitcnt vmcnt(0)")
a("v_readfirstlane_b32 s89, v12")
a("s_add_u32 s88, s88, 1")
a("s_cmp_gt_u32 s88, %d" % SPIN_MAX)
a("s_cbranch_scc1 L_initok")
a("s_cmp_ge_u32 s89, 8")
a("s_cbranch_scc0 L_initpoll")
a("s_branch L_initok")

body = a.render()
txt = HEADER + "; @launch grid=(256,1,1) block=(512,1,1) lds=%d\n" % (A.lds or LDS_BYTES)
txt += """.amdgcn_target "amdgcn-amd-amdhsa--gfx950"
.text
.globl {n}_kernel
{al}.p2align 8
.type {n}_kernel,@function
{n}_kernel:
{body}.section .rodata,"a"
.p2align 6
.amdhsa_kernel {n}_kernel
  .amdhsa_next_free_vgpr 256
  .amdhsa_next_free_sgpr 102
  .amdhsa_accum_offset 256
  .amdhsa_group_segment_fixed_size 0
  .amdhsa_kernarg_size 88
  .amdhsa_user_sgpr_count 2
  .amdhsa_user_sgpr_kernarg_segment_ptr 1
  .amdhsa_system_sgpr_workgroup_id_x 1
  .amdhsa_float_denorm_mode_32 3
.end_amdhsa_kernel
""".format(n=NAME, body=body, al=(".p2align 12\n" + (".fill %d, 4, 0xbf800000\n" % (64 * A.align12) if A.align12 else "")) if A.align12 >= 0 else "")
open(A.o, "w").write(txt)
print("wrote", A.o, len(txt), "bytes,", body.count("\\n"), "lines")
```

```python
import sys, argparse
sys.path.insert(0, "work")
from asmlib import Asm

NAME = "sequential_preLN__sliding_block_cached__dense_activation_relu__decode"
HEADER = open("cdna_kernels/%s.s.ref" % NAME).read().split("; Override launch geometry")[0]

ap = argparse.ArgumentParser()
ap.add_argument("-o", default="cdna_kernels/%s.s" % NAME)
ap.add_argument("--stamp", action="store_true")
ap.add_argument("--dbgstamp", action="store_true")
ap.add_argument("--kvmod", default="nt")
ap.add_argument("--wmod", default="nt")
ap.add_argument("--dmod", default="nt")
ap.add_argument("--pmod", default="sc0 sc1")
ap.add_argument("--L", type=int, default=12)
ap.add_argument("--pat", type=int, default=1)
ap.add_argument("--qk", type=int, default=2)
ap.add_argument("--wo_start", type=int, default=12)
ap.add_argument("--wo_every", type=int, default=2)
ap.add_argument("--codepf", action="store_true")
ap.add_argument("--op4", type=int, default=0)
ap.add_argument("--lin", action="store_true")
ap.add_argument("--op3", action="store_true")
ap.add_argument("--ampA", action="store_true")
ap.add_argument("--fin2", action="store_true")
ap.add_argument("--late2", type=int, default=0)
ap.add_argument("--align12", type=int, default=-1)
ap.add_argument("--warm1", action="store_true")
ap.add_argument("--warm2", action="store_true")
ap.add_argument("--pad", type=int, default=0)
ap.add_argument("--sthr", type=int, nargs=2, default=None)
ap.add_argument("--tk2", action="store_true")
ap.add_argument("--static", action="store_true")
ap.add_argument("--tkwave", type=int, default=0)
ap.add_argument("--thr", type=int, default=0)
ap.add_argument("--thrT", type=int, default=1)
ap.add_argument("--thr0", type=int, default=256)
ap.add_argument("--qpf", action="store_true")
ap.add_argument("--qstart", type=int, default=0)
ap.add_argument("--krot", type=int, default=0)
ap.add_argument("--light2", action="store_true")
ap.add_argument("--defer2", type=int, default=0)
ap.add_argument("--bo2", type=int, default=0)
ap.add_argument("--first2", type=int, default=0)
ap.add_argument("--ampsh", type=int, default=2)
ap.add_argument("--qspan", type=int, default=0)
ap.add_argument("--ospan", type=int, nargs=2, default=None)
ap.add_argument("--fine", action="store_true")
ap.add_argument("--op2", action="store_true")
ap.add_argument("--ln1", action="store_true")
ap.add_argument("--qrow", type=int, default=0)
ap.add_argument("--rot", type=int, default=0)
ap.add_argument("--outmod", default="")
ap.add_argument("--lds", type=int, default=0)
ap.add_argument("--edma", action="store_true")
ap.add_argument("--nopre", action="store_true")
ap.add_argument("--st8", default="hn")
ap.add_argument("--minrate", type=int, default=0)
ap.add_argument("--m2", action="store_true")
ap.add_argument("--D1", type=int, default=0)
ap.add_argument("--D2", type=int, default=0)
ap.add_argument("--pace", type=int, default=0)
ap.add_argument("--warm", action="store_true")
ap.add_argument("--tkpos", type=int, default=8)
ap.add_argument("--map", type=int, default=0)
ap.add_argument("--touch", action="store_true")
ap.add_argument("--qhead", type=int, default=0)
ap.add_argument("--codepf2", action="store_true")
ap.add_argument("--oobq", action="store_true")
ap.add_argument("--oobo", action="store_true")
ap.add_argument("--f2bar", action="store_true")
ap.add_argument("--light", type=int, default=0)
ap.add_argument("--sleep", type=int, default=0)
ap.add_argument("--amp", type=int, default=-1)
ap.add_argument("--diagnum", action="store_true")
ap.add_argument("--LV", type=int, default=0)
ap.add_argument("--dma", default="stream")
ap.add_argument("--pf", type=int, default=0)
ap.add_argument("--pfmod", default="")
A = ap.parse_args()

L_PART = 0
L_QD = 4096
L_ST = 6144
L_YP = 6400
L_HN = 27136
HN_STRIDE = 1312
L_FP = 37888
L_W = 46080
LDS_BYTES = L_W + 81920
WS_H1 = 32768
WS_STAMP = 1 << 20
FFN1_N, FFN2_N = 27, 40
L_TK = 6208
SPIN_MAX = 400000

RING = 48; NRING = 32
YSTR = 2560
WO = 176
def t4(r): return "v[%d:%d]" % (r, r + 3)
def soff(byte):
    hi, lo = byte // 4096, byte % 4096
    return ("0" if hi == 0 else "s%d" % (67 + hi)), lo

a = Asm()
stamp_idx = [0]
def stamp():
    if not A.stamp: return
    a("s_memrealtime s[90:91]\ns_waitcnt lgkmcnt(0)\ns_mov_b32 s%d, s90" % (92 + stamp_idx[0]))
    stamp_idx[0] += 1
    assert stamp_idx[0] <= 9

FINE = [4, 6, 8, 10, 14, 36, 38]
fine_i = [0]
def fine():
    if not A.fine: return
    r = FINE[fine_i[0]]; fine_i[0] += 1
    a("s_memtime s[%d:%d]" % (r, r + 1))

def wave_reduce(v, op, sdst):
    for m in ("quad_perm:[1,0,3,2] row_mask:0xf", "quad_perm:[2,3,0,1] row_mask:0xf", "row_half_mirror row_mask:0xf",
              "row_mirror row_mask:0xf", "row_bcast:15 row_mask:0xa", "row_bcast:31 row_mask:0xc"):
        a("%s_dpp %s, %s, %s %s bank_mask:0xf" % (op, v, v, v, m))
    a("v_readlane_b32 %s, %s, 63" % (sdst, v))

def ln_stats(vals, tmp, vmean_bf, vrinv):
    t0, t1, t2 = tmp
    a("v_add_f32 %s, %s, %s" % (t0, vals[0], vals[1]))
    a("v_add_f32 %s, %s, %s" % (t1, vals[2], vals[3]))
    for k in range(4, 10, 2):
        a("v_add_f32 %s, %s, %s" % (t0, t0, vals[k]))
        a("v_add_f32 %s, %s, %s" % (t1, t1, vals[k + 1]))
    a("v_add_f32 %s, %s, %s" % (t0, t0, t1))
    wave_reduce(t0, "v_add_f32", "s84")
    a("v_mov_b32 %s, 0x3acccccd" % t2)
    a("v_mul_f32 %s, s84, %s" % (vmean_bf, t2))
    a("v_sub_f32 %s, %s, %s" % (t1, vals[0], vmean_bf))
    a("v_mul_f32 %s, %s, %s" % (t0, t1, t1))
    for k in range(1, 10):
        a("v_sub_f32 %s, %s, %s" % (t1, vals[k], vmean_bf))
        a("v_fmac_f32 %s, %s, %s" % (t0, t1, t1))
    wave_reduce(t0, "v_add_f32", "s84")
    a("v_mul_f32 %s, s84, %s" % (t0, t2))
    a("v_cvt_pk_bf16_f32 %s, %s, %s" % (t0, t0, vmean_bf))
    a("v_and_b32 %s, 0xffff0000, %s" % (vmean_bf, t0))
    a("v_lshlrev_b32 %s, 16, %s" % (t0, t0))
    a("v_add_f32 %s, 0x3727c5ac, %s" % (t0, t0))
    a("v_cvt_pk_bf16_f32 %s, %s, %s" % (t0, t0, t0))
    a("v_lshlrev_b32 %s, 16, %s" % (t0, t0))
    a("v_sqrt_f32 %s, %s" % (t0, t0))
    a("v_cvt_pk_bf16_f32 %s, %s, %s" % (t0, t0, t0))
    a("v_lshlrev_b32 %s, 16, %s" % (t0, t0))
    a("v_rcp_f32 %s, %s" % (vrinv, t0))

def selector(abuf, src, lane):
    for r in range(4):
        a("v_and_b32_dpp v%d, %s, v%d row_newbcast:%d row_mask:0xf bank_mask:0xf" % (abuf + r, src, 6 + r, lane))

def srd(d, plo, nbytes):
    a("s_mov_b32 s%d, s%d\ns_mov_b32 s%d, s%d\ns_mov_b32 s%d, %s\ns_mov_b32 s%d, 0x20000" % (d, plo, d + 1, plo + 1, d + 2, nbytes, d + 3))

S = []
kv = [("k", n) for n in range(32)] + [("v", n) for n in range(32)]
if A.qspan:
    oa, ob = A.ospan
    qpos = [A.qstart + (t * (A.qspan - A.qstart)) // 20 for t in range(20)]
    opos = [oa + (t * (ob - oa)) // 20 for t in range(20)]
    for ki in range(64):
        S += [("q", t) for t in range(20) if qpos[t] == ki]
        S += [("o", t) for t in range(20) if opos[t] == ki]
        S.append(kv[ki])
else:
    qi = 0; ki = 0
    while qi < A.qhead:
        S.append(("q", qi)); qi += 1
    while qi < 20:
        for _ in range(A.qk):
            if qi < 20: S.append(("q", qi)); qi += 1
        S.append(kv[ki]); ki += 1
    oi = 0
    while ki < 64:
        S.append(kv[ki]); ki += 1
        if ki >= A.wo_start and (ki - A.wo_start) % A.wo_every == 0 and oi < 20:
            S.append(("o", oi)); oi += 1
    assert oi == 20
if A.tk2: S.append(("t", 0))
POS = {e: p for p, e in enumerate(S)}
free = list(range(NRING))
slot = {}
lend = list(range(32, 52))
st = {"issued": 0, "maxpos": -1, "gate": len(S)}
def reg_of(e):
    if e[0] == "o": return WO + 4 * e[1]
    return RING + 4 * slot[e]
def issue(e):
    kind, n = e
    if kind in "qkv":
        if free: slot[e] = free.pop(0)
        elif lend and kind != "v": slot[e] = lend.pop()
        else: return False
    if kind == "o":
        if (32 + n) not in lend: return False
        lend.remove(32 + n)
    if kind == "q":
        so = "0"
        if n: a("s_mov_b32 s78, %d" % (n * 8192 * (1, 4, 32)[A.qrow] if not (A.oobq and n >= 3) else 0x7f000000)); so = "s78"
        a("buffer_load_dwordx4 %s, v3, s[36:39], %s offen %s" % (t4(reg_of(e)), so, A.wmod))
    elif kind in "kv":
        sr = "s[28:31]" if kind == "k" else "s[32:35]"
        if A.pat == 0:
            so, im = soff(n * 1024)
        elif A.krot:
            sr_ = "s14" if kind == "k" else "s15"
            so, im = sr_, 0
            if n: a("s_add_u32 %s, %s, 8192\ns_and_b32 %s, %s, 0x3ffff" % (sr_, sr_, sr_, sr_))
        elif A.pat == 3:
            so, im = "0", (n & 1) * 1024
            if n >> 1: a("s_mov_b32 s78, %d" % ((n >> 1) * 8192)); so = "s78"
        elif A.pat == 4:
            so, im = "0", (n & 3) * 1024
            if n >> 2: a("s_mov_b32 s78, %d" % ((n >> 2) * 16384)); so = "s78"
        else:
            so, im = "0", 0
            if n: a("s_mov_b32 s78, %d" % (n * (8192 if A.pat == 1 else 4096))); so = "s78"
        a("buffer_load_dwordx4 %s, v2, %s, %s offen offset:%d %s" % (t4(reg_of(e)), sr, so, im, A.kvmod))
    elif kind == "t":
        a("s_mov_b64 exec, 1")
        a("buffer_atomic_add v22, v21, s[48:51], s11 offen sc0 sc1")
        a("s_mov_b64 exec, -1")
    elif kind == "o":
        so, im = soff(n * 256)
        if A.oobo and n >= 3:
            a("s_mov_b32 s78, 0x7f000000"); so = "s78"
        a("buffer_load_dwordx4 %s, v4, s[40:43], %s offen offset:%d %s" % (t4(reg_of(e)), so, im, A.wmod))
    return True
def pump(upto):
    upto = min(upto, len(S) - 1, st["gate"] - 1)
    while st["issued"] <= upto:
        if not issue(S[st["issued"]]): break
        st["issued"] += 1
def ready(e):
    p = POS[e]
    st["maxpos"] = max(st["maxpos"], p)
    before = st["issued"]
    pump(st["maxpos"] + A.L)
    if st["issued"] == before:
        st["idle"] = st.get("idle", 0) + 1
        if A.minrate and st["idle"] >= A.minrate:
            pump(st["issued"]); st["idle"] = 0
    else:
        st["idle"] = 0
    assert st["issued"] > p, (e, st)
    n = st["issued"] - 1 - p
    assert n <= 63
    a("s_waitcnt vmcnt(%d)" % n)
def done(e):
    sl = slot.pop(e)
    if sl >= 32:
        lend.append(sl); lend.sort()
    else:
        free.append(sl)

a("s_cmp_ge_u32 s2, 256")
a("s_cbranch_scc1 L_end")
a("s_load_dwordx16 s[4:19], s[0:1], 0")
a("s_load_dwordx4 s[20:23], s[0:1], 64")
a("s_load_dwordx2 s[24:25], s[0:1], 80")
if A.stamp:
    a("s_memrealtime s[90:91]")
a("v_and_b32 v1, 63, v0")
a("v_lshrrev_b32 v44, 6, v0")
a("v_lshrrev_b32 v45, 4, v1")
a("v_and_b32 v46, 15, v0")
a("v_readfirstlane_b32 s26, v44")
a("s_lshr_b32 s76, s2, 5")
if A.map == 0:
    a("s_and_b32 s77, s2, 31")
elif A.map == 1:
    a("s_and_b32 s77, s2, 7\ns_lshl_b32 s77, s77, 2\ns_bfe_u32 s84, s2, 0x20003\ns_or_b32 s77, s77, s84")
elif A.map == 2:
    a("s_and_b32 s77, s2, 7\ns_lshl_b32 s77, s77, 1\ns_bfe_u32 s84, s2, 0x10003\ns_or_b32 s77, s77, s84\ns_and_b32 s84, s2, 16\ns_or_b32 s77, s77, s84")
a("s_lshl_b32 s3, s76, 5\ns_or_b32 s3, s3, s77")
if A.pat == 0:
    a("v_lshlrev_b32 v2, 15, v44")
    a("v_lshl_add_u32 v2, v1, 4, v2")
elif A.pat == 1:
    a("v_lshlrev_b32 v2, 4, v0")
else:
    a("v_lshrrev_b32 v2, 8, v0\nv_lshlrev_b32 v2, 17, v2\nv_lshl_add_u32 v2, v1, 4, v2\nv_and_b32 v3, 3, v44")
    a("v_lshl_add_u32 v2, v3, %d, v2" % {2: 10, 3: 11, 4: 12}[A.pat])
a("v_lshl_add_u32 v47, v44, 2, v45")
if A.rot:
    a("s_lshl_b32 s84, s76, 2")
    a("v_add_u32 v5, s84, v47")
    a("v_and_b32 v5, 31, v5")
a("v_mul_u32_u24 v4, 5120, %s" % ("v5" if A.rot >= 2 else "v47"))
if A.rot: a("v_mov_b32 v47, v5")
if A.qrow == 0:
    a("v_mul_u32_u24 v47, 20, v47")
elif A.qrow == 1:
    a("v_lshrrev_b32 v47, 2, v47\nv_mul_u32_u24 v47, 80, v47\nv_add_u32 v47, v47, v45")
a("v_lshlrev_b32 v3, 13, v47")
a("v_lshl_add_u32 v3, v46, 4, v3")
a("v_lshl_add_u32 v4, v46, 4, v4")
a("v_mul_u32_u24 v32, 20, v1")
QS = (0, 2, 5)[A.qrow]
a("v_lshlrev_b32 v33, %d, v46" % QS)
a("v_add_lshl_u32 v33, v47, v33, 1")
a("v_and_b32 v34, 3, v0")
a("v_lshlrev_b32 v34, %d, v34" % QS)
a("v_add_lshl_u32 v34, v47, v34, 1")
a("s_mul_i32 s84, s76, 1280")
a("s_lshl_b32 s85, s77, 8")
a("s_lshl_b32 s86, s3, 20")
a("s_add_u32 s86, s86, 786432")
a("s_mov_b32 s46, 10240\ns_mov_b32 s47, 0x20000")
a("s_sub_u32 s38, 5242880, s85\ns_mov_b32 s39, 0x20000")
a("s_mov_b32 s30, 262144\ns_mov_b32 s31, 0x20000")
for k in range(1, 8):
    a("s_movk_i32 s%d, %d" % (67 + k, 4096 * k))
a("s_waitcnt lgkmcnt(0)")
if A.stamp:
    a("s_mov_b32 s92, s90"); stamp_idx[0] = 1
    if A.st8 == "karg":
        a("s_memrealtime s[90:91]\ns_waitcnt lgkmcnt(0)\ns_mov_b32 s100, s90")
if A.krot == 1:
    a("s_mul_i32 s14, s2, 0x9e3779b1\ns_lshr_b32 s14, s14, 27\ns_lshl_b32 s14, s14, 13\ns_mov_b32 s15, s14")
elif A.krot == 2:
    a("s_and_b32 s14, s2, 31\ns_lshl_b32 s14, s14, 13\ns_mov_b32 s15, s14")
elif A.krot == 3:
    a("s_lshr_b32 s14, s2, 3\ns_lshl_b32 s14, s14, 13\ns_mov_b32 s15, s14")
if A.krot == 4:
    a("s_and_b32 s14, s2, 1\ns_lshl_b32 s14, s14, 17\ns_mov_b32 s15, s14")
elif A.krot == 5:
    a("s_lshr_b32 s14, s2, 5\ns_lshl_b32 s14, s14, 15\ns_mov_b32 s15, s14")
elif A.krot == 6:
    a("s_and_b32 s14, s2, 7\ns_lshl_b32 s14, s14, 15\ns_mov_b32 s15, s14")
elif A.krot == 7:
    a("s_brev_b32 s14, s2\ns_lshr_b32 s14, s14, 27\ns_lshl_b32 s14, s14, 13\ns_mov_b32 s15, s14")
elif A.krot == 8:
    a("s_lshr_b32 s14, s2, 5\ns_lshl_b32 s14, s14, 13\ns_mov_b32 s15, s14")
a("s_mov_b32 s44, s4\ns_mov_b32 s45, s5")
a("s_add_u32 s36, s10, s85\ns_addc_u32 s37, s11, 0")
a("s_add_u32 s28, s6, s86\ns_addc_u32 s29, s7, 0")
if A.touch:
    a("s_load_dword s89, s[28:29], 0")
    a("s_add_u32 s32, s8, s86\ns_addc_u32 s33, s9, 0")
    a("s_load_dword s88, s[32:33], 0")
a("s_cmp_ge_u32 s2, 8")
a("s_cbranch_scc1 L_noinit")
srd(48, 24, "66560")
a("s_lshl_b32 s87, s2, 12")
a("v_lshlrev_b32 v35, 3, v0")
a("v_mov_b32 v36, 0\nv_mov_b32 v37, 0\nv_mov_b32 v38, -1\nv_mov_b32 v39, -1")
a("buffer_store_dwordx2 v[36:37], v35, s[48:51], s87 offen sc0 sc1")
a("s_add_u32 s87, s87, %d" % WS_H1)
a("buffer_store_dwordx2 v[38:39], v35, s[48:51], s87 offen sc0 sc1")
if not A.static:
    a("s_lshl_b32 s87, s2, 7\ns_add_u32 s87, s87, 65536")
    a("v_and_b32 v35, 0x78, v35")
    a("buffer_store_dwordx2 v[36:37], v35, s[48:51], s87 offen sc0 sc1")
a("L_noinit:")
a("buffer_load_dwordx4 v[16:19], v32, s[44:47], s84 offen")
a("buffer_load_dword v20, v32, s[44:47], s84 offen offset:16")
a("buffer_load_ushort v22, v33, s[44:47], s84 offen")
a("buffer_load_ushort v23, v34, s[44:47], s84 offen offset:%d" % (32 << QS))
if A.qpf:
    srd(52, 10, "5242880")
    a("s_lshr_b32 s87, s2, 3\ns_mul_i32 s87, s87, %d" % (20 * 8192))
    a("s_and_b32 s88, s2, 7")
    a("v_lshrrev_b32 v35, 4, v0\nv_lshlrev_b32 v35, 13, v35")
    if A.map == 1:
        a("s_lshl_b32 s88, s88, 10\ns_add_u32 s87, s87, s88")
        a("v_lshl_add_u32 v35, v46, 6, v35")
    else:
        a("s_lshl_b32 s88, s88, 8\ns_add_u32 s87, s87, s88")
        a("v_and_b32 v36, 3, v0\nv_lshl_add_u32 v35, v36, 6, v35\nv_bfe_u32 v36, v0, 2, 2\nv_lshl_add_u32 v35, v36, 11, v35")
    a("s_cmp_ge_u32 s26, 4")
    a("s_cbranch_scc1 L_noqpf")
    a("buffer_load_dword v21, v35, s[52:55], s87 offen")
    a("s_cmp_lg_u32 s26, 0")
    a("s_cbranch_scc1 L_noqpf")
    a("s_add_u32 s87, s87, %d" % (16 * 8192))
    a("buffer_load_dword v21, v35, s[52:55], s87 offen")
    a("L_noqpf:")
st["gate"] = POS[("o", 0)]
pump(A.L)
n_first = st["issued"]
if A.codepf:
    a("s_getpc_b64 s[84:85]")
    a("L_pc:")
    a("s_sub_u32 s84, s84, L_pc-%s_kernel" % NAME)
    a("s_subb_u32 s85, s85, 0")
    a("v_lshlrev_b32 v35, 5, v0")
    a("v_min_u32 v35, L_end-%s_kernel, v35" % NAME)
    a("global_load_dword v5, v35, s[84:85]")
a("s_add_u32 s32, s8, s86\ns_addc_u32 s33, s9, 0\ns_mov_b32 s34, 262144\ns_mov_b32 s35, 0x20000")
a("s_mul_i32 s85, s77, 163840")
a("s_add_u32 s40, s12, s85\ns_addc_u32 s41, s13, 0\ns_mov_b32 s42, 163840\ns_mov_b32 s43, 0x20000")
srd(48, 24, "66560")
srd(56, 20, "10240")
a("s_add_u32 s60, s24, %d\ns_addc_u32 s61, s25, 0\ns_mov_b32 s62, 27648\ns_mov_b32 s63, 0x20000" % WS_H1)
srd(64, 22, "256")
a("s_mov_b32 s80, 0xcccccccc\ns_mov_b32 s81, 0xcccccccc\ns_mov_b32 s82, 0xaaaaaaaa\ns_mov_b32 s83, 0xaaaaaaaa")
a("v_and_b32 v35, 1, v0")
a("v_lshlrev_b32 v35, 4, v35")
a("v_mov_b32 v38, 0xffff")
a("v_lshlrev_b32 v38, v35, v38")
a("v_lshrrev_b32 v37, 1, v46")
for r in range(4):
    a("v_cmp_eq_u32 vcc, %d, v37" % r)
    a("v_cndmask_b32 v%d, 0, v38, vcc" % (6 + r))
a("v_lshlrev_b32 v47, 9, v44")
a("v_lshl_add_u32 v47, v46, 5, v47")
a("v_lshl_add_u32 v47, v45, 4, v47")
st["gate"] = len(S)

a("s_waitcnt vmcnt(%d)" % (n_first + (1 if A.codepf else 0)))
if A.stamp and A.st8 == "x":
    a("s_memrealtime s[90:91]\ns_waitcnt lgkmcnt(0)\ns_mov_b32 s100, s90")
for k in range(5):
    a("v_lshlrev_b32 v%d, 16, v%d" % (24 + 2 * k, 16 + k))
    a("v_and_b32 v%d, 0xffff0000, v%d" % (25 + 2 * k, 16 + k))
ln_stats(["v%d" % (24 + k) for k in range(10)], ["v34", "v35", "v37"], "v38", "v39")
for r in (22, 23):
    a("v_lshlrev_b32 v%d, 16, v%d" % (r, r))
    a("v_sub_f32 v%d, v%d, v38" % (r, r))
    a("v_cvt_pk_bf16_f32 v%d, v%d, v%d" % (r, r, r))
    a("v_lshlrev_b32 v%d, 16, v%d" % (r, r))
    a("v_mul_f32 v%d, v%d, v39" % (r, r))
    a("v_cvt_pk_bf16_f32 v%d, v%d, v%d" % (r, r, r))
for t in range(20):
    ab = 24 + 4 * (t & 1)
    selector(ab, "v22" if t < 16 else "v23", t & 15)
    e = ("q", t)
    ready(e)
    if A.stamp and A.st8 == "q%d" % t:
        a("s_memrealtime s[90:91]\ns_waitcnt lgkmcnt(0)\ns_mov_b32 s100, s90")
    a("v_mfma_f32_16x16x32_bf16 v[40:43], %s, %s, %s" % (t4(ab), t4(reg_of(e)), "0" if t == 0 else "v[40:43]"))
    done(e)
a("s_mov_b32 exec_hi, 0")
a("ds_write_b128 v47, v[40:43] offset:%d" % L_PART)
a("s_mov_b64 exec, -1")
a("v_lshlrev_b32 v25, 3, v1")
a("s_waitcnt lgkmcnt(0)")
a("s_barrier")
a("s_cmp_ge_u32 s2, 8")
a("s_cbranch_scc1 L_nosig")
a("s_cmp_lg_u32 s26, 0")
a("s_cbranch_scc1 L_nosig")
a("v_mov_b32 v26, 0\nv_mov_b32 v27, 1")
a("s_mov_b64 exec, 1")
a("buffer_atomic_add v27, v26, s[64:67], 0 offen sc1")
a("s_mov_b64 exec, -1")
a("L_nosig:")
if A.thr:
    a("s_cmp_lg_u32 s26, 0\ns_cbranch_scc1 L_norank")
    a("v_mov_b32 v26, 0\nv_mov_b32 v5, 1\ns_mov_b64 exec, 1")
    a("buffer_atomic_add v5, v26, s[64:67], 0 offen offset:128 sc0 sc1\ns_mov_b64 exec, -1")
    a("L_norank:")
    RANK_POS = st["issued"]
if A.diagnum:
    a("s_cmp_lg_u32 s26, 0\ns_cbranch_scc1 L_nodiag")
    a("s_getreg_b32 s84, hwreg(HW_REG_XCC_ID)\ns_sub_u32 s84, s84, s2\ns_and_b32 s84, s84, 7\ns_lshl_b32 s84, 1, s84")
    a("v_mov_b32 v26, 0\nv_mov_b32 v27, s84\ns_mov_b64 exec, 1")
    a("buffer_atomic_or v27, v26, s[64:67], 0 offen offset:32 sc1\ns_mov_b64 exec, -1")
    a("L_nodiag:")
for w in range(8):
    a("ds_read_b64 v[%d:%d], v25 offset:%d" % (28 + 2 * w, 29 + 2 * w, L_PART + 512 * w))
a("s_waitcnt lgkmcnt(0)")
for w in range(1, 8):
    a("v_add_f32 v28, v28, v%d" % (28 + 2 * w))
    a("v_add_f32 v29, v29, v%d" % (29 + 2 * w))
a("v_cvt_pk_bf16_f32 v28, v28, v29")
a("v_lshlrev_b32 v25, 2, v0")
a("ds_write_b32 v25, v28 offset:%d" % L_QD)
a("v_lshlrev_b32 v25, 8, v44")
a("v_lshl_add_u32 v25, v46, 4, v25")
a("s_waitcnt lgkmcnt(0)")
a("ds_read_b128 v[10:13], v25 offset:%d" % L_QD)
a("s_waitcnt lgkmcnt(0)")
stamp()

for _ in range(A.pad): a("s_nop 0")
def reduce_scatter(dst):
    for n in range(8):
        a("v_add_f32_dpp v%d, v%d, v%d row_mirror row_mask:0xf bank_mask:0x3" % (16 + n, 16 + n, 16 + n))
    for n in range(8):
        a("v_add_f32_dpp v%d, v%d, v%d row_mirror row_mask:0xf bank_mask:0xc" % (16 + n, 24 + n, 24 + n))
    for n in range(4):
        a("v_add_f32_dpp v%d, v%d, v%d row_half_mirror row_mask:0xf bank_mask:0x5" % (16 + n, 16 + n, 16 + n))
    for n in range(4):
        a("v_add_f32_dpp v%d, v%d, v%d row_half_mirror row_mask:0xf bank_mask:0xa" % (16 + n, 20 + n, 20 + n))
    for n in range(4):
        a("v_add_f32_dpp v%d, v%d, v%d quad_perm:[3,2,1,0] row_mask:0xf bank_mask:0xf" % (16 + n, 16 + n, 16 + n))
    a("v_cndmask_b32 v16, v16, v18, s[80:81]")
    a("v_cndmask_b32 v17, v17, v19, s[80:81]")
    a("v_add_f32_dpp v16, v16, v16 quad_perm:[1,0,3,2] row_mask:0xf bank_mask:0xf")
    a("v_add_f32_dpp v17, v17, v17 quad_perm:[1,0,3,2] row_mask:0xf bank_mask:0xf")
    a("v_cndmask_b32 %s, v16, v17, s[82:83]" % dst)

for n in range(32):
    e = ("k", n)
    ready(e)
    acc = 16 + (n & 15)
    for r in range(4):
        a("v_dot2_f32_bf16 v%d, v%d, v%d, %s" % (acc, reg_of(e) + r, 10 + r, "0" if r == 0 else "v%d" % acc))
    done(e)
    if n == 15: reduce_scatter("v14")
    if n == 31: reduce_scatter("v15")
stamp()

a("v_cvt_pk_bf16_f32 v16, v14, v15")
a("v_lshlrev_b32 v14, 16, v16")
a("v_and_b32 v15, 0xffff0000, v16")
a("v_mul_f32 v14, 0x3db504f3, v14")
a("v_mul_f32 v15, 0x3db504f3, v15")
a("v_cvt_pk_bf16_f32 v16, v14, v15")
a("v_lshlrev_b32 v14, 16, v16")
a("v_and_b32 v15, 0xffff0000, v16")
a("v_max_f32 v16, v14, v15")
wave_reduce("v16", "v_max_f32", "s84")
a("v_subrev_f32 v16, s84, v14")
a("v_subrev_f32 v17, s84, v15")
a("v_mul_f32 v16, 0x3fb8aa3b, v16")
a("v_mul_f32 v17, 0x3fb8aa3b, v17")
a("v_exp_f32 v16, v16")
a("v_exp_f32 v17, v17")
a("v_add_f32 v16, v16, v17")
wave_reduce("v16", "v_add_f32", "s85")
a("v_mov_b32 v16, s84")
a("v_mov_b32 v17, s85")
a("v_lshlrev_b32 v18, 3, v44")
a("s_mov_b64 exec, 1")
a("ds_write_b64 v18, v[16:17] offset:%d" % L_ST)
if A.thr:
    a("s_cmp_lg_u32 s26, 0\ns_cbranch_scc1 L_norank2")
    a("s_waitcnt vmcnt(%d)" % min(63, st["issued"] - RANK_POS))
    a("ds_write_b32 v18, v5 offset:%d" % (L_TK + 4))
    a("L_norank2:")
a("s_mov_b64 exec, -1")
a("v_and_b32 v18, 7, v0")
a("v_lshlrev_b32 v18, 3, v18")
a("s_waitcnt lgkmcnt(0)")
a("s_barrier")
a("ds_read_b64 v[16:17], v18 offset:%d" % L_ST)
if A.thr:
    a("v_mov_b32 v19, 0")
    a("ds_read_b32 v19, v19 offset:%d" % (L_TK + 4))
a("s_waitcnt lgkmcnt(0)")
if A.thr:
    a("v_readfirstlane_b32 s10, v19")
    a("s_min_u32 s10, s10, %d" % A.thr0)
    a("s_sub_u32 s10, %d, s10\ns_mul_i32 s10, s10, %d\ns_lshr_b32 s10, s10, 16" % (A.thr0, (A.thr << 16) // A.thr0))
a("v_mov_b32 v18, v16")
for m in ("quad_perm:[1,0,3,2]", "quad_perm:[2,3,0,1]", "row_half_mirror"):
    a("v_max_f32_dpp v18, v18, v18 %s row_mask:0xf bank_mask:0xf" % m)
a("v_sub_f32 v16, v16, v18")
a("v_mul_f32 v16, 0x3fb8aa3b, v16")
a("v_exp_f32 v16, v16")
a("v_mul_f32 v16, v16, v17")
for m in ("quad_perm:[1,0,3,2]", "quad_perm:[2,3,0,1]", "row_half_mirror"):
    a("v_add_f32_dpp v16, v16, v16 %s row_mask:0xf bank_mask:0xf" % m)
a("v_rcp_f32 v16, v16")
a("v_sub_f32 v14, v14, v18")
a("v_sub_f32 v15, v15, v18")
a("v_mul_f32 v14, 0x3fb8aa3b, v14")
a("v_mul_f32 v15, 0x3fb8aa3b, v15")
a("v_exp_f32 v14, v14")
a("v_exp_f32 v15, v15")
a("v_mul_f32 v14, v14, v16")
a("v_mul_f32 v15, v15, v16")
a("v_cvt_pk_bf16_f32 v14, v14, v14")
a("v_cvt_pk_bf16_f32 v15, v15, v15")
stamp()

def pv(n):
    ab = 32 + 4 * (n & 1)
    selector(ab, "v14" if n < 16 else "v15", n & 15)
    e = ("v", n)
    if A.sthr and A.sthr[0] <= n < A.sthr[1]:
        a("s_cmp_eq_u32 s10, 1\ns_cbranch_scc1 L_nt%d\ns_waitcnt vmcnt(%d)\nL_nt%d:" % (n, A.thrT, n))
    if A.thr and n < A.thr:
        a("s_cmp_le_u32 s10, %d\ns_cbranch_scc1 L_nt%d\ns_waitcnt vmcnt(%d)\nL_nt%d:" % (n, n, A.thrT, n))
    ready(e)
    a("v_mfma_f32_16x16x32_bf16 v[40:43], %s, %s, %s" % (t4(ab), t4(reg_of(e)), "0" if n == 0 else "v[40:43]"))
    done(e)

def dma(n, vregs, step):
    for t in range(n):
        a("s_mov_b32 m0, s3")
        a("buffer_load_dwordx4 %s, s[52:55], s13 offen %s lds" % (vregs[t % len(vregs)], A.dmod))
        if t < n - 1:
            a("s_add_u32 s3, s3, 1024")
            a("s_add_u32 s13, s13, %d" % step)

a("v_lshrrev_b32 v16, 2, v46")
a("v_lshlrev_b32 v16, 10, v16")
if A.rot >= 2:
    a("v_add_u32 v17, s76, v44")
    a("v_and_b32 v17, 7, v17")
    a("v_lshl_add_u32 v16, v17, 6, v16")
else:
    a("v_lshl_add_u32 v16, v44, 6, v16")
a("v_lshl_add_u32 v16, v45, 4, v16")
a("v_and_b32 v17, 3, v0")
a("v_lshl_add_u32 v16, v17, 2, v16")
a("v_mul_u32_u24 v18, 2560, v44")
a("v_lshl_add_u32 v18, v46, 5, v18")
a("v_lshl_add_u32 v18, v45, 4, v18")
a("v_bfe_u32 v19, v0, 2, 6")
a("v_mul_u32_u24 v19, 5, v19")
a("v_lshrrev_b32 v20, 8, v0")
a("v_mul_u32_u24 v20, 3, v20")
a("v_add3_u32 v19, v19, v20, v17")
a("v_lshlrev_b32 v19, 3, v19")
a("v_lshlrev_b32 v20, 2, v0")
a("v_mov_b32 v21, 0\nv_mov_b32 v22, 1")
a("s_and_b32 s77, s2, 7\ns_lshl_b32 s75, s77, 7\ns_add_u32 s75, s75, 65536")
a("s_mov_b32 s86, 0x88888888\ns_mov_b32 s87, 0x88888888")
if A.op2:
    for r in range(4):
        a("v_mov_b32_dpp v%d, v%d row_ror:8 row_mask:0xf bank_mask:0xf" % (27 + r, 6 + r))
    if A.lin:
        a("v_mul_u32_u24 v31, %d, v44" % YSTR)
        a("v_lshl_add_u32 v31, v1, 4, v31")
        a("v_and_b32 v11, 0xe0c, v19")
        a("v_bfe_u32 v10, v19, 4, 1")
        a("v_lshl_add_u32 v11, v10, 8, v11")
        a("v_bfe_u32 v10, v19, 5, 4")
        a("v_lshl_add_u32 v19, v10, 4, v11")
    else:
        a("v_mul_u32_u24 v31, 2560, v44")
        a("v_lshrrev_b32 v11, 1, v45")
        a("v_lshl_add_u32 v31, v11, 9, v31")
        a("v_lshl_add_u32 v31, v46, 5, v31")
        a("v_and_b32 v11, 1, v45")
        a("v_lshl_add_u32 v31, v11, 4, v31")
a("v_mul_u32_u24 v5, 80, v44")
a("v_lshrrev_b32 v11, 3, v1")
a("v_add_u32 v5, v5, v11")
a("v_mul_u32_u24 v5, 3456, v5")
a("v_and_b32 v11, 2, v11")
a("v_and_b32 v10, 7, v0")
a("v_xor_b32 v11, v10, v11")
a("v_lshl_add_u32 v25, v11, 4, v5")
a("v_xor_b32 v11, 4, v11")
a("v_lshl_add_u32 v26, v11, 4, v5")
a("s_mul_i32 s3, s26, 10240")
a("s_add_u32 s3, s3, %d" % L_W)
if A.pf:
    a("s_lshr_b32 s84, s2, 3")
    a("s_cmp_ge_u32 s26, 4")
    a("s_cselect_b32 s52, s18, s16\ns_cselect_b32 s53, s19, s17")
    a("s_mov_b32 s54, 2211840\ns_mov_b32 s55, 0x20000")
    a("v_mov_b32 v12, 0x7fffff00")
    a("s_cbranch_scc1 L_pf2")
    a("s_and_b32 s85, s84, 7\ns_mul_i32 s85, s85, 80")
    a("v_lshrrev_b32 v23, 1, v0")
    a("v_add_u32 v23, s85, v23")
    a("v_mul_u32_u24 v23, 3456, v23")
    a("v_and_b32 v13, 1, v0")
    a("v_lshl_add_u32 v23, v13, 6, v23")
    a("s_and_b32 s85, s84, 0x18\ns_add_u32 s85, s85, s77")
    a("s_cmp_lt_u32 s85, 27")
    a("s_cselect_b32 s84, 160, 0")
    a("s_lshl_b32 s85, s85, 7")
    a("v_add_u32 v23, s85, v23")
    a("v_cmp_gt_u32 vcc, s84, v0")
    a("v_cndmask_b32 v23, v12, v23, vcc")
    a("s_branch L_pfdone")
    a("L_pf2:")
    a("s_mul_i32 s84, s84, 54")
    a("v_bfe_u32 v23, v0, 2, 6")
    a("v_add_u32 v23, s84, v23")
    a("v_mul_u32_u24 v23, 1280, v23")
    a("v_lshl_add_u32 v23, v17, 6, v23")
    a("s_mul_i32 s85, s77, 160\ns_and_b32 s85, s85, 0xff80")
    a("v_add_u32 v23, s85, v23")
    a("v_cmp_gt_u32 vcc, %d, v0" % (256 + 216))
    a("v_cndmask_b32 v23, v12, v23, vcc")
    a("L_pfdone:")

if A.codepf2:
    a("s_getpc_b64 s[84:85]")
    a("L_pc2:")
    a("v_lshlrev_b32 v12, 4, v0")
    a("v_add_u32 v12, 1792, v12")
    a("v_min_u32 v12, L_end-L_pc2, v12")
    a("global_load_dword v13, v12, s[84:85]")
if A.sthr:
    a("s_bfe_u32 s10, s36, 0x20008")
if A.LV: A.L = A.LV
if A.tk2:
    st["gate"] = POS[("t", 0)]
    a("s_cmp_eq_u32 s26, %d\ns_cselect_b32 s11, s75, 0x7ffff000" % A.tkwave)
for n in range(32):
    pv(n)
    if A.pf >= 10 and n == A.pf - 10:
        a("buffer_load_dword v24, v23, s[52:55], 0 offen %s" % A.pfmod)
    if n == A.tkpos - 4: a("s_load_dword s89, s[22:23], 0")
    if n == A.tkpos:
        a("s_waitcnt lgkmcnt(0)")
        a("s_cmp_ge_u32 s89, 8")
        a("s_cbranch_scc0 L_initslow")
        a("L_initok:")
        if A.tk2:
            st["gate"] = len(S)
            continue
        if A.static:
            a("s_lshr_b32 s79, s2, 3\ns_xor_b32 s79, s79, 16")
            continue
        a("s_cmp_lg_u32 s26, %d" % A.tkwave)
        a("s_cbranch_scc1 L_notk")
        a("s_mov_b64 exec, 1")
        if A.static:
            a("s_lshr_b32 s84, s2, 3\ns_xor_b32 s84, s84, 16\nv_mov_b32 v22, s84")
        else:
            a("buffer_atomic_add v22, v21, s[48:51], s75 offen sc0 sc1")
        a("s_mov_b64 exec, -1")
        a("L_notk:")
assert st["issued"] == len(S)
stamp()
fine()
if A.pf == 2:
    a("buffer_load_dword v24, v23, s[52:55], 0 offen %s" % A.pfmod)
a("s_mov_b32 exec_hi, 0")
a("ds_write_b128 v47, v[40:43] offset:%d" % L_PART)
if not (A.tk2 or A.static):
    a("s_cmp_lg_u32 s26, %d" % A.tkwave)
    a("s_cbranch_scc1 L_notk2")
    a("s_waitcnt vmcnt(0)")
    a("s_mov_b64 exec, 1")
    a("ds_write_b32 v21, v22 offset:%d" % L_TK)
    a("L_notk2:")
a("s_mov_b64 exec, -1")
a("s_waitcnt lgkmcnt(0)")
a("s_barrier")
fine()
a("ds_read2st64_b32 v[10:11], v16 offset0:%d offset1:%d" % (L_PART // 256, L_PART // 256 + 2))
if A.pf == 1:
    a("buffer_load_dword v24, v23, s[52:55], 0 offen %s" % A.pfmod)
if not (A.tk2 or A.static): a("ds_read_b32 v12, v21 offset:%d" % L_TK)
a("s_waitcnt lgkmcnt(0)")
a("v_add_f32 v10, v10, v11")
if not (A.tk2 or A.static): a("v_readfirstlane_b32 s79, v12")
if A.edma:
    a("s_lshl_b32 s84, s79, 3\ns_add_u32 s84, s84, s77\ns_sub_u32 s84, s84, %d" % FFN2_N)
    a("s_min_u32 s85, s79, 9\ns_cmp_lt_u32 s85, 9\ns_cselect_b32 s84, s84, 99")
    a("s_cmp_ge_u32 s84, %d" % FFN1_N)
    a("s_cbranch_scc1 L_noedma")
    a("s_mov_b32 s52, s16\ns_mov_b32 s53, s17\ns_mov_b32 s54, 2211840\ns_mov_b32 s55, 0x20000")
    a("s_lshl_b32 s13, s84, 7")
    dma(10, ["v25", "v26"], 27648)
    a("L_noedma:")
a("v_add_f32_dpp v10, v10, v10 row_ror:4 row_mask:0xf bank_mask:0xf")
a("v_add_f32_dpp v10, v10, v10 row_ror:8 row_mask:0xf bank_mask:0xf")
a("v_cvt_pk_bf16_f32 v10, v10, v10")
fine()
YA = 128
if A.op3:
    def wr3(cb):
        a("s_mov_b32 exec_hi, 0")
        a("ds_write_b128 v18, %s offset:%d" % (t4(YA + 4 * cb), L_YP + 512 * cb))
        a("s_mov_b32 exec_hi, -1")
    selector(48, "v10", 0)
    selector(52, "v10", 1)
    for cb in range(5):
        for r4 in range(4):
            acc = t4(YA + 4 * cb)
            a("v_mfma_f32_16x16x32_bf16 %s, %s, %s, %s" % (acc, t4(48 + 4 * r4), t4(WO + 4 * (5 * r4 + cb)), "0" if r4 == 0 else acc))
            if cb == 0 and r4 < 2: selector(56 + 4 * r4, "v10", r4 + 2)
        if cb >= 2: wr3(cb - 2)
    wr3(3); wr3(4)
elif A.op2:
    def sel2(r4, hi):
        for r in range(4):
            a("v_and_b32_dpp v%d, v10, v%d row_newbcast:%d row_mask:0xf bank_mask:0xf" % (48 + 8 * r4 + 4 * hi + r, (27 if hi else 6) + r, r4))
    def mm(acc, r4, hi, cb, first):
        a("v_mfma_f32_16x16x32_bf16 %s, %s, %s, %s" % (t4(acc), t4(48 + 8 * r4 + 4 * hi), t4(WO + 4 * (5 * r4 + cb)), "0" if first else t4(acc)))
    if A.op4:
        def and1(r4, hi, r):
            a("v_and_b32_dpp v%d, v10, v%d row_newbcast:%d row_mask:0xf bank_mask:0xf" % (48 + 8 * r4 + 4 * hi + r, (27 if hi else 6) + r, r4))
        if A.op4 == 2: a("s_setprio 1")
        sel2(0, 0); sel2(0, 1)
        for r4 in range(4):
            nxt = [(r4 + 1, hi, r) for hi in range(2) for r in range(4)] if r4 < 3 else []
            for k, (acc, hi, cb) in enumerate([(YA, 0, 0), (YA + 4, 0, 2), (YA + 8, 0, 4), (YA, 1, 1), (YA + 4, 1, 3)]):
                mm(acc, r4, hi, cb, r4 == 0 and hi == 0)
                for x in nxt[2 * k:2 * k + 2]: and1(*x)
        if A.op4 == 2: a("s_setprio 0")
        a("s_mov_b32 exec_hi, 0")
        a("ds_write_b128 v31, %s offset:%d" % (t4(YA + 8), L_YP + 2048))
        a("s_mov_b64 exec, -1")
        a("ds_write_b128 v31, %s offset:%d" % (t4(YA), L_YP))
        a("ds_write_b128 v31, %s offset:%d" % (t4(YA + 4), L_YP + 1024))
    else:
        sel2(0, 0); sel2(0, 1)
        for r4 in range(4):
            mm(YA, r4, 0, 0, r4 == 0)
            if r4 < 3: sel2(r4 + 1, 0)
            mm(YA, r4, 1, 1, False)
            if r4 < 3: sel2(r4 + 1, 1)
        for r4 in range(4):
            mm(YA + 4, r4, 0, 2, r4 == 0)
            mm(YA + 4, r4, 1, 3, False)
        a("ds_write_b128 v31, %s offset:%d" % (t4(YA), L_YP))
        for r4 in range(4):
            mm(YA + 8, r4, 0, 4, r4 == 0)
        a("ds_write_b128 v31, %s offset:%d" % (t4(YA + 4), L_YP + 1024))
    if not A.op4:
        a("s_mov_b32 exec_hi, 0")
        a("ds_write_b128 v31, %s offset:%d" % (t4(YA + 8), L_YP + 2048))
        a("s_mov_b64 exec, -1")
else:
    for r4 in range(4):
        ab = 32 + 4 * (r4 & 1)
        selector(ab, "v10", r4)
        for cb in range(5):
            acc = t4(YA + 4 * cb)
            a("v_mfma_f32_16x16x32_bf16 %s, %s, %s, %s" % (acc, t4(ab), t4(WO + 4 * (5 * r4 + cb)), "0" if r4 == 0 else acc))
    a("s_mov_b32 exec_hi, 0")
    for cb in range(5):
        a("ds_write_b128 v18, %s offset:%d" % (t4(YA + 4 * cb), L_YP + 512 * cb))
    a("s_mov_b64 exec, -1")
if A.pf == 3:
    a("buffer_load_dword v24, v23, s[52:55], 0 offen %s" % A.pfmod)
fine()
a("s_lshl_b32 s84, s76, 12")
a("s_waitcnt lgkmcnt(0)")
fine()
if A.fine: a("s_waitcnt lgkmcnt(0)")
a("s_barrier")
fine()
if A.fine: a("s_waitcnt lgkmcnt(0)")
YS = 148
for w in range(8):
    a("ds_read_b64 v[%d:%d], v19 offset:%d" % (YS + 2 * w, YS + 2 * w + 1, L_YP + YSTR * w))
for s_ in (4, 2, 1):
    for w in range(s_):
        if s_ == 4: a("s_waitcnt lgkmcnt(%d)" % (3 - w))
        a("v_pk_add_f32 v[%d:%d], v[%d:%d], v[%d:%d]" % (YS + 2 * w, YS + 2 * w + 1, YS + 2 * w, YS + 2 * w + 1, YS + 2 * (w + s_), YS + 2 * (w + s_) + 1))
a("v_cndmask_b32 v10, v%d, 1.0, s[86:87]" % YS)
a("v_cndmask_b32 v11, v%d, 1.0, s[86:87]" % (YS + 1))
a("buffer_atomic_add_f32 v10, v20, s[48:51], s84 offen")
a("buffer_atomic_add_f32 v11, v20, s[48:51], s84 offen offset:2048")
if A.pf == 4:
    a("buffer_load_dword v24, v23, s[52:55], 0 offen %s" % A.pfmod)
fine()
stamp()
if A.fine:
    for k, sl in enumerate((93, 94, 95, 98, 99, 100)):
        a("s_sub_u32 s%d, s%d, s%d" % (sl, FINE[k + 1], FINE[k]))
    a("s_mov_b32 s27, 99\ns_branch L_fin")
a("s_mov_b32 s27, 99")
if A.tk2:
    a("s_cmp_lg_u32 s26, %d" % A.tkwave)
    a("s_cbranch_scc1 L_notk2")
    a("s_waitcnt vmcnt(%d)" % (3 if A.pf in (1, 2, 3, 4) else 2))
    a("s_mov_b64 exec, 1")
    a("ds_write_b32 v21, v22 offset:%d" % L_TK)
    a("s_mov_b64 exec, -1")
    a("s_waitcnt lgkmcnt(0)")
    a("L_notk2:")
    a("s_barrier")
    a("ds_read_b32 v12, v21 offset:%d" % L_TK)
    a("s_waitcnt lgkmcnt(0)")
    a("v_readfirstlane_b32 s79, v12")
    a("s_cmp_ge_u32 s79, 9")
    a("s_cbranch_scc1 L_fin")
else:
    a("s_cmp_ge_u32 s79, 9")
    a("s_cbranch_scc1 L_fin")
    a("s_barrier")
a("s_mov_b32 s54, 2211840\ns_mov_b32 s55, 0x20000")
a("s_mov_b32 s85, 0x42000000")
a("s_mov_b32 s88, 0")
a("v_and_b32 v10, 7, v0")
a("s_mul_i32 s27, s77, 5\ns_add_u32 s27, s27, s79")
a("s_cmp_lt_u32 s79, 5")
a("s_cbranch_scc1 L_ffn2")
a("s_lshl_b32 s27, s79, 3\ns_add_u32 s27, s27, s77")
a("s_cmp_ge_u32 s27, %d" % (FFN2_N + FFN1_N))
a("s_cbranch_scc1 L_fin")

AF = 48; BF = 128; XF = 208; GR = 220
a("s_sub_u32 s79, s27, %d" % FFN2_N)
a("s_mov_b32 s52, s16\ns_mov_b32 s53, s17")
a("s_lshl_b32 s13, s79, 7")
if not A.edma:
    dma(10, ["v25", "v26"], 27648)
a("v_mul_u32_u24 v23, 20, v1")
a("v_mul_u32_u24 v21, 1280, v44")
a("v_add_u32 v21, v21, v23")
XR = 248
a("buffer_load_dwordx4 v[%d:%d], v21, s[44:47], 0 offen" % (XR, XR + 3))
a("buffer_load_dword v%d, v21, s[44:47], 0 offen offset:16" % (XR + 4))
a("v_lshlrev_b32 v22, 12, v44")
a("v_lshl_add_u32 v22, v1, 4, v22")
def poll1_issue():
    for m in range(4):
        a("buffer_load_dwordx4 %s, v22, s[48:51], 0 offen offset:%d %s" % (t4(GR + 4 * m), 1024 * m, A.pmod))
if not A.nopre: poll1_issue()
a("v_mul_u32_u24 v11, %d, v44" % HN_STRIDE)
a("v_add_u32 v23, v23, v11")
a("v_add_u32 v35, %d, v23" % L_HN)
a("v_mul_u32_u24 v29, %d, v10" % HN_STRIDE)
a("v_lshl_add_u32 v29, v45, 4, v29")
a("v_lshlrev_b32 v30, 4, v10")
a("v_lshl_add_u32 v30, v44, 8, v30")
a("v_lshrrev_b32 v11, 1, v45")
a("v_lshl_add_u32 v30, v11, 7, v30")
a("v_and_b32 v11, 1, v45")
a("v_lshl_add_u32 v30, v11, 3, v30")
a("v_lshrrev_b32 v12, 2, v46")
a("v_lshl_add_u32 v12, v45, 3, v12")
a("v_lshlrev_b32 v12, 7, v12")
a("v_lshrrev_b32 v13, 3, v46")
a("v_lshl_add_u32 v13, v11, 1, v13")
a("v_and_b32 v11, 3, v44")
a("v_xor_b32 v11, v11, v13")
a("v_lshl_add_u32 v12, v11, 5, v12")
a("v_lshl_add_u32 v12, v17, 3, v12")
a("v_add_u32 v12, %d, v12" % L_W)
a("v_add_u32 v13, 40960, v12")
if A.warm1:
    a("s_mov_b32 s78, 0")
    a("s_branch L_f1_body")
    a("L_f1_resume:")
a("s_waitcnt vmcnt(%d)" % ((0 if A.nopre else 4) + (4 if A.edma else 0)))
if A.stamp and A.st8 == "dma":
    a("s_memrealtime s[90:91]\ns_waitcnt lgkmcnt(0)\ns_mov_b32 s100, s90")
a("s_barrier")
a("s_cmp_ge_u32 s26, 4")
a("s_cbranch_scc1 L_notr")
for ks in range(20):
    base, off = ("v12", ks * 4096) if ks < 10 else ("v13", (ks - 10) * 4096)
    a("ds_read_b64_tr_b16 v[%d:%d], %s offset:%d" % (AF + 4 * ks, AF + 4 * ks + 1, base, off))
    a("ds_read_b64_tr_b16 v[%d:%d], %s offset:%d" % (AF + 4 * ks + 2, AF + 4 * ks + 3, base, off + 512))
a("L_notr:")
if A.nopre and not A.light: poll1_issue()
if A.light: a("v_mov_b32 v%d, 0" % (GR + 3))
if A.edma: a("s_waitcnt vmcnt(4)")
for k in range(5):
    a("v_lshlrev_b32 v%d, 16, v%d" % (XF + 2 * k, XR + k))
    a("v_and_b32 v%d, 0xffff0000, v%d" % (XF + 2 * k + 1, XR + k))
if A.light:
    import struct as _st
    a("s_mov_b32 s84, 0x%08x" % _st.unpack("<I", _st.pack("<f", float(A.light)))[0])
    a("s_waitcnt vmcnt(0)")
    a("s_mov_b32 s78, 1")
    a("s_mov_b64 exec, 1")
    a("L_light:")
    a("v_cmp_gt_f32 vcc, s84, v%d" % (GR + 3))
    a("s_add_u32 s88, s88, 1")
    a("s_cmp_gt_u32 s88, %d" % SPIN_MAX)
    a("s_cbranch_scc1 L_light_done")
    a("s_cbranch_vccz L_light_done")
    if A.sleep: a("s_sleep %d" % A.sleep)
    a("buffer_load_dword v%d, v22, s[48:51], 0 offen offset:12 %s" % (GR + 3, A.pmod))
    a("s_waitcnt vmcnt(0)")
    a("s_branch L_light")
    a("L_light_done:")
    a("s_mov_b64 exec, -1")
elif A.warm:
    a("s_mov_b32 s78, 0")
    a("s_waitcnt vmcnt(0)")
    a("s_branch L_f1_body")
else:
    a("s_mov_b32 s78, 1")
    a("s_branch L_poll1_chk")
if A.D1:
    sets = [GR] + [BF + 16 * k for k in range(A.D1 - 1)]
    def p1(g):
        for m in range(4):
            a("buffer_load_dwordx4 %s, v22, s[48:51], 0 offen offset:%d %s" % (t4(g + 4 * m), 1024 * m, A.pmod))
    a("L_poll1_chk:")
    for g in sets[1:]:
        if A.pace: a("s_sleep %d" % A.pace)
        p1(g)
    a("L_poll1:")
    for k, g in enumerate(sets):
        a("s_waitcnt vmcnt(%d)" % (4 * (A.D1 - 1)))
        a("v_min_f32 v31, v%d, v%d" % (g + 3, g + 7))
        a("v_min3_f32 v31, v31, v%d, v%d" % (g + 11, g + 15))
        a("v_cmp_ne_u32 vcc, s85, v31")
        a("s_cbranch_vccz L_p1x%d" % k)
        if A.pace: a("s_sleep %d" % A.pace)
        p1(g)
    a("s_add_u32 s88, s88, 1")
    a("s_cmp_gt_u32 s88, %d" % SPIN_MAX)
    a("s_cbranch_scc0 L_poll1")
    for k, g in reversed(list(enumerate(sets))):
        a("L_p1x%d:" % k)
        for q, (x, y) in enumerate([(0, 8), (1, 9), (2, 10), (4, 12), (5, 13)]):
            a("v_cvt_pk_bf16_f32 v%d, v%d, v%d" % (24 + q, g + x, g + y))
        if k: a("s_branch L_p1done")
    a("L_p1done:")
    stamp()
    XH = 238
    GR = 10
else:
    a("L_poll1:")
    poll1_issue()
    a("L_poll1_chk:")
    a("s_add_u32 s88, s88, 1")
    a("s_waitcnt vmcnt(0)")
    a("v_min_f32 v31, v%d, v%d" % (GR + 3, GR + 7))
    a("v_min3_f32 v31, v31, v%d, v%d" % (GR + 11, GR + 15))
    a("v_cmp_ne_u32 vcc, s85, v31")
    a("s_cmp_gt_u32 s88, %d" % SPIN_MAX)
    a("s_cbranch_scc1 L_poll1_done")
    a("s_cbranch_vccnz L_poll1")
    a("L_poll1_done:")
    stamp()
    a("L_f1_body:")
    XH = 238
    pairs = [(GR + 0, GR + 8), (GR + 1, GR + 9), (GR + 2, GR + 10), (GR + 4, GR + 12), (GR + 5, GR + 13)]
    for k in range(5):
        a("v_cvt_pk_bf16_f32 v%d, v%d, v%d" % (24 + k, pairs[k][0], pairs[k][1]))
if A.ln1:
    def pk(op, d, x, y, extra=""):
        a("%s v[%d:%d], v[%d:%d], v[%d:%d]%s" % (op, d, d + 1, x, x + 1, y, y + 1, extra))
    def unpack(d, src):
        a("v_lshlrev_b32 v%d, 16, v%d" % (d, src)); a("v_and_b32 v%d, 0xffff0000, v%d" % (d + 1, src))
    for k in range(5): unpack(GR + 2 * k, 24 + k)
    for k in range(5): pk("v_pk_add_f32", GR + 2 * k, GR + 2 * k, XF + 2 * k)
    for k in range(5): a("v_cvt_pk_bf16_f32 v%d, v%d, v%d" % (24 + k, GR + 2 * k, GR + 2 * k + 1))
    a("s_mov_b32 s12, 0x3f803f80")
    for k in range(5):
        a("v_dot2_f32_bf16 v32, v%d, s12, %s" % (24 + k, "0" if k == 0 else "v32"))
        a("v_dot2_f32_bf16 v33, v%d, v%d, %s" % (24 + k, 24 + k, "0" if k == 0 else "v33"))
    fill = [("v_lshlrev_b32 v%d, 16, v%d" % (XH + 2 * k, 24 + k), "v_and_b32 v%d, 0xffff0000, v%d" % (XH + 2 * k + 1, 24 + k)) for k in range(5)]
    fill = [x for pr in fill for x in pr]
    a(fill.pop(0)); a(fill.pop(0)); a(fill.pop(0))
    for m in ("quad_perm:[1,0,3,2] row_mask:0xf", "quad_perm:[2,3,0,1] row_mask:0xf", "row_half_mirror row_mask:0xf",
              "row_mirror row_mask:0xf", "row_bcast:15 row_mask:0xa", "row_bcast:31 row_mask:0xc"):
        a("v_add_f32_dpp v32, v32, v32 %s bank_mask:0xf" % m)
        a("v_add_f32_dpp v33, v33, v33 %s bank_mask:0xf" % m)
        a(fill.pop(0))
    a("v_readlane_b32 s84, v32, 63")
    a("v_readlane_b32 s12, v33, 63")
    a(fill.pop(0))
    a("v_mov_b32 v33, 0x3acccccd")
    a("v_mul_f32 v38, s84, v33")
    a("v_mul_f32 v32, s12, v33")
    a("v_fma_f32 v32, -v38, v38, v32")
    a("v_max_f32 v32, 0, v32")
    a("v_cvt_pk_bf16_f32 v32, v32, v38")
    a("v_and_b32 v38, 0xffff0000, v32")
    a("v_lshlrev_b32 v32, 16, v32")
    a("v_add_f32 v32, 0x3727c5ac, v32")
    a("v_mov_b32 v39, v38")
    a("v_cvt_pk_bf16_f32 v32, v32, v32")
    for k in range(2): pk("v_pk_add_f32", XH + 2 * k, XH + 2 * k, 38, " neg_lo:[0,1] neg_hi:[0,1]")
    a("v_lshlrev_b32 v32, 16, v32")
    a("v_sqrt_f32 v32, v32")
    for k in range(2, 5): pk("v_pk_add_f32", XH + 2 * k, XH + 2 * k, 38, " neg_lo:[0,1] neg_hi:[0,1]")
    a("v_cvt_pk_bf16_f32 v32, v32, v32")
    for k in range(5): a("v_cvt_pk_bf16_f32 v%d, v%d, v%d" % (24 + k, XH + 2 * k, XH + 2 * k + 1))
    a("v_lshlrev_b32 v32, 16, v32")
    a("v_rcp_f32 v36, v32")
    for k in range(5): unpack(XH + 2 * k, 24 + k)
    a("v_mov_b32 v37, v36")
    for k in range(5): pk("v_pk_mul_f32", XH + 2 * k, XH + 2 * k, 36)
    for k in range(5): a("v_cvt_pk_bf16_f32 v%d, v%d, v%d" % (24 + k, XH + 2 * k, XH + 2 * k + 1))
    a("v_add_u32 v23, %d, v23" % L_HN) if False else None
    a("ds_write2_b32 v35, v24, v25 offset0:0 offset1:1")
    a("ds_write2_b32 v35, v26, v27 offset0:2 offset1:3")
    a("ds_write_b32 v35, v28 offset:16")
else:
    for k in range(5):
        a("v_lshlrev_b32 v%d, 16, v%d" % (GR + 2 * k, 24 + k))
        a("v_and_b32 v%d, 0xffff0000, v%d" % (GR + 2 * k + 1, 24 + k))
    for k in range(10):
        a("v_add_f32 v%d, v%d, v%d" % (GR + k, GR + k, XF + k))
    for k in range(5):
        a("v_cvt_pk_bf16_f32 v%d, v%d, v%d" % (24 + k, GR + 2 * k, GR + 2 * k + 1))
    for k in range(5):
        a("v_lshlrev_b32 v%d, 16, v%d" % (XH + 2 * k, 24 + k))
        a("v_and_b32 v%d, 0xffff0000, v%d" % (XH + 2 * k + 1, 24 + k))
    ln_stats(["v%d" % (XH + k) for k in range(10)], ["v31", "v32", "v33"], "v38", "v39")
    for k in range(10):
        a("v_sub_f32 v%d, v%d, v38" % (XH + k, XH + k))
    for k in range(5):
        a("v_cvt_pk_bf16_f32 v%d, v%d, v%d" % (24 + k, XH + 2 * k, XH + 2 * k + 1))
    for k in range(5):
        a("v_lshlrev_b32 v%d, 16, v%d" % (XH + 2 * k, 24 + k))
        a("v_and_b32 v%d, 0xffff0000, v%d" % (XH + 2 * k + 1, 24 + k))
    for k in range(10):
        a("v_mul_f32 v%d, v%d, v39" % (XH + k, XH + k))
    for k in range(5):
        a("v_cvt_pk_bf16_f32 v%d, v%d, v%d" % (24 + k, XH + 2 * k, XH + 2 * k + 1))
        a("ds_write_b32 v23, v%d offset:%d" % (24 + k, L_HN + 4 * k))
a("s_waitcnt lgkmcnt(0)")
a("s_barrier")
if A.stamp and A.st8 == "hn":
    a("s_memrealtime s[90:91]\ns_waitcnt lgkmcnt(0)\ns_mov_b32 s100, s90")
a("s_cmp_ge_u32 s26, 4")
a("s_cbranch_scc1 L_f1_skip")
if A.D1: a("s_waitcnt vmcnt(0)")
GR = 220
for ks in range(20):
    a("ds_read_b128 %s, v29 offset:%d" % (t4(BF + 4 * ks), L_HN + 64 * ks))
for ks in range(20):
    a("s_waitcnt lgkmcnt(%d)" % min(15, 19 - ks))
    a("v_mfma_f32_16x16x32_bf16 v[40:43], %s, %s, %s" % (t4(AF + 4 * ks), t4(BF + 4 * ks), "0" if ks == 0 else "v[40:43]"))
a("s_lshl_b32 s84, s79, 10")
a("s_mov_b32 exec_lo, 0x00ff00ff\ns_mov_b32 exec_hi, 0x00ff00ff")
for r in range(4):
    a("v_max_f32 v%d, 0, v%d" % (40 + r, 40 + r))
a("v_cvt_pk_bf16_f32 v40, v40, v41")
a("v_cvt_pk_bf16_f32 v41, v42, v43")
a("s_cmp_eq_u32 s78, 0")
a("s_cbranch_scc1 L_f1_nost")
a("buffer_store_dwordx2 v[40:41], v30, s[60:63], s84 offen %s" % A.pmod)
a("L_f1_nost:")
a("s_mov_b64 exec, -1")
stamp()
a("L_f1_skip:")
a("s_cmp_eq_u32 s78, 0")
a("s_cbranch_scc0 L_fin")
if A.warm1:
    a("s_branch L_f1_resume")
else:
    a("s_mov_b32 s78, 1")
    a("s_barrier")
    a("s_branch L_poll1")

if A.stamp: stamp_idx[0] = 6
a("L_ffn2:")
a("s_mov_b32 s52, s18\ns_mov_b32 s53, s19")
a("s_lshl_b32 s13, s27, 5")
a("s_mov_b32 s79, s13")
a("v_lshrrev_b32 v5, 1, v0")
a("v_mul_u32_u24 v5, 1280, v5")
a("v_and_b32 v11, 1, v0")
a("v_lshl_add_u32 v5, v11, 4, v5")
dma(7 - A.late2, ["v5"], 327680)
a("v_mul_u32_u24 v21, 1280, v10")
a("v_lshl_add_u32 v21, v45, 3, v21")
a("buffer_load_dwordx2 v[24:25], v21, s[44:47], s79 offen")
a("v_mul_u32_u24 v12, 10240, v44")
a("v_lshl_add_u32 v12, v45, 8, v12")
a("v_lshl_add_u32 v12, v46, 3, v12")
a("v_add_u32 v12, %d, v12" % L_W)
a("v_lshlrev_b32 v22, 9, v44")
a("v_lshl_add_u32 v22, v45, 7, v22")
a("v_lshl_add_u32 v22, v10, 4, v22")
a("v_lshlrev_b32 v16, 4, v0")
a("v_lshlrev_b32 v17, 4, v1")
if A.fin2:
    a("v_bfe_u32 v11, v0, 3, 1")
    a("v_mul_u32_u24 v11, %d, v11" % (4096 - 128))
    a("v_add_u32 v17, v17, v11")
a("s_mov_b32 s78, 1")
if A.warm or A.warm2:
    a("s_mov_b32 s78, 0")
    a("s_branch L_f2_body")
    a("L_f2_real:")
    a("s_mov_b32 s78, 1")
a("s_cmp_lg_u32 s26, 0")
a("s_cbranch_scc1 L_ffn2_noh")
a("s_lshl_b32 s84, s27, 4")
a("v_lshlrev_b32 v11, 2, v45")
a("v_add_u32 v11, s84, v11")
for r in range(4):
    a("v_add_u32 v13, %d, v11" % r)
    a("v_mul_u32_u24 v29, 205, v13")
    a("v_lshrrev_b32 v29, 11, v29")
    a("v_mul_u32_u24 v30, 10, v29")
    a("v_sub_u32 v13, v13, v30")
    a("v_and_b32 v30, 1, v13")
    a("v_lshrrev_b32 v13, 1, v13")
    a("v_mul_u32_u24 v31, 11, v13")
    a("v_lshrrev_b32 v31, 5, v31")
    a("v_lshl_add_u32 v30, v30, 1, v31")
    a("v_mul_u32_u24 v31, 3, v31")
    a("v_sub_u32 v%d, v13, v31" % (XF + 4 + r))
    a("v_lshl_add_u32 v29, v30, 6, v29")
    a("v_lshlrev_b32 v29, 4, v29")
    a("v_lshl_add_u32 v%d, v10, 12, v29" % (XF + r))
if A.light or A.light2:
    a("v_lshlrev_b32 v29, 12, v10")
    a("s_mov_b32 s84, 0x42000000")
    a("s_mov_b64 exec, 0xff")
    a("L_light2:")
    a("buffer_load_dword v30, v29, s[48:51], 0 offen offset:12 %s" % A.pmod)
    a("s_add_u32 s88, s88, 1")
    a("s_waitcnt vmcnt(0)")
    a("v_cmp_gt_f32 vcc, s84, v30")
    a("s_cmp_gt_u32 s88, %d" % SPIN_MAX)
    a("s_cbranch_scc1 L_light2_done")
    a("s_cbranch_vccnz L_light2")
    a("L_light2_done:")
    a("s_mov_b64 exec, -1")
a("L_poll2h:")
if A.sleep: a("s_sleep %d" % A.sleep)
for r in range(4):
    a("buffer_load_dwordx4 %s, v%d, s[48:51], 0 offen %s" % (t4(GR + 4 * r), XF + r, A.pmod))
a("s_add_u32 s88, s88, 1")
a("s_waitcnt vmcnt(0)")
a("v_min_f32 v31, v%d, v%d" % (GR + 3, GR + 7))
a("v_min3_f32 v31, v31, v%d, v%d" % (GR + 11, GR + 15))
a("v_cmp_ne_u32 vcc, s85, v31")
a("s_cmp_gt_u32 s88, %d" % SPIN_MAX)
a("s_cbranch_scc1 L_poll2h_done")
a("s_cbranch_vccnz L_poll2h")
a("L_poll2h_done:")
for r in range(4):
    a("v_cmp_eq_u32 vcc, 1, v%d" % (XF + 4 + r))
    a("v_cndmask_b32 v%d, v%d, v%d, vcc" % (GR + 4 * r, GR + 4 * r, GR + 4 * r + 1))
    a("v_cmp_eq_u32 vcc, 2, v%d" % (XF + 4 + r))
    a("v_cndmask_b32 v%d, v%d, v%d, vcc" % (GR + 4 * r, GR + 4 * r, GR + 4 * r + 2))
for k in range(2):
    a("v_cvt_pk_bf16_f32 v31, v%d, v%d" % (GR + 8 * k, GR + 8 * k + 4))
    a("v_lshlrev_b32 v32, 16, v31")
    a("v_and_b32 v33, 0xffff0000, v31")
    a("v_lshlrev_b32 v34, 16, v%d" % (24 + k))
    a("v_and_b32 v35, 0xffff0000, v%d" % (24 + k))
    a("v_add_f32 v32, v32, v34")
    a("v_add_f32 v33, v33, v35")
    a("v_cvt_pk_bf16_f32 v31, v32, v33")
    a("v_lshlrev_b32 v%d, 16, v31" % (XF + 2 * k))
    a("v_and_b32 v%d, 0xffff0000, v31" % (XF + 1 + 2 * k))
a("L_ffn2_noh:")
a("s_waitcnt vmcnt(0)")
def f2_frags(rng=None):
    for t in (rng if rng is not None else range(7 - A.late2)):
        a("ds_read_b64_tr_b16 v[%d:%d], v12 offset:%d" % (AF + 4 * t, AF + 4 * t + 1, 1024 * t))
        a("ds_read_b64_tr_b16 v[%d:%d], v12 offset:%d" % (AF + 4 * t + 2, AF + 4 * t + 3, 1024 * t + 128))
if not A.defer2: f2_frags()
stamp()
if A.f2bar:
    a("s_barrier")
if A.late2:
    a("s_add_u32 s3, s3, 1024\ns_add_u32 s13, s13, 327680")
    dma(A.late2, ["v5"], 327680)
if A.defer2:
    f2_frags()
    a("s_waitcnt lgkmcnt(0)")
a("s_mov_b32 s88, 0")
if A.D2:
    sets = [80 + 28 * k for k in range(A.D2)]
    assert sets[-1] + 28 <= XF
    def p2(g):
        for t in range(7):
            a("buffer_load_dwordx4 %s, v22, s[60:63], %s offen %s" % (t4(g + 4 * t), soff(4096 * t)[0], A.pmod))
    if A.m2:
        a("s_mov_b32 exec_lo, 0x00ff00ff\ns_mov_b32 exec_hi, 0x00ff00ff")
    for k, g in enumerate(sets):
        if A.pace and k: a("s_sleep %d" % A.pace)
        p2(g)
    a("s_waitcnt lgkmcnt(0)")
    a("L_poll2:")
    for k, g in enumerate(sets):
        a("s_waitcnt vmcnt(%d)" % (7 * (A.D2 - 1)))
        a("v_max3_u32 v31, v%d, v%d, v%d" % (g, g + 1, g + 2))
        a("v_max3_u32 v32, v%d, v%d, v%d" % (g + 3, g + 4, g + 5))
        for q in range(6, 26, 4):
            a("v_max3_u32 v31, v31, v%d, v%d" % (g + q, g + q + 1))
            a("v_max3_u32 v32, v32, v%d, v%d" % (g + q + 2, g + q + 3))
        a("v_max3_u32 v31, v31, v%d, v%d" % (g + 26, g + 27))
        a("v_max_u32 v31, v31, v32")
        a("v_cmp_eq_u32 vcc, -1, v31")
        a("s_cbranch_vccz L_p2x%d" % k)
        if A.pace: a("s_sleep %d" % A.pace)
        p2(g)
    a("s_add_u32 s88, s88, 1")
    a("s_cmp_gt_u32 s88, %d" % SPIN_MAX)
    a("s_cbranch_scc0 L_poll2")
    for k, g in reversed(list(enumerate(sets))):
        a("L_p2x%d:" % k)
        if A.m2: a("s_mov_b64 exec, -1")
        for t in range(7):
            a("v_mfma_f32_16x16x32_bf16 v[40:43], %s, %s, %s" % (t4(AF + 4 * t), t4(g + 4 * t), "0" if t == 0 else "v[40:43]"))
        if k: a("s_branch L_p2done")
    a("L_p2done:")
    a("s_nop 7")
    stamp()
else:
    if A.m2:
        for q in range(28): a("v_mov_b32 v%d, 0" % (BF + q))
        a("s_mov_b32 exec_lo, 0x00ff00ff\ns_mov_b32 exec_hi, 0x00ff00ff")
    if A.first2: a("s_sleep %d" % A.first2)
    a("L_poll2:")
    if A.bo2: a("s_sleep %d" % A.bo2)
    for t in range(7):
        a("buffer_load_dwordx4 %s, v22, s[60:63], %s offen %s" % (t4(BF + 4 * t), soff(4096 * t)[0], A.pmod))
    a("s_add_u32 s88, s88, 1")
    a("s_waitcnt lgkmcnt(0)" if A.fin2 else "s_waitcnt vmcnt(0) lgkmcnt(0)")
    if A.fin2:
        a("s_mov_b64 exec, -1")
        for t in range(7):
            a("s_waitcnt vmcnt(%d)" % (6 - t))
            a("v_mfma_f32_16x16x32_bf16 v[40:43], %s, %s, %s" % (t4(AF + 4 * t), t4(BF + 4 * t), "0" if t == 0 else "v[40:43]"))
            if t == 0: a("v_max3_u32 v31, v%d, v%d, v%d\nv_mov_b32 v32, v%d" % (BF, BF + 1, BF + 2, BF + 3))
            else: a("v_max3_u32 v31, v31, v%d, v%d\nv_max3_u32 v32, v32, v%d, v%d" % (BF + 4 * t, BF + 4 * t + 1, BF + 4 * t + 2, BF + 4 * t + 3))
        a("v_max_u32 v31, v31, v32")
        a("v_cmp_eq_u32 vcc, -1, v31")
        a("s_mov_b32 exec_lo, 0x00ff00ff\ns_mov_b32 exec_hi, 0x00ff00ff")
        a("s_cmp_gt_u32 s88, %d" % SPIN_MAX)
        a("s_cbranch_scc1 L_poll2_done")
        a("s_cbranch_vccnz L_poll2")
        a("L_poll2_done:")
        a("s_mov_b64 exec, -1")
        stamp()
        a("L_f2_body:")
    else:
        a("v_max_u32 v31, v%d, v%d" % (BF, BF + 1))
        a("v_max_u32 v32, v%d, v%d" % (BF + 2, BF + 3))
        for k in range(4, 28, 4):
            a("v_max3_u32 v31, v31, v%d, v%d" % (BF + k, BF + k + 1))
            a("v_max3_u32 v32, v32, v%d, v%d" % (BF + k + 2, BF + k + 3))
        a("v_max_u32 v31, v31, v32")
        a("v_cmp_eq_u32 vcc, -1, v31")
        a("s_cmp_gt_u32 s88, %d" % SPIN_MAX)
        a("s_cbranch_scc1 L_poll2_done")
        a("s_cbranch_vccnz L_poll2")
        a("L_poll2_done:")
        if A.m2: a("s_mov_b64 exec, -1")
        if A.late2:
            f2_frags(range(7 - A.late2, 7))
        stamp()
        a("L_f2_body:")
        for t in range(7):
            if A.late2 and t >= 7 - A.late2: a("s_waitcnt lgkmcnt(%d)" % (2 * (6 - t)))
            a("v_mfma_f32_16x16x32_bf16 v[40:43], %s, %s, %s" % (t4(AF + 4 * t), t4(BF + 4 * t), "0" if t == 0 else "v[40:43]"))
a("ds_write_b128 v16, v[40:43] offset:%d" % L_FP)
a("s_waitcnt lgkmcnt(0)")
a("s_barrier")
a("s_cmp_lg_u32 s26, 0")
a("s_cbranch_scc1 L_f2_skip")
if A.fin2:
    for w in range(4):
        a("ds_read_b128 %s, v17 offset:%d" % (t4(AF + 4 * w), L_FP + 1024 * w))
    for w in range(2):
        a("s_waitcnt lgkmcnt(%d)" % (2 - 2 * w))
        for r in (0, 2):
            a("v_pk_add_f32 v[%d:%d], v[%d:%d], v[%d:%d]" % (AF + 8 * w + r, AF + 8 * w + r + 1, AF + 8 * w + r, AF + 8 * w + r + 1, AF + 8 * w + 4 + r, AF + 8 * w + 4 + r + 1))
    for r in (0, 2):
        a("v_pk_add_f32 v[%d:%d], v[%d:%d], v[%d:%d]" % (AF + r, AF + r + 1, AF + r, AF + r + 1, AF + 8 + r, AF + 8 + r + 1))
    for r in range(4):
        a("v_add_f32_dpp v%d, v%d, v%d row_ror:8 row_mask:0xf bank_mask:0xf" % (AF + r, AF + r, AF + r))
else:
    for w in range(8):
        a("ds_read_b128 %s, v17 offset:%d" % (t4(AF + 4 * w), L_FP + 1024 * w))
    a("s_waitcnt lgkmcnt(0)")
    for s_ in (4, 2, 1):
        for w in range(s_):
            for r in range(0, 4, 2):
                a("v_pk_add_f32 v[%d:%d], v[%d:%d], v[%d:%d]" % (AF + 4 * w + r, AF + 4 * w + r + 1, AF + 4 * w + r, AF + 4 * w + r + 1, AF + 4 * (w + s_) + r, AF + 4 * (w + s_) + r + 1))
a("s_mov_b32 exec_lo, 0x00ff00ff\ns_mov_b32 exec_hi, 0x00ff00ff")
for k in range(2):
    a("v_cvt_pk_bf16_f32 v31, v%d, v%d" % (AF + 2 * k, AF + 2 * k + 1))
    a("v_lshlrev_b32 v32, 16, v31")
    a("v_and_b32 v33, 0xffff0000, v31")
    a("v_add_f32 v32, v32, v%d" % (XF + 2 * k))
    a("v_add_f32 v33, v33, v%d" % (XF + 1 + 2 * k))
    a("v_cvt_pk_bf16_f32 v%d, v32, v33" % (40 + k))
a("s_cmp_eq_u32 s78, 0")
a("s_cbranch_scc1 L_f2_nost")
a("buffer_store_dwordx2 v[40:41], v21, s[56:59], s79 offen %s" % A.outmod)
a("L_f2_nost:")
a("s_mov_b64 exec, -1")
a("L_f2_skip:")
if A.warm or A.warm2:
    a("s_cmp_eq_u32 s78, 0")
    a("s_cbranch_scc1 L_f2_real")
if A.diagnum:
    a("v_mov_b32 v26, 0")
    a("buffer_load_dword v27, v26, s[64:67], 0 offen offset:32 sc0 sc1\ns_waitcnt vmcnt(0)")
    a("v_readfirstlane_b32 s84, v27\ns_bcnt1_i32_b32 s84, s84\ns_cmp_eq_u32 s84, 1\ns_cbranch_scc1 L_fin")
    a("s_memrealtime s[90:91]\ns_waitcnt lgkmcnt(0)\ns_add_u32 s85, s90, 10000")
    a("L_dly:\ns_memrealtime s[90:91]\ns_waitcnt lgkmcnt(0)\ns_sub_u32 s84, s85, s90\ns_cmp_lt_i32 s84, 0\ns_cbranch_scc0 L_dly")
if A.amp >= 0:
    a("s_cmp_lg_u32 s26, 0\ns_cbranch_scc1 L_fin")
    a("s_memrealtime s[90:91]\ns_waitcnt lgkmcnt(0)\ns_mov_b32 s101, s90")
    if A.ampA:
        a("s_load_dword s93, s[24:25], %d\ns_waitcnt lgkmcnt(0)\ns_mov_b32 s94, s92\ns_mov_b32 s92, s93" % (WS_STAMP - 64))
    a("s_sub_u32 s85, s%d, s92\ns_lshl_b32 s85, s85, %d\ns_add_u32 s85, s85, s90" % (92 + A.amp, A.ampsh))
    a("L_dly2:\ns_memrealtime s[90:91]\ns_waitcnt lgkmcnt(0)\ns_sub_u32 s84, s85, s90\ns_cmp_lt_i32 s84, 0\ns_cbranch_scc0 L_dly2")
a("L_fin:")
if A.stamp and A.amp < 0:
    a("s_waitcnt vmcnt(0)")
    a("s_memrealtime s[90:91]\ns_waitcnt lgkmcnt(0)\ns_mov_b32 s101, s90")
    a("s_add_u32 s48, s24, %d\ns_addc_u32 s49, s25, 0\ns_mov_b32 s50, 131072" % WS_STAMP)
    a("s_lshl_b32 s84, s2, 3\ns_add_u32 s84, s84, s26\ns_lshl_b32 s84, s84, 6")
    a("s_getreg_b32 s85, hwreg(HW_REG_XCC_ID)")
    a("v_mov_b32 v1, 0")
    a("s_mov_b64 exec, 1")
    for k in range(10):
        a("v_mov_b32 v2, s%d" % (92 + k))
        a("buffer_store_dword v2, v1, s[48:51], s84 offen offset:%d" % (4 * k))
    a("v_mov_b32 v2, s85")
    a("buffer_store_dword v2, v1, s[48:51], s84 offen offset:40")
    a("v_mov_b32 v2, s88")
    a("buffer_store_dword v2, v1, s[48:51], s84 offen offset:44")
    a("v_mov_b32 v2, s27")
    a("buffer_store_dword v2, v1, s[48:51], s84 offen offset:48")
    if A.dbgstamp:
        a("s_cmp_ge_u32 s27, 40\ns_cbranch_scc1 L_end\ns_cmp_lg_u32 s26, 0\ns_cbranch_scc1 L_end")
        a("s_not_b32 s86, s92")
        a("v_mov_b32 v2, s86")
        a("buffer_atomic_umax v2, v1, s[64:67], 0 offen offset:4 sc1")
        for k in (4, 5, 6, 7, 9):
            a("v_mov_b32 v2, s%d" % (92 + k))
            a("buffer_atomic_umax v2, v1, s[64:67], 0 offen offset:%d sc1" % (8 + 4 * k))
a("L_end:")
a("s_endpgm")
a("L_initslow:")
a("s_mov_b32 s88, 0")
a("L_initpoll:")
a("buffer_load_dword v12, v21, s[64:67], 0 offen sc0 sc1")
a("s_waitcnt vmcnt(0)")
a("v_readfirstlane_b32 s89, v12")
a("s_add_u32 s88, s88, 1")
a("s_cmp_gt_u32 s88, %d" % SPIN_MAX)
a("s_cbranch_scc1 L_initok")
a("s_cmp_ge_u32 s89, 8")
a("s_cbranch_scc0 L_initpoll")
a("s_branch L_initok")

body = a.render()
txt = HEADER + "; @launch grid=(256,1,1) block=(512,1,1) lds=%d\n" % (A.lds or LDS_BYTES)
txt += """.amdgcn_target "amdgcn-amd-amdhsa--gfx950"
.text
.globl {n}_kernel
{al}.p2align 8
.type {n}_kernel,@function
{n}_kernel:
{body}.section .rodata,"a"
.p2align 6
.amdhsa_kernel {n}_kernel
  .amdhsa_next_free_vgpr 256
  .amdhsa_next_free_sgpr 102
  .amdhsa_accum_offset 256
  .amdhsa_group_segment_fixed_size 0
  .amdhsa_kernarg_size 88
  .amdhsa_user_sgpr_count 2
  .amdhsa_user_sgpr_kernarg_segment_ptr 1
  .amdhsa_system_sgpr_workgroup_id_x 1
  .amdhsa_float_denorm_mode_32 3
.end_amdhsa_kernel
""".format(n=NAME, body=body, al=(".p2align 12\n" + (".fill %d, 4, 0xbf800000\n" % (64 * A.align12) if A.align12 else "")) if A.align12 >= 0 else "")
open(A.o, "w").write(txt)
print("wrote", A.o, len(txt), "bytes,", body.count("\\n"), "lines")
```

```python
import sys, argparse
sys.path.insert(0, "work")
from asmlib import Asm

NAME = "sequential_preLN__sliding_block_cached__dense_activation_relu__decode"
HEADER = open("cdna_kernels/%s.s.ref" % NAME).read().split("; Override launch geometry")[0]

ap = argparse.ArgumentParser()
ap.add_argument("-o", default="cdna_kernels/%s.s" % NAME)
ap.add_argument("--stamp", action="store_true")
ap.add_argument("--dbgstamp", action="store_true")
ap.add_argument("--kvmod", default="nt")
ap.add_argument("--wmod", default="nt")
ap.add_argument("--dmod", default="nt")
ap.add_argument("--pmod", default="sc0 sc1")
ap.add_argument("--L", type=int, default=12)
ap.add_argument("--pat", type=int, default=1)
ap.add_argument("--qk", type=int, default=2)
ap.add_argument("--wo_start", type=int, default=12)
ap.add_argument("--wo_every", type=int, default=2)
ap.add_argument("--codepf", action="store_true")
ap.add_argument("--touch2", action="store_true")
ap.add_argument("--op4", type=int, default=0)
ap.add_argument("--lin", action="store_true")
ap.add_argument("--op3", action="store_true")
ap.add_argument("--ampA", action="store_true")
ap.add_argument("--fin2", action="store_true")
ap.add_argument("--late2", type=int, default=0)
ap.add_argument("--align12", type=int, default=-1)
ap.add_argument("--warm1", action="store_true")
ap.add_argument("--warm2", action="store_true")
ap.add_argument("--pad", type=int, default=0)
ap.add_argument("--sthr", type=int, nargs=2, default=None)
ap.add_argument("--tk2", action="store_true")
ap.add_argument("--static", action="store_true")
ap.add_argument("--tkwave", type=int, default=0)
ap.add_argument("--thr", type=int, default=0)
ap.add_argument("--thrT", type=int, default=1)
ap.add_argument("--thr0", type=int, default=256)
ap.add_argument("--qpf", action="store_true")
ap.add_argument("--qstart", type=int, default=0)
ap.add_argument("--krot", type=int, default=0)
ap.add_argument("--light2", action="store_true")
ap.add_argument("--defer2", type=int, default=0)
ap.add_argument("--bo2", type=int, default=0)
ap.add_argument("--first2", type=int, default=0)
ap.add_argument("--ampsh", type=int, default=2)
ap.add_argument("--qspan", type=int, default=0)
ap.add_argument("--ospan", type=int, nargs=2, default=None)
ap.add_argument("--fine", action="store_true")
ap.add_argument("--op2", action="store_true")
ap.add_argument("--ln1", action="store_true")
ap.add_argument("--qrow", type=int, default=0)
ap.add_argument("--rot", type=int, default=0)
ap.add_argument("--outmod", default="")
ap.add_argument("--lds", type=int, default=0)
ap.add_argument("--edma", action="store_true")
ap.add_argument("--nopre", action="store_true")
ap.add_argument("--st8", default="hn")
ap.add_argument("--minrate", type=int, default=0)
ap.add_argument("--m2", action="store_true")
ap.add_argument("--D1", type=int, default=0)
ap.add_argument("--D2", type=int, default=0)
ap.add_argument("--pace", type=int, default=0)
ap.add_argument("--warm", action="store_true")
ap.add_argument("--tkpos", type=int, default=8)
ap.add_argument("--map", type=int, default=0)
ap.add_argument("--touch", action="store_true")
ap.add_argument("--qhead", type=int, default=0)
ap.add_argument("--codepf2", action="store_true")
ap.add_argument("--oobq", action="store_true")
ap.add_argument("--oobo", action="store_true")
ap.add_argument("--f2bar", action="store_true")
ap.add_argument("--light", type=int, default=0)
ap.add_argument("--sleep", type=int, default=0)
ap.add_argument("--amp", type=int, default=-1)
ap.add_argument("--diagnum", action="store_true")
ap.add_argument("--LV", type=int, default=0)
ap.add_argument("--dma", default="stream")
ap.add_argument("--pf", type=int, default=0)
ap.add_argument("--pfmod", default="")
A = ap.parse_args()

L_PART = 0
L_QD = 4096
L_ST = 6144
L_YP = 6400
L_HN = 27136
HN_STRIDE = 1312
L_FP = 37888
L_W = 46080
LDS_BYTES = L_W + 81920
WS_H1 = 32768
WS_STAMP = 1 << 20
FFN1_N, FFN2_N = 27, 40
L_TK = 6208
SPIN_MAX = 400000

RING = 48; NRING = 32
YSTR = 2560
WO = 176
def t4(r): return "v[%d:%d]" % (r, r + 3)
def soff(byte):
    hi, lo = byte // 4096, byte % 4096
    return ("0" if hi == 0 else "s%d" % (67 + hi)), lo

a = Asm()
stamp_idx = [0]
def stamp():
    if not A.stamp: return
    a("s_memrealtime s[90:91]\ns_waitcnt lgkmcnt(0)\ns_mov_b32 s%d, s90" % (92 + stamp_idx[0]))
    stamp_idx[0] += 1
    assert stamp_idx[0] <= 9

FINE = [4, 6, 8, 10, 14, 36, 38]
fine_i = [0]
def fine():
    if not A.fine: return
    r = FINE[fine_i[0]]; fine_i[0] += 1
    a("s_memtime s[%d:%d]" % (r, r + 1))

def wave_reduce(v, op, sdst):
    for m in ("quad_perm:[1,0,3,2] row_mask:0xf", "quad_perm:[2,3,0,1] row_mask:0xf", "row_half_mirror row_mask:0xf",
              "row_mirror row_mask:0xf", "row_bcast:15 row_mask:0xa", "row_bcast:31 row_mask:0xc"):
        a("%s_dpp %s, %s, %s %s bank_mask:0xf" % (op, v, v, v, m))
    a("v_readlane_b32 %s, %s, 63" % (sdst, v))

def ln_stats(vals, tmp, vmean_bf, vrinv):
    t0, t1, t2 = tmp
    a("v_add_f32 %s, %s, %s" % (t0, vals[0], vals[1]))
    a("v_add_f32 %s, %s, %s" % (t1, vals[2], vals[3]))
    for k in range(4, 10, 2):
        a("v_add_f32 %s, %s, %s" % (t0, t0, vals[k]))
        a("v_add_f32 %s, %s, %s" % (t1, t1, vals[k + 1]))
    a("v_add_f32 %s, %s, %s" % (t0, t0, t1))
    wave_reduce(t0, "v_add_f32", "s84")
    a("v_mov_b32 %s, 0x3acccccd" % t2)
    a("v_mul_f32 %s, s84, %s" % (vmean_bf, t2))
    a("v_sub_f32 %s, %s, %s" % (t1, vals[0], vmean_bf))
    a("v_mul_f32 %s, %s, %s" % (t0, t1, t1))
    for k in range(1, 10):
        a("v_sub_f32 %s, %s, %s" % (t1, vals[k], vmean_bf))
        a("v_fmac_f32 %s, %s, %s" % (t0, t1, t1))
    wave_reduce(t0, "v_add_f32", "s84")
    a("v_mul_f32 %s, s84, %s" % (t0, t2))
    a("v_cvt_pk_bf16_f32 %s, %s, %s" % (t0, t0, vmean_bf))
    a("v_and_b32 %s, 0xffff0000, %s" % (vmean_bf, t0))
    a("v_lshlrev_b32 %s, 16, %s" % (t0, t0))
    a("v_add_f32 %s, 0x3727c5ac, %s" % (t0, t0))
    a("v_cvt_pk_bf16_f32 %s, %s, %s" % (t0, t0, t0))
    a("v_lshlrev_b32 %s, 16, %s" % (t0, t0))
    a("v_sqrt_f32 %s, %s" % (t0, t0))
    a("v_cvt_pk_bf16_f32 %s, %s, %s" % (t0, t0, t0))
    a("v_lshlrev_b32 %s, 16, %s" % (t0, t0))
    a("v_rcp_f32 %s, %s" % (vrinv, t0))

def selector(abuf, src, lane):
    for r in range(4):
        a("v_and_b32_dpp v%d, %s, v%d row_newbcast:%d row_mask:0xf bank_mask:0xf" % (abuf + r, src, 6 + r, lane))

def srd(d, plo, nbytes):
    a("s_mov_b32 s%d, s%d\ns_mov_b32 s%d, s%d\ns_mov_b32 s%d, %s\ns_mov_b32 s%d, 0x20000" % (d, plo, d + 1, plo + 1, d + 2, nbytes, d + 3))

S = []
kv = [("k", n) for n in range(32)] + [("v", n) for n in range(32)]
if A.qspan:
    oa, ob = A.ospan
    qpos = [A.qstart + (t * (A.qspan - A.qstart)) // 20 for t in range(20)]
    opos = [oa + (t * (ob - oa)) // 20 for t in range(20)]
    for ki in range(64):
        S += [("q", t) for t in range(20) if qpos[t] == ki]
        S += [("o", t) for t in range(20) if opos[t] == ki]
        S.append(kv[ki])
else:
    qi = 0; ki = 0
    while qi < A.qhead:
        S.append(("q", qi)); qi += 1
    while qi < 20:
        for _ in range(A.qk):
            if qi < 20: S.append(("q", qi)); qi += 1
        S.append(kv[ki]); ki += 1
    oi = 0
    while ki < 64:
        S.append(kv[ki]); ki += 1
        if ki >= A.wo_start and (ki - A.wo_start) % A.wo_every == 0 and oi < 20:
            S.append(("o", oi)); oi += 1
    assert oi == 20
if A.tk2: S.append(("t", 0))
POS = {e: p for p, e in enumerate(S)}
free = list(range(NRING))
slot = {}
lend = list(range(32, 52))
st = {"issued": 0, "maxpos": -1, "gate": len(S)}
def reg_of(e):
    if e[0] == "o": return WO + 4 * e[1]
    return RING + 4 * slot[e]
def issue(e):
    kind, n = e
    if kind in "qkv":
        if free: slot[e] = free.pop(0)
        elif lend and kind != "v": slot[e] = lend.pop()
        else: return False
    if kind == "o":
        if (32 + n) not in lend: return False
        lend.remove(32 + n)
    if kind == "q":
        so = "0"
        if n: a("s_mov_b32 s78, %d" % (n * 8192 * (1, 4, 32)[A.qrow] if not (A.oobq and n >= 3) else 0x7f000000)); so = "s78"
        a("buffer_load_dwordx4 %s, v3, s[36:39], %s offen %s" % (t4(reg_of(e)), so, A.wmod))
    elif kind in "kv":
        sr = "s[28:31]" if kind == "k" else "s[32:35]"
        if A.pat == 0:
            so, im = soff(n * 1024)
        elif A.krot:
            sr_ = "s14" if kind == "k" else "s15"
            so, im = sr_, 0
            if n: a("s_add_u32 %s, %s, 8192\ns_and_b32 %s, %s, 0x3ffff" % (sr_, sr_, sr_, sr_))
        elif A.pat == 3:
            so, im = "0", (n & 1) * 1024
            if n >> 1: a("s_mov_b32 s78, %d" % ((n >> 1) * 8192)); so = "s78"
        elif A.pat == 4:
            so, im = "0", (n & 3) * 1024
            if n >> 2: a("s_mov_b32 s78, %d" % ((n >> 2) * 16384)); so = "s78"
        else:
            so, im = "0", 0
            if n: a("s_mov_b32 s78, %d" % (n * (8192 if A.pat == 1 else 4096))); so = "s78"
        a("buffer_load_dwordx4 %s, v2, %s, %s offen offset:%d %s" % (t4(reg_of(e)), sr, so, im, A.kvmod))
    elif kind == "t":
        a("s_mov_b64 exec, 1")
        a("buffer_atomic_add v22, v21, s[48:51], s11 offen sc0 sc1")
        a("s_mov_b64 exec, -1")
    elif kind == "o":
        so, im = soff(n * 256)
        if A.oobo and n >= 3:
            a("s_mov_b32 s78, 0x7f000000"); so = "s78"
        a("buffer_load_dwordx4 %s, v4, s[40:43], %s offen offset:%d %s" % (t4(reg_of(e)), so, im, A.wmod))
    return True
def pump(upto):
    upto = min(upto, len(S) - 1, st["gate"] - 1)
    while st["issued"] <= upto:
        if not issue(S[st["issued"]]): break
        st["issued"] += 1
def ready(e):
    p = POS[e]
    st["maxpos"] = max(st["maxpos"], p)
    before = st["issued"]
    pump(st["maxpos"] + A.L)
    if st["issued"] == before:
        st["idle"] = st.get("idle", 0) + 1
        if A.minrate and st["idle"] >= A.minrate:
            pump(st["issued"]); st["idle"] = 0
    else:
        st["idle"] = 0
    assert st["issued"] > p, (e, st)
    n = st["issued"] - 1 - p
    assert n <= 63
    a("s_waitcnt vmcnt(%d)" % n)
def done(e):
    sl = slot.pop(e)
    if sl >= 32:
        lend.append(sl); lend.sort()
    else:
        free.append(sl)

a("s_cmp_ge_u32 s2, 256")
a("s_cbranch_scc1 L_end")
a("s_load_dwordx16 s[4:19], s[0:1], 0")
a("s_load_dwordx4 s[20:23], s[0:1], 64")
a("s_load_dwordx2 s[24:25], s[0:1], 80")
if A.stamp:
    a("s_memrealtime s[90:91]")
a("v_and_b32 v1, 63, v0")
a("v_lshrrev_b32 v44, 6, v0")
a("v_lshrrev_b32 v45, 4, v1")
a("v_and_b32 v46, 15, v0")
a("v_readfirstlane_b32 s26, v44")
a("s_lshr_b32 s76, s2, 5")
if A.map == 0:
    a("s_and_b32 s77, s2, 31")
elif A.map == 1:
    a("s_and_b32 s77, s2, 7\ns_lshl_b32 s77, s77, 2\ns_bfe_u32 s84, s2, 0x20003\ns_or_b32 s77, s77, s84")
elif A.map == 2:
    a("s_and_b32 s77, s2, 7\ns_lshl_b32 s77, s77, 1\ns_bfe_u32 s84, s2, 0x10003\ns_or_b32 s77, s77, s84\ns_and_b32 s84, s2, 16\ns_or_b32 s77, s77, s84")
a("s_lshl_b32 s3, s76, 5\ns_or_b32 s3, s3, s77")
if A.pat == 0:
    a("v_lshlrev_b32 v2, 15, v44")
    a("v_lshl_add_u32 v2, v1, 4, v2")
elif A.pat == 1:
    a("v_lshlrev_b32 v2, 4, v0")
else:
    a("v_lshrrev_b32 v2, 8, v0\nv_lshlrev_b32 v2, 17, v2\nv_lshl_add_u32 v2, v1, 4, v2\nv_and_b32 v3, 3, v44")
    a("v_lshl_add_u32 v2, v3, %d, v2" % {2: 10, 3: 11, 4: 12}[A.pat])
a("v_lshl_add_u32 v47, v44, 2, v45")
if A.rot:
    a("s_lshl_b32 s84, s76, 2")
    a("v_add_u32 v5, s84, v47")
    a("v_and_b32 v5, 31, v5")
a("v_mul_u32_u24 v4, 5120, %s" % ("v5" if A.rot >= 2 else "v47"))
if A.rot: a("v_mov_b32 v47, v5")
if A.qrow == 0:
    a("v_mul_u32_u24 v47, 20, v47")
elif A.qrow == 1:
    a("v_lshrrev_b32 v47, 2, v47\nv_mul_u32_u24 v47, 80, v47\nv_add_u32 v47, v47, v45")
a("v_lshlrev_b32 v3, 13, v47")
a("v_lshl_add_u32 v3, v46, 4, v3")
a("v_lshl_add_u32 v4, v46, 4, v4")
a("v_mul_u32_u24 v32, 20, v1")
QS = (0, 2, 5)[A.qrow]
a("v_lshlrev_b32 v33, %d, v46" % QS)
a("v_add_lshl_u32 v33, v47, v33, 1")
a("v_and_b32 v34, 3, v0")
a("v_lshlrev_b32 v34, %d, v34" % QS)
a("v_add_lshl_u32 v34, v47, v34, 1")
a("s_mul_i32 s84, s76, 1280")
a("s_lshl_b32 s85, s77, 8")
a("s_lshl_b32 s86, s3, 20")
a("s_add_u32 s86, s86, 786432")
a("s_mov_b32 s46, 10240\ns_mov_b32 s47, 0x20000")
a("s_sub_u32 s38, 5242880, s85\ns_mov_b32 s39, 0x20000")
a("s_mov_b32 s30, 262144\ns_mov_b32 s31, 0x20000")
for k in range(1, 8):
    a("s_movk_i32 s%d, %d" % (67 + k, 4096 * k))
a("s_waitcnt lgkmcnt(0)")
if A.stamp:
    a("s_mov_b32 s92, s90"); stamp_idx[0] = 1
    if A.st8 == "karg":
        a("s_memrealtime s[90:91]\ns_waitcnt lgkmcnt(0)\ns_mov_b32 s100, s90")
if A.krot == 1:
    a("s_mul_i32 s14, s2, 0x9e3779b1\ns_lshr_b32 s14, s14, 27\ns_lshl_b32 s14, s14, 13\ns_mov_b32 s15, s14")
elif A.krot == 2:
    a("s_and_b32 s14, s2, 31\ns_lshl_b32 s14, s14, 13\ns_mov_b32 s15, s14")
elif A.krot == 3:
    a("s_lshr_b32 s14, s2, 3\ns_lshl_b32 s14, s14, 13\ns_mov_b32 s15, s14")
if A.krot == 4:
    a("s_and_b32 s14, s2, 1\ns_lshl_b32 s14, s14, 17\ns_mov_b32 s15, s14")
elif A.krot == 5:
    a("s_lshr_b32 s14, s2, 5\ns_lshl_b32 s14, s14, 15\ns_mov_b32 s15, s14")
elif A.krot == 6:
    a("s_and_b32 s14, s2, 7\ns_lshl_b32 s14, s14, 15\ns_mov_b32 s15, s14")
elif A.krot == 7:
    a("s_brev_b32 s14, s2\ns_lshr_b32 s14, s14, 27\ns_lshl_b32 s14, s14, 13\ns_mov_b32 s15, s14")
elif A.krot == 8:
    a("s_lshr_b32 s14, s2, 5\ns_lshl_b32 s14, s14, 13\ns_mov_b32 s15, s14")
a("s_mov_b32 s44, s4\ns_mov_b32 s45, s5")
a("s_add_u32 s36, s10, s85\ns_addc_u32 s37, s11, 0")
a("s_add_u32 s28, s6, s86\ns_addc_u32 s29, s7, 0")
if A.touch:
    a("s_load_dword s89, s[28:29], 0")
    a("s_add_u32 s32, s8, s86\ns_addc_u32 s33, s9, 0")
    a("s_load_dword s88, s[32:33], 0")
a("s_cmp_ge_u32 s2, 8")
a("s_cbranch_scc1 L_noinit")
srd(48, 24, "66560")
a("s_lshl_b32 s87, s2, 12")
a("v_lshlrev_b32 v35, 3, v0")
a("v_mov_b32 v36, 0\nv_mov_b32 v37, 0\nv_mov_b32 v38, -1\nv_mov_b32 v39, -1")
a("buffer_store_dwordx2 v[36:37], v35, s[48:51], s87 offen sc0 sc1")
a("s_add_u32 s87, s87, %d" % WS_H1)
a("buffer_store_dwordx2 v[38:39], v35, s[48:51], s87 offen sc0 sc1")
if not A.static:
    a("s_lshl_b32 s87, s2, 7\ns_add_u32 s87, s87, 65536")
    a("v_and_b32 v35, 0x78, v35")
    a("buffer_store_dwordx2 v[36:37], v35, s[48:51], s87 offen sc0 sc1")
a("L_noinit:")
a("buffer_load_dwordx4 v[16:19], v32, s[44:47], s84 offen")
a("buffer_load_dword v20, v32, s[44:47], s84 offen offset:16")
a("buffer_load_ushort v22, v33, s[44:47], s84 offen")
a("buffer_load_ushort v23, v34, s[44:47], s84 offen offset:%d" % (32 << QS))
if A.qpf:
    srd(52, 10, "5242880")
    a("s_lshr_b32 s87, s2, 3\ns_mul_i32 s87, s87, %d" % (20 * 8192))
    a("s_and_b32 s88, s2, 7")
    a("v_lshrrev_b32 v35, 4, v0\nv_lshlrev_b32 v35, 13, v35")
    if A.map == 1:
        a("s_lshl_b32 s88, s88, 10\ns_add_u32 s87, s87, s88")
        a("v_lshl_add_u32 v35, v46, 6, v35")
    else:
        a("s_lshl_b32 s88, s88, 8\ns_add_u32 s87, s87, s88")
        a("v_and_b32 v36, 3, v0\nv_lshl_add_u32 v35, v36, 6, v35\nv_bfe_u32 v36, v0, 2, 2\nv_lshl_add_u32 v35, v36, 11, v35")
    a("s_cmp_ge_u32 s26, 4")
    a("s_cbranch_scc1 L_noqpf")
    a("buffer_load_dword v21, v35, s[52:55], s87 offen")
    a("s_cmp_lg_u32 s26, 0")
    a("s_cbranch_scc1 L_noqpf")
    a("s_add_u32 s87, s87, %d" % (16 * 8192))
    a("buffer_load_dword v21, v35, s[52:55], s87 offen")
    a("L_noqpf:")
st["gate"] = POS[("o", 0)]
pump(A.L)
n_first = st["issued"]
if A.codepf:
    a("s_getpc_b64 s[84:85]")
    a("L_pc:")
    a("s_sub_u32 s84, s84, L_pc-%s_kernel" % NAME)
    a("s_subb_u32 s85, s85, 0")
    a("v_lshlrev_b32 v35, 5, v0")
    a("v_min_u32 v35, L_end-%s_kernel, v35" % NAME)
    a("global_load_dword v5, v35, s[84:85]")
a("s_add_u32 s32, s8, s86\ns_addc_u32 s33, s9, 0\ns_mov_b32 s34, 262144\ns_mov_b32 s35, 0x20000")
a("s_mul_i32 s85, s77, 163840")
a("s_add_u32 s40, s12, s85\ns_addc_u32 s41, s13, 0\ns_mov_b32 s42, 163840\ns_mov_b32 s43, 0x20000")
if A.touch2:
    a("s_lshl_b32 s84, s26, 15")
    a("s_load_dword s88, s[28:29], s84")
    a("s_load_dword s89, s[32:33], s84")
    a("s_mul_i32 s84, s26, 20480")
    a("s_load_dword s87, s[40:41], s84")
srd(48, 24, "66560")
srd(56, 20, "10240")
a("s_add_u32 s60, s24, %d\ns_addc_u32 s61, s25, 0\ns_mov_b32 s62, 27648\ns_mov_b32 s63, 0x20000" % WS_H1)
srd(64, 22, "256")
a("s_mov_b32 s80, 0xcccccccc\ns_mov_b32 s81, 0xcccccccc\ns_mov_b32 s82, 0xaaaaaaaa\ns_mov_b32 s83, 0xaaaaaaaa")
a("v_and_b32 v35, 1, v0")
a("v_lshlrev_b32 v35, 4, v35")
a("v_mov_b32 v38, 0xffff")
a("v_lshlrev_b32 v38, v35, v38")
a("v_lshrrev_b32 v37, 1, v46")
for r in range(4):
    a("v_cmp_eq_u32 vcc, %d, v37" % r)
    a("v_cndmask_b32 v%d, 0, v38, vcc" % (6 + r))
a("v_lshlrev_b32 v47, 9, v44")
a("v_lshl_add_u32 v47, v46, 5, v47")
a("v_lshl_add_u32 v47, v45, 4, v47")
st["gate"] = len(S)

a("s_waitcnt vmcnt(%d)" % (n_first + (1 if A.codepf else 0)))
if A.stamp and A.st8 == "x":
    a("s_memrealtime s[90:91]\ns_waitcnt lgkmcnt(0)\ns_mov_b32 s100, s90")
for k in range(5):
    a("v_lshlrev_b32 v%d, 16, v%d" % (24 + 2 * k, 16 + k))
    a("v_and_b32 v%d, 0xffff0000, v%d" % (25 + 2 * k, 16 + k))
ln_stats(["v%d" % (24 + k) for k in range(10)], ["v34", "v35", "v37"], "v38", "v39")
for r in (22, 23):
    a("v_lshlrev_b32 v%d, 16, v%d" % (r, r))
    a("v_sub_f32 v%d, v%d, v38" % (r, r))
    a("v_cvt_pk_bf16_f32 v%d, v%d, v%d" % (r, r, r))
    a("v_lshlrev_b32 v%d, 16, v%d" % (r, r))
    a("v_mul_f32 v%d, v%d, v39" % (r, r))
    a("v_cvt_pk_bf16_f32 v%d, v%d, v%d" % (r, r, r))
for t in range(20):
    ab = 24 + 4 * (t & 1)
    selector(ab, "v22" if t < 16 else "v23", t & 15)
    e = ("q", t)
    ready(e)
    if A.stamp and A.st8 == "q%d" % t:
        a("s_memrealtime s[90:91]\ns_waitcnt lgkmcnt(0)\ns_mov_b32 s100, s90")
    a("v_mfma_f32_16x16x32_bf16 v[40:43], %s, %s, %s" % (t4(ab), t4(reg_of(e)), "0" if t == 0 else "v[40:43]"))
    done(e)
a("s_mov_b32 exec_hi, 0")
a("ds_write_b128 v47, v[40:43] offset:%d" % L_PART)
a("s_mov_b64 exec, -1")
a("v_lshlrev_b32 v25, 3, v1")
a("s_waitcnt lgkmcnt(0)")
a("s_barrier")
a("s_cmp_ge_u32 s2, 8")
a("s_cbranch_scc1 L_nosig")
a("s_cmp_lg_u32 s26, 0")
a("s_cbranch_scc1 L_nosig")
a("v_mov_b32 v26, 0\nv_mov_b32 v27, 1")
a("s_mov_b64 exec, 1")
a("buffer_atomic_add v27, v26, s[64:67], 0 offen sc1")
a("s_mov_b64 exec, -1")
a("L_nosig:")
if A.thr:
    a("s_cmp_lg_u32 s26, 0\ns_cbranch_scc1 L_norank")
    a("v_mov_b32 v26, 0\nv_mov_b32 v5, 1\ns_mov_b64 exec, 1")
    a("buffer_atomic_add v5, v26, s[64:67], 0 offen offset:128 sc0 sc1\ns_mov_b64 exec, -1")
    a("L_norank:")
    RANK_POS = st["issued"]
if A.diagnum:
    a("s_cmp_lg_u32 s26, 0\ns_cbranch_scc1 L_nodiag")
    a("s_getreg_b32 s84, hwreg(HW_REG_XCC_ID)\ns_sub_u32 s84, s84, s2\ns_and_b32 s84, s84, 7\ns_lshl_b32 s84, 1, s84")
    a("v_mov_b32 v26, 0\nv_mov_b32 v27, s84\ns_mov_b64 exec, 1")
    a("buffer_atomic_or v27, v26, s[64:67], 0 offen offset:32 sc1\ns_mov_b64 exec, -1")
    a("L_nodiag:")
for w in range(8):
    a("ds_read_b64 v[%d:%d], v25 offset:%d" % (28 + 2 * w, 29 + 2 * w, L_PART + 512 * w))
a("s_waitcnt lgkmcnt(0)")
for w in range(1, 8):
    a("v_add_f32 v28, v28, v%d" % (28 + 2 * w))
    a("v_add_f32 v29, v29, v%d" % (29 + 2 * w))
a("v_cvt_pk_bf16_f32 v28, v28, v29")
a("v_lshlrev_b32 v25, 2, v0")
a("ds_write_b32 v25, v28 offset:%d" % L_QD)
a("v_lshlrev_b32 v25, 8, v44")
a("v_lshl_add_u32 v25, v46, 4, v25")
a("s_waitcnt lgkmcnt(0)")
a("ds_read_b128 v[10:13], v25 offset:%d" % L_QD)
a("s_waitcnt lgkmcnt(0)")
stamp()

for _ in range(A.pad): a("s_nop 0")
def reduce_scatter(dst):
    for n in range(8):
        a("v_add_f32_dpp v%d, v%d, v%d row_mirror row_mask:0xf bank_mask:0x3" % (16 + n, 16 + n, 16 + n))
    for n in range(8):
        a("v_add_f32_dpp v%d, v%d, v%d row_mirror row_mask:0xf bank_mask:0xc" % (16 + n, 24 + n, 24 + n))
    for n in range(4):
        a("v_add_f32_dpp v%d, v%d, v%d row_half_mirror row_mask:0xf bank_mask:0x5" % (16 + n, 16 + n, 16 + n))
    for n in range(4):
        a("v_add_f32_dpp v%d, v%d, v%d row_half_mirror row_mask:0xf bank_mask:0xa" % (16 + n, 20 + n, 20 + n))
    for n in range(4):
        a("v_add_f32_dpp v%d, v%d, v%d quad_perm:[3,2,1,0] row_mask:0xf bank_mask:0xf" % (16 + n, 16 + n, 16 + n))
    a("v_cndmask_b32 v16, v16, v18, s[80:81]")
    a("v_cndmask_b32 v17, v17, v19, s[80:81]")
    a("v_add_f32_dpp v16, v16, v16 quad_perm:[1,0,3,2] row_mask:0xf bank_mask:0xf")
    a("v_add_f32_dpp v17, v17, v17 quad_perm:[1,0,3,2] row_mask:0xf bank_mask:0xf")
    a("v_cndmask_b32 %s, v16, v17, s[82:83]" % dst)

for n in range(32):
    e = ("k", n)
    ready(e)
    acc = 16 + (n & 15)
    for r in range(4):
        a("v_dot2_f32_bf16 v%d, v%d, v%d, %s" % (acc, reg_of(e) + r, 10 + r, "0" if r == 0 else "v%d" % acc))
    done(e)
    if n == 15: reduce_scatter("v14")
    if n == 31: reduce_scatter("v15")
stamp()

a("v_cvt_pk_bf16_f32 v16, v14, v15")
a("v_lshlrev_b32 v14, 16, v16")
a("v_and_b32 v15, 0xffff0000, v16")
a("v_mul_f32 v14, 0x3db504f3, v14")
a("v_mul_f32 v15, 0x3db504f3, v15")
a("v_cvt_pk_bf16_f32 v16, v14, v15")
a("v_lshlrev_b32 v14, 16, v16")
a("v_and_b32 v15, 0xffff0000, v16")
a("v_max_f32 v16, v14, v15")
wave_reduce("v16", "v_max_f32", "s84")
a("v_subrev_f32 v16, s84, v14")
a("v_subrev_f32 v17, s84, v15")
a("v_mul_f32 v16, 0x3fb8aa3b, v16")
a("v_mul_f32 v17, 0x3fb8aa3b, v17")
a("v_exp_f32 v16, v16")
a("v_exp_f32 v17, v17")
a("v_add_f32 v16, v16, v17")
wave_reduce("v16", "v_add_f32", "s85")
a("v_mov_b32 v16, s84")
a("v_mov_b32 v17, s85")
a("v_lshlrev_b32 v18, 3, v44")
a("s_mov_b64 exec, 1")
a("ds_write_b64 v18, v[16:17] offset:%d" % L_ST)
if A.thr:
    a("s_cmp_lg_u32 s26, 0\ns_cbranch_scc1 L_norank2")
    a("s_waitcnt vmcnt(%d)" % min(63, st["issued"] - RANK_POS))
    a("ds_write_b32 v18, v5 offset:%d" % (L_TK + 4))
    a("L_norank2:")
a("s_mov_b64 exec, -1")
a("v_and_b32 v18, 7, v0")
a("v_lshlrev_b32 v18, 3, v18")
a("s_waitcnt lgkmcnt(0)")
a("s_barrier")
a("ds_read_b64 v[16:17], v18 offset:%d" % L_ST)
if A.thr:
    a("v_mov_b32 v19, 0")
    a("ds_read_b32 v19, v19 offset:%d" % (L_TK + 4))
a("s_waitcnt lgkmcnt(0)")
if A.thr:
    a("v_readfirstlane_b32 s10, v19")
    a("s_min_u32 s10, s10, %d" % A.thr0)
    a("s_sub_u32 s10, %d, s10\ns_mul_i32 s10, s10, %d\ns_lshr_b32 s10, s10, 16" % (A.thr0, (A.thr << 16) // A.thr0))
a("v_mov_b32 v18, v16")
for m in ("quad_perm:[1,0,3,2]", "quad_perm:[2,3,0,1]", "row_half_mirror"):
    a("v_max_f32_dpp v18, v18, v18 %s row_mask:0xf bank_mask:0xf" % m)
a("v_sub_f32 v16, v16, v18")
a("v_mul_f32 v16, 0x3fb8aa3b, v16")
a("v_exp_f32 v16, v16")
a("v_mul_f32 v16, v16, v17")
for m in ("quad_perm:[1,0,3,2]", "quad_perm:[2,3,0,1]", "row_half_mirror"):
    a("v_add_f32_dpp v16, v16, v16 %s row_mask:0xf bank_mask:0xf" % m)
a("v_rcp_f32 v16, v16")
a("v_sub_f32 v14, v14, v18")
a("v_sub_f32 v15, v15, v18")
a("v_mul_f32 v14, 0x3fb8aa3b, v14")
a("v_mul_f32 v15, 0x3fb8aa3b, v15")
a("v_exp_f32 v14, v14")
a("v_exp_f32 v15, v15")
a("v_mul_f32 v14, v14, v16")
a("v_mul_f32 v15, v15, v16")
a("v_cvt_pk_bf16_f32 v14, v14, v14")
a("v_cvt_pk_bf16_f32 v15, v15, v15")
stamp()

def pv(n):
    ab = 32 + 4 * (n & 1)
    selector(ab, "v14" if n < 16 else "v15", n & 15)
    e = ("v", n)
    if A.sthr and A.sthr[0] <= n < A.sthr[1]:
        a("s_cmp_eq_u32 s10, 1\ns_cbranch_scc1 L_nt%d\ns_waitcnt vmcnt(%d)\nL_nt%d:" % (n, A.thrT, n))
    if A.thr and n < A.thr:
        a("s_cmp_le_u32 s10, %d\ns_cbranch_scc1 L_nt%d\ns_waitcnt vmcnt(%d)\nL_nt%d:" % (n, n, A.thrT, n))
    ready(e)
    a("v_mfma_f32_16x16x32_bf16 v[40:43], %s, %s, %s" % (t4(ab), t4(reg_of(e)), "0" if n == 0 else "v[40:43]"))
    done(e)

def dma(n, vregs, step):
    for t in range(n):
        a("s_mov_b32 m0, s3")
        a("buffer_load_dwordx4 %s, s[52:55], s13 offen %s lds" % (vregs[t % len(vregs)], A.dmod))
        if t < n - 1:
            a("s_add_u32 s3, s3, 1024")
            a("s_add_u32 s13, s13, %d" % step)

a("v_lshrrev_b32 v16, 2, v46")
a("v_lshlrev_b32 v16, 10, v16")
if A.rot >= 2:
    a("v_add_u32 v17, s76, v44")
    a("v_and_b32 v17, 7, v17")
    a("v_lshl_add_u32 v16, v17, 6, v16")
else:
    a("v_lshl_add_u32 v16, v44, 6, v16")
a("v_lshl_add_u32 v16, v45, 4, v16")
a("v_and_b32 v17, 3, v0")
a("v_lshl_add_u32 v16, v17, 2, v16")
a("v_mul_u32_u24 v18, 2560, v44")
a("v_lshl_add_u32 v18, v46, 5, v18")
a("v_lshl_add_u32 v18, v45, 4, v18")
a("v_bfe_u32 v19, v0, 2, 6")
a("v_mul_u32_u24 v19, 5, v19")
a("v_lshrrev_b32 v20, 8, v0")
a("v_mul_u32_u24 v20, 3, v20")
a("v_add3_u32 v19, v19, v20, v17")
a("v_lshlrev_b32 v19, 3, v19")
a("v_lshlrev_b32 v20, 2, v0")
a("v_mov_b32 v21, 0\nv_mov_b32 v22, 1")
a("s_and_b32 s77, s2, 7\ns_lshl_b32 s75, s77, 7\ns_add_u32 s75, s75, 65536")
a("s_mov_b32 s86, 0x88888888\ns_mov_b32 s87, 0x88888888")
if A.op2:
    for r in range(4):
        a("v_mov_b32_dpp v%d, v%d row_ror:8 row_mask:0xf bank_mask:0xf" % (27 + r, 6 + r))
    if A.lin:
        a("v_mul_u32_u24 v31, %d, v44" % YSTR)
        a("v_lshl_add_u32 v31, v1, 4, v31")
        a("v_and_b32 v11, 0xe0c, v19")
        a("v_bfe_u32 v10, v19, 4, 1")
        a("v_lshl_add_u32 v11, v10, 8, v11")
        a("v_bfe_u32 v10, v19, 5, 4")
        a("v_lshl_add_u32 v19, v10, 4, v11")
    else:
        a("v_mul_u32_u24 v31, 2560, v44")
        a("v_lshrrev_b32 v11, 1, v45")
        a("v_lshl_add_u32 v31, v11, 9, v31")
        a("v_lshl_add_u32 v31, v46, 5, v31")
        a("v_and_b32 v11, 1, v45")
        a("v_lshl_add_u32 v31, v11, 4, v31")
a("v_mul_u32_u24 v5, 80, v44")
a("v_lshrrev_b32 v11, 3, v1")
a("v_add_u32 v5, v5, v11")
a("v_mul_u32_u24 v5, 3456, v5")
a("v_and_b32 v11, 2, v11")
a("v_and_b32 v10, 7, v0")
a("v_xor_b32 v11, v10, v11")
a("v_lshl_add_u32 v25, v11, 4, v5")
a("v_xor_b32 v11, 4, v11")
a("v_lshl_add_u32 v26, v11, 4, v5")
a("s_mul_i32 s3, s26, 10240")
a("s_add_u32 s3, s3, %d" % L_W)
if A.pf:
    a("s_lshr_b32 s84, s2, 3")
    a("s_cmp_ge_u32 s26, 4")
    a("s_cselect_b32 s52, s18, s16\ns_cselect_b32 s53, s19, s17")
    a("s_mov_b32 s54, 2211840\ns_mov_b32 s55, 0x20000")
    a("v_mov_b32 v12, 0x7fffff00")
    a("s_cbranch_scc1 L_pf2")
    a("s_and_b32 s85, s84, 7\ns_mul_i32 s85, s85, 80")
    a("v_lshrrev_b32 v23, 1, v0")
    a("v_add_u32 v23, s85, v23")
    a("v_mul_u32_u24 v23, 3456, v23")
    a("v_and_b32 v13, 1, v0")
    a("v_lshl_add_u32 v23, v13, 6, v23")
    a("s_and_b32 s85, s84, 0x18\ns_add_u32 s85, s85, s77")
    a("s_cmp_lt_u32 s85, 27")
    a("s_cselect_b32 s84, 160, 0")
    a("s_lshl_b32 s85, s85, 7")
    a("v_add_u32 v23, s85, v23")
    a("v_cmp_gt_u32 vcc, s84, v0")
    a("v_cndmask_b32 v23, v12, v23, vcc")
    a("s_branch L_pfdone")
    a("L_pf2:")
    a("s_mul_i32 s84, s84, 54")
    a("v_bfe_u32 v23, v0, 2, 6")
    a("v_add_u32 v23, s84, v23")
    a("v_mul_u32_u24 v23, 1280, v23")
    a("v_lshl_add_u32 v23, v17, 6, v23")
    a("s_mul_i32 s85, s77, 160\ns_and_b32 s85, s85, 0xff80")
    a("v_add_u32 v23, s85, v23")
    a("v_cmp_gt_u32 vcc, %d, v0" % (256 + 216))
    a("v_cndmask_b32 v23, v12, v23, vcc")
    a("L_pfdone:")

if A.codepf2:
    a("s_getpc_b64 s[84:85]")
    a("L_pc2:")
    a("v_lshlrev_b32 v12, 4, v0")
    a("v_add_u32 v12, 1792, v12")
    a("v_min_u32 v12, L_end-L_pc2, v12")
    a("global_load_dword v13, v12, s[84:85]")
if A.sthr:
    a("s_bfe_u32 s10, s36, 0x20008")
if A.LV: A.L = A.LV
if A.tk2:
    st["gate"] = POS[("t", 0)]
    a("s_cmp_eq_u32 s26, %d\ns_cselect_b32 s11, s75, 0x7ffff000" % A.tkwave)
for n in range(32):
    pv(n)
    if A.pf >= 10 and n == A.pf - 10:
        a("buffer_load_dword v24, v23, s[52:55], 0 offen %s" % A.pfmod)
    if n == A.tkpos - 4: a("s_load_dword s89, s[22:23], 0")
    if n == A.tkpos:
        a("s_waitcnt lgkmcnt(0)")
        a("s_cmp_ge_u32 s89, 8")
        a("s_cbranch_scc0 L_initslow")
        a("L_initok:")
        if A.tk2:
            st["gate"] = len(S)
            continue
        if A.static:
            a("s_lshr_b32 s79, s2, 3\ns_xor_b32 s79, s79, 16")
            continue
        a("s_cmp_lg_u32 s26, %d" % A.tkwave)
        a("s_cbranch_scc1 L_notk")
        a("s_mov_b64 exec, 1")
        if A.static:
            a("s_lshr_b32 s84, s2, 3\ns_xor_b32 s84, s84, 16\nv_mov_b32 v22, s84")
        else:
            a("buffer_atomic_add v22, v21, s[48:51], s75 offen sc0 sc1")
        a("s_mov_b64 exec, -1")
        a("L_notk:")
assert st["issued"] == len(S)
stamp()
fine()
if A.pf == 2:
    a("buffer_load_dword v24, v23, s[52:55], 0 offen %s" % A.pfmod)
a("s_mov_b32 exec_hi, 0")
a("ds_write_b128 v47, v[40:43] offset:%d" % L_PART)
if not (A.tk2 or A.static):
    a("s_cmp_lg_u32 s26, %d" % A.tkwave)
    a("s_cbranch_scc1 L_notk2")
    a("s_waitcnt vmcnt(0)")
    a("s_mov_b64 exec, 1")
    a("ds_write_b32 v21, v22 offset:%d" % L_TK)
    a("L_notk2:")
a("s_mov_b64 exec, -1")
a("s_waitcnt lgkmcnt(0)")
a("s_barrier")
fine()
a("ds_read2st64_b32 v[10:11], v16 offset0:%d offset1:%d" % (L_PART // 256, L_PART // 256 + 2))
if A.pf == 1:
    a("buffer_load_dword v24, v23, s[52:55], 0 offen %s" % A.pfmod)
if not (A.tk2 or A.static): a("ds_read_b32 v12, v21 offset:%d" % L_TK)
a("s_waitcnt lgkmcnt(0)")
a("v_add_f32 v10, v10, v11")
if not (A.tk2 or A.static): a("v_readfirstlane_b32 s79, v12")
if A.edma:
    a("s_lshl_b32 s84, s79, 3\ns_add_u32 s84, s84, s77\ns_sub_u32 s84, s84, %d" % FFN2_N)
    a("s_min_u32 s85, s79, 9\ns_cmp_lt_u32 s85, 9\ns_cselect_b32 s84, s84, 99")
    a("s_cmp_ge_u32 s84, %d" % FFN1_N)
    a("s_cbranch_scc1 L_noedma")
    a("s_mov_b32 s52, s16\ns_mov_b32 s53, s17\ns_mov_b32 s54, 2211840\ns_mov_b32 s55, 0x20000")
    a("s_lshl_b32 s13, s84, 7")
    dma(10, ["v25", "v26"], 27648)
    a("L_noedma:")
a("v_add_f32_dpp v10, v10, v10 row_ror:4 row_mask:0xf bank_mask:0xf")
a("v_add_f32_dpp v10, v10, v10 row_ror:8 row_mask:0xf bank_mask:0xf")
a("v_cvt_pk_bf16_f32 v10, v10, v10")
fine()
YA = 128
if A.op3:
    def wr3(cb):
        a("s_mov_b32 exec_hi, 0")
        a("ds_write_b128 v18, %s offset:%d" % (t4(YA + 4 * cb), L_YP + 512 * cb))
        a("s_mov_b32 exec_hi, -1")
    selector(48, "v10", 0)
    selector(52, "v10", 1)
    for cb in range(5):
        for r4 in range(4):
            acc = t4(YA + 4 * cb)
            a("v_mfma_f32_16x16x32_bf16 %s, %s, %s, %s" % (acc, t4(48 + 4 * r4), t4(WO + 4 * (5 * r4 + cb)), "0" if r4 == 0 else acc))
            if cb == 0 and r4 < 2: selector(56 + 4 * r4, "v10", r4 + 2)
        if cb >= 2: wr3(cb - 2)
    wr3(3); wr3(4)
elif A.op2:
    def sel2(r4, hi):
        for r in range(4):
            a("v_and_b32_dpp v%d, v10, v%d row_newbcast:%d row_mask:0xf bank_mask:0xf" % (48 + 8 * r4 + 4 * hi + r, (27 if hi else 6) + r, r4))
    def mm(acc, r4, hi, cb, first):
        a("v_mfma_f32_16x16x32_bf16 %s, %s, %s, %s" % (t4(acc), t4(48 + 8 * r4 + 4 * hi), t4(WO + 4 * (5 * r4 + cb)), "0" if first else t4(acc)))
    if A.op4:
        def and1(r4, hi, r):
            a("v_and_b32_dpp v%d, v10, v%d row_newbcast:%d row_mask:0xf bank_mask:0xf" % (48 + 8 * r4 + 4 * hi + r, (27 if hi else 6) + r, r4))
        if A.op4 == 2: a("s_setprio 1")
        sel2(0, 0); sel2(0, 1)
        for r4 in range(4):
            nxt = [(r4 + 1, hi, r) for hi in range(2) for r in range(4)] if r4 < 3 else []
            for k, (acc, hi, cb) in enumerate([(YA, 0, 0), (YA + 4, 0, 2), (YA + 8, 0, 4), (YA, 1, 1), (YA + 4, 1, 3)]):
                mm(acc, r4, hi, cb, r4 == 0 and hi == 0)
                for x in nxt[2 * k:2 * k + 2]: and1(*x)
        if A.op4 == 2: a("s_setprio 0")
        a("s_mov_b32 exec_hi, 0")
        a("ds_write_b128 v31, %s offset:%d" % (t4(YA + 8), L_YP + 2048))
        a("s_mov_b64 exec, -1")
        a("ds_write_b128 v31, %s offset:%d" % (t4(YA), L_YP))
        a("ds_write_b128 v31, %s offset:%d" % (t4(YA + 4), L_YP + 1024))
    else:
        sel2(0, 0); sel2(0, 1)
        for r4 in range(4):
            mm(YA, r4, 0, 0, r4 == 0)
            if r4 < 3: sel2(r4 + 1, 0)
            mm(YA, r4, 1, 1, False)
            if r4 < 3: sel2(r4 + 1, 1)
        for r4 in range(4):
            mm(YA + 4, r4, 0, 2, r4 == 0)
            mm(YA + 4, r4, 1, 3, False)
        a("ds_write_b128 v31, %s offset:%d" % (t4(YA), L_YP))
        for r4 in range(4):
            mm(YA + 8, r4, 0, 4, r4 == 0)
        a("ds_write_b128 v31, %s offset:%d" % (t4(YA + 4), L_YP + 1024))
    if not A.op4:
        a("s_mov_b32 exec_hi, 0")
        a("ds_write_b128 v31, %s offset:%d" % (t4(YA + 8), L_YP + 2048))
        a("s_mov_b64 exec, -1")
else:
    for r4 in range(4):
        ab = 32 + 4 * (r4 & 1)
        selector(ab, "v10", r4)
        for cb in range(5):
            acc = t4(YA + 4 * cb)
            a("v_mfma_f32_16x16x32_bf16 %s, %s, %s, %s" % (acc, t4(ab), t4(WO + 4 * (5 * r4 + cb)), "0" if r4 == 0 else acc))
    a("s_mov_b32 exec_hi, 0")
    for cb in range(5):
        a("ds_write_b128 v18, %s offset:%d" % (t4(YA + 4 * cb), L_YP + 512 * cb))
    a("s_mov_b64 exec, -1")
if A.pf == 3:
    a("buffer_load_dword v24, v23, s[52:55], 0 offen %s" % A.pfmod)
fine()
a("s_lshl_b32 s84, s76, 12")
a("s_waitcnt lgkmcnt(0)")
fine()
if A.fine: a("s_waitcnt lgkmcnt(0)")
a("s_barrier")
fine()
if A.fine: a("s_waitcnt lgkmcnt(0)")
YS = 148
for w in range(8):
    a("ds_read_b64 v[%d:%d], v19 offset:%d" % (YS + 2 * w, YS + 2 * w + 1, L_YP + YSTR * w))
for s_ in (4, 2, 1):
    for w in range(s_):
        if s_ == 4: a("s_waitcnt lgkmcnt(%d)" % (3 - w))
        a("v_pk_add_f32 v[%d:%d], v[%d:%d], v[%d:%d]" % (YS + 2 * w, YS + 2 * w + 1, YS + 2 * w, YS + 2 * w + 1, YS + 2 * (w + s_), YS + 2 * (w + s_) + 1))
a("v_cndmask_b32 v10, v%d, 1.0, s[86:87]" % YS)
a("v_cndmask_b32 v11, v%d, 1.0, s[86:87]" % (YS + 1))
a("buffer_atomic_add_f32 v10, v20, s[48:51], s84 offen")
a("buffer_atomic_add_f32 v11, v20, s[48:51], s84 offen offset:2048")
if A.pf == 4:
    a("buffer_load_dword v24, v23, s[52:55], 0 offen %s" % A.pfmod)
fine()
stamp()
if A.fine:
    for k, sl in enumerate((93, 94, 95, 98, 99, 100)):
        a("s_sub_u32 s%d, s%d, s%d" % (sl, FINE[k + 1], FINE[k]))
    a("s_mov_b32 s27, 99\ns_branch L_fin")
a("s_mov_b32 s27, 99")
if A.tk2:
    a("s_cmp_lg_u32 s26, %d" % A.tkwave)
    a("s_cbranch_scc1 L_notk2")
    a("s_waitcnt vmcnt(%d)" % (3 if A.pf in (1, 2, 3, 4) else 2))
    a("s_mov_b64 exec, 1")
    a("ds_write_b32 v21, v22 offset:%d" % L_TK)
    a("s_mov_b64 exec, -1")
    a("s_waitcnt lgkmcnt(0)")
    a("L_notk2:")
    a("s_barrier")
    a("ds_read_b32 v12, v21 offset:%d" % L_TK)
    a("s_waitcnt lgkmcnt(0)")
    a("v_readfirstlane_b32 s79, v12")
    a("s_cmp_ge_u32 s79, 9")
    a("s_cbranch_scc1 L_fin")
else:
    a("s_cmp_ge_u32 s79, 9")
    a("s_cbranch_scc1 L_fin")
    a("s_barrier")
a("s_mov_b32 s54, 2211840\ns_mov_b32 s55, 0x20000")
a("s_mov_b32 s85, 0x42000000")
a("s_mov_b32 s88, 0")
a("v_and_b32 v10, 7, v0")
a("s_mul_i32 s27, s77, 5\ns_add_u32 s27, s27, s79")
a("s_cmp_lt_u32 s79, 5")
a("s_cbranch_scc1 L_ffn2")
a("s_lshl_b32 s27, s79, 3\ns_add_u32 s27, s27, s77")
a("s_cmp_ge_u32 s27, %d" % (FFN2_N + FFN1_N))
a("s_cbranch_scc1 L_fin")

AF = 48; BF = 128; XF = 208; GR = 220
a("s_sub_u32 s79, s27, %d" % FFN2_N)
a("s_mov_b32 s52, s16\ns_mov_b32 s53, s17")
a("s_lshl_b32 s13, s79, 7")
if not A.edma:
    dma(10, ["v25", "v26"], 27648)
a("v_mul_u32_u24 v23, 20, v1")
a("v_mul_u32_u24 v21, 1280, v44")
a("v_add_u32 v21, v21, v23")
XR = 248
a("buffer_load_dwordx4 v[%d:%d], v21, s[44:47], 0 offen" % (XR, XR + 3))
a("buffer_load_dword v%d, v21, s[44:47], 0 offen offset:16" % (XR + 4))
a("v_lshlrev_b32 v22, 12, v44")
a("v_lshl_add_u32 v22, v1, 4, v22")
def poll1_issue():
    for m in range(4):
        a("buffer_load_dwordx4 %s, v22, s[48:51], 0 offen offset:%d %s" % (t4(GR + 4 * m), 1024 * m, A.pmod))
if not A.nopre: poll1_issue()
a("v_mul_u32_u24 v11, %d, v44" % HN_STRIDE)
a("v_add_u32 v23, v23, v11")
a("v_add_u32 v35, %d, v23" % L_HN)
a("v_mul_u32_u24 v29, %d, v10" % HN_STRIDE)
a("v_lshl_add_u32 v29, v45, 4, v29")
a("v_lshlrev_b32 v30, 4, v10")
a("v_lshl_add_u32 v30, v44, 8, v30")
a("v_lshrrev_b32 v11, 1, v45")
a("v_lshl_add_u32 v30, v11, 7, v30")
a("v_and_b32 v11, 1, v45")
a("v_lshl_add_u32 v30, v11, 3, v30")
a("v_lshrrev_b32 v12, 2, v46")
a("v_lshl_add_u32 v12, v45, 3, v12")
a("v_lshlrev_b32 v12, 7, v12")
a("v_lshrrev_b32 v13, 3, v46")
a("v_lshl_add_u32 v13, v11, 1, v13")
a("v_and_b32 v11, 3, v44")
a("v_xor_b32 v11, v11, v13")
a("v_lshl_add_u32 v12, v11, 5, v12")
a("v_lshl_add_u32 v12, v17, 3, v12")
a("v_add_u32 v12, %d, v12" % L_W)
a("v_add_u32 v13, 40960, v12")
if A.warm1:
    a("s_mov_b32 s78, 0")
    a("s_branch L_f1_body")
    a("L_f1_resume:")
a("s_waitcnt vmcnt(%d)" % ((0 if A.nopre else 4) + (4 if A.edma else 0)))
if A.stamp and A.st8 == "dma":
    a("s_memrealtime s[90:91]\ns_waitcnt lgkmcnt(0)\ns_mov_b32 s100, s90")
a("s_barrier")
a("s_cmp_ge_u32 s26, 4")
a("s_cbranch_scc1 L_notr")
for ks in range(20):
    base, off = ("v12", ks * 4096) if ks < 10 else ("v13", (ks - 10) * 4096)
    a("ds_read_b64_tr_b16 v[%d:%d], %s offset:%d" % (AF + 4 * ks, AF + 4 * ks + 1, base, off))
    a("ds_read_b64_tr_b16 v[%d:%d], %s offset:%d" % (AF + 4 * ks + 2, AF + 4 * ks + 3, base, off + 512))
a("L_notr:")
if A.nopre and not A.light: poll1_issue()
if A.light: a("v_mov_b32 v%d, 0" % (GR + 3))
if A.edma: a("s_waitcnt vmcnt(4)")
for k in range(5):
    a("v_lshlrev_b32 v%d, 16, v%d" % (XF + 2 * k, XR + k))
    a("v_and_b32 v%d, 0xffff0000, v%d" % (XF + 2 * k + 1, XR + k))
if A.light:
    import struct as _st
    a("s_mov_b32 s84, 0x%08x" % _st.unpack("<I", _st.pack("<f", float(A.light)))[0])
    a("s_waitcnt vmcnt(0)")
    a("s_mov_b32 s78, 1")
    a("s_mov_b64 exec, 1")
    a("L_light:")
    a("v_cmp_gt_f32 vcc, s84, v%d" % (GR + 3))
    a("s_add_u32 s88, s88, 1")
    a("s_cmp_gt_u32 s88, %d" % SPIN_MAX)
    a("s_cbranch_scc1 L_light_done")
    a("s_cbranch_vccz L_light_done")
    if A.sleep: a("s_sleep %d" % A.sleep)
    a("buffer_load_dword v%d, v22, s[48:51], 0 offen offset:12 %s" % (GR + 3, A.pmod))
    a("s_waitcnt vmcnt(0)")
    a("s_branch L_light")
    a("L_light_done:")
    a("s_mov_b64 exec, -1")
elif A.warm:
    a("s_mov_b32 s78, 0")
    a("s_waitcnt vmcnt(0)")
    a("s_branch L_f1_body")
else:
    a("s_mov_b32 s78, 1")
    a("s_branch L_poll1_chk")
if A.D1:
    sets = [GR] + [BF + 16 * k for k in range(A.D1 - 1)]
    def p1(g):
        for m in range(4):
            a("buffer_load_dwordx4 %s, v22, s[48:51], 0 offen offset:%d %s" % (t4(g + 4 * m), 1024 * m, A.pmod))
    a("L_poll1_chk:")
    for g in sets[1:]:
        if A.pace: a("s_sleep %d" % A.pace)
        p1(g)
    a("L_poll1:")
    for k, g in enumerate(sets):
        a("s_waitcnt vmcnt(%d)" % (4 * (A.D1 - 1)))
        a("v_min_f32 v31, v%d, v%d" % (g + 3, g + 7))
        a("v_min3_f32 v31, v31, v%d, v%d" % (g + 11, g + 15))
        a("v_cmp_ne_u32 vcc, s85, v31")
        a("s_cbranch_vccz L_p1x%d" % k)
        if A.pace: a("s_sleep %d" % A.pace)
        p1(g)
    a("s_add_u32 s88, s88, 1")
    a("s_cmp_gt_u32 s88, %d" % SPIN_MAX)
    a("s_cbranch_scc0 L_poll1")
    for k, g in reversed(list(enumerate(sets))):
        a("L_p1x%d:" % k)
        for q, (x, y) in enumerate([(0, 8), (1, 9), (2, 10), (4, 12), (5, 13)]):
            a("v_cvt_pk_bf16_f32 v%d, v%d, v%d" % (24 + q, g + x, g + y))
        if k: a("s_branch L_p1done")
    a("L_p1done:")
    stamp()
    XH = 238
    GR = 10
else:
    a("L_poll1:")
    poll1_issue()
    a("L_poll1_chk:")
    a("s_add_u32 s88, s88, 1")
    a("s_waitcnt vmcnt(0)")
    a("v_min_f32 v31, v%d, v%d" % (GR + 3, GR + 7))
    a("v_min3_f32 v31, v31, v%d, v%d" % (GR + 11, GR + 15))
    a("v_cmp_ne_u32 vcc, s85, v31")
    a("s_cmp_gt_u32 s88, %d" % SPIN_MAX)
    a("s_cbranch_scc1 L_poll1_done")
    a("s_cbranch_vccnz L_poll1")
    a("L_poll1_done:")
    stamp()
    a("L_f1_body:")
    XH = 238
    pairs = [(GR + 0, GR + 8), (GR + 1, GR + 9), (GR + 2, GR + 10), (GR + 4, GR + 12), (GR + 5, GR + 13)]
    for k in range(5):
        a("v_cvt_pk_bf16_f32 v%d, v%d, v%d" % (24 + k, pairs[k][0], pairs[k][1]))
if A.ln1:
    def pk(op, d, x, y, extra=""):
        a("%s v[%d:%d], v[%d:%d], v[%d:%d]%s" % (op, d, d + 1, x, x + 1, y, y + 1, extra))
    def unpack(d, src):
        a("v_lshlrev_b32 v%d, 16, v%d" % (d, src)); a("v_and_b32 v%d, 0xffff0000, v%d" % (d + 1, src))
    for k in range(5): unpack(GR + 2 * k, 24 + k)
    for k in range(5): pk("v_pk_add_f32", GR + 2 * k, GR + 2 * k, XF + 2 * k)
    for k in range(5): a("v_cvt_pk_bf16_f32 v%d, v%d, v%d" % (24 + k, GR + 2 * k, GR + 2 * k + 1))
    a("s_mov_b32 s12, 0x3f803f80")
    for k in range(5):
        a("v_dot2_f32_bf16 v32, v%d, s12, %s" % (24 + k, "0" if k == 0 else "v32"))
        a("v_dot2_f32_bf16 v33, v%d, v%d, %s" % (24 + k, 24 + k, "0" if k == 0 else "v33"))
    fill = [("v_lshlrev_b32 v%d, 16, v%d" % (XH + 2 * k, 24 + k), "v_and_b32 v%d, 0xffff0000, v%d" % (XH + 2 * k + 1, 24 + k)) for k in range(5)]
    fill = [x for pr in fill for x in pr]
    a(fill.pop(0)); a(fill.pop(0)); a(fill.pop(0))
    for m in ("quad_perm:[1,0,3,2] row_mask:0xf", "quad_perm:[2,3,0,1] row_mask:0xf", "row_half_mirror row_mask:0xf",
              "row_mirror row_mask:0xf", "row_bcast:15 row_mask:0xa", "row_bcast:31 row_mask:0xc"):
        a("v_add_f32_dpp v32, v32, v32 %s bank_mask:0xf" % m)
        a("v_add_f32_dpp v33, v33, v33 %s bank_mask:0xf" % m)
        a(fill.pop(0))
    a("v_readlane_b32 s84, v32, 63")
    a("v_readlane_b32 s12, v33, 63")
    a(fill.pop(0))
    a("v_mov_b32 v33, 0x3acccccd")
    a("v_mul_f32 v38, s84, v33")
    a("v_mul_f32 v32, s12, v33")
    a("v_fma_f32 v32, -v38, v38, v32")
    a("v_max_f32 v32, 0, v32")
    a("v_cvt_pk_bf16_f32 v32, v32, v38")
    a("v_and_b32 v38, 0xffff0000, v32")
    a("v_lshlrev_b32 v32, 16, v32")
    a("v_add_f32 v32, 0x3727c5ac, v32")
    a("v_mov_b32 v39, v38")
    a("v_cvt_pk_bf16_f32 v32, v32, v32")
    for k in range(2): pk("v_pk_add_f32", XH + 2 * k, XH + 2 * k, 38, " neg_lo:[0,1] neg_hi:[0,1]")
    a("v_lshlrev_b32 v32, 16, v32")
    a("v_sqrt_f32 v32, v32")
    for k in range(2, 5): pk("v_pk_add_f32", XH + 2 * k, XH + 2 * k, 38, " neg_lo:[0,1] neg_hi:[0,1]")
    a("v_cvt_pk_bf16_f32 v32, v32, v32")
    for k in range(5): a("v_cvt_pk_bf16_f32 v%d, v%d, v%d" % (24 + k, XH + 2 * k, XH + 2 * k + 1))
    a("v_lshlrev_b32 v32, 16, v32")
    a("v_rcp_f32 v36, v32")
    for k in range(5): unpack(XH + 2 * k, 24 + k)
    a("v_mov_b32 v37, v36")
    for k in range(5): pk("v_pk_mul_f32", XH + 2 * k, XH + 2 * k, 36)
    for k in range(5): a("v_cvt_pk_bf16_f32 v%d, v%d, v%d" % (24 + k, XH + 2 * k, XH + 2 * k + 1))
    a("v_add_u32 v23, %d, v23" % L_HN) if False else None
    a("ds_write2_b32 v35, v24, v25 offset0:0 offset1:1")
    a("ds_write2_b32 v35, v26, v27 offset0:2 offset1:3")
    a("ds_write_b32 v35, v28 offset:16")
else:
    for k in range(5):
        a("v_lshlrev_b32 v%d, 16, v%d" % (GR + 2 * k, 24 + k))
        a("v_and_b32 v%d, 0xffff0000, v%d" % (GR + 2 * k + 1, 24 + k))
    for k in range(10):
        a("v_add_f32 v%d, v%d, v%d" % (GR + k, GR + k, XF + k))
    for k in range(5):
        a("v_cvt_pk_bf16_f32 v%d, v%d, v%d" % (24 + k, GR + 2 * k, GR + 2 * k + 1))
    for k in range(5):
        a("v_lshlrev_b32 v%d, 16, v%d" % (XH + 2 * k, 24 + k))
        a("v_and_b32 v%d, 0xffff0000, v%d" % (XH + 2 * k + 1, 24 + k))
    ln_stats(["v%d" % (XH + k) for k in range(10)], ["v31", "v32", "v33"], "v38", "v39")
    for k in range(10):
        a("v_sub_f32 v%d, v%d, v38" % (XH + k, XH + k))
    for k in range(5):
        a("v_cvt_pk_bf16_f32 v%d, v%d, v%d" % (24 + k, XH + 2 * k, XH + 2 * k + 1))
    for k in range(5):
        a("v_lshlrev_b32 v%d, 16, v%d" % (XH + 2 * k, 24 + k))
        a("v_and_b32 v%d, 0xffff0000, v%d" % (XH + 2 * k + 1, 24 + k))
    for k in range(10):
        a("v_mul_f32 v%d, v%d, v39" % (XH + k, XH + k))
    for k in range(5):
        a("v_cvt_pk_bf16_f32 v%d, v%d, v%d" % (24 + k, XH + 2 * k, XH + 2 * k + 1))
        a("ds_write_b32 v23, v%d offset:%d" % (24 + k, L_HN + 4 * k))
a("s_waitcnt lgkmcnt(0)")
a("s_barrier")
if A.stamp and A.st8 == "hn":
    a("s_memrealtime s[90:91]\ns_waitcnt lgkmcnt(0)\ns_mov_b32 s100, s90")
a("s_cmp_ge_u32 s26, 4")
a("s_cbranch_scc1 L_f1_skip")
if A.D1: a("s_waitcnt vmcnt(0)")
GR = 220
for ks in range(20):
    a("ds_read_b128 %s, v29 offset:%d" % (t4(BF + 4 * ks), L_HN + 64 * ks))
for ks in range(20):
    a("s_waitcnt lgkmcnt(%d)" % min(15, 19 - ks))
    a("v_mfma_f32_16x16x32_bf16 v[40:43], %s, %s, %s" % (t4(AF + 4 * ks), t4(BF + 4 * ks), "0" if ks == 0 else "v[40:43]"))
a("s_lshl_b32 s84, s79, 10")
a("s_mov_b32 exec_lo, 0x00ff00ff\ns_mov_b32 exec_hi, 0x00ff00ff")
for r in range(4):
    a("v_max_f32 v%d, 0, v%d" % (40 + r, 40 + r))
a("v_cvt_pk_bf16_f32 v40, v40, v41")
a("v_cvt_pk_bf16_f32 v41, v42, v43")
W1 = A.warm or A.warm1
if W1:
    a("s_cmp_eq_u32 s78, 0")
    a("s_cbranch_scc1 L_f1_nost")
a("buffer_store_dwordx2 v[40:41], v30, s[60:63], s84 offen %s" % A.pmod)
a("L_f1_nost:")
a("s_mov_b64 exec, -1")
stamp()
a("L_f1_skip:")
if W1:
    a("s_cmp_eq_u32 s78, 0")
    a("s_cbranch_scc0 L_fin")
if not W1:
    a("s_branch L_fin" if A.stamp else "s_endpgm")
elif A.warm1:
    a("s_branch L_f1_resume")
else:
    a("s_mov_b32 s78, 1")
    a("s_barrier")
    a("s_branch L_poll1")

if A.stamp: stamp_idx[0] = 6
a("L_ffn2:")
a("s_mov_b32 s52, s18\ns_mov_b32 s53, s19")
a("s_lshl_b32 s13, s27, 5")
a("s_mov_b32 s79, s13")
a("v_lshrrev_b32 v5, 1, v0")
a("v_mul_u32_u24 v5, 1280, v5")
a("v_and_b32 v11, 1, v0")
a("v_lshl_add_u32 v5, v11, 4, v5")
dma(7 - A.late2, ["v5"], 327680)
a("v_mul_u32_u24 v21, 1280, v10")
a("v_lshl_add_u32 v21, v45, 3, v21")
a("buffer_load_dwordx2 v[24:25], v21, s[44:47], s79 offen")
a("v_mul_u32_u24 v12, 10240, v44")
a("v_lshl_add_u32 v12, v45, 8, v12")
a("v_lshl_add_u32 v12, v46, 3, v12")
a("v_add_u32 v12, %d, v12" % L_W)
a("v_lshlrev_b32 v22, 9, v44")
a("v_lshl_add_u32 v22, v45, 7, v22")
a("v_lshl_add_u32 v22, v10, 4, v22")
a("v_lshlrev_b32 v16, 4, v0")
a("v_lshlrev_b32 v17, 4, v1")
if A.fin2:
    a("v_bfe_u32 v11, v0, 3, 1")
    a("v_mul_u32_u24 v11, %d, v11" % (4096 - 128))
    a("v_add_u32 v17, v17, v11")
a("s_mov_b32 s78, 1")
if A.warm or A.warm2:
    a("s_mov_b32 s78, 0")
    a("s_branch L_f2_body")
    a("L_f2_real:")
    a("s_mov_b32 s78, 1")
a("s_cmp_lg_u32 s26, 0")
a("s_cbranch_scc1 L_ffn2_noh")
a("s_lshl_b32 s84, s27, 4")
a("v_lshlrev_b32 v11, 2, v45")
a("v_add_u32 v11, s84, v11")
for r in range(4):
    a("v_add_u32 v13, %d, v11" % r)
    a("v_mul_u32_u24 v29, 205, v13")
    a("v_lshrrev_b32 v29, 11, v29")
    a("v_mul_u32_u24 v30, 10, v29")
    a("v_sub_u32 v13, v13, v30")
    a("v_and_b32 v30, 1, v13")
    a("v_lshrrev_b32 v13, 1, v13")
    a("v_mul_u32_u24 v31, 11, v13")
    a("v_lshrrev_b32 v31, 5, v31")
    a("v_lshl_add_u32 v30, v30, 1, v31")
    a("v_mul_u32_u24 v31, 3, v31")
    a("v_sub_u32 v%d, v13, v31" % (XF + 4 + r))
    a("v_lshl_add_u32 v29, v30, 6, v29")
    a("v_lshlrev_b32 v29, 4, v29")
    a("v_lshl_add_u32 v%d, v10, 12, v29" % (XF + r))
if A.light or A.light2:
    a("v_lshlrev_b32 v29, 12, v10")
    a("s_mov_b32 s84, 0x42000000")
    a("s_mov_b64 exec, 0xff")
    a("L_light2:")
    a("buffer_load_dword v30, v29, s[48:51], 0 offen offset:12 %s" % A.pmod)
    a("s_add_u32 s88, s88, 1")
    a("s_waitcnt vmcnt(0)")
    a("v_cmp_gt_f32 vcc, s84, v30")
    a("s_cmp_gt_u32 s88, %d" % SPIN_MAX)
    a("s_cbranch_scc1 L_light2_done")
    a("s_cbranch_vccnz L_light2")
    a("L_light2_done:")
    a("s_mov_b64 exec, -1")
a("L_poll2h:")
if A.sleep: a("s_sleep %d" % A.sleep)
for r in range(4):
    a("buffer_load_dwordx4 %s, v%d, s[48:51], 0 offen %s" % (t4(GR + 4 * r), XF + r, A.pmod))
a("s_add_u32 s88, s88, 1")
a("s_waitcnt vmcnt(0)")
a("v_min_f32 v31, v%d, v%d" % (GR + 3, GR + 7))
a("v_min3_f32 v31, v31, v%d, v%d" % (GR + 11, GR + 15))
a("v_cmp_ne_u32 vcc, s85, v31")
a("s_cmp_gt_u32 s88, %d" % SPIN_MAX)
a("s_cbranch_scc1 L_poll2h_done")
a("s_cbranch_vccnz L_poll2h")
a("L_poll2h_done:")
for r in range(4):
    a("v_cmp_eq_u32 vcc, 1, v%d" % (XF + 4 + r))
    a("v_cndmask_b32 v%d, v%d, v%d, vcc" % (GR + 4 * r, GR + 4 * r, GR + 4 * r + 1))
    a("v_cmp_eq_u32 vcc, 2, v%d" % (XF + 4 + r))
    a("v_cndmask_b32 v%d, v%d, v%d, vcc" % (GR + 4 * r, GR + 4 * r, GR + 4 * r + 2))
for k in range(2):
    a("v_cvt_pk_bf16_f32 v31, v%d, v%d" % (GR + 8 * k, GR + 8 * k + 4))
    a("v_lshlrev_b32 v32, 16, v31")
    a("v_and_b32 v33, 0xffff0000, v31")
    a("v_lshlrev_b32 v34, 16, v%d" % (24 + k))
    a("v_and_b32 v35, 0xffff0000, v%d" % (24 + k))
    a("v_add_f32 v32, v32, v34")
    a("v_add_f32 v33, v33, v35")
    a("v_cvt_pk_bf16_f32 v31, v32, v33")
    a("v_lshlrev_b32 v%d, 16, v31" % (XF + 2 * k))
    a("v_and_b32 v%d, 0xffff0000, v31" % (XF + 1 + 2 * k))
a("L_ffn2_noh:")
a("s_waitcnt vmcnt(0)")
def f2_frags(rng=None):
    for t in (rng if rng is not None else range(7 - A.late2)):
        a("ds_read_b64_tr_b16 v[%d:%d], v12 offset:%d" % (AF + 4 * t, AF + 4 * t + 1, 1024 * t))
        a("ds_read_b64_tr_b16 v[%d:%d], v12 offset:%d" % (AF + 4 * t + 2, AF + 4 * t + 3, 1024 * t + 128))
if not A.defer2: f2_frags()
stamp()
if A.f2bar:
    a("s_barrier")
if A.late2:
    a("s_add_u32 s3, s3, 1024\ns_add_u32 s13, s13, 327680")
    dma(A.late2, ["v5"], 327680)
if A.defer2:
    f2_frags()
    a("s_waitcnt lgkmcnt(0)")
a("s_mov_b32 s88, 0")
if A.D2:
    sets = [80 + 28 * k for k in range(A.D2)]
    assert sets[-1] + 28 <= XF
    def p2(g):
        for t in range(7):
            a("buffer_load_dwordx4 %s, v22, s[60:63], %s offen %s" % (t4(g + 4 * t), soff(4096 * t)[0], A.pmod))
    if A.m2:
        a("s_mov_b32 exec_lo, 0x00ff00ff\ns_mov_b32 exec_hi, 0x00ff00ff")
    for k, g in enumerate(sets):
        if A.pace and k: a("s_sleep %d" % A.pace)
        p2(g)
    a("s_waitcnt lgkmcnt(0)")
    a("L_poll2:")
    for k, g in enumerate(sets):
        a("s_waitcnt vmcnt(%d)" % (7 * (A.D2 - 1)))
        a("v_max3_u32 v31, v%d, v%d, v%d" % (g, g + 1, g + 2))
        a("v_max3_u32 v32, v%d, v%d, v%d" % (g + 3, g + 4, g + 5))
        for q in range(6, 26, 4):
            a("v_max3_u32 v31, v31, v%d, v%d" % (g + q, g + q + 1))
            a("v_max3_u32 v32, v32, v%d, v%d" % (g + q + 2, g + q + 3))
        a("v_max3_u32 v31, v31, v%d, v%d" % (g + 26, g + 27))
        a("v_max_u32 v31, v31, v32")
        a("v_cmp_eq_u32 vcc, -1, v31")
        a("s_cbranch_vccz L_p2x%d" % k)
        if A.pace: a("s_sleep %d" % A.pace)
        p2(g)
    a("s_add_u32 s88, s88, 1")
    a("s_cmp_gt_u32 s88, %d" % SPIN_MAX)
    a("s_cbranch_scc0 L_poll2")
    for k, g in reversed(list(enumerate(sets))):
        a("L_p2x%d:" % k)
        if A.m2: a("s_mov_b64 exec, -1")
        for t in range(7):
            a("v_mfma_f32_16x16x32_bf16 v[40:43], %s, %s, %s" % (t4(AF + 4 * t), t4(g + 4 * t), "0" if t == 0 else "v[40:43]"))
        if k: a("s_branch L_p2done")
    a("L_p2done:")
    a("s_nop 7")
    stamp()
else:
    if A.m2:
        for q in range(28): a("v_mov_b32 v%d, 0" % (BF + q))
        a("s_mov_b32 exec_lo, 0x00ff00ff\ns_mov_b32 exec_hi, 0x00ff00ff")
    if A.first2: a("s_sleep %d" % A.first2)
    a("L_poll2:")
    if A.bo2: a("s_sleep %d" % A.bo2)
    for t in range(7):
        a("buffer_load_dwordx4 %s, v22, s[60:63], %s offen %s" % (t4(BF + 4 * t), soff(4096 * t)[0], A.pmod))
    a("s_add_u32 s88, s88, 1")
    a("s_waitcnt lgkmcnt(0)" if A.fin2 else "s_waitcnt vmcnt(0) lgkmcnt(0)")
    if A.fin2:
        a("s_mov_b64 exec, -1")
        for t in range(7):
            a("s_waitcnt vmcnt(%d)" % (6 - t))
            a("v_mfma_f32_16x16x32_bf16 v[40:43], %s, %s, %s" % (t4(AF + 4 * t), t4(BF + 4 * t), "0" if t == 0 else "v[40:43]"))
            if t == 0: a("v_max3_u32 v31, v%d, v%d, v%d\nv_mov_b32 v32, v%d" % (BF, BF + 1, BF + 2, BF + 3))
            else: a("v_max3_u32 v31, v31, v%d, v%d\nv_max3_u32 v32, v32, v%d, v%d" % (BF + 4 * t, BF + 4 * t + 1, BF + 4 * t + 2, BF + 4 * t + 3))
        a("v_max_u32 v31, v31, v32")
        a("v_cmp_eq_u32 vcc, -1, v31")
        a("s_mov_b32 exec_lo, 0x00ff00ff\ns_mov_b32 exec_hi, 0x00ff00ff")
        a("s_cmp_gt_u32 s88, %d" % SPIN_MAX)
        a("s_cbranch_scc1 L_poll2_done")
        a("s_cbranch_vccnz L_poll2")
        a("L_poll2_done:")
        a("s_mov_b64 exec, -1")
        stamp()
        a("L_f2_body:")
    else:
        a("v_max_u32 v31, v%d, v%d" % (BF, BF + 1))
        a("v_max_u32 v32, v%d, v%d" % (BF + 2, BF + 3))
        for k in range(4, 28, 4):
            a("v_max3_u32 v31, v31, v%d, v%d" % (BF + k, BF + k + 1))
            a("v_max3_u32 v32, v32, v%d, v%d" % (BF + k + 2, BF + k + 3))
        a("v_max_u32 v31, v31, v32")
        a("v_cmp_eq_u32 vcc, -1, v31")
        a("s_cmp_gt_u32 s88, %d" % SPIN_MAX)
        a("s_cbranch_scc1 L_poll2_done")
        a("s_cbranch_vccnz L_poll2")
        a("L_poll2_done:")
        if A.m2: a("s_mov_b64 exec, -1")
        if A.late2:
            f2_frags(range(7 - A.late2, 7))
        stamp()
        a("L_f2_body:")
        for t in range(7):
            if A.late2 and t >= 7 - A.late2: a("s_waitcnt lgkmcnt(%d)" % (2 * (6 - t)))
            a("v_mfma_f32_16x16x32_bf16 v[40:43], %s, %s, %s" % (t4(AF + 4 * t), t4(BF + 4 * t), "0" if t == 0 else "v[40:43]"))
a("ds_write_b128 v16, v[40:43] offset:%d" % L_FP)
a("s_waitcnt lgkmcnt(0)")
a("s_barrier")
a("s_cmp_lg_u32 s26, 0")
a("s_cbranch_scc1 L_f2_skip")
if A.fin2:
    for w in range(4):
        a("ds_read_b128 %s, v17 offset:%d" % (t4(AF + 4 * w), L_FP + 1024 * w))
    for w in range(2):
        a("s_waitcnt lgkmcnt(%d)" % (2 - 2 * w))
        for r in (0, 2):
            a("v_pk_add_f32 v[%d:%d], v[%d:%d], v[%d:%d]" % (AF + 8 * w + r, AF + 8 * w + r + 1, AF + 8 * w + r, AF + 8 * w + r + 1, AF + 8 * w + 4 + r, AF + 8 * w + 4 + r + 1))
    for r in (0, 2):
        a("v_pk_add_f32 v[%d:%d], v[%d:%d], v[%d:%d]" % (AF + r, AF + r + 1, AF + r, AF + r + 1, AF + 8 + r, AF + 8 + r + 1))
    for r in range(4):
        a("v_add_f32_dpp v%d, v%d, v%d row_ror:8 row_mask:0xf bank_mask:0xf" % (AF + r, AF + r, AF + r))
else:
    for w in range(8):
        a("ds_read_b128 %s, v17 offset:%d" % (t4(AF + 4 * w), L_FP + 1024 * w))
    a("s_waitcnt lgkmcnt(0)")
    for s_ in (4, 2, 1):
        for w in range(s_):
            for r in range(0, 4, 2):
                a("v_pk_add_f32 v[%d:%d], v[%d:%d], v[%d:%d]" % (AF + 4 * w + r, AF + 4 * w + r + 1, AF + 4 * w + r, AF + 4 * w + r + 1, AF + 4 * (w + s_) + r, AF + 4 * (w + s_) + r + 1))
a("s_mov_b32 exec_lo, 0x00ff00ff\ns_mov_b32 exec_hi, 0x00ff00ff")
for k in range(2):
    a("v_cvt_pk_bf16_f32 v31, v%d, v%d" % (AF + 2 * k, AF + 2 * k + 1))
    a("v_lshlrev_b32 v32, 16, v31")
    a("v_and_b32 v33, 0xffff0000, v31")
    a("v_add_f32 v32, v32, v%d" % (XF + 2 * k))
    a("v_add_f32 v33, v33, v%d" % (XF + 1 + 2 * k))
    a("v_cvt_pk_bf16_f32 v%d, v32, v33" % (40 + k))
if A.warm or A.warm2:
    a("s_cmp_eq_u32 s78, 0")
    a("s_cbranch_scc1 L_f2_nost")
a("buffer_store_dwordx2 v[40:41], v21, s[56:59], s79 offen %s" % A.outmod)
a("L_f2_nost:")
a("s_mov_b64 exec, -1")
a("L_f2_skip:")
if A.warm or A.warm2:
    a("s_cmp_eq_u32 s78, 0")
    a("s_cbranch_scc1 L_f2_real")
if A.diagnum:
    a("v_mov_b32 v26, 0")
    a("buffer_load_dword v27, v26, s[64:67], 0 offen offset:32 sc0 sc1\ns_waitcnt vmcnt(0)")
    a("v_readfirstlane_b32 s84, v27\ns_bcnt1_i32_b32 s84, s84\ns_cmp_eq_u32 s84, 1\ns_cbranch_scc1 L_fin")
    a("s_memrealtime s[90:91]\ns_waitcnt lgkmcnt(0)\ns_add_u32 s85, s90, 10000")
    a("L_dly:\ns_memrealtime s[90:91]\ns_waitcnt lgkmcnt(0)\ns_sub_u32 s84, s85, s90\ns_cmp_lt_i32 s84, 0\ns_cbranch_scc0 L_dly")
if A.amp >= 0:
    a("s_cmp_lg_u32 s26, 0\ns_cbranch_scc1 L_fin")
    a("s_memrealtime s[90:91]\ns_waitcnt lgkmcnt(0)\ns_mov_b32 s101, s90")
    if A.ampA:
        a("s_load_dword s93, s[24:25], %d\ns_waitcnt lgkmcnt(0)\ns_mov_b32 s94, s92\ns_mov_b32 s92, s93" % (WS_STAMP - 64))
    a("s_sub_u32 s85, s%d, s92\ns_lshl_b32 s85, s85, %d\ns_add_u32 s85, s85, s90" % (92 + A.amp, A.ampsh))
    a("L_dly2:\ns_memrealtime s[90:91]\ns_waitcnt lgkmcnt(0)\ns_sub_u32 s84, s85, s90\ns_cmp_lt_i32 s84, 0\ns_cbranch_scc0 L_dly2")
a("L_fin:")
if A.stamp and A.amp < 0:
    a("s_waitcnt vmcnt(0)")
    a("s_memrealtime s[90:91]\ns_waitcnt lgkmcnt(0)\ns_mov_b32 s101, s90")
    a("s_add_u32 s48, s24, %d\ns_addc_u32 s49, s25, 0\ns_mov_b32 s50, 131072" % WS_STAMP)
    a("s_lshl_b32 s84, s2, 3\ns_add_u32 s84, s84, s26\ns_lshl_b32 s84, s84, 6")
    a("s_getreg_b32 s85, hwreg(HW_REG_XCC_ID)")
    a("v_mov_b32 v1, 0")
    a("s_mov_b64 exec, 1")
    for k in range(10):
        a("v_mov_b32 v2, s%d" % (92 + k))
        a("buffer_store_dword v2, v1, s[48:51], s84 offen offset:%d" % (4 * k))
    a("v_mov_b32 v2, s85")
    a("buffer_store_dword v2, v1, s[48:51], s84 offen offset:40")
    a("v_mov_b32 v2, s88")
    a("buffer_store_dword v2, v1, s[48:51], s84 offen offset:44")
    a("v_mov_b32 v2, s27")
    a("buffer_store_dword v2, v1, s[48:51], s84 offen offset:48")
    if A.dbgstamp:
        a("s_cmp_ge_u32 s27, 40\ns_cbranch_scc1 L_end\ns_cmp_lg_u32 s26, 0\ns_cbranch_scc1 L_end")
        a("s_not_b32 s86, s92")
        a("v_mov_b32 v2, s86")
        a("buffer_atomic_umax v2, v1, s[64:67], 0 offen offset:4 sc1")
        for k in (4, 5, 6, 7, 9):
            a("v_mov_b32 v2, s%d" % (92 + k))
            a("buffer_atomic_umax v2, v1, s[64:67], 0 offen offset:%d sc1" % (8 + 4 * k))
a("L_end:")
a("s_endpgm")
a("L_initslow:")
a("s_mov_b32 s88, 0")
a("L_initpoll:")
a("buffer_load_dword v12, v21, s[64:67], 0 offen sc0 sc1")
a("s_waitcnt vmcnt(0)")
a("v_readfirstlane_b32 s89, v12")
a("s_add_u32 s88, s88, 1")
a("s_cmp_gt_u32 s88, %d" % SPIN_MAX)
a("s_cbranch_scc1 L_initok")
a("s_cmp_ge_u32 s89, 8")
a("s_cbranch_scc0 L_initpoll")
a("s_branch L_initok")

DESC = '; ---------------------------------------------------------------------------------------------\n; ---------------------------------------------------------------------------------------------\n'
body = a.render()
txt = HEADER + "; @launch grid=(256,1,1) block=(512,1,1) lds=%d\n" % (A.lds or LDS_BYTES)
txt += DESC + """.amdgcn_target "amdgcn-amd-amdhsa--gfx950"
.text
.globl {n}_kernel
{al}.p2align 8
.type {n}_kernel,@function
{n}_kernel:
{body}.section .rodata,"a"
.p2align 6
.amdhsa_kernel {n}_kernel
  .amdhsa_next_free_vgpr 256
  .amdhsa_next_free_sgpr 102
  .amdhsa_accum_offset 256
  .amdhsa_group_segment_fixed_size 0
  .amdhsa_kernarg_size 88
  .amdhsa_user_sgpr_count 2
  .amdhsa_user_sgpr_kernarg_segment_ptr 1
  .amdhsa_system_sgpr_workgroup_id_x 1
  .amdhsa_float_denorm_mode_32 3
.end_amdhsa_kernel
""".format(n=NAME, body=body, al=(".p2align 12\n" + (".fill %d, 4, 0xbf810000   ; never executed: places the entry so that no latency-critical segment crosses a 4 KiB line\n" % (64 * A.align12) if A.align12 else "")) if A.align12 >= 0 else "")
open(A.o, "w").write(txt)
print("wrote", A.o, len(txt), "bytes,", body.count("\\n"), "lines")
```

```python
import sys, argparse
sys.path.insert(0, "work")
from asmlib import Asm

NAME = "sequential_preLN__sliding_block_cached__dense_activation_relu__decode"
HEADER = open("cdna_kernels/%s.s.ref" % NAME).read().split("; Override launch geometry")[0]

ap = argparse.ArgumentParser()
ap.add_argument("-o", default="cdna_kernels/%s.s" % NAME)
ap.add_argument("--stamp", action="store_true")
ap.add_argument("--dbgstamp", action="store_true")
ap.add_argument("--kvmod", default="nt")
ap.add_argument("--wmod", default="nt")
ap.add_argument("--dmod", default="nt")
ap.add_argument("--pmod", default="sc0 sc1")
ap.add_argument("--L", type=int, default=12)
ap.add_argument("--pat", type=int, default=1)
ap.add_argument("--qk", type=int, default=2)
ap.add_argument("--wo_start", type=int, default=12)
ap.add_argument("--wo_every", type=int, default=2)
ap.add_argument("--codepf", action="store_true")
ap.add_argument("--diagd", action="store_true")
ap.add_argument("--pair2", action="store_true")
ap.add_argument("--st4", action="store_true")
ap.add_argument("--touch2", action="store_true")
ap.add_argument("--op4", type=int, default=0)
ap.add_argument("--lin", action="store_true")
ap.add_argument("--op3", action="store_true")
ap.add_argument("--ampA", action="store_true")
ap.add_argument("--fin2", action="store_true")
ap.add_argument("--late2", type=int, default=0)
ap.add_argument("--align12", type=int, default=-1)
ap.add_argument("--warm1", action="store_true")
ap.add_argument("--warm2", action="store_true")
ap.add_argument("--pad", type=int, default=0)
ap.add_argument("--sthr", type=int, nargs=2, default=None)
ap.add_argument("--tk2", action="store_true")
ap.add_argument("--static", action="store_true")
ap.add_argument("--tkwave", type=int, default=0)
ap.add_argument("--thr", type=int, default=0)
ap.add_argument("--thrT", type=int, default=1)
ap.add_argument("--thr0", type=int, default=256)
ap.add_argument("--qpf", action="store_true")
ap.add_argument("--qstart", type=int, default=0)
ap.add_argument("--krot", type=int, default=0)
ap.add_argument("--light2", action="store_true")
ap.add_argument("--defer2", type=int, default=0)
ap.add_argument("--bo2", type=int, default=0)
ap.add_argument("--first2", type=int, default=0)
ap.add_argument("--ampsh", type=int, default=2)
ap.add_argument("--qspan", type=int, default=0)
ap.add_argument("--ospan", type=int, nargs=2, default=None)
ap.add_argument("--fine", action="store_true")
ap.add_argument("--op2", action="store_true")
ap.add_argument("--ln1", action="store_true")
ap.add_argument("--qrow", type=int, default=0)
ap.add_argument("--rot", type=int, default=0)
ap.add_argument("--outmod", default="")
ap.add_argument("--lds", type=int, default=0)
ap.add_argument("--edma", action="store_true")
ap.add_argument("--nopre", action="store_true")
ap.add_argument("--st8", default="hn")
ap.add_argument("--minrate", type=int, default=0)
ap.add_argument("--m2", action="store_true")
ap.add_argument("--D1", type=int, default=0)
ap.add_argument("--D2", type=int, default=0)
ap.add_argument("--pace", type=int, default=0)
ap.add_argument("--warm", action="store_true")
ap.add_argument("--tkpos", type=int, default=8)
ap.add_argument("--map", type=int, default=0)
ap.add_argument("--touch", action="store_true")
ap.add_argument("--qhead", type=int, default=0)
ap.add_argument("--codepf2", action="store_true")
ap.add_argument("--oobq", action="store_true")
ap.add_argument("--oobo", action="store_true")
ap.add_argument("--f2bar", action="store_true")
ap.add_argument("--light", type=int, default=0)
ap.add_argument("--sleep", type=int, default=0)
ap.add_argument("--amp", type=int, default=-1)
ap.add_argument("--diagnum", action="store_true")
ap.add_argument("--LV", type=int, default=0)
ap.add_argument("--dma", default="stream")
ap.add_argument("--pf", type=int, default=0)
ap.add_argument("--pfmod", default="")
A = ap.parse_args()

L_PART = 0
L_QD = 4096
L_ST = 6144
L_YP = 6400
L_HN = 27136
HN_STRIDE = 1312
L_FP = 37888
L_W = 46080
LDS_BYTES = L_W + 81920
WS_H1 = 32768
WS_STAMP = 1 << 20
FFN1_N, FFN2_N = 27, 40
L_TK = 6208
SPIN_MAX = 400000

RING = 48; NRING = 32
YSTR = 2560
WO = 176
def t4(r): return "v[%d:%d]" % (r, r + 3)
def soff(byte):
    hi, lo = byte // 4096, byte % 4096
    return ("0" if hi == 0 else "s%d" % (67 + hi)), lo

a = Asm()
stamp_idx = [0]
def stamp():
    if not A.stamp: return
    a("s_memrealtime s[90:91]\ns_waitcnt lgkmcnt(0)\ns_mov_b32 s%d, s90" % (92 + stamp_idx[0]))
    stamp_idx[0] += 1
    assert stamp_idx[0] <= 9

FINE = [4, 6, 8, 10, 14, 36, 38]
fine_i = [0]
def fine():
    if not A.fine: return
    r = FINE[fine_i[0]]; fine_i[0] += 1
    a("s_memtime s[%d:%d]" % (r, r + 1))

def wave_reduce(v, op, sdst):
    for m in ("quad_perm:[1,0,3,2] row_mask:0xf", "quad_perm:[2,3,0,1] row_mask:0xf", "row_half_mirror row_mask:0xf",
              "row_mirror row_mask:0xf", "row_bcast:15 row_mask:0xa", "row_bcast:31 row_mask:0xc"):
        a("%s_dpp %s, %s, %s %s bank_mask:0xf" % (op, v, v, v, m))
    a("v_readlane_b32 %s, %s, 63" % (sdst, v))

def ln_stats(vals, tmp, vmean_bf, vrinv):
    t0, t1, t2 = tmp
    a("v_add_f32 %s, %s, %s" % (t0, vals[0], vals[1]))
    a("v_add_f32 %s, %s, %s" % (t1, vals[2], vals[3]))
    for k in range(4, 10, 2):
        a("v_add_f32 %s, %s, %s" % (t0, t0, vals[k]))
        a("v_add_f32 %s, %s, %s" % (t1, t1, vals[k + 1]))
    a("v_add_f32 %s, %s, %s" % (t0, t0, t1))
    wave_reduce(t0, "v_add_f32", "s84")
    a("v_mov_b32 %s, 0x3acccccd" % t2)
    a("v_mul_f32 %s, s84, %s" % (vmean_bf, t2))
    a("v_sub_f32 %s, %s, %s" % (t1, vals[0], vmean_bf))
    a("v_mul_f32 %s, %s, %s" % (t0, t1, t1))
    for k in range(1, 10):
        a("v_sub_f32 %s, %s, %s" % (t1, vals[k], vmean_bf))
        a("v_fmac_f32 %s, %s, %s" % (t0, t1, t1))
    wave_reduce(t0, "v_add_f32", "s84")
    a("v_mul_f32 %s, s84, %s" % (t0, t2))
    a("v_cvt_pk_bf16_f32 %s, %s, %s" % (t0, t0, vmean_bf))
    a("v_and_b32 %s, 0xffff0000, %s" % (vmean_bf, t0))
    a("v_lshlrev_b32 %s, 16, %s" % (t0, t0))
    a("v_add_f32 %s, 0x3727c5ac, %s" % (t0, t0))
    a("v_cvt_pk_bf16_f32 %s, %s, %s" % (t0, t0, t0))
    a("v_lshlrev_b32 %s, 16, %s" % (t0, t0))
    a("v_sqrt_f32 %s, %s" % (t0, t0))
    a("v_cvt_pk_bf16_f32 %s, %s, %s" % (t0, t0, t0))
    a("v_lshlrev_b32 %s, 16, %s" % (t0, t0))
    a("v_rcp_f32 %s, %s" % (vrinv, t0))

def selector(abuf, src, lane):
    for r in range(4):
        a("v_and_b32_dpp v%d, %s, v%d row_newbcast:%d row_mask:0xf bank_mask:0xf" % (abuf + r, src, 6 + r, lane))

def srd(d, plo, nbytes):
    a("s_mov_b32 s%d, s%d\ns_mov_b32 s%d, s%d\ns_mov_b32 s%d, %s\ns_mov_b32 s%d, 0x20000" % (d, plo, d + 1, plo + 1, d + 2, nbytes, d + 3))

S = []
kv = [("k", n) for n in range(32)] + [("v", n) for n in range(32)]
if A.qspan:
    oa, ob = A.ospan
    qpos = [A.qstart + (t * (A.qspan - A.qstart)) // 20 for t in range(20)]
    opos = [oa + (t * (ob - oa)) // 20 for t in range(20)]
    for ki in range(64):
        S += [("q", t) for t in range(20) if qpos[t] == ki]
        S += [("o", t) for t in range(20) if opos[t] == ki]
        S.append(kv[ki])
else:
    qi = 0; ki = 0
    while qi < A.qhead:
        S.append(("q", qi)); qi += 1
    while qi < 20:
        for _ in range(A.qk):
            if qi < 20: S.append(("q", qi)); qi += 1
        S.append(kv[ki]); ki += 1
    oi = 0
    while ki < 64:
        S.append(kv[ki]); ki += 1
        if ki >= A.wo_start and (ki - A.wo_start) % A.wo_every == 0 and oi < 20:
            S.append(("o", oi)); oi += 1
    assert oi == 20
if A.tk2: S.append(("t", 0))
POS = {e: p for p, e in enumerate(S)}
free = list(range(NRING))
slot = {}
lend = list(range(32, 52))
st = {"issued": 0, "maxpos": -1, "gate": len(S)}
def reg_of(e):
    if e[0] == "o": return WO + 4 * e[1]
    return RING + 4 * slot[e]
def issue(e):
    kind, n = e
    if kind in "qkv":
        if free: slot[e] = free.pop(0)
        elif lend and kind != "v": slot[e] = lend.pop()
        else: return False
    if kind == "o":
        if (32 + n) not in lend: return False
        lend.remove(32 + n)
    if kind == "q":
        so = "0"
        if n: a("s_mov_b32 s78, %d" % (n * 8192 * (1, 4, 32)[A.qrow] if not (A.oobq and n >= 3) else 0x7f000000)); so = "s78"
        a("buffer_load_dwordx4 %s, v3, s[36:39], %s offen %s" % (t4(reg_of(e)), so, A.wmod))
    elif kind in "kv":
        sr = "s[28:31]" if kind == "k" else "s[32:35]"
        if A.pat == 0:
            so, im = soff(n * 1024)
        elif A.krot:
            sr_ = "s14" if kind == "k" else "s15"
            so, im = sr_, 0
            if n: a("s_add_u32 %s, %s, 8192\ns_and_b32 %s, %s, 0x3ffff" % (sr_, sr_, sr_, sr_))
        elif A.pat == 3:
            so, im = "0", (n & 1) * 1024
            if n >> 1: a("s_mov_b32 s78, %d" % ((n >> 1) * 8192)); so = "s78"
        elif A.pat == 4:
            so, im = "0", (n & 3) * 1024
            if n >> 2: a("s_mov_b32 s78, %d" % ((n >> 2) * 16384)); so = "s78"
        else:
            so, im = "0", 0
            if n: a("s_mov_b32 s78, %d" % (n * (8192 if A.pat == 1 else 4096))); so = "s78"
        a("buffer_load_dwordx4 %s, v2, %s, %s offen offset:%d %s" % (t4(reg_of(e)), sr, so, im, A.kvmod))
    elif kind == "t":
        a("s_mov_b64 exec, 1")
        a("buffer_atomic_add v22, v21, s[48:51], s11 offen sc0 sc1")
        a("s_mov_b64 exec, -1")
    elif kind == "o":
        so, im = soff(n * 256)
        if A.oobo and n >= 3:
            a("s_mov_b32 s78, 0x7f000000"); so = "s78"
        a("buffer_load_dwordx4 %s, v4, s[40:43], %s offen offset:%d %s" % (t4(reg_of(e)), so, im, A.wmod))
    return True
def pump(upto):
    upto = min(upto, len(S) - 1, st["gate"] - 1)
    while st["issued"] <= upto:
        if not issue(S[st["issued"]]): break
        st["issued"] += 1
def ready(e):
    p = POS[e]
    st["maxpos"] = max(st["maxpos"], p)
    before = st["issued"]
    pump(st["maxpos"] + A.L)
    if st["issued"] == before:
        st["idle"] = st.get("idle", 0) + 1
        if A.minrate and st["idle"] >= A.minrate:
            pump(st["issued"]); st["idle"] = 0
    else:
        st["idle"] = 0
    assert st["issued"] > p, (e, st)
    n = st["issued"] - 1 - p
    assert n <= 63
    a("s_waitcnt vmcnt(%d)" % n)
def done(e):
    sl = slot.pop(e)
    if sl >= 32:
        lend.append(sl); lend.sort()
    else:
        free.append(sl)

a("s_cmp_ge_u32 s2, 256")
a("s_cbranch_scc1 L_end")
a("s_load_dwordx16 s[4:19], s[0:1], 0")
a("s_load_dwordx4 s[20:23], s[0:1], 64")
a("s_load_dwordx2 s[24:25], s[0:1], 80")
if A.stamp:
    a("s_memrealtime s[90:91]")
a("v_and_b32 v1, 63, v0")
a("v_lshrrev_b32 v44, 6, v0")
a("v_lshrrev_b32 v45, 4, v1")
a("v_and_b32 v46, 15, v0")
a("v_readfirstlane_b32 s26, v44")
a("s_lshr_b32 s76, s2, 5")
if A.map == 0:
    a("s_and_b32 s77, s2, 31")
elif A.map == 1:
    a("s_and_b32 s77, s2, 7\ns_lshl_b32 s77, s77, 2\ns_bfe_u32 s84, s2, 0x20003\ns_or_b32 s77, s77, s84")
elif A.map >= 10:
    c = A.map - 10
    tab = list(range(8)); tab[5], tab[c] = tab[c], tab[5]
    a("s_and_b32 s84, s2, 7\ns_lshl_b32 s84, s84, 2\ns_lshr_b32 s84, 0x%08x, s84\ns_and_b32 s84, s84, 7" % sum(t << (4 * k) for k, t in enumerate(tab)))
    a("s_and_b32 s77, s2, 24\ns_or_b32 s77, s77, s84")
elif A.map == 2:
    a("s_and_b32 s77, s2, 7\ns_lshl_b32 s77, s77, 1\ns_bfe_u32 s84, s2, 0x10003\ns_or_b32 s77, s77, s84\ns_and_b32 s84, s2, 16\ns_or_b32 s77, s77, s84")
a("s_lshl_b32 s3, s76, 5\ns_or_b32 s3, s3, s77")
if A.pat == 0:
    a("v_lshlrev_b32 v2, 15, v44")
    a("v_lshl_add_u32 v2, v1, 4, v2")
elif A.pat == 1:
    a("v_lshlrev_b32 v2, 4, v0")
else:
    a("v_lshrrev_b32 v2, 8, v0\nv_lshlrev_b32 v2, 17, v2\nv_lshl_add_u32 v2, v1, 4, v2\nv_and_b32 v3, 3, v44")
    a("v_lshl_add_u32 v2, v3, %d, v2" % {2: 10, 3: 11, 4: 12}[A.pat])
a("v_lshl_add_u32 v47, v44, 2, v45")
if A.rot:
    a("s_lshl_b32 s84, s76, 2")
    a("v_add_u32 v5, s84, v47")
    a("v_and_b32 v5, 31, v5")
a("v_mul_u32_u24 v4, 5120, %s" % ("v5" if A.rot >= 2 else "v47"))
if A.rot: a("v_mov_b32 v47, v5")
if A.qrow == 0:
    a("v_mul_u32_u24 v47, 20, v47")
elif A.qrow == 1:
    a("v_lshrrev_b32 v47, 2, v47\nv_mul_u32_u24 v47, 80, v47\nv_add_u32 v47, v47, v45")
a("v_lshlrev_b32 v3, 13, v47")
a("v_lshl_add_u32 v3, v46, 4, v3")
a("v_lshl_add_u32 v4, v46, 4, v4")
a("v_mul_u32_u24 v32, 20, v1")
QS = (0, 2, 5)[A.qrow]
a("v_lshlrev_b32 v33, %d, v46" % QS)
a("v_add_lshl_u32 v33, v47, v33, 1")
a("v_and_b32 v34, 3, v0")
a("v_lshlrev_b32 v34, %d, v34" % QS)
a("v_add_lshl_u32 v34, v47, v34, 1")
a("s_mul_i32 s84, s76, 1280")
a("s_lshl_b32 s85, s77, 8")
a("s_lshl_b32 s86, s3, 20")
a("s_add_u32 s86, s86, 786432")
a("s_mov_b32 s46, 10240\ns_mov_b32 s47, 0x20000")
a("s_sub_u32 s38, 5242880, s85\ns_mov_b32 s39, 0x20000")
a("s_mov_b32 s30, 262144\ns_mov_b32 s31, 0x20000")
for k in range(1, 8):
    a("s_movk_i32 s%d, %d" % (67 + k, 4096 * k))
a("s_waitcnt lgkmcnt(0)")
if A.stamp:
    a("s_mov_b32 s92, s90"); stamp_idx[0] = 1
    if A.st8 == "karg":
        a("s_memrealtime s[90:91]\ns_waitcnt lgkmcnt(0)\ns_mov_b32 s100, s90")
if A.krot == 1:
    a("s_mul_i32 s14, s2, 0x9e3779b1\ns_lshr_b32 s14, s14, 27\ns_lshl_b32 s14, s14, 13\ns_mov_b32 s15, s14")
elif A.krot == 2:
    a("s_and_b32 s14, s2, 31\ns_lshl_b32 s14, s14, 13\ns_mov_b32 s15, s14")
elif A.krot == 3:
    a("s_lshr_b32 s14, s2, 3\ns_lshl_b32 s14, s14, 13\ns_mov_b32 s15, s14")
if A.krot == 4:
    a("s_and_b32 s14, s2, 1\ns_lshl_b32 s14, s14, 17\ns_mov_b32 s15, s14")
elif A.krot == 5:
    a("s_lshr_b32 s14, s2, 5\ns_lshl_b32 s14, s14, 15\ns_mov_b32 s15, s14")
elif A.krot == 6:
    a("s_and_b32 s14, s2, 7\ns_lshl_b32 s14, s14, 15\ns_mov_b32 s15, s14")
elif A.krot == 7:
    a("s_brev_b32 s14, s2\ns_lshr_b32 s14, s14, 27\ns_lshl_b32 s14, s14, 13\ns_mov_b32 s15, s14")
elif A.krot == 8:
    a("s_lshr_b32 s14, s2, 5\ns_lshl_b32 s14, s14, 13\ns_mov_b32 s15, s14")
a("s_mov_b32 s44, s4\ns_mov_b32 s45, s5")
a("s_add_u32 s36, s10, s85\ns_addc_u32 s37, s11, 0")
a("s_add_u32 s28, s6, s86\ns_addc_u32 s29, s7, 0")
if A.touch:
    a("s_load_dword s89, s[28:29], 0")
    a("s_add_u32 s32, s8, s86\ns_addc_u32 s33, s9, 0")
    a("s_load_dword s88, s[32:33], 0")
a("s_cmp_ge_u32 s2, 8")
a("s_cbranch_scc1 L_noinit")
srd(48, 24, "66560")
a("s_lshl_b32 s87, s2, 12")
a("v_lshlrev_b32 v35, 3, v0")
a("v_mov_b32 v36, 0\nv_mov_b32 v37, 0\nv_mov_b32 v38, -1\nv_mov_b32 v39, -1")
a("buffer_store_dwordx2 v[36:37], v35, s[48:51], s87 offen sc0 sc1")
a("s_add_u32 s87, s87, %d" % WS_H1)
a("buffer_store_dwordx2 v[38:39], v35, s[48:51], s87 offen sc0 sc1")
if not A.static:
    a("s_lshl_b32 s87, s2, 7\ns_add_u32 s87, s87, 65536")
    a("v_and_b32 v35, 0x78, v35")
    a("buffer_store_dwordx2 v[36:37], v35, s[48:51], s87 offen sc0 sc1")
a("L_noinit:")
a("buffer_load_dwordx4 v[16:19], v32, s[44:47], s84 offen")
a("buffer_load_dword v20, v32, s[44:47], s84 offen offset:16")
a("buffer_load_ushort v22, v33, s[44:47], s84 offen")
a("buffer_load_ushort v23, v34, s[44:47], s84 offen offset:%d" % (32 << QS))
if A.qpf:
    srd(52, 10, "5242880")
    a("s_lshr_b32 s87, s2, 3\ns_mul_i32 s87, s87, %d" % (20 * 8192))
    a("s_and_b32 s88, s2, 7")
    a("v_lshrrev_b32 v35, 4, v0\nv_lshlrev_b32 v35, 13, v35")
    if A.map == 1:
        a("s_lshl_b32 s88, s88, 10\ns_add_u32 s87, s87, s88")
        a("v_lshl_add_u32 v35, v46, 6, v35")
    else:
        a("s_lshl_b32 s88, s88, 8\ns_add_u32 s87, s87, s88")
        a("v_and_b32 v36, 3, v0\nv_lshl_add_u32 v35, v36, 6, v35\nv_bfe_u32 v36, v0, 2, 2\nv_lshl_add_u32 v35, v36, 11, v35")
    a("s_cmp_ge_u32 s26, 4")
    a("s_cbranch_scc1 L_noqpf")
    a("buffer_load_dword v21, v35, s[52:55], s87 offen")
    a("s_cmp_lg_u32 s26, 0")
    a("s_cbranch_scc1 L_noqpf")
    a("s_add_u32 s87, s87, %d" % (16 * 8192))
    a("buffer_load_dword v21, v35, s[52:55], s87 offen")
    a("L_noqpf:")
st["gate"] = POS[("o", 0)]
pump(A.L)
n_first = st["issued"]
if A.codepf:
    a("s_getpc_b64 s[84:85]")
    a("L_pc:")
    a("s_sub_u32 s84, s84, L_pc-%s_kernel" % NAME)
    a("s_subb_u32 s85, s85, 0")
    a("v_lshlrev_b32 v35, 5, v0")
    a("v_min_u32 v35, L_end-%s_kernel, v35" % NAME)
    a("global_load_dword v5, v35, s[84:85]")
a("s_add_u32 s32, s8, s86\ns_addc_u32 s33, s9, 0\ns_mov_b32 s34, 262144\ns_mov_b32 s35, 0x20000")
a("s_mul_i32 s85, s77, 163840")
a("s_add_u32 s40, s12, s85\ns_addc_u32 s41, s13, 0\ns_mov_b32 s42, 163840\ns_mov_b32 s43, 0x20000")
if A.touch2:
    a("s_lshl_b32 s84, s26, 15")
    a("s_load_dword s88, s[28:29], s84")
    a("s_load_dword s89, s[32:33], s84")
    a("s_mul_i32 s84, s26, 20480")
    a("s_load_dword s87, s[40:41], s84")
srd(48, 24, "66560")
srd(56, 20, "10240")
a("s_add_u32 s60, s24, %d\ns_addc_u32 s61, s25, 0\ns_mov_b32 s62, 27648\ns_mov_b32 s63, 0x20000" % WS_H1)
srd(64, 22, "256")
a("s_mov_b32 s80, 0xcccccccc\ns_mov_b32 s81, 0xcccccccc\ns_mov_b32 s82, 0xaaaaaaaa\ns_mov_b32 s83, 0xaaaaaaaa")
a("v_and_b32 v35, 1, v0")
a("v_lshlrev_b32 v35, 4, v35")
a("v_mov_b32 v38, 0xffff")
a("v_lshlrev_b32 v38, v35, v38")
a("v_lshrrev_b32 v37, 1, v46")
for r in range(4):
    a("v_cmp_eq_u32 vcc, %d, v37" % r)
    a("v_cndmask_b32 v%d, 0, v38, vcc" % (6 + r))
a("v_lshlrev_b32 v47, 9, v44")
a("v_lshl_add_u32 v47, v46, 5, v47")
a("v_lshl_add_u32 v47, v45, 4, v47")
st["gate"] = len(S)

a("s_waitcnt vmcnt(%d)" % (n_first + (1 if A.codepf else 0)))
if A.stamp and A.st8 == "x":
    a("s_memrealtime s[90:91]\ns_waitcnt lgkmcnt(0)\ns_mov_b32 s100, s90")
for k in range(5):
    a("v_lshlrev_b32 v%d, 16, v%d" % (24 + 2 * k, 16 + k))
    a("v_and_b32 v%d, 0xffff0000, v%d" % (25 + 2 * k, 16 + k))
ln_stats(["v%d" % (24 + k) for k in range(10)], ["v34", "v35", "v37"], "v38", "v39")
for r in (22, 23):
    a("v_lshlrev_b32 v%d, 16, v%d" % (r, r))
    a("v_sub_f32 v%d, v%d, v38" % (r, r))
    a("v_cvt_pk_bf16_f32 v%d, v%d, v%d" % (r, r, r))
    a("v_lshlrev_b32 v%d, 16, v%d" % (r, r))
    a("v_mul_f32 v%d, v%d, v39" % (r, r))
    a("v_cvt_pk_bf16_f32 v%d, v%d, v%d" % (r, r, r))
for t in range(20):
    ab = 24 + 4 * (t & 1)
    selector(ab, "v22" if t < 16 else "v23", t & 15)
    e = ("q", t)
    ready(e)
    if A.stamp and A.st8 == "q%d" % t:
        a("s_memrealtime s[90:91]\ns_waitcnt lgkmcnt(0)\ns_mov_b32 s100, s90")
    a("v_mfma_f32_16x16x32_bf16 v[40:43], %s, %s, %s" % (t4(ab), t4(reg_of(e)), "0" if t == 0 else "v[40:43]"))
    done(e)
a("s_mov_b32 exec_hi, 0")
a("ds_write_b128 v47, v[40:43] offset:%d" % L_PART)
a("s_mov_b64 exec, -1")
a("v_lshlrev_b32 v25, 3, v1")
a("s_waitcnt lgkmcnt(0)")
a("s_barrier")
a("s_cmp_ge_u32 s2, 8")
a("s_cbranch_scc1 L_nosig")
a("s_cmp_lg_u32 s26, 0")
a("s_cbranch_scc1 L_nosig")
a("v_mov_b32 v26, 0\nv_mov_b32 v27, 1")
a("s_mov_b64 exec, 1")
a("buffer_atomic_add v27, v26, s[64:67], 0 offen sc1")
a("s_mov_b64 exec, -1")
a("L_nosig:")
if A.thr:
    a("s_cmp_lg_u32 s26, 0\ns_cbranch_scc1 L_norank")
    a("v_mov_b32 v26, 0\nv_mov_b32 v5, 1\ns_mov_b64 exec, 1")
    a("buffer_atomic_add v5, v26, s[64:67], 0 offen offset:128 sc0 sc1\ns_mov_b64 exec, -1")
    a("L_norank:")
    RANK_POS = st["issued"]
if A.diagnum:
    a("s_cmp_lg_u32 s26, 0\ns_cbranch_scc1 L_nodiag")
    a("s_getreg_b32 s84, hwreg(HW_REG_XCC_ID)\ns_sub_u32 s84, s84, s2\ns_and_b32 s84, s84, 7\ns_lshl_b32 s84, 1, s84")
    a("v_mov_b32 v26, 0\nv_mov_b32 v27, s84\ns_mov_b64 exec, 1")
    a("buffer_atomic_or v27, v26, s[64:67], 0 offen offset:32 sc1\ns_mov_b64 exec, -1")
    a("L_nodiag:")
for w in range(8):
    a("ds_read_b64 v[%d:%d], v25 offset:%d" % (28 + 2 * w, 29 + 2 * w, L_PART + 512 * w))
a("s_waitcnt lgkmcnt(0)")
for w in range(1, 8):
    a("v_add_f32 v28, v28, v%d" % (28 + 2 * w))
    a("v_add_f32 v29, v29, v%d" % (29 + 2 * w))
a("v_cvt_pk_bf16_f32 v28, v28, v29")
a("v_lshlrev_b32 v25, 2, v0")
a("ds_write_b32 v25, v28 offset:%d" % L_QD)
a("v_lshlrev_b32 v25, 8, v44")
a("v_lshl_add_u32 v25, v46, 4, v25")
a("s_waitcnt lgkmcnt(0)")
a("ds_read_b128 v[10:13], v25 offset:%d" % L_QD)
a("s_waitcnt lgkmcnt(0)")
stamp()

for _ in range(A.pad): a("s_nop 0")
def reduce_scatter(dst):
    for n in range(8):
        a("v_add_f32_dpp v%d, v%d, v%d row_mirror row_mask:0xf bank_mask:0x3" % (16 + n, 16 + n, 16 + n))
    for n in range(8):
        a("v_add_f32_dpp v%d, v%d, v%d row_mirror row_mask:0xf bank_mask:0xc" % (16 + n, 24 + n, 24 + n))
    for n in range(4):
        a("v_add_f32_dpp v%d, v%d, v%d row_half_mirror row_mask:0xf bank_mask:0x5" % (16 + n, 16 + n, 16 + n))
    for n in range(4):
        a("v_add_f32_dpp v%d, v%d, v%d row_half_mirror row_mask:0xf bank_mask:0xa" % (16 + n, 20 + n, 20 + n))
    for n in range(4):
        a("v_add_f32_dpp v%d, v%d, v%d quad_perm:[3,2,1,0] row_mask:0xf bank_mask:0xf" % (16 + n, 16 + n, 16 + n))
    a("v_cndmask_b32 v16, v16, v18, s[80:81]")
    a("v_cndmask_b32 v17, v17, v19, s[80:81]")
    a("v_add_f32_dpp v16, v16, v16 quad_perm:[1,0,3,2] row_mask:0xf bank_mask:0xf")
    a("v_add_f32_dpp v17, v17, v17 quad_perm:[1,0,3,2] row_mask:0xf bank_mask:0xf")
    a("v_cndmask_b32 %s, v16, v17, s[82:83]" % dst)

for n in range(32):
    e = ("k", n)
    ready(e)
    acc = 16 + (n & 15)
    for r in range(4):
        a("v_dot2_f32_bf16 v%d, v%d, v%d, %s" % (acc, reg_of(e) + r, 10 + r, "0" if r == 0 else "v%d" % acc))
    done(e)
    if n == 15: reduce_scatter("v14")
    if n == 31: reduce_scatter("v15")
stamp()

a("v_cvt_pk_bf16_f32 v16, v14, v15")
a("v_lshlrev_b32 v14, 16, v16")
a("v_and_b32 v15, 0xffff0000, v16")
a("v_mul_f32 v14, 0x3db504f3, v14")
a("v_mul_f32 v15, 0x3db504f3, v15")
a("v_cvt_pk_bf16_f32 v16, v14, v15")
a("v_lshlrev_b32 v14, 16, v16")
a("v_and_b32 v15, 0xffff0000, v16")
a("v_max_f32 v16, v14, v15")
wave_reduce("v16", "v_max_f32", "s84")
a("v_subrev_f32 v16, s84, v14")
a("v_subrev_f32 v17, s84, v15")
a("v_mul_f32 v16, 0x3fb8aa3b, v16")
a("v_mul_f32 v17, 0x3fb8aa3b, v17")
a("v_exp_f32 v16, v16")
a("v_exp_f32 v17, v17")
a("v_add_f32 v16, v16, v17")
wave_reduce("v16", "v_add_f32", "s85")
a("v_mov_b32 v16, s84")
a("v_mov_b32 v17, s85")
a("v_lshlrev_b32 v18, 3, v44")
a("s_mov_b64 exec, 1")
a("ds_write_b64 v18, v[16:17] offset:%d" % L_ST)
if A.thr:
    a("s_cmp_lg_u32 s26, 0\ns_cbranch_scc1 L_norank2")
    a("s_waitcnt vmcnt(%d)" % min(63, st["issued"] - RANK_POS))
    a("ds_write_b32 v18, v5 offset:%d" % (L_TK + 4))
    a("L_norank2:")
a("s_mov_b64 exec, -1")
a("v_and_b32 v18, 7, v0")
a("v_lshlrev_b32 v18, 3, v18")
a("s_waitcnt lgkmcnt(0)")
a("s_barrier")
a("ds_read_b64 v[16:17], v18 offset:%d" % L_ST)
if A.thr:
    a("v_mov_b32 v19, 0")
    a("ds_read_b32 v19, v19 offset:%d" % (L_TK + 4))
a("s_waitcnt lgkmcnt(0)")
if A.thr:
    a("v_readfirstlane_b32 s10, v19")
    a("s_min_u32 s10, s10, %d" % A.thr0)
    a("s_sub_u32 s10, %d, s10\ns_mul_i32 s10, s10, %d\ns_lshr_b32 s10, s10, 16" % (A.thr0, (A.thr << 16) // A.thr0))
a("v_mov_b32 v18, v16")
for m in ("quad_perm:[1,0,3,2]", "quad_perm:[2,3,0,1]", "row_half_mirror"):
    a("v_max_f32_dpp v18, v18, v18 %s row_mask:0xf bank_mask:0xf" % m)
a("v_sub_f32 v16, v16, v18")
a("v_mul_f32 v16, 0x3fb8aa3b, v16")
a("v_exp_f32 v16, v16")
a("v_mul_f32 v16, v16, v17")
for m in ("quad_perm:[1,0,3,2]", "quad_perm:[2,3,0,1]", "row_half_mirror"):
    a("v_add_f32_dpp v16, v16, v16 %s row_mask:0xf bank_mask:0xf" % m)
a("v_rcp_f32 v16, v16")
a("v_sub_f32 v14, v14, v18")
a("v_sub_f32 v15, v15, v18")
a("v_mul_f32 v14, 0x3fb8aa3b, v14")
a("v_mul_f32 v15, 0x3fb8aa3b, v15")
a("v_exp_f32 v14, v14")
a("v_exp_f32 v15, v15")
a("v_mul_f32 v14, v14, v16")
a("v_mul_f32 v15, v15, v16")
a("v_cvt_pk_bf16_f32 v14, v14, v14")
a("v_cvt_pk_bf16_f32 v15, v15, v15")
stamp()

def pv(n):
    ab = 32 + 4 * (n & 1)
    selector(ab, "v14" if n < 16 else "v15", n & 15)
    e = ("v", n)
    if A.sthr and A.sthr[0] <= n < A.sthr[1]:
        a("s_cmp_eq_u32 s10, 1\ns_cbranch_scc1 L_nt%d\ns_waitcnt vmcnt(%d)\nL_nt%d:" % (n, A.thrT, n))
    if A.thr and n < A.thr:
        a("s_cmp_le_u32 s10, %d\ns_cbranch_scc1 L_nt%d\ns_waitcnt vmcnt(%d)\nL_nt%d:" % (n, n, A.thrT, n))
    ready(e)
    a("v_mfma_f32_16x16x32_bf16 v[40:43], %s, %s, %s" % (t4(ab), t4(reg_of(e)), "0" if n == 0 else "v[40:43]"))
    done(e)

def dma(n, vregs, step):
    for t in range(n):
        a("s_mov_b32 m0, s3")
        a("buffer_load_dwordx4 %s, s[52:55], s13 offen %s lds" % (vregs[t % len(vregs)], A.dmod))
        if t < n - 1:
            a("s_add_u32 s3, s3, 1024")
            a("s_add_u32 s13, s13, %d" % step)

a("v_lshrrev_b32 v16, 2, v46")
a("v_lshlrev_b32 v16, 10, v16")
if A.rot >= 2:
    a("v_add_u32 v17, s76, v44")
    a("v_and_b32 v17, 7, v17")
    a("v_lshl_add_u32 v16, v17, 6, v16")
else:
    a("v_lshl_add_u32 v16, v44, 6, v16")
a("v_lshl_add_u32 v16, v45, 4, v16")
a("v_and_b32 v17, 3, v0")
a("v_lshl_add_u32 v16, v17, 2, v16")
a("v_mul_u32_u24 v18, 2560, v44")
a("v_lshl_add_u32 v18, v46, 5, v18")
a("v_lshl_add_u32 v18, v45, 4, v18")
a("v_bfe_u32 v19, v0, 2, 6")
a("v_mul_u32_u24 v19, 5, v19")
a("v_lshrrev_b32 v20, 8, v0")
a("v_mul_u32_u24 v20, 3, v20")
a("v_add3_u32 v19, v19, v20, v17")
a("v_lshlrev_b32 v19, 3, v19")
a("v_lshlrev_b32 v20, 2, v0")
a("v_mov_b32 v21, 0\nv_mov_b32 v22, 1")
a("s_and_b32 s77, s2, 7\ns_lshl_b32 s75, s77, 7\ns_add_u32 s75, s75, 65536")
a("s_mov_b32 s86, 0x88888888\ns_mov_b32 s87, 0x88888888")
if A.op2:
    for r in range(4):
        a("v_mov_b32_dpp v%d, v%d row_ror:8 row_mask:0xf bank_mask:0xf" % (27 + r, 6 + r))
    if A.lin:
        a("v_mul_u32_u24 v31, %d, v44" % YSTR)
        a("v_lshl_add_u32 v31, v1, 4, v31")
        a("v_and_b32 v11, 0xe0c, v19")
        a("v_bfe_u32 v10, v19, 4, 1")
        a("v_lshl_add_u32 v11, v10, 8, v11")
        a("v_bfe_u32 v10, v19, 5, 4")
        a("v_lshl_add_u32 v19, v10, 4, v11")
    else:
        a("v_mul_u32_u24 v31, 2560, v44")
        a("v_lshrrev_b32 v11, 1, v45")
        a("v_lshl_add_u32 v31, v11, 9, v31")
        a("v_lshl_add_u32 v31, v46, 5, v31")
        a("v_and_b32 v11, 1, v45")
        a("v_lshl_add_u32 v31, v11, 4, v31")
a("v_mul_u32_u24 v5, 80, v44")
a("v_lshrrev_b32 v11, 3, v1")
a("v_add_u32 v5, v5, v11")
a("v_mul_u32_u24 v5, 3456, v5")
a("v_and_b32 v11, 2, v11")
a("v_and_b32 v10, 7, v0")
a("v_xor_b32 v11, v10, v11")
a("v_lshl_add_u32 v25, v11, 4, v5")
a("v_xor_b32 v11, 4, v11")
a("v_lshl_add_u32 v26, v11, 4, v5")
a("s_mul_i32 s3, s26, 10240")
a("s_add_u32 s3, s3, %d" % L_W)
if A.pf:
    a("s_lshr_b32 s84, s2, 3")
    a("s_cmp_ge_u32 s26, 4")
    a("s_cselect_b32 s52, s18, s16\ns_cselect_b32 s53, s19, s17")
    a("s_mov_b32 s54, 2211840\ns_mov_b32 s55, 0x20000")
    a("v_mov_b32 v12, 0x7fffff00")
    a("s_cbranch_scc1 L_pf2")
    a("s_and_b32 s85, s84, 7\ns_mul_i32 s85, s85, 80")
    a("v_lshrrev_b32 v23, 1, v0")
    a("v_add_u32 v23, s85, v23")
    a("v_mul_u32_u24 v23, 3456, v23")
    a("v_and_b32 v13, 1, v0")
    a("v_lshl_add_u32 v23, v13, 6, v23")
    a("s_and_b32 s85, s84, 0x18\ns_add_u32 s85, s85, s77")
    a("s_cmp_lt_u32 s85, 27")
    a("s_cselect_b32 s84, 160, 0")
    a("s_lshl_b32 s85, s85, 7")
    a("v_add_u32 v23, s85, v23")
    a("v_cmp_gt_u32 vcc, s84, v0")
    a("v_cndmask_b32 v23, v12, v23, vcc")
    a("s_branch L_pfdone")
    a("L_pf2:")
    a("s_mul_i32 s84, s84, 54")
    a("v_bfe_u32 v23, v0, 2, 6")
    a("v_add_u32 v23, s84, v23")
    a("v_mul_u32_u24 v23, 1280, v23")
    a("v_lshl_add_u32 v23, v17, 6, v23")
    a("s_mul_i32 s85, s77, 160\ns_and_b32 s85, s85, 0xff80")
    a("v_add_u32 v23, s85, v23")
    a("v_cmp_gt_u32 vcc, %d, v0" % (256 + 216))
    a("v_cndmask_b32 v23, v12, v23, vcc")
    a("L_pfdone:")

if A.codepf2:
    a("s_getpc_b64 s[84:85]")
    a("L_pc2:")
    a("v_lshlrev_b32 v12, 4, v0")
    a("v_add_u32 v12, 1792, v12")
    a("v_min_u32 v12, L_end-L_pc2, v12")
    a("global_load_dword v13, v12, s[84:85]")
if A.sthr:
    a("s_bfe_u32 s10, s36, 0x20008")
if A.LV: A.L = A.LV
if A.tk2:
    st["gate"] = POS[("t", 0)]
    a("s_cmp_eq_u32 s26, %d\ns_cselect_b32 s11, s75, 0x7ffff000" % A.tkwave)
for n in range(32):
    pv(n)
    if A.pf >= 10 and n == A.pf - 10:
        a("buffer_load_dword v24, v23, s[52:55], 0 offen %s" % A.pfmod)
    if n == A.tkpos - 4: a("s_load_dword s89, s[22:23], 0")
    if n == A.tkpos:
        a("s_waitcnt lgkmcnt(0)")
        a("s_cmp_ge_u32 s89, 8")
        a("s_cbranch_scc0 L_initslow")
        a("L_initok:")
        if A.tk2:
            st["gate"] = len(S)
            continue
        if A.static:
            a("s_lshr_b32 s79, s2, 3\ns_xor_b32 s79, s79, 16")
            continue
        a("s_cmp_lg_u32 s26, %d" % A.tkwave)
        a("s_cbranch_scc1 L_notk")
        a("s_mov_b64 exec, 1")
        if A.static:
            a("s_lshr_b32 s84, s2, 3\ns_xor_b32 s84, s84, 16\nv_mov_b32 v22, s84")
        else:
            a("buffer_atomic_add v22, v21, s[48:51], s75 offen sc0 sc1")
        a("s_mov_b64 exec, -1")
        a("L_notk:")
assert st["issued"] == len(S)
stamp()
fine()
if A.pf == 2:
    a("buffer_load_dword v24, v23, s[52:55], 0 offen %s" % A.pfmod)
a("s_mov_b32 exec_hi, 0")
a("ds_write_b128 v47, v[40:43] offset:%d" % L_PART)
if not (A.tk2 or A.static):
    a("s_cmp_lg_u32 s26, %d" % A.tkwave)
    a("s_cbranch_scc1 L_notk2")
    a("s_waitcnt vmcnt(0)")
    a("s_mov_b64 exec, 1")
    a("ds_write_b32 v21, v22 offset:%d" % L_TK)
    a("L_notk2:")
a("s_mov_b64 exec, -1")
a("s_waitcnt lgkmcnt(0)")
a("s_barrier")
fine()
a("ds_read2st64_b32 v[10:11], v16 offset0:%d offset1:%d" % (L_PART // 256, L_PART // 256 + 2))
if A.pf == 1:
    a("buffer_load_dword v24, v23, s[52:55], 0 offen %s" % A.pfmod)
if not (A.tk2 or A.static): a("ds_read_b32 v12, v21 offset:%d" % L_TK)
a("s_waitcnt lgkmcnt(0)")
a("v_add_f32 v10, v10, v11")
if not (A.tk2 or A.static): a("v_readfirstlane_b32 s79, v12")
if A.edma:
    a("s_lshl_b32 s84, s79, 3\ns_add_u32 s84, s84, s77\ns_sub_u32 s84, s84, %d" % FFN2_N)
    a("s_min_u32 s85, s79, 9\ns_cmp_lt_u32 s85, 9\ns_cselect_b32 s84, s84, 99")
    a("s_cmp_ge_u32 s84, %d" % FFN1_N)
    a("s_cbranch_scc1 L_noedma")
    a("s_mov_b32 s52, s16\ns_mov_b32 s53, s17\ns_mov_b32 s54, 2211840\ns_mov_b32 s55, 0x20000")
    a("s_lshl_b32 s13, s84, 7")
    dma(10, ["v25", "v26"], 27648)
    a("L_noedma:")
a("v_add_f32_dpp v10, v10, v10 row_ror:4 row_mask:0xf bank_mask:0xf")
a("v_add_f32_dpp v10, v10, v10 row_ror:8 row_mask:0xf bank_mask:0xf")
a("v_cvt_pk_bf16_f32 v10, v10, v10")
fine()
YA = 128
if A.op3:
    def wr3(cb):
        a("s_mov_b32 exec_hi, 0")
        a("ds_write_b128 v18, %s offset:%d" % (t4(YA + 4 * cb), L_YP + 512 * cb))
        a("s_mov_b32 exec_hi, -1")
    selector(48, "v10", 0)
    selector(52, "v10", 1)
    for cb in range(5):
        for r4 in range(4):
            acc = t4(YA + 4 * cb)
            a("v_mfma_f32_16x16x32_bf16 %s, %s, %s, %s" % (acc, t4(48 + 4 * r4), t4(WO + 4 * (5 * r4 + cb)), "0" if r4 == 0 else acc))
            if cb == 0 and r4 < 2: selector(56 + 4 * r4, "v10", r4 + 2)
        if cb >= 2: wr3(cb - 2)
    wr3(3); wr3(4)
elif A.op2:
    def sel2(r4, hi):
        for r in range(4):
            a("v_and_b32_dpp v%d, v10, v%d row_newbcast:%d row_mask:0xf bank_mask:0xf" % (48 + 8 * r4 + 4 * hi + r, (27 if hi else 6) + r, r4))
    def mm(acc, r4, hi, cb, first):
        a("v_mfma_f32_16x16x32_bf16 %s, %s, %s, %s" % (t4(acc), t4(48 + 8 * r4 + 4 * hi), t4(WO + 4 * (5 * r4 + cb)), "0" if first else t4(acc)))
    if A.op4:
        def and1(r4, hi, r):
            a("v_and_b32_dpp v%d, v10, v%d row_newbcast:%d row_mask:0xf bank_mask:0xf" % (48 + 8 * r4 + 4 * hi + r, (27 if hi else 6) + r, r4))
        if A.op4 == 2: a("s_setprio 1")
        sel2(0, 0); sel2(0, 1)
        for r4 in range(4):
            nxt = [(r4 + 1, hi, r) for hi in range(2) for r in range(4)] if r4 < 3 else []
            for k, (acc, hi, cb) in enumerate([(YA, 0, 0), (YA + 4, 0, 2), (YA + 8, 0, 4), (YA, 1, 1), (YA + 4, 1, 3)]):
                mm(acc, r4, hi, cb, r4 == 0 and hi == 0)
                for x in nxt[2 * k:2 * k + 2]: and1(*x)
        if A.op4 == 2: a("s_setprio 0")
        a("s_mov_b32 exec_hi, 0")
        a("ds_write_b128 v31, %s offset:%d" % (t4(YA + 8), L_YP + 2048))
        a("s_mov_b64 exec, -1")
        a("ds_write_b128 v31, %s offset:%d" % (t4(YA), L_YP))
        a("ds_write_b128 v31, %s offset:%d" % (t4(YA + 4), L_YP + 1024))
    else:
        sel2(0, 0); sel2(0, 1)
        for r4 in range(4):
            mm(YA, r4, 0, 0, r4 == 0)
            if r4 < 3: sel2(r4 + 1, 0)
            mm(YA, r4, 1, 1, False)
            if r4 < 3: sel2(r4 + 1, 1)
        for r4 in range(4):
            mm(YA + 4, r4, 0, 2, r4 == 0)
            mm(YA + 4, r4, 1, 3, False)
        a("ds_write_b128 v31, %s offset:%d" % (t4(YA), L_YP))
        for r4 in range(4):
            mm(YA + 8, r4, 0, 4, r4 == 0)
        a("ds_write_b128 v31, %s offset:%d" % (t4(YA + 4), L_YP + 1024))
    if not A.op4:
        a("s_mov_b32 exec_hi, 0")
        a("ds_write_b128 v31, %s offset:%d" % (t4(YA + 8), L_YP + 2048))
        a("s_mov_b64 exec, -1")
else:
    for r4 in range(4):
        ab = 32 + 4 * (r4 & 1)
        selector(ab, "v10", r4)
        for cb in range(5):
            acc = t4(YA + 4 * cb)
            a("v_mfma_f32_16x16x32_bf16 %s, %s, %s, %s" % (acc, t4(ab), t4(WO + 4 * (5 * r4 + cb)), "0" if r4 == 0 else acc))
    a("s_mov_b32 exec_hi, 0")
    for cb in range(5):
        a("ds_write_b128 v18, %s offset:%d" % (t4(YA + 4 * cb), L_YP + 512 * cb))
    a("s_mov_b64 exec, -1")
if A.pf == 3:
    a("buffer_load_dword v24, v23, s[52:55], 0 offen %s" % A.pfmod)
fine()
a("s_lshl_b32 s84, s76, 12")
a("s_waitcnt lgkmcnt(0)")
fine()
if A.fine: a("s_waitcnt lgkmcnt(0)")
a("s_barrier")
fine()
if A.fine: a("s_waitcnt lgkmcnt(0)")
YS = 148
for w in range(8):
    a("ds_read_b64 v[%d:%d], v19 offset:%d" % (YS + 2 * w, YS + 2 * w + 1, L_YP + YSTR * w))
for s_ in (4, 2, 1):
    for w in range(s_):
        if s_ == 4: a("s_waitcnt lgkmcnt(%d)" % (3 - w))
        a("v_pk_add_f32 v[%d:%d], v[%d:%d], v[%d:%d]" % (YS + 2 * w, YS + 2 * w + 1, YS + 2 * w, YS + 2 * w + 1, YS + 2 * (w + s_), YS + 2 * (w + s_) + 1))
a("v_cndmask_b32 v10, v%d, 1.0, s[86:87]" % YS)
a("v_cndmask_b32 v11, v%d, 1.0, s[86:87]" % (YS + 1))
a("buffer_atomic_add_f32 v10, v20, s[48:51], s84 offen")
a("buffer_atomic_add_f32 v11, v20, s[48:51], s84 offen offset:2048")
if A.pf == 4:
    a("buffer_load_dword v24, v23, s[52:55], 0 offen %s" % A.pfmod)
fine()
stamp()
if A.fine:
    for k, sl in enumerate((93, 94, 95, 98, 99, 100)):
        a("s_sub_u32 s%d, s%d, s%d" % (sl, FINE[k + 1], FINE[k]))
    a("s_mov_b32 s27, 99\ns_branch L_fin")
a("s_mov_b32 s27, 99")
if A.tk2:
    a("s_cmp_lg_u32 s26, %d" % A.tkwave)
    a("s_cbranch_scc1 L_notk2")
    a("s_waitcnt vmcnt(%d)" % (3 if A.pf in (1, 2, 3, 4) else 2))
    a("s_mov_b64 exec, 1")
    a("ds_write_b32 v21, v22 offset:%d" % L_TK)
    a("s_mov_b64 exec, -1")
    a("s_waitcnt lgkmcnt(0)")
    a("L_notk2:")
    a("s_barrier")
    a("ds_read_b32 v12, v21 offset:%d" % L_TK)
    a("s_waitcnt lgkmcnt(0)")
    a("v_readfirstlane_b32 s79, v12")
    a("s_cmp_ge_u32 s79, 9")
    a("s_cbranch_scc1 L_fin")
else:
    a("s_cmp_ge_u32 s79, 9")
    a("s_cbranch_scc1 L_fin")
    a("s_barrier")
a("s_mov_b32 s54, 2211840\ns_mov_b32 s55, 0x20000")
a("s_mov_b32 s85, 0x42000000")
a("s_mov_b32 s88, 0")
a("v_and_b32 v10, 7, v0")
a("s_mul_i32 s27, s77, 5\ns_add_u32 s27, s27, s79")
a("s_cmp_lt_u32 s79, 5")
a("s_cbranch_scc1 L_ffn2")
a("s_lshl_b32 s27, s79, 3\ns_add_u32 s27, s27, s77")
a("s_cmp_ge_u32 s27, %d" % (FFN2_N + FFN1_N))
a("s_cbranch_scc1 L_fin")

AF = 48; BF = 128; XF = 208; GR = 220
a("s_sub_u32 s79, s27, %d" % FFN2_N)
a("s_mov_b32 s52, s16\ns_mov_b32 s53, s17")
a("s_lshl_b32 s13, s79, 7")
if not A.edma:
    dma(10, ["v25", "v26"], 27648)
a("v_mul_u32_u24 v23, 20, v1")
a("v_mul_u32_u24 v21, 1280, v44")
a("v_add_u32 v21, v21, v23")
XR = 248
a("buffer_load_dwordx4 v[%d:%d], v21, s[44:47], 0 offen" % (XR, XR + 3))
a("buffer_load_dword v%d, v21, s[44:47], 0 offen offset:16" % (XR + 4))
a("v_lshlrev_b32 v22, 12, v44")
a("v_lshl_add_u32 v22, v1, 4, v22")
def poll1_issue():
    for m in range(4):
        a("buffer_load_dwordx4 %s, v22, s[48:51], 0 offen offset:%d %s" % (t4(GR + 4 * m), 1024 * m, A.pmod))
if not A.nopre: poll1_issue()
a("v_mul_u32_u24 v11, %d, v44" % HN_STRIDE)
a("v_add_u32 v23, v23, v11")
a("v_add_u32 v35, %d, v23" % L_HN)
a("v_mul_u32_u24 v29, %d, v10" % HN_STRIDE)
a("v_lshl_add_u32 v29, v45, 4, v29")
a("v_lshlrev_b32 v30, 4, v10")
if A.pair2:
    a("v_and_b32 v11, 1, v44")
    a("v_lshl_add_u32 v30, v11, 9, v30")
    a("v_bfe_u32 v11, v44, 1, 1")
    a("v_lshl_add_u32 v30, v11, 7, v30")
    a("v_lshrrev_b32 v11, 1, v45")
    a("v_lshl_add_u32 v30, v11, 8, v30")
else:
    a("v_lshl_add_u32 v30, v44, 8, v30")
    a("v_lshrrev_b32 v11, 1, v45")
    a("v_lshl_add_u32 v30, v11, 7, v30")
a("v_and_b32 v11, 1, v45")
a("v_lshl_add_u32 v30, v11, 3, v30")
a("v_lshrrev_b32 v12, 2, v46")
a("v_lshl_add_u32 v12, v45, 3, v12")
a("v_lshlrev_b32 v12, 7, v12")
a("v_lshrrev_b32 v13, 3, v46")
a("v_lshl_add_u32 v13, v11, 1, v13")
a("v_and_b32 v11, 3, v44")
a("v_xor_b32 v11, v11, v13")
a("v_lshl_add_u32 v12, v11, 5, v12")
a("v_lshl_add_u32 v12, v17, 3, v12")
a("v_add_u32 v12, %d, v12" % L_W)
a("v_add_u32 v13, 40960, v12")
if A.warm1:
    a("s_mov_b32 s78, 0")
    a("s_branch L_f1_body")
    a("L_f1_resume:")
a("s_waitcnt vmcnt(%d)" % ((0 if A.nopre else 4) + (4 if A.edma else 0)))
if A.stamp and A.st8 == "dma":
    a("s_memrealtime s[90:91]\ns_waitcnt lgkmcnt(0)\ns_mov_b32 s100, s90")
a("s_barrier")
a("s_cmp_ge_u32 s26, 4")
a("s_cbranch_scc1 L_notr")
for ks in range(20):
    base, off = ("v12", ks * 4096) if ks < 10 else ("v13", (ks - 10) * 4096)
    a("ds_read_b64_tr_b16 v[%d:%d], %s offset:%d" % (AF + 4 * ks, AF + 4 * ks + 1, base, off))
    a("ds_read_b64_tr_b16 v[%d:%d], %s offset:%d" % (AF + 4 * ks + 2, AF + 4 * ks + 3, base, off + 512))
a("L_notr:")
if A.nopre and not A.light: poll1_issue()
if A.light: a("v_mov_b32 v%d, 0" % (GR + 3))
if A.edma: a("s_waitcnt vmcnt(4)")
for k in range(5):
    a("v_lshlrev_b32 v%d, 16, v%d" % (XF + 2 * k, XR + k))
    a("v_and_b32 v%d, 0xffff0000, v%d" % (XF + 2 * k + 1, XR + k))
if A.light:
    import struct as _st
    a("s_mov_b32 s84, 0x%08x" % _st.unpack("<I", _st.pack("<f", float(A.light)))[0])
    a("s_waitcnt vmcnt(0)")
    a("s_mov_b32 s78, 1")
    a("s_mov_b64 exec, 1")
    a("L_light:")
    a("v_cmp_gt_f32 vcc, s84, v%d" % (GR + 3))
    a("s_add_u32 s88, s88, 1")
    a("s_cmp_gt_u32 s88, %d" % SPIN_MAX)
    a("s_cbranch_scc1 L_light_done")
    a("s_cbranch_vccz L_light_done")
    if A.sleep: a("s_sleep %d" % A.sleep)
    a("buffer_load_dword v%d, v22, s[48:51], 0 offen offset:12 %s" % (GR + 3, A.pmod))
    a("s_waitcnt vmcnt(0)")
    a("s_branch L_light")
    a("L_light_done:")
    a("s_mov_b64 exec, -1")
elif A.warm:
    a("s_mov_b32 s78, 0")
    a("s_waitcnt vmcnt(0)")
    a("s_branch L_f1_body")
else:
    a("s_mov_b32 s78, 1")
    a("s_branch L_poll1_chk")
if A.D1:
    sets = [GR] + [BF + 16 * k for k in range(A.D1 - 1)]
    def p1(g):
        for m in range(4):
            a("buffer_load_dwordx4 %s, v22, s[48:51], 0 offen offset:%d %s" % (t4(g + 4 * m), 1024 * m, A.pmod))
    a("L_poll1_chk:")
    for g in sets[1:]:
        if A.pace: a("s_sleep %d" % A.pace)
        p1(g)
    a("L_poll1:")
    for k, g in enumerate(sets):
        a("s_waitcnt vmcnt(%d)" % (4 * (A.D1 - 1)))
        a("v_min_f32 v31, v%d, v%d" % (g + 3, g + 7))
        a("v_min3_f32 v31, v31, v%d, v%d" % (g + 11, g + 15))
        a("v_cmp_ne_u32 vcc, s85, v31")
        a("s_cbranch_vccz L_p1x%d" % k)
        if A.pace: a("s_sleep %d" % A.pace)
        p1(g)
    a("s_add_u32 s88, s88, 1")
    a("s_cmp_gt_u32 s88, %d" % SPIN_MAX)
    a("s_cbranch_scc0 L_poll1")
    for k, g in reversed(list(enumerate(sets))):
        a("L_p1x%d:" % k)
        for q, (x, y) in enumerate([(0, 8), (1, 9), (2, 10), (4, 12), (5, 13)]):
            a("v_cvt_pk_bf16_f32 v%d, v%d, v%d" % (24 + q, g + x, g + y))
        if k: a("s_branch L_p1done")
    a("L_p1done:")
    stamp()
    XH = 238
    GR = 10
else:
    a("L_poll1:")
    poll1_issue()
    a("L_poll1_chk:")
    a("s_add_u32 s88, s88, 1")
    a("s_waitcnt vmcnt(0)")
    a("v_min_f32 v31, v%d, v%d" % (GR + 3, GR + 7))
    a("v_min3_f32 v31, v31, v%d, v%d" % (GR + 11, GR + 15))
    a("v_cmp_ne_u32 vcc, s85, v31")
    a("s_cmp_gt_u32 s88, %d" % SPIN_MAX)
    a("s_cbranch_scc1 L_poll1_done")
    a("s_cbranch_vccnz L_poll1")
    a("L_poll1_done:")
    stamp()
    a("L_f1_body:")
    XH = 238
    pairs = [(GR + 0, GR + 8), (GR + 1, GR + 9), (GR + 2, GR + 10), (GR + 4, GR + 12), (GR + 5, GR + 13)]
    for k in range(5):
        a("v_cvt_pk_bf16_f32 v%d, v%d, v%d" % (24 + k, pairs[k][0], pairs[k][1]))
if A.ln1:
    def pk(op, d, x, y, extra=""):
        a("%s v[%d:%d], v[%d:%d], v[%d:%d]%s" % (op, d, d + 1, x, x + 1, y, y + 1, extra))
    def unpack(d, src):
        a("v_lshlrev_b32 v%d, 16, v%d" % (d, src)); a("v_and_b32 v%d, 0xffff0000, v%d" % (d + 1, src))
    for k in range(5): unpack(GR + 2 * k, 24 + k)
    for k in range(5): pk("v_pk_add_f32", GR + 2 * k, GR + 2 * k, XF + 2 * k)
    for k in range(5): a("v_cvt_pk_bf16_f32 v%d, v%d, v%d" % (24 + k, GR + 2 * k, GR + 2 * k + 1))
    a("s_mov_b32 s12, 0x3f803f80")
    for k in range(5):
        a("v_dot2_f32_bf16 v32, v%d, s12, %s" % (24 + k, "0" if k == 0 else "v32"))
        a("v_dot2_f32_bf16 v33, v%d, v%d, %s" % (24 + k, 24 + k, "0" if k == 0 else "v33"))
    fill = [("v_lshlrev_b32 v%d, 16, v%d" % (XH + 2 * k, 24 + k), "v_and_b32 v%d, 0xffff0000, v%d" % (XH + 2 * k + 1, 24 + k)) for k in range(5)]
    fill = [x for pr in fill for x in pr]
    a(fill.pop(0)); a(fill.pop(0)); a(fill.pop(0))
    for m in ("quad_perm:[1,0,3,2] row_mask:0xf", "quad_perm:[2,3,0,1] row_mask:0xf", "row_half_mirror row_mask:0xf",
              "row_mirror row_mask:0xf", "row_bcast:15 row_mask:0xa", "row_bcast:31 row_mask:0xc"):
        a("v_add_f32_dpp v32, v32, v32 %s bank_mask:0xf" % m)
        a("v_add_f32_dpp v33, v33, v33 %s bank_mask:0xf" % m)
        a(fill.pop(0))
    a("v_readlane_b32 s84, v32, 63")
    a("v_readlane_b32 s12, v33, 63")
    a(fill.pop(0))
    a("v_mov_b32 v33, 0x3acccccd")
    a("v_mul_f32 v38, s84, v33")
    a("v_mul_f32 v32, s12, v33")
    a("v_fma_f32 v32, -v38, v38, v32")
    a("v_max_f32 v32, 0, v32")
    a("v_cvt_pk_bf16_f32 v32, v32, v38")
    a("v_and_b32 v38, 0xffff0000, v32")
    a("v_lshlrev_b32 v32, 16, v32")
    a("v_add_f32 v32, 0x3727c5ac, v32")
    a("v_mov_b32 v39, v38")
    a("v_cvt_pk_bf16_f32 v32, v32, v32")
    for k in range(2): pk("v_pk_add_f32", XH + 2 * k, XH + 2 * k, 38, " neg_lo:[0,1] neg_hi:[0,1]")
    a("v_lshlrev_b32 v32, 16, v32")
    a("v_sqrt_f32 v32, v32")
    for k in range(2, 5): pk("v_pk_add_f32", XH + 2 * k, XH + 2 * k, 38, " neg_lo:[0,1] neg_hi:[0,1]")
    a("v_cvt_pk_bf16_f32 v32, v32, v32")
    for k in range(5): a("v_cvt_pk_bf16_f32 v%d, v%d, v%d" % (24 + k, XH + 2 * k, XH + 2 * k + 1))
    a("v_lshlrev_b32 v32, 16, v32")
    a("v_rcp_f32 v36, v32")
    for k in range(5): unpack(XH + 2 * k, 24 + k)
    a("v_mov_b32 v37, v36")
    for k in range(5): pk("v_pk_mul_f32", XH + 2 * k, XH + 2 * k, 36)
    for k in range(5): a("v_cvt_pk_bf16_f32 v%d, v%d, v%d" % (24 + k, XH + 2 * k, XH + 2 * k + 1))
    a("v_add_u32 v23, %d, v23" % L_HN) if False else None
    a("ds_write2_b32 v35, v24, v25 offset0:0 offset1:1")
    a("ds_write2_b32 v35, v26, v27 offset0:2 offset1:3")
    a("ds_write_b32 v35, v28 offset:16")
else:
    for k in range(5):
        a("v_lshlrev_b32 v%d, 16, v%d" % (GR + 2 * k, 24 + k))
        a("v_and_b32 v%d, 0xffff0000, v%d" % (GR + 2 * k + 1, 24 + k))
    for k in range(10):
        a("v_add_f32 v%d, v%d, v%d" % (GR + k, GR + k, XF + k))
    for k in range(5):
        a("v_cvt_pk_bf16_f32 v%d, v%d, v%d" % (24 + k, GR + 2 * k, GR + 2 * k + 1))
    for k in range(5):
        a("v_lshlrev_b32 v%d, 16, v%d" % (XH + 2 * k, 24 + k))
        a("v_and_b32 v%d, 0xffff0000, v%d" % (XH + 2 * k + 1, 24 + k))
    ln_stats(["v%d" % (XH + k) for k in range(10)], ["v31", "v32", "v33"], "v38", "v39")
    for k in range(10):
        a("v_sub_f32 v%d, v%d, v38" % (XH + k, XH + k))
    for k in range(5):
        a("v_cvt_pk_bf16_f32 v%d, v%d, v%d" % (24 + k, XH + 2 * k, XH + 2 * k + 1))
    for k in range(5):
        a("v_lshlrev_b32 v%d, 16, v%d" % (XH + 2 * k, 24 + k))
        a("v_and_b32 v%d, 0xffff0000, v%d" % (XH + 2 * k + 1, 24 + k))
    for k in range(10):
        a("v_mul_f32 v%d, v%d, v39" % (XH + k, XH + k))
    for k in range(5):
        a("v_cvt_pk_bf16_f32 v%d, v%d, v%d" % (24 + k, XH + 2 * k, XH + 2 * k + 1))
        a("ds_write_b32 v23, v%d offset:%d" % (24 + k, L_HN + 4 * k))
a("s_waitcnt lgkmcnt(0)")
a("s_barrier")
if A.stamp and A.st8 == "hn":
    a("s_memrealtime s[90:91]\ns_waitcnt lgkmcnt(0)\ns_mov_b32 s100, s90")
a("s_cmp_ge_u32 s26, 4")
a("s_cbranch_scc1 L_f1_skip")
if A.D1: a("s_waitcnt vmcnt(0)")
GR = 220
for ks in range(20):
    a("ds_read_b128 %s, v29 offset:%d" % (t4(BF + 4 * ks), L_HN + 64 * ks))
for ks in range(20):
    a("s_waitcnt lgkmcnt(%d)" % min(15, 19 - ks))
    a("v_mfma_f32_16x16x32_bf16 v[40:43], %s, %s, %s" % (t4(AF + 4 * ks), t4(BF + 4 * ks), "0" if ks == 0 else "v[40:43]"))
a("s_lshl_b32 s84, s79, 10")
if not A.st4:
    a("s_mov_b32 exec_lo, 0x00ff00ff\ns_mov_b32 exec_hi, 0x00ff00ff")
for r in range(4):
    a("v_max_f32 v%d, 0, v%d" % (40 + r, 40 + r))
if A.st4:
    a("v_cvt_pk_bf16_f32 v36, v40, v41")
    a("v_cvt_pk_bf16_f32 v38, v40, v41")
    a("v_cvt_pk_bf16_f32 v37, v42, v43")
    a("v_cvt_pk_bf16_f32 v39, v42, v43")
    a("v_permlane16_swap_b32 v36, v38")
    a("v_permlane16_swap_b32 v37, v39")
    a("s_mov_b32 exec_lo, 0xff\ns_mov_b32 exec_hi, 0xff")
else:
    a("v_cvt_pk_bf16_f32 v40, v40, v41")
    a("v_cvt_pk_bf16_f32 v41, v42, v43")
W1 = A.warm or A.warm1
if W1:
    a("s_cmp_eq_u32 s78, 0")
    a("s_cbranch_scc1 L_f1_nost")
if A.st4:
    a("buffer_store_dwordx4 v[36:39], v30, s[60:63], s84 offen %s" % A.pmod)
else:
    a("buffer_store_dwordx2 v[40:41], v30, s[60:63], s84 offen %s" % A.pmod)
a("L_f1_nost:")
a("s_mov_b64 exec, -1")
stamp()
a("L_f1_skip:")
if W1:
    a("s_cmp_eq_u32 s78, 0")
    a("s_cbranch_scc0 L_fin")
if not W1:
    a("s_branch L_fin" if A.stamp else "s_endpgm")
elif A.warm1:
    a("s_branch L_f1_resume")
else:
    a("s_mov_b32 s78, 1")
    a("s_barrier")
    a("s_branch L_poll1")

if A.stamp: stamp_idx[0] = 6
a("L_ffn2:")
a("s_mov_b32 s52, s18\ns_mov_b32 s53, s19")
a("s_lshl_b32 s13, s27, 5")
a("s_mov_b32 s79, s13")
if A.pair2:
    a("v_lshrrev_b32 v5, 1, v1")
    a("v_lshl_add_u32 v5, v44, 6, v5")
else:
    a("v_lshrrev_b32 v5, 1, v0")
a("v_mul_u32_u24 v5, 1280, v5")
a("v_and_b32 v11, 1, v0")
a("v_lshl_add_u32 v5, v11, 4, v5")
NF2 = 8 if A.pair2 else 7
if A.pair2:
    for t in range(8):
        a("s_mov_b32 m0, s3")
        a("buffer_load_dwordx4 v5, s[52:55], s13 offen %s lds" % A.dmod)
        if t < 7:
            a("s_add_u32 s3, s3, 1024")
            a("s_add_u32 s13, s13, %d" % (40960 if t % 2 == 0 else 655360 - 40960))
else:
    dma(7 - A.late2, ["v5"], 327680)
a("v_mul_u32_u24 v21, 1280, v10")
a("v_lshl_add_u32 v21, v45, 3, v21")
a("buffer_load_dwordx2 v[24:25], v21, s[44:47], s79 offen")
a("v_mul_u32_u24 v12, 10240, v44")
a("v_lshl_add_u32 v12, v45, 8, v12")
a("v_lshl_add_u32 v12, v46, 3, v12")
a("v_add_u32 v12, %d, v12" % L_W)
if A.pair2:
    a("v_lshlrev_b32 v22, 4, v0")
else:
    a("v_lshlrev_b32 v22, 9, v44")
    a("v_lshl_add_u32 v22, v45, 7, v22")
    a("v_lshl_add_u32 v22, v10, 4, v22")
a("v_lshlrev_b32 v16, 4, v0")
a("v_lshlrev_b32 v17, 4, v1")
if A.fin2:
    a("v_bfe_u32 v11, v0, 3, 1")
    a("v_mul_u32_u24 v11, %d, v11" % (4096 - 128))
    a("v_add_u32 v17, v17, v11")
a("s_mov_b32 s78, 1")
if A.warm or A.warm2:
    a("s_mov_b32 s78, 0")
    a("s_branch L_f2_body")
    a("L_f2_real:")
    a("s_mov_b32 s78, 1")
a("s_cmp_lg_u32 s26, 0")
a("s_cbranch_scc1 L_ffn2_noh")
a("s_lshl_b32 s84, s27, 4")
a("v_lshlrev_b32 v11, 2, v45")
a("v_add_u32 v11, s84, v11")
for r in range(4):
    a("v_add_u32 v13, %d, v11" % r)
    a("v_mul_u32_u24 v29, 205, v13")
    a("v_lshrrev_b32 v29, 11, v29")
    a("v_mul_u32_u24 v30, 10, v29")
    a("v_sub_u32 v13, v13, v30")
    a("v_and_b32 v30, 1, v13")
    a("v_lshrrev_b32 v13, 1, v13")
    a("v_mul_u32_u24 v31, 11, v13")
    a("v_lshrrev_b32 v31, 5, v31")
    a("v_lshl_add_u32 v30, v30, 1, v31")
    a("v_mul_u32_u24 v31, 3, v31")
    a("v_sub_u32 v%d, v13, v31" % (XF + 4 + r))
    a("v_lshl_add_u32 v29, v30, 6, v29")
    a("v_lshlrev_b32 v29, 4, v29")
    a("v_lshl_add_u32 v%d, v10, 12, v29" % (XF + r))
if A.light or A.light2:
    a("v_lshlrev_b32 v29, 12, v10")
    a("s_mov_b32 s84, 0x42000000")
    a("s_mov_b64 exec, 0xff")
    a("L_light2:")
    a("buffer_load_dword v30, v29, s[48:51], 0 offen offset:12 %s" % A.pmod)
    a("s_add_u32 s88, s88, 1")
    a("s_waitcnt vmcnt(0)")
    a("v_cmp_gt_f32 vcc, s84, v30")
    a("s_cmp_gt_u32 s88, %d" % SPIN_MAX)
    a("s_cbranch_scc1 L_light2_done")
    a("s_cbranch_vccnz L_light2")
    a("L_light2_done:")
    a("s_mov_b64 exec, -1")
a("L_poll2h:")
if A.sleep: a("s_sleep %d" % A.sleep)
for r in range(4):
    a("buffer_load_dwordx4 %s, v%d, s[48:51], 0 offen %s" % (t4(GR + 4 * r), XF + r, A.pmod))
a("s_add_u32 s88, s88, 1")
a("s_waitcnt vmcnt(0)")
a("v_min_f32 v31, v%d, v%d" % (GR + 3, GR + 7))
a("v_min3_f32 v31, v31, v%d, v%d" % (GR + 11, GR + 15))
a("v_cmp_ne_u32 vcc, s85, v31")
a("s_cmp_gt_u32 s88, %d" % SPIN_MAX)
a("s_cbranch_scc1 L_poll2h_done")
a("s_cbranch_vccnz L_poll2h")
a("L_poll2h_done:")
for r in range(4):
    a("v_cmp_eq_u32 vcc, 1, v%d" % (XF + 4 + r))
    a("v_cndmask_b32 v%d, v%d, v%d, vcc" % (GR + 4 * r, GR + 4 * r, GR + 4 * r + 1))
    a("v_cmp_eq_u32 vcc, 2, v%d" % (XF + 4 + r))
    a("v_cndmask_b32 v%d, v%d, v%d, vcc" % (GR + 4 * r, GR + 4 * r, GR + 4 * r + 2))
for k in range(2):
    a("v_cvt_pk_bf16_f32 v31, v%d, v%d" % (GR + 8 * k, GR + 8 * k + 4))
    a("v_lshlrev_b32 v32, 16, v31")
    a("v_and_b32 v33, 0xffff0000, v31")
    a("v_lshlrev_b32 v34, 16, v%d" % (24 + k))
    a("v_and_b32 v35, 0xffff0000, v%d" % (24 + k))
    a("v_add_f32 v32, v32, v34")
    a("v_add_f32 v33, v33, v35")
    a("v_cvt_pk_bf16_f32 v31, v32, v33")
    a("v_lshlrev_b32 v%d, 16, v31" % (XF + 2 * k))
    a("v_and_b32 v%d, 0xffff0000, v31" % (XF + 1 + 2 * k))
a("L_ffn2_noh:")
a("s_waitcnt vmcnt(0)")
def f2_frags(rng=None):
    for t in (rng if rng is not None else range(NF2 - A.late2)):
        a("ds_read_b64_tr_b16 v[%d:%d], v12 offset:%d" % (AF + 4 * t, AF + 4 * t + 1, 1024 * t))
        a("ds_read_b64_tr_b16 v[%d:%d], v12 offset:%d" % (AF + 4 * t + 2, AF + 4 * t + 3, 1024 * t + 128))
if not A.defer2: f2_frags()
stamp()
if A.f2bar:
    a("s_barrier")
if A.late2:
    a("s_add_u32 s3, s3, 1024\ns_add_u32 s13, s13, 327680")
    dma(A.late2, ["v5"], 327680)
if A.defer2:
    f2_frags()
    a("s_waitcnt lgkmcnt(0)")
a("s_mov_b32 s88, 0")
if A.pair2:
    a("L_poll2:")
    for t in range(4):
        a("buffer_load_dwordx4 %s, v22, s[60:63], %s offen %s" % (t4(BF + 4 * t), soff(8192 * t)[0], A.pmod))
    a("s_add_u32 s88, s88, 1")
    a("s_waitcnt lgkmcnt(0)")
    for t in range(4):
        a("s_waitcnt vmcnt(%d)" % (3 - t))
        a("v_mfma_f32_16x16x32_bf16 v[36:39], %s, %s, %s" % (t4(AF + 8 * t + 4), t4(BF + 4 * t), "0" if t == 0 else "v[36:39]"))
        a("v_mfma_f32_16x16x32_bf16 v[40:43], %s, %s, %s" % (t4(AF + 8 * t), t4(BF + 4 * t), "0" if t == 0 else "v[40:43]"))
        if t == 0: a("v_max3_u32 v31, v%d, v%d, v%d\nv_mov_b32 v32, v%d" % (BF, BF + 1, BF + 2, BF + 3))
        else: a("v_max3_u32 v31, v31, v%d, v%d\nv_max3_u32 v32, v32, v%d, v%d" % (BF + 4 * t, BF + 4 * t + 1, BF + 4 * t + 2, BF + 4 * t + 3))
    a("v_max_u32 v31, v31, v32")
    a("v_cmp_eq_u32 vcc, -1, v31")
    a("s_cmp_gt_u32 s88, %d" % SPIN_MAX)
    a("s_cselect_b64 vcc, 0, vcc")
    a("s_cbranch_vccnz L_poll2")
    stamp()
    for r in range(4):
        a("v_add_f32_dpp v%d, v%d, v%d row_ror:8 row_mask:0xf bank_mask:0xf" % (40 + r, 36 + r, 40 + r))
elif A.D2:
    sets = [80 + 28 * k for k in range(A.D2)]
    assert sets[-1] + 28 <= XF
    def p2(g):
        for t in range(7):
            a("buffer_load_dwordx4 %s, v22, s[60:63], %s offen %s" % (t4(g + 4 * t), soff(4096 * t)[0], A.pmod))
    if A.m2:
        a("s_mov_b32 exec_lo, 0x00ff00ff\ns_mov_b32 exec_hi, 0x00ff00ff")
    for k, g in enumerate(sets):
        if A.pace and k: a("s_sleep %d" % A.pace)
        p2(g)
    a("s_waitcnt lgkmcnt(0)")
    a("L_poll2:")
    for k, g in enumerate(sets):
        a("s_waitcnt vmcnt(%d)" % (7 * (A.D2 - 1)))
        a("v_max3_u32 v31, v%d, v%d, v%d" % (g, g + 1, g + 2))
        a("v_max3_u32 v32, v%d, v%d, v%d" % (g + 3, g + 4, g + 5))
        for q in range(6, 26, 4):
            a("v_max3_u32 v31, v31, v%d, v%d" % (g + q, g + q + 1))
            a("v_max3_u32 v32, v32, v%d, v%d" % (g + q + 2, g + q + 3))
        a("v_max3_u32 v31, v31, v%d, v%d" % (g + 26, g + 27))
        a("v_max_u32 v31, v31, v32")
        a("v_cmp_eq_u32 vcc, -1, v31")
        a("s_cbranch_vccz L_p2x%d" % k)
        if A.pace: a("s_sleep %d" % A.pace)
        p2(g)
    a("s_add_u32 s88, s88, 1")
    a("s_cmp_gt_u32 s88, %d" % SPIN_MAX)
    a("s_cbranch_scc0 L_poll2")
    for k, g in reversed(list(enumerate(sets))):
        a("L_p2x%d:" % k)
        if A.m2: a("s_mov_b64 exec, -1")
        for t in range(7):
            a("v_mfma_f32_16x16x32_bf16 v[40:43], %s, %s, %s" % (t4(AF + 4 * t), t4(g + 4 * t), "0" if t == 0 else "v[40:43]"))
        if k: a("s_branch L_p2done")
    a("L_p2done:")
    a("s_nop 7")
    stamp()
else:
    if A.m2:
        for q in range(28): a("v_mov_b32 v%d, 0" % (BF + q))
        a("s_mov_b32 exec_lo, 0x00ff00ff\ns_mov_b32 exec_hi, 0x00ff00ff")
    if A.first2: a("s_sleep %d" % A.first2)
    a("L_poll2:")
    if A.bo2: a("s_sleep %d" % A.bo2)
    for t in range(7):
        a("buffer_load_dwordx4 %s, v22, s[60:63], %s offen %s" % (t4(BF + 4 * t), soff(4096 * t)[0], A.pmod))
    a("s_add_u32 s88, s88, 1")
    a("s_waitcnt lgkmcnt(0)" if A.fin2 else "s_waitcnt vmcnt(0) lgkmcnt(0)")
    if A.fin2:
        a("s_mov_b64 exec, -1")
        for t in range(7):
            a("s_waitcnt vmcnt(%d)" % (6 - t))
            a("v_mfma_f32_16x16x32_bf16 v[40:43], %s, %s, %s" % (t4(AF + 4 * t), t4(BF + 4 * t), "0" if t == 0 else "v[40:43]"))
            if t == 0: a("v_max3_u32 v31, v%d, v%d, v%d\nv_mov_b32 v32, v%d" % (BF, BF + 1, BF + 2, BF + 3))
            else: a("v_max3_u32 v31, v31, v%d, v%d\nv_max3_u32 v32, v32, v%d, v%d" % (BF + 4 * t, BF + 4 * t + 1, BF + 4 * t + 2, BF + 4 * t + 3))
        a("v_max_u32 v31, v31, v32")
        a("v_cmp_eq_u32 vcc, -1, v31")
        a("s_mov_b32 exec_lo, 0x00ff00ff\ns_mov_b32 exec_hi, 0x00ff00ff")
        a("s_cmp_gt_u32 s88, %d" % SPIN_MAX)
        a("s_cbranch_scc1 L_poll2_done")
        a("s_cbranch_vccnz L_poll2")
        a("L_poll2_done:")
        a("s_mov_b64 exec, -1")
        stamp()
        a("L_f2_body:")
    else:
        a("v_max_u32 v31, v%d, v%d" % (BF, BF + 1))
        a("v_max_u32 v32, v%d, v%d" % (BF + 2, BF + 3))
        for k in range(4, 28, 4):
            a("v_max3_u32 v31, v31, v%d, v%d" % (BF + k, BF + k + 1))
            a("v_max3_u32 v32, v32, v%d, v%d" % (BF + k + 2, BF + k + 3))
        a("v_max_u32 v31, v31, v32")
        a("v_cmp_eq_u32 vcc, -1, v31")
        a("s_cmp_gt_u32 s88, %d" % SPIN_MAX)
        a("s_cbranch_scc1 L_poll2_done")
        a("s_cbranch_vccnz L_poll2")
        a("L_poll2_done:")
        if A.m2: a("s_mov_b64 exec, -1")
        if A.late2:
            f2_frags(range(7 - A.late2, 7))
        stamp()
        a("L_f2_body:")
        for t in range(7):
            if A.late2 and t >= 7 - A.late2: a("s_waitcnt lgkmcnt(%d)" % (2 * (6 - t)))
            a("v_mfma_f32_16x16x32_bf16 v[40:43], %s, %s, %s" % (t4(AF + 4 * t), t4(BF + 4 * t), "0" if t == 0 else "v[40:43]"))
a("ds_write_b128 v16, v[40:43] offset:%d" % L_FP)
a("s_waitcnt lgkmcnt(0)")
a("s_barrier")
a("s_cmp_lg_u32 s26, 0")
a("s_cbranch_scc1 L_f2_skip")
if A.fin2:
    for w in range(4):
        a("ds_read_b128 %s, v17 offset:%d" % (t4(AF + 4 * w), L_FP + 1024 * w))
    for w in range(2):
        a("s_waitcnt lgkmcnt(%d)" % (2 - 2 * w))
        for r in (0, 2):
            a("v_pk_add_f32 v[%d:%d], v[%d:%d], v[%d:%d]" % (AF + 8 * w + r, AF + 8 * w + r + 1, AF + 8 * w + r, AF + 8 * w + r + 1, AF + 8 * w + 4 + r, AF + 8 * w + 4 + r + 1))
    for r in (0, 2):
        a("v_pk_add_f32 v[%d:%d], v[%d:%d], v[%d:%d]" % (AF + r, AF + r + 1, AF + r, AF + r + 1, AF + 8 + r, AF + 8 + r + 1))
    for r in range(4):
        a("v_add_f32_dpp v%d, v%d, v%d row_ror:8 row_mask:0xf bank_mask:0xf" % (AF + r, AF + r, AF + r))
else:
    for w in range(8):
        a("ds_read_b128 %s, v17 offset:%d" % (t4(AF + 4 * w), L_FP + 1024 * w))
    a("s_waitcnt lgkmcnt(0)")
    for s_ in (4, 2, 1):
        for w in range(s_):
            for r in range(0, 4, 2):
                a("v_pk_add_f32 v[%d:%d], v[%d:%d], v[%d:%d]" % (AF + 4 * w + r, AF + 4 * w + r + 1, AF + 4 * w + r, AF + 4 * w + r + 1, AF + 4 * (w + s_) + r, AF + 4 * (w + s_) + r + 1))
a("s_mov_b32 exec_lo, 0x00ff00ff\ns_mov_b32 exec_hi, 0x00ff00ff")
for k in range(2):
    a("v_cvt_pk_bf16_f32 v31, v%d, v%d" % (AF + 2 * k, AF + 2 * k + 1))
    a("v_lshlrev_b32 v32, 16, v31")
    a("v_and_b32 v33, 0xffff0000, v31")
    a("v_add_f32 v32, v32, v%d" % (XF + 2 * k))
    a("v_add_f32 v33, v33, v%d" % (XF + 1 + 2 * k))
    a("v_cvt_pk_bf16_f32 v%d, v32, v33" % (40 + k))
if A.warm or A.warm2:
    a("s_cmp_eq_u32 s78, 0")
    a("s_cbranch_scc1 L_f2_nost")
a("buffer_store_dwordx2 v[40:41], v21, s[56:59], s79 offen %s" % A.outmod)
a("L_f2_nost:")
a("s_mov_b64 exec, -1")
a("L_f2_skip:")
if A.warm or A.warm2:
    a("s_cmp_eq_u32 s78, 0")
    a("s_cbranch_scc1 L_f2_real")
if A.diagnum:
    a("v_mov_b32 v26, 0")
    a("buffer_load_dword v27, v26, s[64:67], 0 offen offset:32 sc0 sc1\ns_waitcnt vmcnt(0)")
    a("v_readfirstlane_b32 s84, v27\ns_bcnt1_i32_b32 s84, s84\ns_cmp_eq_u32 s84, 1\ns_cbranch_scc1 L_fin")
    a("s_memrealtime s[90:91]\ns_waitcnt lgkmcnt(0)\ns_add_u32 s85, s90, 10000")
    a("L_dly:\ns_memrealtime s[90:91]\ns_waitcnt lgkmcnt(0)\ns_sub_u32 s84, s85, s90\ns_cmp_lt_i32 s84, 0\ns_cbranch_scc0 L_dly")
if A.diagd:
    a("s_getreg_b32 s84, hwreg(HW_REG_XCC_ID)\ns_sub_u32 s84, s84, s2\ns_and_b32 s84, s84, 7\ns_mul_i32 s85, s84, 2000")
    a("s_memrealtime s[90:91]\ns_waitcnt lgkmcnt(0)\ns_add_u32 s85, s85, s90")
    a("L_dly3:\ns_memrealtime s[90:91]\ns_waitcnt lgkmcnt(0)\ns_sub_u32 s84, s85, s90\ns_cmp_lt_i32 s84, 0\ns_cbranch_scc0 L_dly3")
if A.amp >= 0:
    a("s_cmp_lg_u32 s26, 0\ns_cbranch_scc1 L_fin")
    a("s_memrealtime s[90:91]\ns_waitcnt lgkmcnt(0)\ns_mov_b32 s101, s90")
    if A.ampA:
        a("s_load_dword s93, s[24:25], %d\ns_waitcnt lgkmcnt(0)\ns_mov_b32 s94, s92\ns_mov_b32 s92, s93" % (WS_STAMP - 64))
    a("s_sub_u32 s85, s%d, s92\ns_lshl_b32 s85, s85, %d\ns_add_u32 s85, s85, s90" % (92 + A.amp, A.ampsh))
    a("L_dly2:\ns_memrealtime s[90:91]\ns_waitcnt lgkmcnt(0)\ns_sub_u32 s84, s85, s90\ns_cmp_lt_i32 s84, 0\ns_cbranch_scc0 L_dly2")
a("L_fin:")
if A.stamp and A.amp < 0:
    a("s_waitcnt vmcnt(0)")
    a("s_memrealtime s[90:91]\ns_waitcnt lgkmcnt(0)\ns_mov_b32 s101, s90")
    a("s_add_u32 s48, s24, %d\ns_addc_u32 s49, s25, 0\ns_mov_b32 s50, 131072" % WS_STAMP)
    a("s_lshl_b32 s84, s2, 3\ns_add_u32 s84, s84, s26\ns_lshl_b32 s84, s84, 6")
    a("s_getreg_b32 s85, hwreg(HW_REG_XCC_ID)")
    a("v_mov_b32 v1, 0")
    a("s_mov_b64 exec, 1")
    for k in range(10):
        a("v_mov_b32 v2, s%d" % (92 + k))
        a("buffer_store_dword v2, v1, s[48:51], s84 offen offset:%d" % (4 * k))
    a("v_mov_b32 v2, s85")
    a("buffer_store_dword v2, v1, s[48:51], s84 offen offset:40")
    a("v_mov_b32 v2, s88")
    a("buffer_store_dword v2, v1, s[48:51], s84 offen offset:44")
    a("v_mov_b32 v2, s27")
    a("buffer_store_dword v2, v1, s[48:51], s84 offen offset:48")
    if A.dbgstamp:
        a("s_cmp_ge_u32 s27, 40\ns_cbranch_scc1 L_end\ns_cmp_lg_u32 s26, 0\ns_cbranch_scc1 L_end")
        a("s_not_b32 s86, s92")
        a("v_mov_b32 v2, s86")
        a("buffer_atomic_umax v2, v1, s[64:67], 0 offen offset:4 sc1")
        for k in (4, 5, 6, 7, 9):
            a("v_mov_b32 v2, s%d" % (92 + k))
            a("buffer_atomic_umax v2, v1, s[64:67], 0 offen offset:%d sc1" % (8 + 4 * k))
a("L_end:")
a("s_endpgm")
a("L_initslow:")
a("s_mov_b32 s88, 0")
a("L_initpoll:")
a("buffer_load_dword v12, v21, s[64:67], 0 offen sc0 sc1")
a("s_waitcnt vmcnt(0)")
a("v_readfirstlane_b32 s89, v12")
a("s_add_u32 s88, s88, 1")
a("s_cmp_gt_u32 s88, %d" % SPIN_MAX)
a("s_cbranch_scc1 L_initok")
a("s_cmp_ge_u32 s89, 8")
a("s_cbranch_scc0 L_initpoll")
a("s_branch L_initok")

DESC = '; ---------------------------------------------------------------------------------------------\n; ---------------------------------------------------------------------------------------------\n'
body = a.render()
txt = HEADER + "; @launch grid=(256,1,1) block=(512,1,1) lds=%d\n" % (A.lds or LDS_BYTES)
txt += DESC + """.amdgcn_target "amdgcn-amd-amdhsa--gfx950"
.text
.globl {n}_kernel
{al}.p2align 8
.type {n}_kernel,@function
{n}_kernel:
{body}.section .rodata,"a"
.p2align 6
.amdhsa_kernel {n}_kernel
  .amdhsa_next_free_vgpr 256
  .amdhsa_next_free_sgpr 102
  .amdhsa_accum_offset 256
  .amdhsa_group_segment_fixed_size 0
  .amdhsa_kernarg_size 88
  .amdhsa_user_sgpr_count 2
  .amdhsa_user_sgpr_kernarg_segment_ptr 1
  .amdhsa_system_sgpr_workgroup_id_x 1
  .amdhsa_float_denorm_mode_32 3
.end_amdhsa_kernel
""".format(n=NAME, body=body, al=(".p2align 12\n" + (".fill %d, 4, 0xbf810000   ; never executed: places the entry so that no latency-critical segment crosses a 4 KiB line\n" % (64 * A.align12) if A.align12 else "")) if A.align12 >= 0 else "")
open(A.o, "w").write(txt)
print("wrote", A.o, len(txt), "bytes,", body.count("\\n"), "lines")
```

```python
import sys, argparse
sys.path.insert(0, "work")
from asmlib import Asm

NAME = "sequential_preLN__sliding_block_cached__dense_activation_relu__decode"
HEADER = open("cdna_kernels/%s.s.ref" % NAME).read().split("; Override launch geometry")[0]

ap = argparse.ArgumentParser()
ap.add_argument("-o", default="cdna_kernels/%s.s" % NAME)
ap.add_argument("--stamp", action="store_true")
ap.add_argument("--dbgstamp", action="store_true")
ap.add_argument("--kvmod", default="nt")
ap.add_argument("--wmod", default="nt")
ap.add_argument("--dmod", default="nt")
ap.add_argument("--pmod", default="sc0 sc1")
ap.add_argument("--L", type=int, default=12)
ap.add_argument("--pat", type=int, default=1)
ap.add_argument("--qk", type=int, default=2)
ap.add_argument("--wo_start", type=int, default=12)
ap.add_argument("--wo_every", type=int, default=2)
ap.add_argument("--codepf", action="store_true")
ap.add_argument("--diags", type=int, default=-1)
ap.add_argument("--diagd", action="store_true")
ap.add_argument("--pair2", action="store_true")
ap.add_argument("--st4", action="store_true")
ap.add_argument("--touch2", action="store_true")
ap.add_argument("--op4", type=int, default=0)
ap.add_argument("--lin", action="store_true")
ap.add_argument("--op3", action="store_true")
ap.add_argument("--ampA", action="store_true")
ap.add_argument("--fin2", action="store_true")
ap.add_argument("--late2", type=int, default=0)
ap.add_argument("--align12", type=int, default=-1)
ap.add_argument("--warm1", action="store_true")
ap.add_argument("--warm2", action="store_true")
ap.add_argument("--pad", type=int, default=0)
ap.add_argument("--sthr", type=int, nargs=2, default=None)
ap.add_argument("--tk2", action="store_true")
ap.add_argument("--static", action="store_true")
ap.add_argument("--tkwave", type=int, default=0)
ap.add_argument("--thr", type=int, default=0)
ap.add_argument("--thrT", type=int, default=1)
ap.add_argument("--thr0", type=int, default=256)
ap.add_argument("--qpf", action="store_true")
ap.add_argument("--qstart", type=int, default=0)
ap.add_argument("--krot", type=int, default=0)
ap.add_argument("--light2", action="store_true")
ap.add_argument("--defer2", type=int, default=0)
ap.add_argument("--bo2", type=int, default=0)
ap.add_argument("--first2", type=int, default=0)
ap.add_argument("--ampsh", type=int, default=2)
ap.add_argument("--qspan", type=int, default=0)
ap.add_argument("--ospan", type=int, nargs=2, default=None)
ap.add_argument("--fine", action="store_true")
ap.add_argument("--op2", action="store_true")
ap.add_argument("--ln1", action="store_true")
ap.add_argument("--qrow", type=int, default=0)
ap.add_argument("--rot", type=int, default=0)
ap.add_argument("--outmod", default="")
ap.add_argument("--lds", type=int, default=0)
ap.add_argument("--edma", action="store_true")
ap.add_argument("--nopre", action="store_true")
ap.add_argument("--st8", default="hn")
ap.add_argument("--minrate", type=int, default=0)
ap.add_argument("--m2", action="store_true")
ap.add_argument("--D1", type=int, default=0)
ap.add_argument("--D2", type=int, default=0)
ap.add_argument("--pace", type=int, default=0)
ap.add_argument("--warm", action="store_true")
ap.add_argument("--tkpos", type=int, default=8)
ap.add_argument("--map", type=int, default=0)
ap.add_argument("--touch", action="store_true")
ap.add_argument("--qhead", type=int, default=0)
ap.add_argument("--codepf2", action="store_true")
ap.add_argument("--oobq", action="store_true")
ap.add_argument("--oobo", action="store_true")
ap.add_argument("--f2bar", action="store_true")
ap.add_argument("--light", type=int, default=0)
ap.add_argument("--sleep", type=int, default=0)
ap.add_argument("--amp", type=int, default=-1)
ap.add_argument("--diagnum", action="store_true")
ap.add_argument("--LV", type=int, default=0)
ap.add_argument("--dma", default="stream")
ap.add_argument("--pf", type=int, default=0)
ap.add_argument("--pfmod", default="")
A = ap.parse_args()

L_PART = 0
L_QD = 4096
L_ST = 6144
L_YP = 6400
L_HN = 27136
HN_STRIDE = 1312
L_FP = 37888
L_W = 46080
LDS_BYTES = L_W + 81920
WS_H1 = 32768
WS_STAMP = 1 << 20
FFN1_N, FFN2_N = 27, 40
L_TK = 6208
SPIN_MAX = 400000

RING = 48; NRING = 32
YSTR = 2560
WO = 176
def t4(r): return "v[%d:%d]" % (r, r + 3)
def soff(byte):
    hi, lo = byte // 4096, byte % 4096
    return ("0" if hi == 0 else "s%d" % (67 + hi)), lo

a = Asm()
stamp_idx = [0]
def stamp():
    if not A.stamp: return
    a("s_memrealtime s[90:91]\ns_waitcnt lgkmcnt(0)\ns_mov_b32 s%d, s90" % (92 + stamp_idx[0]))
    stamp_idx[0] += 1
    assert stamp_idx[0] <= 9

FINE = [4, 6, 8, 10, 14, 36, 38]
fine_i = [0]
def fine():
    if not A.fine: return
    r = FINE[fine_i[0]]; fine_i[0] += 1
    a("s_memtime s[%d:%d]" % (r, r + 1))

def wave_reduce(v, op, sdst):
    for m in ("quad_perm:[1,0,3,2] row_mask:0xf", "quad_perm:[2,3,0,1] row_mask:0xf", "row_half_mirror row_mask:0xf",
              "row_mirror row_mask:0xf", "row_bcast:15 row_mask:0xa", "row_bcast:31 row_mask:0xc"):
        a("%s_dpp %s, %s, %s %s bank_mask:0xf" % (op, v, v, v, m))
    a("v_readlane_b32 %s, %s, 63" % (sdst, v))

def ln_stats(vals, tmp, vmean_bf, vrinv):
    t0, t1, t2 = tmp
    a("v_add_f32 %s, %s, %s" % (t0, vals[0], vals[1]))
    a("v_add_f32 %s, %s, %s" % (t1, vals[2], vals[3]))
    for k in range(4, 10, 2):
        a("v_add_f32 %s, %s, %s" % (t0, t0, vals[k]))
        a("v_add_f32 %s, %s, %s" % (t1, t1, vals[k + 1]))
    a("v_add_f32 %s, %s, %s" % (t0, t0, t1))
    wave_reduce(t0, "v_add_f32", "s84")
    a("v_mov_b32 %s, 0x3acccccd" % t2)
    a("v_mul_f32 %s, s84, %s" % (vmean_bf, t2))
    a("v_sub_f32 %s, %s, %s" % (t1, vals[0], vmean_bf))
    a("v_mul_f32 %s, %s, %s" % (t0, t1, t1))
    for k in range(1, 10):
        a("v_sub_f32 %s, %s, %s" % (t1, vals[k], vmean_bf))
        a("v_fmac_f32 %s, %s, %s" % (t0, t1, t1))
    wave_reduce(t0, "v_add_f32", "s84")
    a("v_mul_f32 %s, s84, %s" % (t0, t2))
    a("v_cvt_pk_bf16_f32 %s, %s, %s" % (t0, t0, vmean_bf))
    a("v_and_b32 %s, 0xffff0000, %s" % (vmean_bf, t0))
    a("v_lshlrev_b32 %s, 16, %s" % (t0, t0))
    a("v_add_f32 %s, 0x3727c5ac, %s" % (t0, t0))
    a("v_cvt_pk_bf16_f32 %s, %s, %s" % (t0, t0, t0))
    a("v_lshlrev_b32 %s, 16, %s" % (t0, t0))
    a("v_sqrt_f32 %s, %s" % (t0, t0))
    a("v_cvt_pk_bf16_f32 %s, %s, %s" % (t0, t0, t0))
    a("v_lshlrev_b32 %s, 16, %s" % (t0, t0))
    a("v_rcp_f32 %s, %s" % (vrinv, t0))

def selector(abuf, src, lane):
    for r in range(4):
        a("v_and_b32_dpp v%d, %s, v%d row_newbcast:%d row_mask:0xf bank_mask:0xf" % (abuf + r, src, 6 + r, lane))

def srd(d, plo, nbytes):
    a("s_mov_b32 s%d, s%d\ns_mov_b32 s%d, s%d\ns_mov_b32 s%d, %s\ns_mov_b32 s%d, 0x20000" % (d, plo, d + 1, plo + 1, d + 2, nbytes, d + 3))

S = []
kv = [("k", n) for n in range(32)] + [("v", n) for n in range(32)]
if A.qspan:
    oa, ob = A.ospan
    qpos = [A.qstart + (t * (A.qspan - A.qstart)) // 20 for t in range(20)]
    opos = [oa + (t * (ob - oa)) // 20 for t in range(20)]
    for ki in range(64):
        S += [("q", t) for t in range(20) if qpos[t] == ki]
        S += [("o", t) for t in range(20) if opos[t] == ki]
        S.append(kv[ki])
else:
    qi = 0; ki = 0
    while qi < A.qhead:
        S.append(("q", qi)); qi += 1
    while qi < 20:
        for _ in range(A.qk):
            if qi < 20: S.append(("q", qi)); qi += 1
        S.append(kv[ki]); ki += 1
    oi = 0
    while ki < 64:
        S.append(kv[ki]); ki += 1
        if ki >= A.wo_start and (ki - A.wo_start) % A.wo_every == 0 and oi < 20:
            S.append(("o", oi)); oi += 1
    assert oi == 20
if A.tk2: S.append(("t", 0))
POS = {e: p for p, e in enumerate(S)}
free = list(range(NRING))
slot = {}
lend = list(range(32, 52))
st = {"issued": 0, "maxpos": -1, "gate": len(S)}
def reg_of(e):
    if e[0] == "o": return WO + 4 * e[1]
    return RING + 4 * slot[e]
def issue(e):
    kind, n = e
    if kind in "qkv":
        if free: slot[e] = free.pop(0)
        elif lend and kind != "v": slot[e] = lend.pop()
        else: return False
    if kind == "o":
        if (32 + n) not in lend: return False
        lend.remove(32 + n)
    if kind == "q":
        so = "0"
        if n: a("s_mov_b32 s78, %d" % (n * 8192 * (1, 4, 32)[A.qrow] if not (A.oobq and n >= 3) else 0x7f000000)); so = "s78"
        a("buffer_load_dwordx4 %s, v3, s[36:39], %s offen %s" % (t4(reg_of(e)), so, A.wmod))
    elif kind in "kv":
        sr = "s[28:31]" if kind == "k" else "s[32:35]"
        if A.pat == 0:
            so, im = soff(n * 1024)
        elif A.krot:
            sr_ = "s14" if kind == "k" else "s15"
            so, im = sr_, 0
            if n: a("s_add_u32 %s, %s, 8192\ns_and_b32 %s, %s, 0x3ffff" % (sr_, sr_, sr_, sr_))
        elif A.pat == 3:
            so, im = "0", (n & 1) * 1024
            if n >> 1: a("s_mov_b32 s78, %d" % ((n >> 1) * 8192)); so = "s78"
        elif A.pat == 4:
            so, im = "0", (n & 3) * 1024
            if n >> 2: a("s_mov_b32 s78, %d" % ((n >> 2) * 16384)); so = "s78"
        else:
            so, im = "0", 0
            if n: a("s_mov_b32 s78, %d" % (n * (8192 if A.pat == 1 else 4096))); so = "s78"
        a("buffer_load_dwordx4 %s, v2, %s, %s offen offset:%d %s" % (t4(reg_of(e)), sr, so, im, A.kvmod))
    elif kind == "t":
        a("s_mov_b64 exec, 1")
        a("buffer_atomic_add v22, v21, s[48:51], s11 offen sc0 sc1")
        a("s_mov_b64 exec, -1")
    elif kind == "o":
        so, im = soff(n * 256)
        if A.oobo and n >= 3:
            a("s_mov_b32 s78, 0x7f000000"); so = "s78"
        a("buffer_load_dwordx4 %s, v4, s[40:43], %s offen offset:%d %s" % (t4(reg_of(e)), so, im, A.wmod))
    return True
def pump(upto):
    upto = min(upto, len(S) - 1, st["gate"] - 1)
    while st["issued"] <= upto:
        if not issue(S[st["issued"]]): break
        st["issued"] += 1
def ready(e):
    p = POS[e]
    st["maxpos"] = max(st["maxpos"], p)
    before = st["issued"]
    pump(st["maxpos"] + A.L)
    if st["issued"] == before:
        st["idle"] = st.get("idle", 0) + 1
        if A.minrate and st["idle"] >= A.minrate:
            pump(st["issued"]); st["idle"] = 0
    else:
        st["idle"] = 0
    assert st["issued"] > p, (e, st)
    n = st["issued"] - 1 - p
    assert n <= 63
    a("s_waitcnt vmcnt(%d)" % n)
def done(e):
    sl = slot.pop(e)
    if sl >= 32:
        lend.append(sl); lend.sort()
    else:
        free.append(sl)

a("s_cmp_ge_u32 s2, 256")
a("s_cbranch_scc1 L_end")
a("s_load_dwordx16 s[4:19], s[0:1], 0")
a("s_load_dwordx4 s[20:23], s[0:1], 64")
a("s_load_dwordx2 s[24:25], s[0:1], 80")
if A.stamp:
    a("s_memrealtime s[90:91]")
a("v_and_b32 v1, 63, v0")
a("v_lshrrev_b32 v44, 6, v0")
a("v_lshrrev_b32 v45, 4, v1")
a("v_and_b32 v46, 15, v0")
a("v_readfirstlane_b32 s26, v44")
a("s_lshr_b32 s76, s2, 5")
if A.map == 0:
    a("s_and_b32 s77, s2, 31")
elif A.map == 1:
    a("s_and_b32 s77, s2, 7\ns_lshl_b32 s77, s77, 2\ns_bfe_u32 s84, s2, 0x20003\ns_or_b32 s77, s77, s84")
elif A.map >= 10:
    c = A.map - 10
    tab = list(range(8)); tab[5], tab[c] = tab[c], tab[5]
    a("s_and_b32 s84, s2, 7\ns_lshl_b32 s84, s84, 2\ns_lshr_b32 s84, 0x%08x, s84\ns_and_b32 s84, s84, 7" % sum(t << (4 * k) for k, t in enumerate(tab)))
    a("s_and_b32 s77, s2, 24\ns_or_b32 s77, s77, s84")
elif A.map == 2:
    a("s_and_b32 s77, s2, 7\ns_lshl_b32 s77, s77, 1\ns_bfe_u32 s84, s2, 0x10003\ns_or_b32 s77, s77, s84\ns_and_b32 s84, s2, 16\ns_or_b32 s77, s77, s84")
a("s_lshl_b32 s3, s76, 5\ns_or_b32 s3, s3, s77")
if A.pat == 0:
    a("v_lshlrev_b32 v2, 15, v44")
    a("v_lshl_add_u32 v2, v1, 4, v2")
elif A.pat == 1:
    a("v_lshlrev_b32 v2, 4, v0")
else:
    a("v_lshrrev_b32 v2, 8, v0\nv_lshlrev_b32 v2, 17, v2\nv_lshl_add_u32 v2, v1, 4, v2\nv_and_b32 v3, 3, v44")
    a("v_lshl_add_u32 v2, v3, %d, v2" % {2: 10, 3: 11, 4: 12}[A.pat])
a("v_lshl_add_u32 v47, v44, 2, v45")
if A.rot:
    a("s_lshl_b32 s84, s76, 2")
    a("v_add_u32 v5, s84, v47")
    a("v_and_b32 v5, 31, v5")
a("v_mul_u32_u24 v4, 5120, %s" % ("v5" if A.rot >= 2 else "v47"))
if A.rot: a("v_mov_b32 v47, v5")
if A.qrow == 0:
    a("v_mul_u32_u24 v47, 20, v47")
elif A.qrow == 1:
    a("v_lshrrev_b32 v47, 2, v47\nv_mul_u32_u24 v47, 80, v47\nv_add_u32 v47, v47, v45")
a("v_lshlrev_b32 v3, 13, v47")
a("v_lshl_add_u32 v3, v46, 4, v3")
a("v_lshl_add_u32 v4, v46, 4, v4")
a("v_mul_u32_u24 v32, 20, v1")
QS = (0, 2, 5)[A.qrow]
a("v_lshlrev_b32 v33, %d, v46" % QS)
a("v_add_lshl_u32 v33, v47, v33, 1")
a("v_and_b32 v34, 3, v0")
a("v_lshlrev_b32 v34, %d, v34" % QS)
a("v_add_lshl_u32 v34, v47, v34, 1")
a("s_mul_i32 s84, s76, 1280")
a("s_lshl_b32 s85, s77, 8")
a("s_lshl_b32 s86, s3, 20")
a("s_add_u32 s86, s86, 786432")
a("s_mov_b32 s46, 10240\ns_mov_b32 s47, 0x20000")
a("s_sub_u32 s38, 5242880, s85\ns_mov_b32 s39, 0x20000")
a("s_mov_b32 s30, 262144\ns_mov_b32 s31, 0x20000")
for k in range(1, 8):
    a("s_movk_i32 s%d, %d" % (67 + k, 4096 * k))
a("s_waitcnt lgkmcnt(0)")
if A.stamp:
    a("s_mov_b32 s92, s90"); stamp_idx[0] = 1
    if A.st8 == "karg":
        a("s_memrealtime s[90:91]\ns_waitcnt lgkmcnt(0)\ns_mov_b32 s100, s90")
if A.krot == 1:
    a("s_mul_i32 s14, s2, 0x9e3779b1\ns_lshr_b32 s14, s14, 27\ns_lshl_b32 s14, s14, 13\ns_mov_b32 s15, s14")
elif A.krot == 2:
    a("s_and_b32 s14, s2, 31\ns_lshl_b32 s14, s14, 13\ns_mov_b32 s15, s14")
elif A.krot == 3:
    a("s_lshr_b32 s14, s2, 3\ns_lshl_b32 s14, s14, 13\ns_mov_b32 s15, s14")
if A.krot == 4:
    a("s_and_b32 s14, s2, 1\ns_lshl_b32 s14, s14, 17\ns_mov_b32 s15, s14")
elif A.krot == 5:
    a("s_lshr_b32 s14, s2, 5\ns_lshl_b32 s14, s14, 15\ns_mov_b32 s15, s14")
elif A.krot == 6:
    a("s_and_b32 s14, s2, 7\ns_lshl_b32 s14, s14, 15\ns_mov_b32 s15, s14")
elif A.krot == 7:
    a("s_brev_b32 s14, s2\ns_lshr_b32 s14, s14, 27\ns_lshl_b32 s14, s14, 13\ns_mov_b32 s15, s14")
elif A.krot == 8:
    a("s_lshr_b32 s14, s2, 5\ns_lshl_b32 s14, s14, 13\ns_mov_b32 s15, s14")
a("s_mov_b32 s44, s4\ns_mov_b32 s45, s5")
a("s_add_u32 s36, s10, s85\ns_addc_u32 s37, s11, 0")
a("s_add_u32 s28, s6, s86\ns_addc_u32 s29, s7, 0")
if A.touch:
    a("s_load_dword s89, s[28:29], 0")
    a("s_add_u32 s32, s8, s86\ns_addc_u32 s33, s9, 0")
    a("s_load_dword s88, s[32:33], 0")
a("s_cmp_ge_u32 s2, 8")
a("s_cbranch_scc1 L_noinit")
srd(48, 24, "66560")
a("s_lshl_b32 s87, s2, 12")
a("v_lshlrev_b32 v35, 3, v0")
a("v_mov_b32 v36, 0\nv_mov_b32 v37, 0\nv_mov_b32 v38, -1\nv_mov_b32 v39, -1")
a("buffer_store_dwordx2 v[36:37], v35, s[48:51], s87 offen sc0 sc1")
a("s_add_u32 s87, s87, %d" % WS_H1)
a("buffer_store_dwordx2 v[38:39], v35, s[48:51], s87 offen sc0 sc1")
if not A.static:
    a("s_lshl_b32 s87, s2, 7\ns_add_u32 s87, s87, 65536")
    a("v_and_b32 v35, 0x78, v35")
    a("buffer_store_dwordx2 v[36:37], v35, s[48:51], s87 offen sc0 sc1")
a("L_noinit:")
a("buffer_load_dwordx4 v[16:19], v32, s[44:47], s84 offen")
a("buffer_load_dword v20, v32, s[44:47], s84 offen offset:16")
a("buffer_load_ushort v22, v33, s[44:47], s84 offen")
a("buffer_load_ushort v23, v34, s[44:47], s84 offen offset:%d" % (32 << QS))
if A.qpf:
    srd(52, 10, "5242880")
    a("s_lshr_b32 s87, s2, 3\ns_mul_i32 s87, s87, %d" % (20 * 8192))
    a("s_and_b32 s88, s2, 7")
    a("v_lshrrev_b32 v35, 4, v0\nv_lshlrev_b32 v35, 13, v35")
    if A.map == 1:
        a("s_lshl_b32 s88, s88, 10\ns_add_u32 s87, s87, s88")
        a("v_lshl_add_u32 v35, v46, 6, v35")
    else:
        a("s_lshl_b32 s88, s88, 8\ns_add_u32 s87, s87, s88")
        a("v_and_b32 v36, 3, v0\nv_lshl_add_u32 v35, v36, 6, v35\nv_bfe_u32 v36, v0, 2, 2\nv_lshl_add_u32 v35, v36, 11, v35")
    a("s_cmp_ge_u32 s26, 4")
    a("s_cbranch_scc1 L_noqpf")
    a("buffer_load_dword v21, v35, s[52:55], s87 offen")
    a("s_cmp_lg_u32 s26, 0")
    a("s_cbranch_scc1 L_noqpf")
    a("s_add_u32 s87, s87, %d" % (16 * 8192))
    a("buffer_load_dword v21, v35, s[52:55], s87 offen")
    a("L_noqpf:")
st["gate"] = POS[("o", 0)]
pump(A.L)
n_first = st["issued"]
if A.codepf:
    a("s_getpc_b64 s[84:85]")
    a("L_pc:")
    a("s_sub_u32 s84, s84, L_pc-%s_kernel" % NAME)
    a("s_subb_u32 s85, s85, 0")
    a("v_lshlrev_b32 v35, 5, v0")
    a("v_min_u32 v35, L_end-%s_kernel, v35" % NAME)
    a("global_load_dword v5, v35, s[84:85]")
a("s_add_u32 s32, s8, s86\ns_addc_u32 s33, s9, 0\ns_mov_b32 s34, 262144\ns_mov_b32 s35, 0x20000")
a("s_mul_i32 s85, s77, 163840")
a("s_add_u32 s40, s12, s85\ns_addc_u32 s41, s13, 0\ns_mov_b32 s42, 163840\ns_mov_b32 s43, 0x20000")
if A.touch2:
    a("s_lshl_b32 s84, s26, 15")
    a("s_load_dword s88, s[28:29], s84")
    a("s_load_dword s89, s[32:33], s84")
    a("s_mul_i32 s84, s26, 20480")
    a("s_load_dword s87, s[40:41], s84")
srd(48, 24, "66560")
srd(56, 20, "10240")
a("s_add_u32 s60, s24, %d\ns_addc_u32 s61, s25, 0\ns_mov_b32 s62, 27648\ns_mov_b32 s63, 0x20000" % WS_H1)
srd(64, 22, "256")
a("s_mov_b32 s80, 0xcccccccc\ns_mov_b32 s81, 0xcccccccc\ns_mov_b32 s82, 0xaaaaaaaa\ns_mov_b32 s83, 0xaaaaaaaa")
a("v_and_b32 v35, 1, v0")
a("v_lshlrev_b32 v35, 4, v35")
a("v_mov_b32 v38, 0xffff")
a("v_lshlrev_b32 v38, v35, v38")
a("v_lshrrev_b32 v37, 1, v46")
for r in range(4):
    a("v_cmp_eq_u32 vcc, %d, v37" % r)
    a("v_cndmask_b32 v%d, 0, v38, vcc" % (6 + r))
a("v_lshlrev_b32 v47, 9, v44")
a("v_lshl_add_u32 v47, v46, 5, v47")
a("v_lshl_add_u32 v47, v45, 4, v47")
st["gate"] = len(S)

a("s_waitcnt vmcnt(%d)" % (n_first + (1 if A.codepf else 0)))
if A.stamp and A.st8 == "x":
    a("s_memrealtime s[90:91]\ns_waitcnt lgkmcnt(0)\ns_mov_b32 s100, s90")
for k in range(5):
    a("v_lshlrev_b32 v%d, 16, v%d" % (24 + 2 * k, 16 + k))
    a("v_and_b32 v%d, 0xffff0000, v%d" % (25 + 2 * k, 16 + k))
ln_stats(["v%d" % (24 + k) for k in range(10)], ["v34", "v35", "v37"], "v38", "v39")
for r in (22, 23):
    a("v_lshlrev_b32 v%d, 16, v%d" % (r, r))
    a("v_sub_f32 v%d, v%d, v38" % (r, r))
    a("v_cvt_pk_bf16_f32 v%d, v%d, v%d" % (r, r, r))
    a("v_lshlrev_b32 v%d, 16, v%d" % (r, r))
    a("v_mul_f32 v%d, v%d, v39" % (r, r))
    a("v_cvt_pk_bf16_f32 v%d, v%d, v%d" % (r, r, r))
for t in range(20):
    ab = 24 + 4 * (t & 1)
    selector(ab, "v22" if t < 16 else "v23", t & 15)
    e = ("q", t)
    ready(e)
    if A.stamp and A.st8 == "q%d" % t:
        a("s_memrealtime s[90:91]\ns_waitcnt lgkmcnt(0)\ns_mov_b32 s100, s90")
    a("v_mfma_f32_16x16x32_bf16 v[40:43], %s, %s, %s" % (t4(ab), t4(reg_of(e)), "0" if t == 0 else "v[40:43]"))
    done(e)
a("s_mov_b32 exec_hi, 0")
a("ds_write_b128 v47, v[40:43] offset:%d" % L_PART)
a("s_mov_b64 exec, -1")
a("v_lshlrev_b32 v25, 3, v1")
a("s_waitcnt lgkmcnt(0)")
a("s_barrier")
a("s_cmp_ge_u32 s2, 8")
a("s_cbranch_scc1 L_nosig")
a("s_cmp_lg_u32 s26, 0")
a("s_cbranch_scc1 L_nosig")
a("v_mov_b32 v26, 0\nv_mov_b32 v27, 1")
a("s_mov_b64 exec, 1")
a("buffer_atomic_add v27, v26, s[64:67], 0 offen sc1")
a("s_mov_b64 exec, -1")
a("L_nosig:")
if A.diags >= 0:
    a("s_cmp_lg_u32 s2, 1\ns_cbranch_scc1 L_nods\ns_cmp_lg_u32 s26, 0\ns_cbranch_scc1 L_nods")
    a("v_mov_b32 v26, 0\nv_mov_b32 v27, s92\ns_mov_b64 exec, 1")
    a("buffer_store_dword v27, v26, s[64:67], 0 offen offset:192 sc0 sc1\ns_mov_b64 exec, -1")
    a("L_nods:")
if A.thr:
    a("s_cmp_lg_u32 s26, 0\ns_cbranch_scc1 L_norank")
    a("v_mov_b32 v26, 0\nv_mov_b32 v5, 1\ns_mov_b64 exec, 1")
    a("buffer_atomic_add v5, v26, s[64:67], 0 offen offset:128 sc0 sc1\ns_mov_b64 exec, -1")
    a("L_norank:")
    RANK_POS = st["issued"]
if A.diagnum:
    a("s_cmp_lg_u32 s26, 0\ns_cbranch_scc1 L_nodiag")
    a("s_getreg_b32 s84, hwreg(HW_REG_XCC_ID)\ns_sub_u32 s84, s84, s2\ns_and_b32 s84, s84, 7\ns_lshl_b32 s84, 1, s84")
    a("v_mov_b32 v26, 0\nv_mov_b32 v27, s84\ns_mov_b64 exec, 1")
    a("buffer_atomic_or v27, v26, s[64:67], 0 offen offset:32 sc1\ns_mov_b64 exec, -1")
    a("L_nodiag:")
for w in range(8):
    a("ds_read_b64 v[%d:%d], v25 offset:%d" % (28 + 2 * w, 29 + 2 * w, L_PART + 512 * w))
a("s_waitcnt lgkmcnt(0)")
for w in range(1, 8):
    a("v_add_f32 v28, v28, v%d" % (28 + 2 * w))
    a("v_add_f32 v29, v29, v%d" % (29 + 2 * w))
a("v_cvt_pk_bf16_f32 v28, v28, v29")
a("v_lshlrev_b32 v25, 2, v0")
a("ds_write_b32 v25, v28 offset:%d" % L_QD)
a("v_lshlrev_b32 v25, 8, v44")
a("v_lshl_add_u32 v25, v46, 4, v25")
a("s_waitcnt lgkmcnt(0)")
a("ds_read_b128 v[10:13], v25 offset:%d" % L_QD)
a("s_waitcnt lgkmcnt(0)")
stamp()

for _ in range(A.pad): a("s_nop 0")
def reduce_scatter(dst):
    for n in range(8):
        a("v_add_f32_dpp v%d, v%d, v%d row_mirror row_mask:0xf bank_mask:0x3" % (16 + n, 16 + n, 16 + n))
    for n in range(8):
        a("v_add_f32_dpp v%d, v%d, v%d row_mirror row_mask:0xf bank_mask:0xc" % (16 + n, 24 + n, 24 + n))
    for n in range(4):
        a("v_add_f32_dpp v%d, v%d, v%d row_half_mirror row_mask:0xf bank_mask:0x5" % (16 + n, 16 + n, 16 + n))
    for n in range(4):
        a("v_add_f32_dpp v%d, v%d, v%d row_half_mirror row_mask:0xf bank_mask:0xa" % (16 + n, 20 + n, 20 + n))
    for n in range(4):
        a("v_add_f32_dpp v%d, v%d, v%d quad_perm:[3,2,1,0] row_mask:0xf bank_mask:0xf" % (16 + n, 16 + n, 16 + n))
    a("v_cndmask_b32 v16, v16, v18, s[80:81]")
    a("v_cndmask_b32 v17, v17, v19, s[80:81]")
    a("v_add_f32_dpp v16, v16, v16 quad_perm:[1,0,3,2] row_mask:0xf bank_mask:0xf")
    a("v_add_f32_dpp v17, v17, v17 quad_perm:[1,0,3,2] row_mask:0xf bank_mask:0xf")
    a("v_cndmask_b32 %s, v16, v17, s[82:83]" % dst)

for n in range(32):
    e = ("k", n)
    ready(e)
    acc = 16 + (n & 15)
    for r in range(4):
        a("v_dot2_f32_bf16 v%d, v%d, v%d, %s" % (acc, reg_of(e) + r, 10 + r, "0" if r == 0 else "v%d" % acc))
    done(e)
    if n == 15: reduce_scatter("v14")
    if n == 31: reduce_scatter("v15")
stamp()

a("v_cvt_pk_bf16_f32 v16, v14, v15")
a("v_lshlrev_b32 v14, 16, v16")
a("v_and_b32 v15, 0xffff0000, v16")
a("v_mul_f32 v14, 0x3db504f3, v14")
a("v_mul_f32 v15, 0x3db504f3, v15")
a("v_cvt_pk_bf16_f32 v16, v14, v15")
a("v_lshlrev_b32 v14, 16, v16")
a("v_and_b32 v15, 0xffff0000, v16")
a("v_max_f32 v16, v14, v15")
wave_reduce("v16", "v_max_f32", "s84")
a("v_subrev_f32 v16, s84, v14")
a("v_subrev_f32 v17, s84, v15")
a("v_mul_f32 v16, 0x3fb8aa3b, v16")
a("v_mul_f32 v17, 0x3fb8aa3b, v17")
a("v_exp_f32 v16, v16")
a("v_exp_f32 v17, v17")
a("v_add_f32 v16, v16, v17")
wave_reduce("v16", "v_add_f32", "s85")
a("v_mov_b32 v16, s84")
a("v_mov_b32 v17, s85")
a("v_lshlrev_b32 v18, 3, v44")
a("s_mov_b64 exec, 1")
a("ds_write_b64 v18, v[16:17] offset:%d" % L_ST)
if A.thr:
    a("s_cmp_lg_u32 s26, 0\ns_cbranch_scc1 L_norank2")
    a("s_waitcnt vmcnt(%d)" % min(63, st["issued"] - RANK_POS))
    a("ds_write_b32 v18, v5 offset:%d" % (L_TK + 4))
    a("L_norank2:")
a("s_mov_b64 exec, -1")
a("v_and_b32 v18, 7, v0")
a("v_lshlrev_b32 v18, 3, v18")
a("s_waitcnt lgkmcnt(0)")
a("s_barrier")
a("ds_read_b64 v[16:17], v18 offset:%d" % L_ST)
if A.thr:
    a("v_mov_b32 v19, 0")
    a("ds_read_b32 v19, v19 offset:%d" % (L_TK + 4))
a("s_waitcnt lgkmcnt(0)")
if A.thr:
    a("v_readfirstlane_b32 s10, v19")
    a("s_min_u32 s10, s10, %d" % A.thr0)
    a("s_sub_u32 s10, %d, s10\ns_mul_i32 s10, s10, %d\ns_lshr_b32 s10, s10, 16" % (A.thr0, (A.thr << 16) // A.thr0))
a("v_mov_b32 v18, v16")
for m in ("quad_perm:[1,0,3,2]", "quad_perm:[2,3,0,1]", "row_half_mirror"):
    a("v_max_f32_dpp v18, v18, v18 %s row_mask:0xf bank_mask:0xf" % m)
a("v_sub_f32 v16, v16, v18")
a("v_mul_f32 v16, 0x3fb8aa3b, v16")
a("v_exp_f32 v16, v16")
a("v_mul_f32 v16, v16, v17")
for m in ("quad_perm:[1,0,3,2]", "quad_perm:[2,3,0,1]", "row_half_mirror"):
    a("v_add_f32_dpp v16, v16, v16 %s row_mask:0xf bank_mask:0xf" % m)
a("v_rcp_f32 v16, v16")
a("v_sub_f32 v14, v14, v18")
a("v_sub_f32 v15, v15, v18")
a("v_mul_f32 v14, 0x3fb8aa3b, v14")
a("v_mul_f32 v15, 0x3fb8aa3b, v15")
a("v_exp_f32 v14, v14")
a("v_exp_f32 v15, v15")
a("v_mul_f32 v14, v14, v16")
a("v_mul_f32 v15, v15, v16")
a("v_cvt_pk_bf16_f32 v14, v14, v14")
a("v_cvt_pk_bf16_f32 v15, v15, v15")
stamp()

def pv(n):
    ab = 32 + 4 * (n & 1)
    selector(ab, "v14" if n < 16 else "v15", n & 15)
    e = ("v", n)
    if A.sthr and A.sthr[0] <= n < A.sthr[1]:
        a("s_cmp_eq_u32 s10, 1\ns_cbranch_scc1 L_nt%d\ns_waitcnt vmcnt(%d)\nL_nt%d:" % (n, A.thrT, n))
    if A.thr and n < A.thr:
        a("s_cmp_le_u32 s10, %d\ns_cbranch_scc1 L_nt%d\ns_waitcnt vmcnt(%d)\nL_nt%d:" % (n, n, A.thrT, n))
    ready(e)
    a("v_mfma_f32_16x16x32_bf16 v[40:43], %s, %s, %s" % (t4(ab), t4(reg_of(e)), "0" if n == 0 else "v[40:43]"))
    done(e)

def dma(n, vregs, step):
    for t in range(n):
        a("s_mov_b32 m0, s3")
        a("buffer_load_dwordx4 %s, s[52:55], s13 offen %s lds" % (vregs[t % len(vregs)], A.dmod))
        if t < n - 1:
            a("s_add_u32 s3, s3, 1024")
            a("s_add_u32 s13, s13, %d" % step)

a("v_lshrrev_b32 v16, 2, v46")
a("v_lshlrev_b32 v16, 10, v16")
if A.rot >= 2:
    a("v_add_u32 v17, s76, v44")
    a("v_and_b32 v17, 7, v17")
    a("v_lshl_add_u32 v16, v17, 6, v16")
else:
    a("v_lshl_add_u32 v16, v44, 6, v16")
a("v_lshl_add_u32 v16, v45, 4, v16")
a("v_and_b32 v17, 3, v0")
a("v_lshl_add_u32 v16, v17, 2, v16")
a("v_mul_u32_u24 v18, 2560, v44")
a("v_lshl_add_u32 v18, v46, 5, v18")
a("v_lshl_add_u32 v18, v45, 4, v18")
a("v_bfe_u32 v19, v0, 2, 6")
a("v_mul_u32_u24 v19, 5, v19")
a("v_lshrrev_b32 v20, 8, v0")
a("v_mul_u32_u24 v20, 3, v20")
a("v_add3_u32 v19, v19, v20, v17")
a("v_lshlrev_b32 v19, 3, v19")
a("v_lshlrev_b32 v20, 2, v0")
a("v_mov_b32 v21, 0\nv_mov_b32 v22, 1")
a("s_and_b32 s77, s2, 7\ns_lshl_b32 s75, s77, 7\ns_add_u32 s75, s75, 65536")
a("s_mov_b32 s86, 0x88888888\ns_mov_b32 s87, 0x88888888")
if A.op2:
    for r in range(4):
        a("v_mov_b32_dpp v%d, v%d row_ror:8 row_mask:0xf bank_mask:0xf" % (27 + r, 6 + r))
    if A.lin:
        a("v_mul_u32_u24 v31, %d, v44" % YSTR)
        a("v_lshl_add_u32 v31, v1, 4, v31")
        a("v_and_b32 v11, 0xe0c, v19")
        a("v_bfe_u32 v10, v19, 4, 1")
        a("v_lshl_add_u32 v11, v10, 8, v11")
        a("v_bfe_u32 v10, v19, 5, 4")
        a("v_lshl_add_u32 v19, v10, 4, v11")
    else:
        a("v_mul_u32_u24 v31, 2560, v44")
        a("v_lshrrev_b32 v11, 1, v45")
        a("v_lshl_add_u32 v31, v11, 9, v31")
        a("v_lshl_add_u32 v31, v46, 5, v31")
        a("v_and_b32 v11, 1, v45")
        a("v_lshl_add_u32 v31, v11, 4, v31")
a("v_mul_u32_u24 v5, 80, v44")
a("v_lshrrev_b32 v11, 3, v1")
a("v_add_u32 v5, v5, v11")
a("v_mul_u32_u24 v5, 3456, v5")
a("v_and_b32 v11, 2, v11")
a("v_and_b32 v10, 7, v0")
a("v_xor_b32 v11, v10, v11")
a("v_lshl_add_u32 v25, v11, 4, v5")
a("v_xor_b32 v11, 4, v11")
a("v_lshl_add_u32 v26, v11, 4, v5")
a("s_mul_i32 s3, s26, 10240")
a("s_add_u32 s3, s3, %d" % L_W)
if A.pf:
    a("s_lshr_b32 s84, s2, 3")
    a("s_cmp_ge_u32 s26, 4")
    a("s_cselect_b32 s52, s18, s16\ns_cselect_b32 s53, s19, s17")
    a("s_mov_b32 s54, 2211840\ns_mov_b32 s55, 0x20000")
    a("v_mov_b32 v12, 0x7fffff00")
    a("s_cbranch_scc1 L_pf2")
    a("s_and_b32 s85, s84, 7\ns_mul_i32 s85, s85, 80")
    a("v_lshrrev_b32 v23, 1, v0")
    a("v_add_u32 v23, s85, v23")
    a("v_mul_u32_u24 v23, 3456, v23")
    a("v_and_b32 v13, 1, v0")
    a("v_lshl_add_u32 v23, v13, 6, v23")
    a("s_and_b32 s85, s84, 0x18\ns_add_u32 s85, s85, s77")
    a("s_cmp_lt_u32 s85, 27")
    a("s_cselect_b32 s84, 160, 0")
    a("s_lshl_b32 s85, s85, 7")
    a("v_add_u32 v23, s85, v23")
    a("v_cmp_gt_u32 vcc, s84, v0")
    a("v_cndmask_b32 v23, v12, v23, vcc")
    a("s_branch L_pfdone")
    a("L_pf2:")
    a("s_mul_i32 s84, s84, 54")
    a("v_bfe_u32 v23, v0, 2, 6")
    a("v_add_u32 v23, s84, v23")
    a("v_mul_u32_u24 v23, 1280, v23")
    a("v_lshl_add_u32 v23, v17, 6, v23")
    a("s_mul_i32 s85, s77, 160\ns_and_b32 s85, s85, 0xff80")
    a("v_add_u32 v23, s85, v23")
    a("v_cmp_gt_u32 vcc, %d, v0" % (256 + 216))
    a("v_cndmask_b32 v23, v12, v23, vcc")
    a("L_pfdone:")

if A.codepf2:
    a("s_getpc_b64 s[84:85]")
    a("L_pc2:")
    a("v_lshlrev_b32 v12, 4, v0")
    a("v_add_u32 v12, 1792, v12")
    a("v_min_u32 v12, L_end-L_pc2, v12")
    a("global_load_dword v13, v12, s[84:85]")
if A.sthr:
    a("s_bfe_u32 s10, s36, 0x20008")
if A.LV: A.L = A.LV
if A.tk2:
    st["gate"] = POS[("t", 0)]
    a("s_cmp_eq_u32 s26, %d\ns_cselect_b32 s11, s75, 0x7ffff000" % A.tkwave)
for n in range(32):
    pv(n)
    if A.pf >= 10 and n == A.pf - 10:
        a("buffer_load_dword v24, v23, s[52:55], 0 offen %s" % A.pfmod)
    if n == A.tkpos - 4: a("s_load_dword s89, s[22:23], 0")
    if n == A.tkpos:
        a("s_waitcnt lgkmcnt(0)")
        a("s_cmp_ge_u32 s89, 8")
        a("s_cbranch_scc0 L_initslow")
        a("L_initok:")
        if A.tk2:
            st["gate"] = len(S)
            continue
        if A.static:
            a("s_lshr_b32 s79, s2, 3\ns_xor_b32 s79, s79, 16")
            continue
        a("s_cmp_lg_u32 s26, %d" % A.tkwave)
        a("s_cbranch_scc1 L_notk")
        a("s_mov_b64 exec, 1")
        if A.static:
            a("s_lshr_b32 s84, s2, 3\ns_xor_b32 s84, s84, 16\nv_mov_b32 v22, s84")
        else:
            a("buffer_atomic_add v22, v21, s[48:51], s75 offen sc0 sc1")
        a("s_mov_b64 exec, -1")
        a("L_notk:")
assert st["issued"] == len(S)
stamp()
fine()
if A.pf == 2:
    a("buffer_load_dword v24, v23, s[52:55], 0 offen %s" % A.pfmod)
a("s_mov_b32 exec_hi, 0")
a("ds_write_b128 v47, v[40:43] offset:%d" % L_PART)
if not (A.tk2 or A.static):
    a("s_cmp_lg_u32 s26, %d" % A.tkwave)
    a("s_cbranch_scc1 L_notk2")
    a("s_waitcnt vmcnt(0)")
    a("s_mov_b64 exec, 1")
    a("ds_write_b32 v21, v22 offset:%d" % L_TK)
    a("L_notk2:")
a("s_mov_b64 exec, -1")
a("s_waitcnt lgkmcnt(0)")
a("s_barrier")
fine()
a("ds_read2st64_b32 v[10:11], v16 offset0:%d offset1:%d" % (L_PART // 256, L_PART // 256 + 2))
if A.pf == 1:
    a("buffer_load_dword v24, v23, s[52:55], 0 offen %s" % A.pfmod)
if not (A.tk2 or A.static): a("ds_read_b32 v12, v21 offset:%d" % L_TK)
a("s_waitcnt lgkmcnt(0)")
a("v_add_f32 v10, v10, v11")
if not (A.tk2 or A.static): a("v_readfirstlane_b32 s79, v12")
if A.edma:
    a("s_lshl_b32 s84, s79, 3\ns_add_u32 s84, s84, s77\ns_sub_u32 s84, s84, %d" % FFN2_N)
    a("s_min_u32 s85, s79, 9\ns_cmp_lt_u32 s85, 9\ns_cselect_b32 s84, s84, 99")
    a("s_cmp_ge_u32 s84, %d" % FFN1_N)
    a("s_cbranch_scc1 L_noedma")
    a("s_mov_b32 s52, s16\ns_mov_b32 s53, s17\ns_mov_b32 s54, 2211840\ns_mov_b32 s55, 0x20000")
    a("s_lshl_b32 s13, s84, 7")
    dma(10, ["v25", "v26"], 27648)
    a("L_noedma:")
a("v_add_f32_dpp v10, v10, v10 row_ror:4 row_mask:0xf bank_mask:0xf")
a("v_add_f32_dpp v10, v10, v10 row_ror:8 row_mask:0xf bank_mask:0xf")
a("v_cvt_pk_bf16_f32 v10, v10, v10")
fine()
YA = 128
if A.op3:
    def wr3(cb):
        a("s_mov_b32 exec_hi, 0")
        a("ds_write_b128 v18, %s offset:%d" % (t4(YA + 4 * cb), L_YP + 512 * cb))
        a("s_mov_b32 exec_hi, -1")
    selector(48, "v10", 0)
    selector(52, "v10", 1)
    for cb in range(5):
        for r4 in range(4):
            acc = t4(YA + 4 * cb)
            a("v_mfma_f32_16x16x32_bf16 %s, %s, %s, %s" % (acc, t4(48 + 4 * r4), t4(WO + 4 * (5 * r4 + cb)), "0" if r4 == 0 else acc))
            if cb == 0 and r4 < 2: selector(56 + 4 * r4, "v10", r4 + 2)
        if cb >= 2: wr3(cb - 2)
    wr3(3); wr3(4)
elif A.op2:
    def sel2(r4, hi):
        for r in range(4):
            a("v_and_b32_dpp v%d, v10, v%d row_newbcast:%d row_mask:0xf bank_mask:0xf" % (48 + 8 * r4 + 4 * hi + r, (27 if hi else 6) + r, r4))
    def mm(acc, r4, hi, cb, first):
        a("v_mfma_f32_16x16x32_bf16 %s, %s, %s, %s" % (t4(acc), t4(48 + 8 * r4 + 4 * hi), t4(WO + 4 * (5 * r4 + cb)), "0" if first else t4(acc)))
    if A.op4:
        def and1(r4, hi, r):
            a("v_and_b32_dpp v%d, v10, v%d row_newbcast:%d row_mask:0xf bank_mask:0xf" % (48 + 8 * r4 + 4 * hi + r, (27 if hi else 6) + r, r4))
        if A.op4 == 2: a("s_setprio 1")
        sel2(0, 0); sel2(0, 1)
        for r4 in range(4):
            nxt = [(r4 + 1, hi, r) for hi in range(2) for r in range(4)] if r4 < 3 else []
            for k, (acc, hi, cb) in enumerate([(YA, 0, 0), (YA + 4, 0, 2), (YA + 8, 0, 4), (YA, 1, 1), (YA + 4, 1, 3)]):
                mm(acc, r4, hi, cb, r4 == 0 and hi == 0)
                for x in nxt[2 * k:2 * k + 2]: and1(*x)
        if A.op4 == 2: a("s_setprio 0")
        a("s_mov_b32 exec_hi, 0")
        a("ds_write_b128 v31, %s offset:%d" % (t4(YA + 8), L_YP + 2048))
        a("s_mov_b64 exec, -1")
        a("ds_write_b128 v31, %s offset:%d" % (t4(YA), L_YP))
        a("ds_write_b128 v31, %s offset:%d" % (t4(YA + 4), L_YP + 1024))
    else:
        sel2(0, 0); sel2(0, 1)
        for r4 in range(4):
            mm(YA, r4, 0, 0, r4 == 0)
            if r4 < 3: sel2(r4 + 1, 0)
            mm(YA, r4, 1, 1, False)
            if r4 < 3: sel2(r4 + 1, 1)
        for r4 in range(4):
            mm(YA + 4, r4, 0, 2, r4 == 0)
            mm(YA + 4, r4, 1, 3, False)
        a("ds_write_b128 v31, %s offset:%d" % (t4(YA), L_YP))
        for r4 in range(4):
            mm(YA + 8, r4, 0, 4, r4 == 0)
        a("ds_write_b128 v31, %s offset:%d" % (t4(YA + 4), L_YP + 1024))
    if not A.op4:
        a("s_mov_b32 exec_hi, 0")
        a("ds_write_b128 v31, %s offset:%d" % (t4(YA + 8), L_YP + 2048))
        a("s_mov_b64 exec, -1")
else:
    for r4 in range(4):
        ab = 32 + 4 * (r4 & 1)
        selector(ab, "v10", r4)
        for cb in range(5):
            acc = t4(YA + 4 * cb)
            a("v_mfma_f32_16x16x32_bf16 %s, %s, %s, %s" % (acc, t4(ab), t4(WO + 4 * (5 * r4 + cb)), "0" if r4 == 0 else acc))
    a("s_mov_b32 exec_hi, 0")
    for cb in range(5):
        a("ds_write_b128 v18, %s offset:%d" % (t4(YA + 4 * cb), L_YP + 512 * cb))
    a("s_mov_b64 exec, -1")
if A.pf == 3:
    a("buffer_load_dword v24, v23, s[52:55], 0 offen %s" % A.pfmod)
fine()
a("s_lshl_b32 s84, s76, 12")
a("s_waitcnt lgkmcnt(0)")
fine()
if A.fine: a("s_waitcnt lgkmcnt(0)")
a("s_barrier")
fine()
if A.fine: a("s_waitcnt lgkmcnt(0)")
YS = 148
for w in range(8):
    a("ds_read_b64 v[%d:%d], v19 offset:%d" % (YS + 2 * w, YS + 2 * w + 1, L_YP + YSTR * w))
for s_ in (4, 2, 1):
    for w in range(s_):
        if s_ == 4: a("s_waitcnt lgkmcnt(%d)" % (3 - w))
        a("v_pk_add_f32 v[%d:%d], v[%d:%d], v[%d:%d]" % (YS + 2 * w, YS + 2 * w + 1, YS + 2 * w, YS + 2 * w + 1, YS + 2 * (w + s_), YS + 2 * (w + s_) + 1))
a("v_cndmask_b32 v10, v%d, 1.0, s[86:87]" % YS)
a("v_cndmask_b32 v11, v%d, 1.0, s[86:87]" % (YS + 1))
a("buffer_atomic_add_f32 v10, v20, s[48:51], s84 offen")
a("buffer_atomic_add_f32 v11, v20, s[48:51], s84 offen offset:2048")
if A.pf == 4:
    a("buffer_load_dword v24, v23, s[52:55], 0 offen %s" % A.pfmod)
fine()
stamp()
if A.fine:
    for k, sl in enumerate((93, 94, 95, 98, 99, 100)):
        a("s_sub_u32 s%d, s%d, s%d" % (sl, FINE[k + 1], FINE[k]))
    a("s_mov_b32 s27, 99\ns_branch L_fin")
a("s_mov_b32 s27, 99")
if A.tk2:
    a("s_cmp_lg_u32 s26, %d" % A.tkwave)
    a("s_cbranch_scc1 L_notk2")
    a("s_waitcnt vmcnt(%d)" % (3 if A.pf in (1, 2, 3, 4) else 2))
    a("s_mov_b64 exec, 1")
    a("ds_write_b32 v21, v22 offset:%d" % L_TK)
    a("s_mov_b64 exec, -1")
    a("s_waitcnt lgkmcnt(0)")
    a("L_notk2:")
    a("s_barrier")
    a("ds_read_b32 v12, v21 offset:%d" % L_TK)
    a("s_waitcnt lgkmcnt(0)")
    a("v_readfirstlane_b32 s79, v12")
    a("s_cmp_ge_u32 s79, 9")
    a("s_cbranch_scc1 L_fin")
else:
    a("s_cmp_ge_u32 s79, 9")
    a("s_cbranch_scc1 L_fin")
    a("s_barrier")
a("s_mov_b32 s54, 2211840\ns_mov_b32 s55, 0x20000")
a("s_mov_b32 s85, 0x42000000")
a("s_mov_b32 s88, 0")
a("v_and_b32 v10, 7, v0")
a("s_mul_i32 s27, s77, 5\ns_add_u32 s27, s27, s79")
a("s_cmp_lt_u32 s79, 5")
a("s_cbranch_scc1 L_ffn2")
a("s_lshl_b32 s27, s79, 3\ns_add_u32 s27, s27, s77")
a("s_cmp_ge_u32 s27, %d" % (FFN2_N + FFN1_N))
a("s_cbranch_scc1 L_fin")

AF = 48; BF = 128; XF = 208; GR = 220
a("s_sub_u32 s79, s27, %d" % FFN2_N)
a("s_mov_b32 s52, s16\ns_mov_b32 s53, s17")
a("s_lshl_b32 s13, s79, 7")
if not A.edma:
    dma(10, ["v25", "v26"], 27648)
a("v_mul_u32_u24 v23, 20, v1")
a("v_mul_u32_u24 v21, 1280, v44")
a("v_add_u32 v21, v21, v23")
XR = 248
a("buffer_load_dwordx4 v[%d:%d], v21, s[44:47], 0 offen" % (XR, XR + 3))
a("buffer_load_dword v%d, v21, s[44:47], 0 offen offset:16" % (XR + 4))
a("v_lshlrev_b32 v22, 12, v44")
a("v_lshl_add_u32 v22, v1, 4, v22")
def poll1_issue():
    for m in range(4):
        a("buffer_load_dwordx4 %s, v22, s[48:51], 0 offen offset:%d %s" % (t4(GR + 4 * m), 1024 * m, A.pmod))
if not A.nopre: poll1_issue()
a("v_mul_u32_u24 v11, %d, v44" % HN_STRIDE)
a("v_add_u32 v23, v23, v11")
a("v_add_u32 v35, %d, v23" % L_HN)
a("v_mul_u32_u24 v29, %d, v10" % HN_STRIDE)
a("v_lshl_add_u32 v29, v45, 4, v29")
a("v_lshlrev_b32 v30, 4, v10")
if A.pair2:
    a("v_and_b32 v11, 1, v44")
    a("v_lshl_add_u32 v30, v11, 9, v30")
    a("v_bfe_u32 v11, v44, 1, 1")
    a("v_lshl_add_u32 v30, v11, 7, v30")
    a("v_lshrrev_b32 v11, 1, v45")
    a("v_lshl_add_u32 v30, v11, 8, v30")
else:
    a("v_lshl_add_u32 v30, v44, 8, v30")
    a("v_lshrrev_b32 v11, 1, v45")
    a("v_lshl_add_u32 v30, v11, 7, v30")
a("v_and_b32 v11, 1, v45")
a("v_lshl_add_u32 v30, v11, 3, v30")
a("v_lshrrev_b32 v12, 2, v46")
a("v_lshl_add_u32 v12, v45, 3, v12")
a("v_lshlrev_b32 v12, 7, v12")
a("v_lshrrev_b32 v13, 3, v46")
a("v_lshl_add_u32 v13, v11, 1, v13")
a("v_and_b32 v11, 3, v44")
a("v_xor_b32 v11, v11, v13")
a("v_lshl_add_u32 v12, v11, 5, v12")
a("v_lshl_add_u32 v12, v17, 3, v12")
a("v_add_u32 v12, %d, v12" % L_W)
a("v_add_u32 v13, 40960, v12")
if A.warm1:
    a("s_mov_b32 s78, 0")
    a("s_branch L_f1_body")
    a("L_f1_resume:")
a("s_waitcnt vmcnt(%d)" % ((0 if A.nopre else 4) + (4 if A.edma else 0)))
if A.stamp and A.st8 == "dma":
    a("s_memrealtime s[90:91]\ns_waitcnt lgkmcnt(0)\ns_mov_b32 s100, s90")
a("s_barrier")
a("s_cmp_ge_u32 s26, 4")
a("s_cbranch_scc1 L_notr")
for ks in range(20):
    base, off = ("v12", ks * 4096) if ks < 10 else ("v13", (ks - 10) * 4096)
    a("ds_read_b64_tr_b16 v[%d:%d], %s offset:%d" % (AF + 4 * ks, AF + 4 * ks + 1, base, off))
    a("ds_read_b64_tr_b16 v[%d:%d], %s offset:%d" % (AF + 4 * ks + 2, AF + 4 * ks + 3, base, off + 512))
a("L_notr:")
if A.nopre and not A.light: poll1_issue()
if A.light: a("v_mov_b32 v%d, 0" % (GR + 3))
if A.edma: a("s_waitcnt vmcnt(4)")
for k in range(5):
    a("v_lshlrev_b32 v%d, 16, v%d" % (XF + 2 * k, XR + k))
    a("v_and_b32 v%d, 0xffff0000, v%d" % (XF + 2 * k + 1, XR + k))
if A.light:
    import struct as _st
    a("s_mov_b32 s84, 0x%08x" % _st.unpack("<I", _st.pack("<f", float(A.light)))[0])
    a("s_waitcnt vmcnt(0)")
    a("s_mov_b32 s78, 1")
    a("s_mov_b64 exec, 1")
    a("L_light:")
    a("v_cmp_gt_f32 vcc, s84, v%d" % (GR + 3))
    a("s_add_u32 s88, s88, 1")
    a("s_cmp_gt_u32 s88, %d" % SPIN_MAX)
    a("s_cbranch_scc1 L_light_done")
    a("s_cbranch_vccz L_light_done")
    if A.sleep: a("s_sleep %d" % A.sleep)
    a("buffer_load_dword v%d, v22, s[48:51], 0 offen offset:12 %s" % (GR + 3, A.pmod))
    a("s_waitcnt vmcnt(0)")
    a("s_branch L_light")
    a("L_light_done:")
    a("s_mov_b64 exec, -1")
elif A.warm:
    a("s_mov_b32 s78, 0")
    a("s_waitcnt vmcnt(0)")
    a("s_branch L_f1_body")
else:
    a("s_mov_b32 s78, 1")
    a("s_branch L_poll1_chk")
if A.D1:
    sets = [GR] + [BF + 16 * k for k in range(A.D1 - 1)]
    def p1(g):
        for m in range(4):
            a("buffer_load_dwordx4 %s, v22, s[48:51], 0 offen offset:%d %s" % (t4(g + 4 * m), 1024 * m, A.pmod))
    a("L_poll1_chk:")
    for g in sets[1:]:
        if A.pace: a("s_sleep %d" % A.pace)
        p1(g)
    a("L_poll1:")
    for k, g in enumerate(sets):
        a("s_waitcnt vmcnt(%d)" % (4 * (A.D1 - 1)))
        a("v_min_f32 v31, v%d, v%d" % (g + 3, g + 7))
        a("v_min3_f32 v31, v31, v%d, v%d" % (g + 11, g + 15))
        a("v_cmp_ne_u32 vcc, s85, v31")
        a("s_cbranch_vccz L_p1x%d" % k)
        if A.pace: a("s_sleep %d" % A.pace)
        p1(g)
    a("s_add_u32 s88, s88, 1")
    a("s_cmp_gt_u32 s88, %d" % SPIN_MAX)
    a("s_cbranch_scc0 L_poll1")
    for k, g in reversed(list(enumerate(sets))):
        a("L_p1x%d:" % k)
        for q, (x, y) in enumerate([(0, 8), (1, 9), (2, 10), (4, 12), (5, 13)]):
            a("v_cvt_pk_bf16_f32 v%d, v%d, v%d" % (24 + q, g + x, g + y))
        if k: a("s_branch L_p1done")
    a("L_p1done:")
    stamp()
    XH = 238
    GR = 10
else:
    a("L_poll1:")
    poll1_issue()
    a("L_poll1_chk:")
    a("s_add_u32 s88, s88, 1")
    a("s_waitcnt vmcnt(0)")
    a("v_min_f32 v31, v%d, v%d" % (GR + 3, GR + 7))
    a("v_min3_f32 v31, v31, v%d, v%d" % (GR + 11, GR + 15))
    a("v_cmp_ne_u32 vcc, s85, v31")
    a("s_cmp_gt_u32 s88, %d" % SPIN_MAX)
    a("s_cbranch_scc1 L_poll1_done")
    a("s_cbranch_vccnz L_poll1")
    a("L_poll1_done:")
    stamp()
    a("L_f1_body:")
    XH = 238
    pairs = [(GR + 0, GR + 8), (GR + 1, GR + 9), (GR + 2, GR + 10), (GR + 4, GR + 12), (GR + 5, GR + 13)]
    for k in range(5):
        a("v_cvt_pk_bf16_f32 v%d, v%d, v%d" % (24 + k, pairs[k][0], pairs[k][1]))
if A.ln1:
    def pk(op, d, x, y, extra=""):
        a("%s v[%d:%d], v[%d:%d], v[%d:%d]%s" % (op, d, d + 1, x, x + 1, y, y + 1, extra))
    def unpack(d, src):
        a("v_lshlrev_b32 v%d, 16, v%d" % (d, src)); a("v_and_b32 v%d, 0xffff0000, v%d" % (d + 1, src))
    for k in range(5): unpack(GR + 2 * k, 24 + k)
    for k in range(5): pk("v_pk_add_f32", GR + 2 * k, GR + 2 * k, XF + 2 * k)
    for k in range(5): a("v_cvt_pk_bf16_f32 v%d, v%d, v%d" % (24 + k, GR + 2 * k, GR + 2 * k + 1))
    a("s_mov_b32 s12, 0x3f803f80")
    for k in range(5):
        a("v_dot2_f32_bf16 v32, v%d, s12, %s" % (24 + k, "0" if k == 0 else "v32"))
        a("v_dot2_f32_bf16 v33, v%d, v%d, %s" % (24 + k, 24 + k, "0" if k == 0 else "v33"))
    fill = [("v_lshlrev_b32 v%d, 16, v%d" % (XH + 2 * k, 24 + k), "v_and_b32 v%d, 0xffff0000, v%d" % (XH + 2 * k + 1, 24 + k)) for k in range(5)]
    fill = [x for pr in fill for x in pr]
    a(fill.pop(0)); a(fill.pop(0)); a(fill.pop(0))
    for m in ("quad_perm:[1,0,3,2] row_mask:0xf", "quad_perm:[2,3,0,1] row_mask:0xf", "row_half_mirror row_mask:0xf",
              "row_mirror row_mask:0xf", "row_bcast:15 row_mask:0xa", "row_bcast:31 row_mask:0xc"):
        a("v_add_f32_dpp v32, v32, v32 %s bank_mask:0xf" % m)
        a("v_add_f32_dpp v33, v33, v33 %s bank_mask:0xf" % m)
        a(fill.pop(0))
    a("v_readlane_b32 s84, v32, 63")
    a("v_readlane_b32 s12, v33, 63")
    a(fill.pop(0))
    a("v_mov_b32 v33, 0x3acccccd")
    a("v_mul_f32 v38, s84, v33")
    a("v_mul_f32 v32, s12, v33")
    a("v_fma_f32 v32, -v38, v38, v32")
    a("v_max_f32 v32, 0, v32")
    a("v_cvt_pk_bf16_f32 v32, v32, v38")
    a("v_and_b32 v38, 0xffff0000, v32")
    a("v_lshlrev_b32 v32, 16, v32")
    a("v_add_f32 v32, 0x3727c5ac, v32")
    a("v_mov_b32 v39, v38")
    a("v_cvt_pk_bf16_f32 v32, v32, v32")
    for k in range(2): pk("v_pk_add_f32", XH + 2 * k, XH + 2 * k, 38, " neg_lo:[0,1] neg_hi:[0,1]")
    a("v_lshlrev_b32 v32, 16, v32")
    a("v_sqrt_f32 v32, v32")
    for k in range(2, 5): pk("v_pk_add_f32", XH + 2 * k, XH + 2 * k, 38, " neg_lo:[0,1] neg_hi:[0,1]")
    a("v_cvt_pk_bf16_f32 v32, v32, v32")
    for k in range(5): a("v_cvt_pk_bf16_f32 v%d, v%d, v%d" % (24 + k, XH + 2 * k, XH + 2 * k + 1))
    a("v_lshlrev_b32 v32, 16, v32")
    a("v_rcp_f32 v36, v32")
    for k in range(5): unpack(XH + 2 * k, 24 + k)
    a("v_mov_b32 v37, v36")
    for k in range(5): pk("v_pk_mul_f32", XH + 2 * k, XH + 2 * k, 36)
    for k in range(5): a("v_cvt_pk_bf16_f32 v%d, v%d, v%d" % (24 + k, XH + 2 * k, XH + 2 * k + 1))
    a("v_add_u32 v23, %d, v23" % L_HN) if False else None
    a("ds_write2_b32 v35, v24, v25 offset0:0 offset1:1")
    a("ds_write2_b32 v35, v26, v27 offset0:2 offset1:3")
    a("ds_write_b32 v35, v28 offset:16")
else:
    for k in range(5):
        a("v_lshlrev_b32 v%d, 16, v%d" % (GR + 2 * k, 24 + k))
        a("v_and_b32 v%d, 0xffff0000, v%d" % (GR + 2 * k + 1, 24 + k))
    for k in range(10):
        a("v_add_f32 v%d, v%d, v%d" % (GR + k, GR + k, XF + k))
    for k in range(5):
        a("v_cvt_pk_bf16_f32 v%d, v%d, v%d" % (24 + k, GR + 2 * k, GR + 2 * k + 1))
    for k in range(5):
        a("v_lshlrev_b32 v%d, 16, v%d" % (XH + 2 * k, 24 + k))
        a("v_and_b32 v%d, 0xffff0000, v%d" % (XH + 2 * k + 1, 24 + k))
    ln_stats(["v%d" % (XH + k) for k in range(10)], ["v31", "v32", "v33"], "v38", "v39")
    for k in range(10):
        a("v_sub_f32 v%d, v%d, v38" % (XH + k, XH + k))
    for k in range(5):
        a("v_cvt_pk_bf16_f32 v%d, v%d, v%d" % (24 + k, XH + 2 * k, XH + 2 * k + 1))
    for k in range(5):
        a("v_lshlrev_b32 v%d, 16, v%d" % (XH + 2 * k, 24 + k))
        a("v_and_b32 v%d, 0xffff0000, v%d" % (XH + 2 * k + 1, 24 + k))
    for k in range(10):
        a("v_mul_f32 v%d, v%d, v39" % (XH + k, XH + k))
    for k in range(5):
        a("v_cvt_pk_bf16_f32 v%d, v%d, v%d" % (24 + k, XH + 2 * k, XH + 2 * k + 1))
        a("ds_write_b32 v23, v%d offset:%d" % (24 + k, L_HN + 4 * k))
a("s_waitcnt lgkmcnt(0)")
a("s_barrier")
if A.stamp and A.st8 == "hn":
    a("s_memrealtime s[90:91]\ns_waitcnt lgkmcnt(0)\ns_mov_b32 s100, s90")
a("s_cmp_ge_u32 s26, 4")
a("s_cbranch_scc1 L_f1_skip")
if A.D1: a("s_waitcnt vmcnt(0)")
GR = 220
for ks in range(20):
    a("ds_read_b128 %s, v29 offset:%d" % (t4(BF + 4 * ks), L_HN + 64 * ks))
for ks in range(20):
    a("s_waitcnt lgkmcnt(%d)" % min(15, 19 - ks))
    a("v_mfma_f32_16x16x32_bf16 v[40:43], %s, %s, %s" % (t4(AF + 4 * ks), t4(BF + 4 * ks), "0" if ks == 0 else "v[40:43]"))
a("s_lshl_b32 s84, s79, 10")
if not A.st4:
    a("s_mov_b32 exec_lo, 0x00ff00ff\ns_mov_b32 exec_hi, 0x00ff00ff")
for r in range(4):
    a("v_max_f32 v%d, 0, v%d" % (40 + r, 40 + r))
if A.st4:
    a("v_cvt_pk_bf16_f32 v36, v40, v41")
    a("v_cvt_pk_bf16_f32 v38, v40, v41")
    a("v_cvt_pk_bf16_f32 v37, v42, v43")
    a("v_cvt_pk_bf16_f32 v39, v42, v43")
    a("v_permlane16_swap_b32 v36, v38")
    a("v_permlane16_swap_b32 v37, v39")
    a("s_mov_b32 exec_lo, 0xff\ns_mov_b32 exec_hi, 0xff")
else:
    a("v_cvt_pk_bf16_f32 v40, v40, v41")
    a("v_cvt_pk_bf16_f32 v41, v42, v43")
W1 = A.warm or A.warm1
if W1:
    a("s_cmp_eq_u32 s78, 0")
    a("s_cbranch_scc1 L_f1_nost")
if A.st4:
    a("buffer_store_dwordx4 v[36:39], v30, s[60:63], s84 offen %s" % A.pmod)
else:
    a("buffer_store_dwordx2 v[40:41], v30, s[60:63], s84 offen %s" % A.pmod)
a("L_f1_nost:")
a("s_mov_b64 exec, -1")
stamp()
a("L_f1_skip:")
if W1:
    a("s_cmp_eq_u32 s78, 0")
    a("s_cbranch_scc0 L_fin")
if not W1:
    a("s_branch L_fin" if A.stamp else "s_endpgm")
elif A.warm1:
    a("s_branch L_f1_resume")
else:
    a("s_mov_b32 s78, 1")
    a("s_barrier")
    a("s_branch L_poll1")

if A.stamp: stamp_idx[0] = 6
a("L_ffn2:")
a("s_mov_b32 s52, s18\ns_mov_b32 s53, s19")
a("s_lshl_b32 s13, s27, 5")
a("s_mov_b32 s79, s13")
if A.pair2:
    a("v_lshrrev_b32 v5, 1, v1")
    a("v_lshl_add_u32 v5, v44, 6, v5")
else:
    a("v_lshrrev_b32 v5, 1, v0")
a("v_mul_u32_u24 v5, 1280, v5")
a("v_and_b32 v11, 1, v0")
a("v_lshl_add_u32 v5, v11, 4, v5")
NF2 = 8 if A.pair2 else 7
if A.pair2:
    for t in range(8):
        a("s_mov_b32 m0, s3")
        a("buffer_load_dwordx4 v5, s[52:55], s13 offen %s lds" % A.dmod)
        if t < 7:
            a("s_add_u32 s3, s3, 1024")
            a("s_add_u32 s13, s13, %d" % (40960 if t % 2 == 0 else 655360 - 40960))
else:
    dma(7 - A.late2, ["v5"], 327680)
a("v_mul_u32_u24 v21, 1280, v10")
a("v_lshl_add_u32 v21, v45, 3, v21")
a("buffer_load_dwordx2 v[24:25], v21, s[44:47], s79 offen")
a("v_mul_u32_u24 v12, 10240, v44")
a("v_lshl_add_u32 v12, v45, 8, v12")
a("v_lshl_add_u32 v12, v46, 3, v12")
a("v_add_u32 v12, %d, v12" % L_W)
if A.pair2:
    a("v_lshlrev_b32 v22, 4, v0")
else:
    a("v_lshlrev_b32 v22, 9, v44")
    a("v_lshl_add_u32 v22, v45, 7, v22")
    a("v_lshl_add_u32 v22, v10, 4, v22")
a("v_lshlrev_b32 v16, 4, v0")
a("v_lshlrev_b32 v17, 4, v1")
if A.fin2:
    a("v_bfe_u32 v11, v0, 3, 1")
    a("v_mul_u32_u24 v11, %d, v11" % (4096 - 128))
    a("v_add_u32 v17, v17, v11")
a("s_mov_b32 s78, 1")
if A.warm or A.warm2:
    a("s_mov_b32 s78, 0")
    a("s_branch L_f2_body")
    a("L_f2_real:")
    a("s_mov_b32 s78, 1")
a("s_cmp_lg_u32 s26, 0")
a("s_cbranch_scc1 L_ffn2_noh")
a("s_lshl_b32 s84, s27, 4")
a("v_lshlrev_b32 v11, 2, v45")
a("v_add_u32 v11, s84, v11")
for r in range(4):
    a("v_add_u32 v13, %d, v11" % r)
    a("v_mul_u32_u24 v29, 205, v13")
    a("v_lshrrev_b32 v29, 11, v29")
    a("v_mul_u32_u24 v30, 10, v29")
    a("v_sub_u32 v13, v13, v30")
    a("v_and_b32 v30, 1, v13")
    a("v_lshrrev_b32 v13, 1, v13")
    a("v_mul_u32_u24 v31, 11, v13")
    a("v_lshrrev_b32 v31, 5, v31")
    a("v_lshl_add_u32 v30, v30, 1, v31")
    a("v_mul_u32_u24 v31, 3, v31")
    a("v_sub_u32 v%d, v13, v31" % (XF + 4 + r))
    a("v_lshl_add_u32 v29, v30, 6, v29")
    a("v_lshlrev_b32 v29, 4, v29")
    a("v_lshl_add_u32 v%d, v10, 12, v29" % (XF + r))
if A.light or A.light2:
    a("v_lshlrev_b32 v29, 12, v10")
    a("s_mov_b32 s84, 0x42000000")
    a("s_mov_b64 exec, 0xff")
    a("L_light2:")
    a("buffer_load_dword v30, v29, s[48:51], 0 offen offset:12 %s" % A.pmod)
    a("s_add_u32 s88, s88, 1")
    a("s_waitcnt vmcnt(0)")
    a("v_cmp_gt_f32 vcc, s84, v30")
    a("s_cmp_gt_u32 s88, %d" % SPIN_MAX)
    a("s_cbranch_scc1 L_light2_done")
    a("s_cbranch_vccnz L_light2")
    a("L_light2_done:")
    a("s_mov_b64 exec, -1")
a("L_poll2h:")
if A.sleep: a("s_sleep %d" % A.sleep)
for r in range(4):
    a("buffer_load_dwordx4 %s, v%d, s[48:51], 0 offen %s" % (t4(GR + 4 * r), XF + r, A.pmod))
a("s_add_u32 s88, s88, 1")
a("s_waitcnt vmcnt(0)")
a("v_min_f32 v31, v%d, v%d" % (GR + 3, GR + 7))
a("v_min3_f32 v31, v31, v%d, v%d" % (GR + 11, GR + 15))
a("v_cmp_ne_u32 vcc, s85, v31")
a("s_cmp_gt_u32 s88, %d" % SPIN_MAX)
a("s_cbranch_scc1 L_poll2h_done")
a("s_cbranch_vccnz L_poll2h")
a("L_poll2h_done:")
for r in range(4):
    a("v_cmp_eq_u32 vcc, 1, v%d" % (XF + 4 + r))
    a("v_cndmask_b32 v%d, v%d, v%d, vcc" % (GR + 4 * r, GR + 4 * r, GR + 4 * r + 1))
    a("v_cmp_eq_u32 vcc, 2, v%d" % (XF + 4 + r))
    a("v_cndmask_b32 v%d, v%d, v%d, vcc" % (GR + 4 * r, GR + 4 * r, GR + 4 * r + 2))
for k in range(2):
    a("v_cvt_pk_bf16_f32 v31, v%d, v%d" % (GR + 8 * k, GR + 8 * k + 4))
    a("v_lshlrev_b32 v32, 16, v31")
    a("v_and_b32 v33, 0xffff0000, v31")
    a("v_lshlrev_b32 v34, 16, v%d" % (24 + k))
    a("v_and_b32 v35, 0xffff0000, v%d" % (24 + k))
    a("v_add_f32 v32, v32, v34")
    a("v_add_f32 v33, v33, v35")
    a("v_cvt_pk_bf16_f32 v31, v32, v33")
    a("v_lshlrev_b32 v%d, 16, v31" % (XF + 2 * k))
    a("v_and_b32 v%d, 0xffff0000, v31" % (XF + 1 + 2 * k))
a("L_ffn2_noh:")
a("s_waitcnt vmcnt(0)")
def f2_frags(rng=None):
    for t in (rng if rng is not None else range(NF2 - A.late2)):
        a("ds_read_b64_tr_b16 v[%d:%d], v12 offset:%d" % (AF + 4 * t, AF + 4 * t + 1, 1024 * t))
        a("ds_read_b64_tr_b16 v[%d:%d], v12 offset:%d" % (AF + 4 * t + 2, AF + 4 * t + 3, 1024 * t + 128))
if not A.defer2: f2_frags()
stamp()
if A.f2bar:
    a("s_barrier")
if A.late2:
    a("s_add_u32 s3, s3, 1024\ns_add_u32 s13, s13, 327680")
    dma(A.late2, ["v5"], 327680)
if A.defer2:
    f2_frags()
    a("s_waitcnt lgkmcnt(0)")
a("s_mov_b32 s88, 0")
if A.pair2:
    a("L_poll2:")
    for t in range(4):
        a("buffer_load_dwordx4 %s, v22, s[60:63], %s offen %s" % (t4(BF + 4 * t), soff(8192 * t)[0], A.pmod))
    a("s_add_u32 s88, s88, 1")
    a("s_waitcnt lgkmcnt(0)")
    for t in range(4):
        a("s_waitcnt vmcnt(%d)" % (3 - t))
        a("v_mfma_f32_16x16x32_bf16 v[36:39], %s, %s, %s" % (t4(AF + 8 * t + 4), t4(BF + 4 * t), "0" if t == 0 else "v[36:39]"))
        a("v_mfma_f32_16x16x32_bf16 v[40:43], %s, %s, %s" % (t4(AF + 8 * t), t4(BF + 4 * t), "0" if t == 0 else "v[40:43]"))
        if t == 0: a("v_max3_u32 v31, v%d, v%d, v%d\nv_mov_b32 v32, v%d" % (BF, BF + 1, BF + 2, BF + 3))
        else: a("v_max3_u32 v31, v31, v%d, v%d\nv_max3_u32 v32, v32, v%d, v%d" % (BF + 4 * t, BF + 4 * t + 1, BF + 4 * t + 2, BF + 4 * t + 3))
    a("v_max_u32 v31, v31, v32")
    a("v_cmp_eq_u32 vcc, -1, v31")
    a("s_cmp_gt_u32 s88, %d" % SPIN_MAX)
    a("s_cselect_b64 vcc, 0, vcc")
    a("s_cbranch_vccnz L_poll2")
    stamp()
    for r in range(4):
        a("v_add_f32_dpp v%d, v%d, v%d row_ror:8 row_mask:0xf bank_mask:0xf" % (40 + r, 36 + r, 40 + r))
elif A.D2:
    sets = [80 + 28 * k for k in range(A.D2)]
    assert sets[-1] + 28 <= XF
    def p2(g):
        for t in range(7):
            a("buffer_load_dwordx4 %s, v22, s[60:63], %s offen %s" % (t4(g + 4 * t), soff(4096 * t)[0], A.pmod))
    if A.m2:
        a("s_mov_b32 exec_lo, 0x00ff00ff\ns_mov_b32 exec_hi, 0x00ff00ff")
    for k, g in enumerate(sets):
        if A.pace and k: a("s_sleep %d" % A.pace)
        p2(g)
    a("s_waitcnt lgkmcnt(0)")
    a("L_poll2:")
    for k, g in enumerate(sets):
        a("s_waitcnt vmcnt(%d)" % (7 * (A.D2 - 1)))
        a("v_max3_u32 v31, v%d, v%d, v%d" % (g, g + 1, g + 2))
        a("v_max3_u32 v32, v%d, v%d, v%d" % (g + 3, g + 4, g + 5))
        for q in range(6, 26, 4):
            a("v_max3_u32 v31, v31, v%d, v%d" % (g + q, g + q + 1))
            a("v_max3_u32 v32, v32, v%d, v%d" % (g + q + 2, g + q + 3))
        a("v_max3_u32 v31, v31, v%d, v%d" % (g + 26, g + 27))
        a("v_max_u32 v31, v31, v32")
        a("v_cmp_eq_u32 vcc, -1, v31")
        a("s_cbranch_vccz L_p2x%d" % k)
        if A.pace: a("s_sleep %d" % A.pace)
        p2(g)
    a("s_add_u32 s88, s88, 1")
    a("s_cmp_gt_u32 s88, %d" % SPIN_MAX)
    a("s_cbranch_scc0 L_poll2")
    for k, g in reversed(list(enumerate(sets))):
        a("L_p2x%d:" % k)
        if A.m2: a("s_mov_b64 exec, -1")
        for t in range(7):
            a("v_mfma_f32_16x16x32_bf16 v[40:43], %s, %s, %s" % (t4(AF + 4 * t), t4(g + 4 * t), "0" if t == 0 else "v[40:43]"))
        if k: a("s_branch L_p2done")
    a("L_p2done:")
    a("s_nop 7")
    stamp()
else:
    if A.m2:
        for q in range(28): a("v_mov_b32 v%d, 0" % (BF + q))
        a("s_mov_b32 exec_lo, 0x00ff00ff\ns_mov_b32 exec_hi, 0x00ff00ff")
    if A.first2: a("s_sleep %d" % A.first2)
    a("L_poll2:")
    if A.bo2: a("s_sleep %d" % A.bo2)
    for t in range(7):
        a("buffer_load_dwordx4 %s, v22, s[60:63], %s offen %s" % (t4(BF + 4 * t), soff(4096 * t)[0], A.pmod))
    a("s_add_u32 s88, s88, 1")
    a("s_waitcnt lgkmcnt(0)" if A.fin2 else "s_waitcnt vmcnt(0) lgkmcnt(0)")
    if A.fin2:
        a("s_mov_b64 exec, -1")
        for t in range(7):
            a("s_waitcnt vmcnt(%d)" % (6 - t))
            a("v_mfma_f32_16x16x32_bf16 v[40:43], %s, %s, %s" % (t4(AF + 4 * t), t4(BF + 4 * t), "0" if t == 0 else "v[40:43]"))
            if t == 0: a("v_max3_u32 v31, v%d, v%d, v%d\nv_mov_b32 v32, v%d" % (BF, BF + 1, BF + 2, BF + 3))
            else: a("v_max3_u32 v31, v31, v%d, v%d\nv_max3_u32 v32, v32, v%d, v%d" % (BF + 4 * t, BF + 4 * t + 1, BF + 4 * t + 2, BF + 4 * t + 3))
        a("v_max_u32 v31, v31, v32")
        a("v_cmp_eq_u32 vcc, -1, v31")
        a("s_mov_b32 exec_lo, 0x00ff00ff\ns_mov_b32 exec_hi, 0x00ff00ff")
        a("s_cmp_gt_u32 s88, %d" % SPIN_MAX)
        a("s_cbranch_scc1 L_poll2_done")
        a("s_cbranch_vccnz L_poll2")
        a("L_poll2_done:")
        a("s_mov_b64 exec, -1")
        stamp()
        a("L_f2_body:")
    else:
        a("v_max_u32 v31, v%d, v%d" % (BF, BF + 1))
        a("v_max_u32 v32, v%d, v%d" % (BF + 2, BF + 3))
        for k in range(4, 28, 4):
            a("v_max3_u32 v31, v31, v%d, v%d" % (BF + k, BF + k + 1))
            a("v_max3_u32 v32, v32, v%d, v%d" % (BF + k + 2, BF + k + 3))
        a("v_max_u32 v31, v31, v32")
        a("v_cmp_eq_u32 vcc, -1, v31")
        a("s_cmp_gt_u32 s88, %d" % SPIN_MAX)
        a("s_cbranch_scc1 L_poll2_done")
        a("s_cbranch_vccnz L_poll2")
        a("L_poll2_done:")
        if A.m2: a("s_mov_b64 exec, -1")
        if A.late2:
            f2_frags(range(7 - A.late2, 7))
        stamp()
        a("L_f2_body:")
        for t in range(7):
            if A.late2 and t >= 7 - A.late2: a("s_waitcnt lgkmcnt(%d)" % (2 * (6 - t)))
            a("v_mfma_f32_16x16x32_bf16 v[40:43], %s, %s, %s" % (t4(AF + 4 * t), t4(BF + 4 * t), "0" if t == 0 else "v[40:43]"))
a("ds_write_b128 v16, v[40:43] offset:%d" % L_FP)
a("s_waitcnt lgkmcnt(0)")
a("s_barrier")
a("s_cmp_lg_u32 s26, 0")
a("s_cbranch_scc1 L_f2_skip")
if A.fin2:
    for w in range(4):
        a("ds_read_b128 %s, v17 offset:%d" % (t4(AF + 4 * w), L_FP + 1024 * w))
    for w in range(2):
        a("s_waitcnt lgkmcnt(%d)" % (2 - 2 * w))
        for r in (0, 2):
            a("v_pk_add_f32 v[%d:%d], v[%d:%d], v[%d:%d]" % (AF + 8 * w + r, AF + 8 * w + r + 1, AF + 8 * w + r, AF + 8 * w + r + 1, AF + 8 * w + 4 + r, AF + 8 * w + 4 + r + 1))
    for r in (0, 2):
        a("v_pk_add_f32 v[%d:%d], v[%d:%d], v[%d:%d]" % (AF + r, AF + r + 1, AF + r, AF + r + 1, AF + 8 + r, AF + 8 + r + 1))
    for r in range(4):
        a("v_add_f32_dpp v%d, v%d, v%d row_ror:8 row_mask:0xf bank_mask:0xf" % (AF + r, AF + r, AF + r))
else:
    for w in range(8):
        a("ds_read_b128 %s, v17 offset:%d" % (t4(AF + 4 * w), L_FP + 1024 * w))
    a("s_waitcnt lgkmcnt(0)")
    for s_ in (4, 2, 1):
        for w in range(s_):
            for r in range(0, 4, 2):
                a("v_pk_add_f32 v[%d:%d], v[%d:%d], v[%d:%d]" % (AF + 4 * w + r, AF + 4 * w + r + 1, AF + 4 * w + r, AF + 4 * w + r + 1, AF + 4 * (w + s_) + r, AF + 4 * (w + s_) + r + 1))
a("s_mov_b32 exec_lo, 0x00ff00ff\ns_mov_b32 exec_hi, 0x00ff00ff")
for k in range(2):
    a("v_cvt_pk_bf16_f32 v31, v%d, v%d" % (AF + 2 * k, AF + 2 * k + 1))
    a("v_lshlrev_b32 v32, 16, v31")
    a("v_and_b32 v33, 0xffff0000, v31")
    a("v_add_f32 v32, v32, v%d" % (XF + 2 * k))
    a("v_add_f32 v33, v33, v%d" % (XF + 1 + 2 * k))
    a("v_cvt_pk_bf16_f32 v%d, v32, v33" % (40 + k))
if A.warm or A.warm2:
    a("s_cmp_eq_u32 s78, 0")
    a("s_cbranch_scc1 L_f2_nost")
a("buffer_store_dwordx2 v[40:41], v21, s[56:59], s79 offen %s" % A.outmod)
a("L_f2_nost:")
a("s_mov_b64 exec, -1")
a("L_f2_skip:")
if A.warm or A.warm2:
    a("s_cmp_eq_u32 s78, 0")
    a("s_cbranch_scc1 L_f2_real")
if A.diagnum:
    a("v_mov_b32 v26, 0")
    a("buffer_load_dword v27, v26, s[64:67], 0 offen offset:32 sc0 sc1\ns_waitcnt vmcnt(0)")
    a("v_readfirstlane_b32 s84, v27\ns_bcnt1_i32_b32 s84, s84\ns_cmp_eq_u32 s84, 1\ns_cbranch_scc1 L_fin")
    a("s_memrealtime s[90:91]\ns_waitcnt lgkmcnt(0)\ns_add_u32 s85, s90, 10000")
    a("L_dly:\ns_memrealtime s[90:91]\ns_waitcnt lgkmcnt(0)\ns_sub_u32 s84, s85, s90\ns_cmp_lt_i32 s84, 0\ns_cbranch_scc0 L_dly")
if A.diags >= 0:
    a("s_and_b32 s84, s2, 7\ns_cmp_lg_u32 s84, %d\ns_cbranch_scc1 L_fin" % A.diags)
    a("v_mov_b32 v26, 0\nbuffer_load_dword v27, v26, s[64:67], 0 offen offset:192 sc0 sc1\ns_waitcnt vmcnt(0)\nv_readfirstlane_b32 s84, v27")
    a("s_sub_u32 s85, s92, s84\ns_add_u32 s85, s85, 200\ns_min_u32 s85, s85, 1000\ns_lshl_b32 s85, s85, 4")
    a("s_memrealtime s[90:91]\ns_waitcnt lgkmcnt(0)\ns_add_u32 s85, s85, s90")
    a("L_dly4:\ns_memrealtime s[90:91]\ns_waitcnt lgkmcnt(0)\ns_sub_u32 s84, s85, s90\ns_cmp_lt_i32 s84, 0\ns_cbranch_scc0 L_dly4")
if A.diagd:
    a("s_getreg_b32 s84, hwreg(HW_REG_XCC_ID)\ns_sub_u32 s84, s84, s2\ns_and_b32 s84, s84, 7\ns_mul_i32 s85, s84, 2000")
    a("s_memrealtime s[90:91]\ns_waitcnt lgkmcnt(0)\ns_add_u32 s85, s85, s90")
    a("L_dly3:\ns_memrealtime s[90:91]\ns_waitcnt lgkmcnt(0)\ns_sub_u32 s84, s85, s90\ns_cmp_lt_i32 s84, 0\ns_cbranch_scc0 L_dly3")
if A.amp >= 0:
    a("s_cmp_lg_u32 s26, 0\ns_cbranch_scc1 L_fin")
    a("s_memrealtime s[90:91]\ns_waitcnt lgkmcnt(0)\ns_mov_b32 s101, s90")
    if A.ampA:
        a("s_load_dword s93, s[24:25], %d\ns_waitcnt lgkmcnt(0)\ns_mov_b32 s94, s92\ns_mov_b32 s92, s93" % (WS_STAMP - 64))
    a("s_sub_u32 s85, s%d, s92\ns_lshl_b32 s85, s85, %d\ns_add_u32 s85, s85, s90" % (92 + A.amp, A.ampsh))
    a("L_dly2:\ns_memrealtime s[90:91]\ns_waitcnt lgkmcnt(0)\ns_sub_u32 s84, s85, s90\ns_cmp_lt_i32 s84, 0\ns_cbranch_scc0 L_dly2")
a("L_fin:")
if A.stamp and A.amp < 0:
    a("s_waitcnt vmcnt(0)")
    a("s_memrealtime s[90:91]\ns_waitcnt lgkmcnt(0)\ns_mov_b32 s101, s90")
    a("s_add_u32 s48, s24, %d\ns_addc_u32 s49, s25, 0\ns_mov_b32 s50, 131072" % WS_STAMP)
    a("s_lshl_b32 s84, s2, 3\ns_add_u32 s84, s84, s26\ns_lshl_b32 s84, s84, 6")
    a("s_getreg_b32 s85, hwreg(HW_REG_XCC_ID)")
    a("v_mov_b32 v1, 0")
    a("s_mov_b64 exec, 1")
    for k in range(10):
        a("v_mov_b32 v2, s%d" % (92 + k))
        a("buffer_store_dword v2, v1, s[48:51], s84 offen offset:%d" % (4 * k))
    a("v_mov_b32 v2, s85")
    a("buffer_store_dword v2, v1, s[48:51], s84 offen offset:40")
    a("v_mov_b32 v2, s88")
    a("buffer_store_dword v2, v1, s[48:51], s84 offen offset:44")
    a("v_mov_b32 v2, s27")
    a("buffer_store_dword v2, v1, s[48:51], s84 offen offset:48")
    if A.dbgstamp:
        a("s_cmp_ge_u32 s27, 40\ns_cbranch_scc1 L_end\ns_cmp_lg_u32 s26, 0\ns_cbranch_scc1 L_end")
        a("s_not_b32 s86, s92")
        a("v_mov_b32 v2, s86")
        a("buffer_atomic_umax v2, v1, s[64:67], 0 offen offset:4 sc1")
        for k in (4, 5, 6, 7, 9):
            a("v_mov_b32 v2, s%d" % (92 + k))
            a("buffer_atomic_umax v2, v1, s[64:67], 0 offen offset:%d sc1" % (8 + 4 * k))
a("L_end:")
a("s_endpgm")
a("L_initslow:")
a("s_mov_b32 s88, 0")
a("L_initpoll:")
a("buffer_load_dword v12, v21, s[64:67], 0 offen sc0 sc1")
a("s_waitcnt vmcnt(0)")
a("v_readfirstlane_b32 s89, v12")
a("s_add_u32 s88, s88, 1")
a("s_cmp_gt_u32 s88, %d" % SPIN_MAX)
a("s_cbranch_scc1 L_initok")
a("s_cmp_ge_u32 s89, 8")
a("s_cbranch_scc0 L_initpoll")
a("s_branch L_initok")

DESC = '; ---------------------------------------------------------------------------------------------\n; ---------------------------------------------------------------------------------------------\n'
body = a.render()
txt = HEADER + "; @launch grid=(256,1,1) block=(512,1,1) lds=%d\n" % (A.lds or LDS_BYTES)
txt += DESC + """.amdgcn_target "amdgcn-amd-amdhsa--gfx950"
.text
.globl {n}_kernel
{al}.p2align 8
.type {n}_kernel,@function
{n}_kernel:
{body}.section .rodata,"a"
.p2align 6
.amdhsa_kernel {n}_kernel
  .amdhsa_next_free_vgpr 256
  .amdhsa_next_free_sgpr 102
  .amdhsa_accum_offset 256
  .amdhsa_group_segment_fixed_size 0
  .amdhsa_kernarg_size 88
  .amdhsa_user_sgpr_count 2
  .amdhsa_user_sgpr_kernarg_segment_ptr 1
  .amdhsa_system_sgpr_workgroup_id_x 1
  .amdhsa_float_denorm_mode_32 3
.end_amdhsa_kernel
""".format(n=NAME, body=body, al=(".p2align 12\n" + (".fill %d, 4, 0xbf810000   ; never executed: places the entry so that no latency-critical segment crosses a 4 KiB line\n" % (64 * A.align12) if A.align12 else "")) if A.align12 >= 0 else "")
open(A.o, "w").write(txt)
print("wrote", A.o, len(txt), "bytes,", body.count("\\n"), "lines")
```

```python
import sys, argparse
sys.path.insert(0, "work")
from asmlib import Asm

NAME = "sequential_preLN__sliding_block_cached__dense_activation_relu__decode"
HEADER = open("cdna_kernels/%s.s.ref" % NAME).read().split("; Override launch geometry")[0]

ap = argparse.ArgumentParser()
ap.add_argument("-o", default="cdna_kernels/%s.s" % NAME)
ap.add_argument("--stamp", action="store_true")
ap.add_argument("--dbgstamp", action="store_true")
ap.add_argument("--kvmod", default="nt")
ap.add_argument("--wmod", default="nt")
ap.add_argument("--dmod", default="nt")
ap.add_argument("--pmod", default="sc0 sc1")
ap.add_argument("--L", type=int, default=12)
ap.add_argument("--pat", type=int, default=1)
ap.add_argument("--qk", type=int, default=2)
ap.add_argument("--wo_start", type=int, default=12)
ap.add_argument("--wo_every", type=int, default=2)
ap.add_argument("--codepf", action="store_true")
ap.add_argument("--slown", type=int, default=20)
ap.add_argument("--slow", type=int, default=0)
ap.add_argument("--diags", type=int, default=-1)
ap.add_argument("--diagd", action="store_true")
ap.add_argument("--pair2", action="store_true")
ap.add_argument("--st4", action="store_true")
ap.add_argument("--touch2", action="store_true")
ap.add_argument("--op4", type=int, default=0)
ap.add_argument("--lin", action="store_true")
ap.add_argument("--op3", action="store_true")
ap.add_argument("--ampA", action="store_true")
ap.add_argument("--fin2", action="store_true")
ap.add_argument("--late2", type=int, default=0)
ap.add_argument("--align12", type=int, default=-1)
ap.add_argument("--warm1", action="store_true")
ap.add_argument("--warm2", action="store_true")
ap.add_argument("--pad", type=int, default=0)
ap.add_argument("--sthr", type=int, nargs=2, default=None)
ap.add_argument("--tk2", action="store_true")
ap.add_argument("--static", action="store_true")
ap.add_argument("--tkwave", type=int, default=0)
ap.add_argument("--thr", type=int, default=0)
ap.add_argument("--thrT", type=int, default=1)
ap.add_argument("--thr0", type=int, default=256)
ap.add_argument("--qpf", action="store_true")
ap.add_argument("--qstart", type=int, default=0)
ap.add_argument("--krot", type=int, default=0)
ap.add_argument("--light2", action="store_true")
ap.add_argument("--defer2", type=int, default=0)
ap.add_argument("--bo2", type=int, default=0)
ap.add_argument("--first2", type=int, default=0)
ap.add_argument("--ampsh", type=int, default=2)
ap.add_argument("--qspan", type=int, default=0)
ap.add_argument("--ospan", type=int, nargs=2, default=None)
ap.add_argument("--fine", action="store_true")
ap.add_argument("--op2", action="store_true")
ap.add_argument("--ln1", action="store_true")
ap.add_argument("--qrow", type=int, default=0)
ap.add_argument("--rot", type=int, default=0)
ap.add_argument("--outmod", default="")
ap.add_argument("--lds", type=int, default=0)
ap.add_argument("--edma", action="store_true")
ap.add_argument("--nopre", action="store_true")
ap.add_argument("--st8", default="hn")
ap.add_argument("--minrate", type=int, default=0)
ap.add_argument("--m2", action="store_true")
ap.add_argument("--D1", type=int, default=0)
ap.add_argument("--D2", type=int, default=0)
ap.add_argument("--pace", type=int, default=0)
ap.add_argument("--warm", action="store_true")
ap.add_argument("--tkpos", type=int, default=8)
ap.add_argument("--map", type=int, default=0)
ap.add_argument("--touch", action="store_true")
ap.add_argument("--qhead", type=int, default=0)
ap.add_argument("--codepf2", action="store_true")
ap.add_argument("--oobq", action="store_true")
ap.add_argument("--oobo", action="store_true")
ap.add_argument("--f2bar", action="store_true")
ap.add_argument("--light", type=int, default=0)
ap.add_argument("--sleep", type=int, default=0)
ap.add_argument("--amp", type=int, default=-1)
ap.add_argument("--diagnum", action="store_true")
ap.add_argument("--LV", type=int, default=0)
ap.add_argument("--dma", default="stream")
ap.add_argument("--pf", type=int, default=0)
ap.add_argument("--pfmod", default="")
A = ap.parse_args()

L_PART = 0
L_QD = 4096
L_ST = 6144
L_YP = 6400
L_HN = 27136
HN_STRIDE = 1312
L_FP = 37888
L_W = 46080
LDS_BYTES = L_W + 81920
WS_H1 = 32768
WS_STAMP = 1 << 20
FFN1_N, FFN2_N = 27, 40
L_TK = 6208
SPIN_MAX = 400000

RING = 48; NRING = 32
YSTR = 2560
WO = 176
def t4(r): return "v[%d:%d]" % (r, r + 3)
def soff(byte):
    hi, lo = byte // 4096, byte % 4096
    return ("0" if hi == 0 else "s%d" % (67 + hi)), lo

a = Asm()
stamp_idx = [0]
def stamp():
    if not A.stamp: return
    a("s_memrealtime s[90:91]\ns_waitcnt lgkmcnt(0)\ns_mov_b32 s%d, s90" % (92 + stamp_idx[0]))
    stamp_idx[0] += 1
    assert stamp_idx[0] <= 9

FINE = [4, 6, 8, 10, 14, 36, 38]
fine_i = [0]
def fine():
    if not A.fine: return
    r = FINE[fine_i[0]]; fine_i[0] += 1
    a("s_memtime s[%d:%d]" % (r, r + 1))

def wave_reduce(v, op, sdst):
    for m in ("quad_perm:[1,0,3,2] row_mask:0xf", "quad_perm:[2,3,0,1] row_mask:0xf", "row_half_mirror row_mask:0xf",
              "row_mirror row_mask:0xf", "row_bcast:15 row_mask:0xa", "row_bcast:31 row_mask:0xc"):
        a("%s_dpp %s, %s, %s %s bank_mask:0xf" % (op, v, v, v, m))
    a("v_readlane_b32 %s, %s, 63" % (sdst, v))

def ln_stats(vals, tmp, vmean_bf, vrinv):
    t0, t1, t2 = tmp
    a("v_add_f32 %s, %s, %s" % (t0, vals[0], vals[1]))
    a("v_add_f32 %s, %s, %s" % (t1, vals[2], vals[3]))
    for k in range(4, 10, 2):
        a("v_add_f32 %s, %s, %s" % (t0, t0, vals[k]))
        a("v_add_f32 %s, %s, %s" % (t1, t1, vals[k + 1]))
    a("v_add_f32 %s, %s, %s" % (t0, t0, t1))
    wave_reduce(t0, "v_add_f32", "s84")
    a("v_mov_b32 %s, 0x3acccccd" % t2)
    a("v_mul_f32 %s, s84, %s" % (vmean_bf, t2))
    a("v_sub_f32 %s, %s, %s" % (t1, vals[0], vmean_bf))
    a("v_mul_f32 %s, %s, %s" % (t0, t1, t1))
    for k in range(1, 10):
        a("v_sub_f32 %s, %s, %s" % (t1, vals[k], vmean_bf))
        a("v_fmac_f32 %s, %s, %s" % (t0, t1, t1))
    wave_reduce(t0, "v_add_f32", "s84")
    a("v_mul_f32 %s, s84, %s" % (t0, t2))
    a("v_cvt_pk_bf16_f32 %s, %s, %s" % (t0, t0, vmean_bf))
    a("v_and_b32 %s, 0xffff0000, %s" % (vmean_bf, t0))
    a("v_lshlrev_b32 %s, 16, %s" % (t0, t0))
    a("v_add_f32 %s, 0x3727c5ac, %s" % (t0, t0))
    a("v_cvt_pk_bf16_f32 %s, %s, %s" % (t0, t0, t0))
    a("v_lshlrev_b32 %s, 16, %s" % (t0, t0))
    a("v_sqrt_f32 %s, %s" % (t0, t0))
    a("v_cvt_pk_bf16_f32 %s, %s, %s" % (t0, t0, t0))
    a("v_lshlrev_b32 %s, 16, %s" % (t0, t0))
    a("v_rcp_f32 %s, %s" % (vrinv, t0))

def selector(abuf, src, lane):
    for r in range(4):
        a("v_and_b32_dpp v%d, %s, v%d row_newbcast:%d row_mask:0xf bank_mask:0xf" % (abuf + r, src, 6 + r, lane))

def srd(d, plo, nbytes):
    a("s_mov_b32 s%d, s%d\ns_mov_b32 s%d, s%d\ns_mov_b32 s%d, %s\ns_mov_b32 s%d, 0x20000" % (d, plo, d + 1, plo + 1, d + 2, nbytes, d + 3))

S = []
kv = [("k", n) for n in range(32)] + [("v", n) for n in range(32)]
if A.qspan:
    oa, ob = A.ospan
    qpos = [A.qstart + (t * (A.qspan - A.qstart)) // 20 for t in range(20)]
    opos = [oa + (t * (ob - oa)) // 20 for t in range(20)]
    for ki in range(64):
        S += [("q", t) for t in range(20) if qpos[t] == ki]
        S += [("o", t) for t in range(20) if opos[t] == ki]
        S.append(kv[ki])
else:
    qi = 0; ki = 0
    while qi < A.qhead:
        S.append(("q", qi)); qi += 1
    while qi < 20:
        for _ in range(A.qk):
            if qi < 20: S.append(("q", qi)); qi += 1
        S.append(kv[ki]); ki += 1
    oi = 0
    while ki < 64:
        S.append(kv[ki]); ki += 1
        if ki >= A.wo_start and (ki - A.wo_start) % A.wo_every == 0 and oi < 20:
            S.append(("o", oi)); oi += 1
    assert oi == 20
if A.tk2: S.append(("t", 0))
POS = {e: p for p, e in enumerate(S)}
free = list(range(NRING))
slot = {}
lend = list(range(32, 52))
st = {"issued": 0, "maxpos": -1, "gate": len(S)}
def reg_of(e):
    if e[0] == "o": return WO + 4 * e[1]
    return RING + 4 * slot[e]
def issue(e):
    kind, n = e
    if kind in "qkv":
        if free: slot[e] = free.pop(0)
        elif lend and kind != "v": slot[e] = lend.pop()
        else: return False
    if kind == "o":
        if (32 + n) not in lend: return False
        lend.remove(32 + n)
    if kind == "q":
        so = "0"
        if n: a("s_mov_b32 s78, %d" % (n * 8192 * (1, 4, 32)[A.qrow] if not (A.oobq and n >= 3) else 0x7f000000)); so = "s78"
        masked = A.slow and ((n + 1) * A.slown) // 20 != (n * A.slown) // 20
        a("buffer_load_dwordx4 %s, %s, s[36:39], %s offen %s" % (t4(reg_of(e)), "v21" if masked else "v3", so, A.wmod))
    elif kind in "kv":
        sr = "s[28:31]" if kind == "k" else "s[32:35]"
        if A.pat == 0:
            so, im = soff(n * 1024)
        elif A.krot:
            sr_ = "s14" if kind == "k" else "s15"
            so, im = sr_, 0
            if n: a("s_add_u32 %s, %s, %s\ns_and_b32 %s, %s, 0x3ffff" % (sr_, sr_, "s27" if A.krot >= 9 else "8192", sr_, sr_))
        elif A.pat == 3:
            so, im = "0", (n & 1) * 1024
            if n >> 1: a("s_mov_b32 s78, %d" % ((n >> 1) * 8192)); so = "s78"
        elif A.pat == 4:
            so, im = "0", (n & 3) * 1024
            if n >> 2: a("s_mov_b32 s78, %d" % ((n >> 2) * 16384)); so = "s78"
        else:
            so, im = "0", 0
            if n: a("s_mov_b32 s78, %d" % (n * (8192 if A.pat == 1 else 4096))); so = "s78"
        a("buffer_load_dwordx4 %s, v2, %s, %s offen offset:%d %s" % (t4(reg_of(e)), sr, so, im, A.kvmod))
    elif kind == "t":
        a("s_mov_b64 exec, 1")
        a("buffer_atomic_add v22, v21, s[48:51], s11 offen sc0 sc1")
        a("s_mov_b64 exec, -1")
    elif kind == "o":
        so, im = soff(n * 256)
        if A.oobo and n >= 3:
            a("s_mov_b32 s78, 0x7f000000"); so = "s78"
        a("buffer_load_dwordx4 %s, v4, s[40:43], %s offen offset:%d %s" % (t4(reg_of(e)), so, im, A.wmod))
    return True
def pump(upto):
    upto = min(upto, len(S) - 1, st["gate"] - 1)
    while st["issued"] <= upto:
        if not issue(S[st["issued"]]): break
        st["issued"] += 1
def ready(e):
    p = POS[e]
    st["maxpos"] = max(st["maxpos"], p)
    before = st["issued"]
    pump(st["maxpos"] + A.L)
    if st["issued"] == before:
        st["idle"] = st.get("idle", 0) + 1
        if A.minrate and st["idle"] >= A.minrate:
            pump(st["issued"]); st["idle"] = 0
    else:
        st["idle"] = 0
    assert st["issued"] > p, (e, st)
    n = st["issued"] - 1 - p
    assert n <= 63
    a("s_waitcnt vmcnt(%d)" % n)
def done(e):
    sl = slot.pop(e)
    if sl >= 32:
        lend.append(sl); lend.sort()
    else:
        free.append(sl)

def SLOW0():
    pass
a("s_cmp_ge_u32 s2, 256")
a("s_cbranch_scc1 L_end")
a("s_load_dwordx16 s[4:19], s[0:1], 0")
a("s_load_dwordx4 s[20:23], s[0:1], 64")
a("s_load_dwordx2 s[24:25], s[0:1], 80")
if A.stamp:
    a("s_memrealtime s[90:91]")
a("v_and_b32 v1, 63, v0")
a("v_lshrrev_b32 v44, 6, v0")
a("v_lshrrev_b32 v45, 4, v1")
a("v_and_b32 v46, 15, v0")
a("v_readfirstlane_b32 s26, v44")
a("s_lshr_b32 s76, s2, 5")
if A.map == 0:
    a("s_and_b32 s77, s2, 31")
elif A.map == 1:
    a("s_and_b32 s77, s2, 7\ns_lshl_b32 s77, s77, 2\ns_bfe_u32 s84, s2, 0x20003\ns_or_b32 s77, s77, s84")
elif A.map >= 10:
    c = A.map - 10
    tab = list(range(8)); tab[5], tab[c] = tab[c], tab[5]
    a("s_and_b32 s84, s2, 7\ns_lshl_b32 s84, s84, 2\ns_lshr_b32 s84, 0x%08x, s84\ns_and_b32 s84, s84, 7" % sum(t << (4 * k) for k, t in enumerate(tab)))
    a("s_and_b32 s77, s2, 24\ns_or_b32 s77, s77, s84")
elif A.map == 2:
    a("s_and_b32 s77, s2, 7\ns_lshl_b32 s77, s77, 1\ns_bfe_u32 s84, s2, 0x10003\ns_or_b32 s77, s77, s84\ns_and_b32 s84, s2, 16\ns_or_b32 s77, s77, s84")
a("s_lshl_b32 s3, s76, 5\ns_or_b32 s3, s3, s77")
if A.pat == 0:
    a("v_lshlrev_b32 v2, 15, v44")
    a("v_lshl_add_u32 v2, v1, 4, v2")
elif A.pat == 1:
    a("v_lshlrev_b32 v2, 4, v0")
else:
    a("v_lshrrev_b32 v2, 8, v0\nv_lshlrev_b32 v2, 17, v2\nv_lshl_add_u32 v2, v1, 4, v2\nv_and_b32 v3, 3, v44")
    a("v_lshl_add_u32 v2, v3, %d, v2" % {2: 10, 3: 11, 4: 12}[A.pat])
a("v_lshl_add_u32 v47, v44, 2, v45")
if A.rot:
    a("s_lshl_b32 s84, s76, 2")
    a("v_add_u32 v5, s84, v47")
    a("v_and_b32 v5, 31, v5")
a("v_mul_u32_u24 v4, 5120, %s" % ("v5" if A.rot >= 2 else "v47"))
if A.rot: a("v_mov_b32 v47, v5")
if A.qrow == 0:
    a("v_mul_u32_u24 v47, 20, v47")
elif A.qrow == 1:
    a("v_lshrrev_b32 v47, 2, v47\nv_mul_u32_u24 v47, 80, v47\nv_add_u32 v47, v47, v45")
a("v_lshlrev_b32 v3, 13, v47")
a("v_lshl_add_u32 v3, v46, 4, v3")
a("v_lshl_add_u32 v4, v46, 4, v4")
a("v_mul_u32_u24 v32, 20, v1")
QS = (0, 2, 5)[A.qrow]
a("v_lshlrev_b32 v33, %d, v46" % QS)
a("v_add_lshl_u32 v33, v47, v33, 1")
a("v_and_b32 v34, 3, v0")
a("v_lshlrev_b32 v34, %d, v34" % QS)
a("v_add_lshl_u32 v34, v47, v34, 1")
a("s_mul_i32 s84, s76, 1280")
a("s_lshl_b32 s85, s77, 8")
a("s_lshl_b32 s86, s3, 20")
a("s_add_u32 s86, s86, 786432")
a("s_mov_b32 s46, 10240\ns_mov_b32 s47, 0x20000")
a("s_sub_u32 s38, 5242880, s85\ns_mov_b32 s39, 0x20000")
a("s_mov_b32 s30, 262144\ns_mov_b32 s31, 0x20000")
for k in range(1, 8):
    a("s_movk_i32 s%d, %d" % (67 + k, 4096 * k))
a("s_waitcnt lgkmcnt(0)")
if A.stamp:
    a("s_mov_b32 s92, s90"); stamp_idx[0] = 1
    if A.st8 == "karg":
        a("s_memrealtime s[90:91]\ns_waitcnt lgkmcnt(0)\ns_mov_b32 s100, s90")
if A.krot == 1:
    a("s_mul_i32 s14, s2, 0x9e3779b1\ns_lshr_b32 s14, s14, 27\ns_lshl_b32 s14, s14, 13\ns_mov_b32 s15, s14")
elif A.krot == 2:
    a("s_and_b32 s14, s2, 31\ns_lshl_b32 s14, s14, 13\ns_mov_b32 s15, s14")
elif A.krot == 3:
    a("s_lshr_b32 s14, s2, 3\ns_lshl_b32 s14, s14, 13\ns_mov_b32 s15, s14")
if A.krot == 9:
    a("s_mul_i32 s27, s2, 0x9e3779b1\ns_lshr_b32 s14, s27, 27\ns_lshl_b32 s14, s14, 13\ns_mov_b32 s15, s14")
    a("s_bfe_u32 s27, s27, 0x40010\ns_lshl_b32 s27, s27, 14\ns_or_b32 s27, s27, 8192")
if A.krot == 10:
    a("s_mul_i32 s27, s2, 0x9e3779b1\ns_mov_b32 s14, 0\ns_mov_b32 s15, 0")
    a("s_lshr_b32 s27, s27, 28\ns_lshl_b32 s27, s27, 14\ns_or_b32 s27, s27, 8192")
if A.krot == 4:
    a("s_and_b32 s14, s2, 1\ns_lshl_b32 s14, s14, 17\ns_mov_b32 s15, s14")
elif A.krot == 5:
    a("s_lshr_b32 s14, s2, 5\ns_lshl_b32 s14, s14, 15\ns_mov_b32 s15, s14")
elif A.krot == 6:
    a("s_and_b32 s14, s2, 7\ns_lshl_b32 s14, s14, 15\ns_mov_b32 s15, s14")
elif A.krot == 7:
    a("s_brev_b32 s14, s2\ns_lshr_b32 s14, s14, 27\ns_lshl_b32 s14, s14, 13\ns_mov_b32 s15, s14")
elif A.krot == 8:
    a("s_lshr_b32 s14, s2, 5\ns_lshl_b32 s14, s14, 13\ns_mov_b32 s15, s14")
a("s_mov_b32 s44, s4\ns_mov_b32 s45, s5")
a("s_add_u32 s36, s10, s85\ns_addc_u32 s37, s11, 0")
a("s_add_u32 s28, s6, s86\ns_addc_u32 s29, s7, 0")
if A.touch:
    a("s_load_dword s89, s[28:29], 0")
    a("s_add_u32 s32, s8, s86\ns_addc_u32 s33, s9, 0")
    a("s_load_dword s88, s[32:33], 0")
a("s_cmp_ge_u32 s2, 8")
a("s_cbranch_scc1 L_noinit")
srd(48, 24, "66560")
a("s_lshl_b32 s87, s2, 12")
a("v_lshlrev_b32 v35, 3, v0")
a("v_mov_b32 v36, 0\nv_mov_b32 v37, 0\nv_mov_b32 v38, -1\nv_mov_b32 v39, -1")
a("buffer_store_dwordx2 v[36:37], v35, s[48:51], s87 offen sc0 sc1")
a("s_add_u32 s87, s87, %d" % WS_H1)
a("buffer_store_dwordx2 v[38:39], v35, s[48:51], s87 offen sc0 sc1")
if not A.static:
    a("s_lshl_b32 s87, s2, 7\ns_add_u32 s87, s87, 65536")
    a("v_and_b32 v35, 0x78, v35")
    a("buffer_store_dwordx2 v[36:37], v35, s[48:51], s87 offen sc0 sc1")
a("L_noinit:")
if A.slow:
    a("s_bfe_u32 s87, s36, 0x30007\ns_cmp_eq_u32 s87, 2\ns_cselect_b32 s27, 1, 0")
    a("s_bfe_u32 s87, s36, 0x60007\ns_cmp_eq_u32 s87, 62\ns_cselect_b32 s27, 1, s27")
    a("v_mov_b32 v21, v3")
    a("s_cmp_eq_u32 s27, 0")
    a("s_cbranch_scc1 L_fast0")
    a("s_mov_b32 exec_lo, 0xff00ff00\ns_mov_b32 exec_hi, 0xff00ff00")
    a("v_mov_b32 v21, 0x7ff00000")
    a("s_mov_b64 exec, -1")
    SLOW0()
    a("L_fast0:")
a("buffer_load_dwordx4 v[16:19], v32, s[44:47], s84 offen")
a("buffer_load_dword v20, v32, s[44:47], s84 offen offset:16")
a("buffer_load_ushort v22, v33, s[44:47], s84 offen")
a("buffer_load_ushort v23, v34, s[44:47], s84 offen offset:%d" % (32 << QS))
if A.qpf:
    srd(52, 10, "5242880")
    a("s_lshr_b32 s87, s2, 3\ns_mul_i32 s87, s87, %d" % (20 * 8192))
    a("s_and_b32 s88, s2, 7")
    a("v_lshrrev_b32 v35, 4, v0\nv_lshlrev_b32 v35, 13, v35")
    if A.map == 1:
        a("s_lshl_b32 s88, s88, 10\ns_add_u32 s87, s87, s88")
        a("v_lshl_add_u32 v35, v46, 6, v35")
    else:
        a("s_lshl_b32 s88, s88, 8\ns_add_u32 s87, s87, s88")
        a("v_and_b32 v36, 3, v0\nv_lshl_add_u32 v35, v36, 6, v35\nv_bfe_u32 v36, v0, 2, 2\nv_lshl_add_u32 v35, v36, 11, v35")
    a("s_cmp_ge_u32 s26, 4")
    a("s_cbranch_scc1 L_noqpf")
    a("buffer_load_dword v21, v35, s[52:55], s87 offen")
    a("s_cmp_lg_u32 s26, 0")
    a("s_cbranch_scc1 L_noqpf")
    a("s_add_u32 s87, s87, %d" % (16 * 8192))
    a("buffer_load_dword v21, v35, s[52:55], s87 offen")
    a("L_noqpf:")
st["gate"] = POS[("o", 0)]
pump(A.L)
n_first = st["issued"]
if A.codepf:
    a("s_getpc_b64 s[84:85]")
    a("L_pc:")
    a("s_sub_u32 s84, s84, L_pc-%s_kernel" % NAME)
    a("s_subb_u32 s85, s85, 0")
    a("v_lshlrev_b32 v35, 5, v0")
    a("v_min_u32 v35, L_end-%s_kernel, v35" % NAME)
    a("global_load_dword v5, v35, s[84:85]")
a("s_add_u32 s32, s8, s86\ns_addc_u32 s33, s9, 0\ns_mov_b32 s34, 262144\ns_mov_b32 s35, 0x20000")
a("s_mul_i32 s85, s77, 163840")
a("s_add_u32 s40, s12, s85\ns_addc_u32 s41, s13, 0\ns_mov_b32 s42, 163840\ns_mov_b32 s43, 0x20000")
if A.touch2:
    a("s_lshl_b32 s84, s26, 15")
    a("s_load_dword s88, s[28:29], s84")
    a("s_load_dword s89, s[32:33], s84")
    a("s_mul_i32 s84, s26, 20480")
    a("s_load_dword s87, s[40:41], s84")
srd(48, 24, "66560")
srd(56, 20, "10240")
a("s_add_u32 s60, s24, %d\ns_addc_u32 s61, s25, 0\ns_mov_b32 s62, 27648\ns_mov_b32 s63, 0x20000" % WS_H1)
srd(64, 22, "256")
a("s_mov_b32 s80, 0xcccccccc\ns_mov_b32 s81, 0xcccccccc\ns_mov_b32 s82, 0xaaaaaaaa\ns_mov_b32 s83, 0xaaaaaaaa")
a("v_and_b32 v35, 1, v0")
a("v_lshlrev_b32 v35, 4, v35")
a("v_mov_b32 v38, 0xffff")
a("v_lshlrev_b32 v38, v35, v38")
a("v_lshrrev_b32 v37, 1, v46")
for r in range(4):
    a("v_cmp_eq_u32 vcc, %d, v37" % r)
    a("v_cndmask_b32 v%d, 0, v38, vcc" % (6 + r))
a("v_lshlrev_b32 v47, 9, v44")
a("v_lshl_add_u32 v47, v46, 5, v47")
a("v_lshl_add_u32 v47, v45, 4, v47")
st["gate"] = len(S)

a("s_waitcnt vmcnt(%d)" % (n_first + (1 if A.codepf else 0)))
if A.stamp and A.st8 == "x":
    a("s_memrealtime s[90:91]\ns_waitcnt lgkmcnt(0)\ns_mov_b32 s100, s90")
for k in range(5):
    a("v_lshlrev_b32 v%d, 16, v%d" % (24 + 2 * k, 16 + k))
    a("v_and_b32 v%d, 0xffff0000, v%d" % (25 + 2 * k, 16 + k))
ln_stats(["v%d" % (24 + k) for k in range(10)], ["v34", "v35", "v37"], "v38", "v39")
for r in (22, 23):
    a("v_lshlrev_b32 v%d, 16, v%d" % (r, r))
    a("v_sub_f32 v%d, v%d, v38" % (r, r))
    a("v_cvt_pk_bf16_f32 v%d, v%d, v%d" % (r, r, r))
    a("v_lshlrev_b32 v%d, 16, v%d" % (r, r))
    a("v_mul_f32 v%d, v%d, v39" % (r, r))
    a("v_cvt_pk_bf16_f32 v%d, v%d, v%d" % (r, r, r))
for t in range(20):
    ab = 24 + 4 * (t & 1)
    selector(ab, "v22" if t < 16 else "v23", t & 15)
    e = ("q", t)
    ready(e)
    if A.stamp and A.st8 == "q%d" % t:
        a("s_memrealtime s[90:91]\ns_waitcnt lgkmcnt(0)\ns_mov_b32 s100, s90")
    a("v_mfma_f32_16x16x32_bf16 v[40:43], %s, %s, %s" % (t4(ab), t4(reg_of(e)), "0" if t == 0 else "v[40:43]"))
    done(e)
a("s_mov_b32 exec_hi, 0")
a("ds_write_b128 v47, v[40:43] offset:%d" % L_PART)
a("s_mov_b64 exec, -1")
a("v_lshlrev_b32 v25, 3, v1")
a("s_waitcnt lgkmcnt(0)")
a("s_barrier")
a("s_cmp_ge_u32 s2, 8")
a("s_cbranch_scc1 L_nosig")
a("s_cmp_lg_u32 s26, 0")
a("s_cbranch_scc1 L_nosig")
a("v_mov_b32 v26, 0\nv_mov_b32 v27, 1")
a("s_mov_b64 exec, 1")
a("buffer_atomic_add v27, v26, s[64:67], 0 offen sc1")
a("s_mov_b64 exec, -1")
a("L_nosig:")
if A.diags >= 0:
    a("s_cmp_lg_u32 s2, 1\ns_cbranch_scc1 L_nods\ns_cmp_lg_u32 s26, 0\ns_cbranch_scc1 L_nods")
    a("v_mov_b32 v26, 0\nv_mov_b32 v27, s92\ns_mov_b64 exec, 1")
    a("buffer_store_dword v27, v26, s[64:67], 0 offen offset:192 sc0 sc1\ns_mov_b64 exec, -1")
    a("L_nods:")
if A.thr:
    a("s_cmp_lg_u32 s26, 0\ns_cbranch_scc1 L_norank")
    a("v_mov_b32 v26, 0\nv_mov_b32 v5, 1\ns_mov_b64 exec, 1")
    a("buffer_atomic_add v5, v26, s[64:67], 0 offen offset:128 sc0 sc1\ns_mov_b64 exec, -1")
    a("L_norank:")
    RANK_POS = st["issued"]
if A.diagnum:
    a("s_cmp_lg_u32 s26, 0\ns_cbranch_scc1 L_nodiag")
    a("s_getreg_b32 s84, hwreg(HW_REG_XCC_ID)\ns_sub_u32 s84, s84, s2\ns_and_b32 s84, s84, 7\ns_lshl_b32 s84, 1, s84")
    a("v_mov_b32 v26, 0\nv_mov_b32 v27, s84\ns_mov_b64 exec, 1")
    a("buffer_atomic_or v27, v26, s[64:67], 0 offen offset:32 sc1\ns_mov_b64 exec, -1")
    a("L_nodiag:")
for w in range(8):
    a("ds_read_b64 v[%d:%d], v25 offset:%d" % (28 + 2 * w, 29 + 2 * w, L_PART + 512 * w))
a("s_waitcnt lgkmcnt(0)")
for w in range(1, 8):
    a("v_add_f32 v28, v28, v%d" % (28 + 2 * w))
    a("v_add_f32 v29, v29, v%d" % (29 + 2 * w))
a("v_cvt_pk_bf16_f32 v28, v28, v29")
a("v_lshlrev_b32 v25, 2, v0")
a("ds_write_b32 v25, v28 offset:%d" % L_QD)
a("v_lshlrev_b32 v25, 8, v44")
a("v_lshl_add_u32 v25, v46, 4, v25")
a("s_waitcnt lgkmcnt(0)")
a("ds_read_b128 v[10:13], v25 offset:%d" % L_QD)
a("s_waitcnt lgkmcnt(0)")
stamp()

for _ in range(A.pad): a("s_nop 0")
def reduce_scatter(dst):
    for n in range(8):
        a("v_add_f32_dpp v%d, v%d, v%d row_mirror row_mask:0xf bank_mask:0x3" % (16 + n, 16 + n, 16 + n))
    for n in range(8):
        a("v_add_f32_dpp v%d, v%d, v%d row_mirror row_mask:0xf bank_mask:0xc" % (16 + n, 24 + n, 24 + n))
    for n in range(4):
        a("v_add_f32_dpp v%d, v%d, v%d row_half_mirror row_mask:0xf bank_mask:0x5" % (16 + n, 16 + n, 16 + n))
    for n in range(4):
        a("v_add_f32_dpp v%d, v%d, v%d row_half_mirror row_mask:0xf bank_mask:0xa" % (16 + n, 20 + n, 20 + n))
    for n in range(4):
        a("v_add_f32_dpp v%d, v%d, v%d quad_perm:[3,2,1,0] row_mask:0xf bank_mask:0xf" % (16 + n, 16 + n, 16 + n))
    a("v_cndmask_b32 v16, v16, v18, s[80:81]")
    a("v_cndmask_b32 v17, v17, v19, s[80:81]")
    a("v_add_f32_dpp v16, v16, v16 quad_perm:[1,0,3,2] row_mask:0xf bank_mask:0xf")
    a("v_add_f32_dpp v17, v17, v17 quad_perm:[1,0,3,2] row_mask:0xf bank_mask:0xf")
    a("v_cndmask_b32 %s, v16, v17, s[82:83]" % dst)

for n in range(32):
    e = ("k", n)
    ready(e)
    acc = 16 + (n & 15)
    for r in range(4):
        a("v_dot2_f32_bf16 v%d, v%d, v%d, %s" % (acc, reg_of(e) + r, 10 + r, "0" if r == 0 else "v%d" % acc))
    done(e)
    if n == 15: reduce_scatter("v14")
    if n == 31: reduce_scatter("v15")
stamp()

a("v_cvt_pk_bf16_f32 v16, v14, v15")
a("v_lshlrev_b32 v14, 16, v16")
a("v_and_b32 v15, 0xffff0000, v16")
a("v_mul_f32 v14, 0x3db504f3, v14")
a("v_mul_f32 v15, 0x3db504f3, v15")
a("v_cvt_pk_bf16_f32 v16, v14, v15")
a("v_lshlrev_b32 v14, 16, v16")
a("v_and_b32 v15, 0xffff0000, v16")
a("v_max_f32 v16, v14, v15")
wave_reduce("v16", "v_max_f32", "s84")
a("v_subrev_f32 v16, s84, v14")
a("v_subrev_f32 v17, s84, v15")
a("v_mul_f32 v16, 0x3fb8aa3b, v16")
a("v_mul_f32 v17, 0x3fb8aa3b, v17")
a("v_exp_f32 v16, v16")
a("v_exp_f32 v17, v17")
a("v_add_f32 v16, v16, v17")
wave_reduce("v16", "v_add_f32", "s85")
a("v_mov_b32 v16, s84")
a("v_mov_b32 v17, s85")
a("v_lshlrev_b32 v18, 3, v44")
a("s_mov_b64 exec, 1")
a("ds_write_b64 v18, v[16:17] offset:%d" % L_ST)
if A.thr:
    a("s_cmp_lg_u32 s26, 0\ns_cbranch_scc1 L_norank2")
    a("s_waitcnt vmcnt(%d)" % min(63, st["issued"] - RANK_POS))
    a("ds_write_b32 v18, v5 offset:%d" % (L_TK + 4))
    a("L_norank2:")
a("s_mov_b64 exec, -1")
a("v_and_b32 v18, 7, v0")
a("v_lshlrev_b32 v18, 3, v18")
a("s_waitcnt lgkmcnt(0)")
a("s_barrier")
a("ds_read_b64 v[16:17], v18 offset:%d" % L_ST)
if A.thr:
    a("v_mov_b32 v19, 0")
    a("ds_read_b32 v19, v19 offset:%d" % (L_TK + 4))
a("s_waitcnt lgkmcnt(0)")
if A.thr:
    a("v_readfirstlane_b32 s10, v19")
    a("s_min_u32 s10, s10, %d" % A.thr0)
    a("s_sub_u32 s10, %d, s10\ns_mul_i32 s10, s10, %d\ns_lshr_b32 s10, s10, 16" % (A.thr0, (A.thr << 16) // A.thr0))
a("v_mov_b32 v18, v16")
for m in ("quad_perm:[1,0,3,2]", "quad_perm:[2,3,0,1]", "row_half_mirror"):
    a("v_max_f32_dpp v18, v18, v18 %s row_mask:0xf bank_mask:0xf" % m)
a("v_sub_f32 v16, v16, v18")
a("v_mul_f32 v16, 0x3fb8aa3b, v16")
a("v_exp_f32 v16, v16")
a("v_mul_f32 v16, v16, v17")
for m in ("quad_perm:[1,0,3,2]", "quad_perm:[2,3,0,1]", "row_half_mirror"):
    a("v_add_f32_dpp v16, v16, v16 %s row_mask:0xf bank_mask:0xf" % m)
a("v_rcp_f32 v16, v16")
a("v_sub_f32 v14, v14, v18")
a("v_sub_f32 v15, v15, v18")
a("v_mul_f32 v14, 0x3fb8aa3b, v14")
a("v_mul_f32 v15, 0x3fb8aa3b, v15")
a("v_exp_f32 v14, v14")
a("v_exp_f32 v15, v15")
a("v_mul_f32 v14, v14, v16")
a("v_mul_f32 v15, v15, v16")
a("v_cvt_pk_bf16_f32 v14, v14, v14")
a("v_cvt_pk_bf16_f32 v15, v15, v15")
stamp()

def pv(n):
    ab = 32 + 4 * (n & 1)
    selector(ab, "v14" if n < 16 else "v15", n & 15)
    e = ("v", n)
    if A.sthr and A.sthr[0] <= n < A.sthr[1]:
        a("s_cmp_eq_u32 s10, 1\ns_cbranch_scc1 L_nt%d\ns_waitcnt vmcnt(%d)\nL_nt%d:" % (n, A.thrT, n))
    if A.thr and n < A.thr:
        a("s_cmp_le_u32 s10, %d\ns_cbranch_scc1 L_nt%d\ns_waitcnt vmcnt(%d)\nL_nt%d:" % (n, n, A.thrT, n))
    ready(e)
    a("v_mfma_f32_16x16x32_bf16 v[40:43], %s, %s, %s" % (t4(ab), t4(reg_of(e)), "0" if n == 0 else "v[40:43]"))
    done(e)

def dma(n, vregs, step):
    for t in range(n):
        a("s_mov_b32 m0, s3")
        a("buffer_load_dwordx4 %s, s[52:55], s13 offen %s lds" % (vregs[t % len(vregs)], A.dmod))
        if t < n - 1:
            a("s_add_u32 s3, s3, 1024")
            a("s_add_u32 s13, s13, %d" % step)

a("v_lshrrev_b32 v16, 2, v46")
a("v_lshlrev_b32 v16, 10, v16")
if A.rot >= 2:
    a("v_add_u32 v17, s76, v44")
    a("v_and_b32 v17, 7, v17")
    a("v_lshl_add_u32 v16, v17, 6, v16")
else:
    a("v_lshl_add_u32 v16, v44, 6, v16")
a("v_lshl_add_u32 v16, v45, 4, v16")
a("v_and_b32 v17, 3, v0")
a("v_lshl_add_u32 v16, v17, 2, v16")
a("v_mul_u32_u24 v18, 2560, v44")
a("v_lshl_add_u32 v18, v46, 5, v18")
a("v_lshl_add_u32 v18, v45, 4, v18")
a("v_bfe_u32 v19, v0, 2, 6")
a("v_mul_u32_u24 v19, 5, v19")
a("v_lshrrev_b32 v20, 8, v0")
a("v_mul_u32_u24 v20, 3, v20")
a("v_add3_u32 v19, v19, v20, v17")
a("v_lshlrev_b32 v19, 3, v19")
a("v_lshlrev_b32 v20, 2, v0")
a("v_mov_b32 v21, 0\nv_mov_b32 v22, 1")
a("s_and_b32 s77, s2, 7\ns_lshl_b32 s75, s77, 7\ns_add_u32 s75, s75, 65536")
a("s_mov_b32 s86, 0x88888888\ns_mov_b32 s87, 0x88888888")
if A.op2:
    for r in range(4):
        a("v_mov_b32_dpp v%d, v%d row_ror:8 row_mask:0xf bank_mask:0xf" % (27 + r, 6 + r))
    if A.lin:
        a("v_mul_u32_u24 v31, %d, v44" % YSTR)
        a("v_lshl_add_u32 v31, v1, 4, v31")
        a("v_and_b32 v11, 0xe0c, v19")
        a("v_bfe_u32 v10, v19, 4, 1")
        a("v_lshl_add_u32 v11, v10, 8, v11")
        a("v_bfe_u32 v10, v19, 5, 4")
        a("v_lshl_add_u32 v19, v10, 4, v11")
    else:
        a("v_mul_u32_u24 v31, 2560, v44")
        a("v_lshrrev_b32 v11, 1, v45")
        a("v_lshl_add_u32 v31, v11, 9, v31")
        a("v_lshl_add_u32 v31, v46, 5, v31")
        a("v_and_b32 v11, 1, v45")
        a("v_lshl_add_u32 v31, v11, 4, v31")
a("v_mul_u32_u24 v5, 80, v44")
a("v_lshrrev_b32 v11, 3, v1")
a("v_add_u32 v5, v5, v11")
a("v_mul_u32_u24 v5, 3456, v5")
a("v_and_b32 v11, 2, v11")
a("v_and_b32 v10, 7, v0")
a("v_xor_b32 v11, v10, v11")
a("v_lshl_add_u32 v25, v11, 4, v5")
a("v_xor_b32 v11, 4, v11")
a("v_lshl_add_u32 v26, v11, 4, v5")
a("s_mul_i32 s3, s26, 10240")
a("s_add_u32 s3, s3, %d" % L_W)
if A.pf:
    a("s_lshr_b32 s84, s2, 3")
    a("s_cmp_ge_u32 s26, 4")
    a("s_cselect_b32 s52, s18, s16\ns_cselect_b32 s53, s19, s17")
    a("s_mov_b32 s54, 2211840\ns_mov_b32 s55, 0x20000")
    a("v_mov_b32 v12, 0x7fffff00")
    a("s_cbranch_scc1 L_pf2")
    a("s_and_b32 s85, s84, 7\ns_mul_i32 s85, s85, 80")
    a("v_lshrrev_b32 v23, 1, v0")
    a("v_add_u32 v23, s85, v23")
    a("v_mul_u32_u24 v23, 3456, v23")
    a("v_and_b32 v13, 1, v0")
    a("v_lshl_add_u32 v23, v13, 6, v23")
    a("s_and_b32 s85, s84, 0x18\ns_add_u32 s85, s85, s77")
    a("s_cmp_lt_u32 s85, 27")
    a("s_cselect_b32 s84, 160, 0")
    a("s_lshl_b32 s85, s85, 7")
    a("v_add_u32 v23, s85, v23")
    a("v_cmp_gt_u32 vcc, s84, v0")
    a("v_cndmask_b32 v23, v12, v23, vcc")
    a("s_branch L_pfdone")
    a("L_pf2:")
    a("s_mul_i32 s84, s84, 54")
    a("v_bfe_u32 v23, v0, 2, 6")
    a("v_add_u32 v23, s84, v23")
    a("v_mul_u32_u24 v23, 1280, v23")
    a("v_lshl_add_u32 v23, v17, 6, v23")
    a("s_mul_i32 s85, s77, 160\ns_and_b32 s85, s85, 0xff80")
    a("v_add_u32 v23, s85, v23")
    a("v_cmp_gt_u32 vcc, %d, v0" % (256 + 216))
    a("v_cndmask_b32 v23, v12, v23, vcc")
    a("L_pfdone:")

if A.codepf2:
    a("s_getpc_b64 s[84:85]")
    a("L_pc2:")
    a("v_lshlrev_b32 v12, 4, v0")
    a("v_add_u32 v12, 1792, v12")
    a("v_min_u32 v12, L_end-L_pc2, v12")
    a("global_load_dword v13, v12, s[84:85]")
if A.sthr:
    a("s_bfe_u32 s10, s36, 0x20008")
if A.LV: A.L = A.LV
if A.tk2:
    st["gate"] = POS[("t", 0)]
    a("s_cmp_eq_u32 s26, %d\ns_cselect_b32 s11, s75, 0x7ffff000" % A.tkwave)
for n in range(32):
    pv(n)
    if A.pf >= 10 and n == A.pf - 10:
        a("buffer_load_dword v24, v23, s[52:55], 0 offen %s" % A.pfmod)
    if n == A.tkpos - 4: a("s_load_dword s89, s[22:23], 0")
    if n == A.tkpos:
        a("s_waitcnt lgkmcnt(0)")
        a("s_cmp_ge_u32 s89, 8")
        a("s_cbranch_scc0 L_initslow")
        a("L_initok:")
        if A.tk2:
            st["gate"] = len(S)
            continue
        if A.static:
            a("s_lshr_b32 s79, s2, 3\ns_xor_b32 s79, s79, 16")
            continue
        a("s_cmp_lg_u32 s26, %d" % A.tkwave)
        a("s_cbranch_scc1 L_notk")
        a("s_mov_b64 exec, 1")
        if A.static:
            a("s_lshr_b32 s84, s2, 3\ns_xor_b32 s84, s84, 16\nv_mov_b32 v22, s84")
        else:
            a("buffer_atomic_add v22, v21, s[48:51], s75 offen sc0 sc1")
        a("s_mov_b64 exec, -1")
        a("L_notk:")
assert st["issued"] == len(S)
stamp()
fine()
if A.pf == 2:
    a("buffer_load_dword v24, v23, s[52:55], 0 offen %s" % A.pfmod)
a("s_mov_b32 exec_hi, 0")
a("ds_write_b128 v47, v[40:43] offset:%d" % L_PART)
if not (A.tk2 or A.static):
    a("s_cmp_lg_u32 s26, %d" % A.tkwave)
    a("s_cbranch_scc1 L_notk2")
    a("s_waitcnt vmcnt(0)")
    a("s_mov_b64 exec, 1")
    a("ds_write_b32 v21, v22 offset:%d" % L_TK)
    a("L_notk2:")
a("s_mov_b64 exec, -1")
a("s_waitcnt lgkmcnt(0)")
a("s_barrier")
fine()
a("ds_read2st64_b32 v[10:11], v16 offset0:%d offset1:%d" % (L_PART // 256, L_PART // 256 + 2))
if A.pf == 1:
    a("buffer_load_dword v24, v23, s[52:55], 0 offen %s" % A.pfmod)
if not (A.tk2 or A.static): a("ds_read_b32 v12, v21 offset:%d" % L_TK)
a("s_waitcnt lgkmcnt(0)")
a("v_add_f32 v10, v10, v11")
if not (A.tk2 or A.static): a("v_readfirstlane_b32 s79, v12")
if A.edma:
    a("s_lshl_b32 s84, s79, 3\ns_add_u32 s84, s84, s77\ns_sub_u32 s84, s84, %d" % FFN2_N)
    a("s_min_u32 s85, s79, 9\ns_cmp_lt_u32 s85, 9\ns_cselect_b32 s84, s84, 99")
    a("s_cmp_ge_u32 s84, %d" % FFN1_N)
    a("s_cbranch_scc1 L_noedma")
    a("s_mov_b32 s52, s16\ns_mov_b32 s53, s17\ns_mov_b32 s54, 2211840\ns_mov_b32 s55, 0x20000")
    a("s_lshl_b32 s13, s84, 7")
    dma(10, ["v25", "v26"], 27648)
    a("L_noedma:")
a("v_add_f32_dpp v10, v10, v10 row_ror:4 row_mask:0xf bank_mask:0xf")
a("v_add_f32_dpp v10, v10, v10 row_ror:8 row_mask:0xf bank_mask:0xf")
a("v_cvt_pk_bf16_f32 v10, v10, v10")
fine()
YA = 128
if A.op3:
    def wr3(cb):
        a("s_mov_b32 exec_hi, 0")
        a("ds_write_b128 v18, %s offset:%d" % (t4(YA + 4 * cb), L_YP + 512 * cb))
        a("s_mov_b32 exec_hi, -1")
    selector(48, "v10", 0)
    selector(52, "v10", 1)
    for cb in range(5):
        for r4 in range(4):
            acc = t4(YA + 4 * cb)
            a("v_mfma_f32_16x16x32_bf16 %s, %s, %s, %s" % (acc, t4(48 + 4 * r4), t4(WO + 4 * (5 * r4 + cb)), "0" if r4 == 0 else acc))
            if cb == 0 and r4 < 2: selector(56 + 4 * r4, "v10", r4 + 2)
        if cb >= 2: wr3(cb - 2)
    wr3(3); wr3(4)
elif A.op2:
    def sel2(r4, hi):
        for r in range(4):
            a("v_and_b32_dpp v%d, v10, v%d row_newbcast:%d row_mask:0xf bank_mask:0xf" % (48 + 8 * r4 + 4 * hi + r, (27 if hi else 6) + r, r4))
    def mm(acc, r4, hi, cb, first):
        a("v_mfma_f32_16x16x32_bf16 %s, %s, %s, %s" % (t4(acc), t4(48 + 8 * r4 + 4 * hi), t4(WO + 4 * (5 * r4 + cb)), "0" if first else t4(acc)))
    if A.op4:
        def and1(r4, hi, r):
            a("v_and_b32_dpp v%d, v10, v%d row_newbcast:%d row_mask:0xf bank_mask:0xf" % (48 + 8 * r4 + 4 * hi + r, (27 if hi else 6) + r, r4))
        if A.op4 == 2: a("s_setprio 1")
        sel2(0, 0); sel2(0, 1)
        for r4 in range(4):
            nxt = [(r4 + 1, hi, r) for hi in range(2) for r in range(4)] if r4 < 3 else []
            for k, (acc, hi, cb) in enumerate([(YA, 0, 0), (YA + 4, 0, 2), (YA + 8, 0, 4), (YA, 1, 1), (YA + 4, 1, 3)]):
                mm(acc, r4, hi, cb, r4 == 0 and hi == 0)
                for x in nxt[2 * k:2 * k + 2]: and1(*x)
        if A.op4 == 2: a("s_setprio 0")
        a("s_mov_b32 exec_hi, 0")
        a("ds_write_b128 v31, %s offset:%d" % (t4(YA + 8), L_YP + 2048))
        a("s_mov_b64 exec, -1")
        a("ds_write_b128 v31, %s offset:%d" % (t4(YA), L_YP))
        a("ds_write_b128 v31, %s offset:%d" % (t4(YA + 4), L_YP + 1024))
    else:
        sel2(0, 0); sel2(0, 1)
        for r4 in range(4):
            mm(YA, r4, 0, 0, r4 == 0)
            if r4 < 3: sel2(r4 + 1, 0)
            mm(YA, r4, 1, 1, False)
            if r4 < 3: sel2(r4 + 1, 1)
        for r4 in range(4):
            mm(YA + 4, r4, 0, 2, r4 == 0)
            mm(YA + 4, r4, 1, 3, False)
        a("ds_write_b128 v31, %s offset:%d" % (t4(YA), L_YP))
        for r4 in range(4):
            mm(YA + 8, r4, 0, 4, r4 == 0)
        a("ds_write_b128 v31, %s offset:%d" % (t4(YA + 4), L_YP + 1024))
    if not A.op4:
        a("s_mov_b32 exec_hi, 0")
        a("ds_write_b128 v31, %s offset:%d" % (t4(YA + 8), L_YP + 2048))
        a("s_mov_b64 exec, -1")
else:
    for r4 in range(4):
        ab = 32 + 4 * (r4 & 1)
        selector(ab, "v10", r4)
        for cb in range(5):
            acc = t4(YA + 4 * cb)
            a("v_mfma_f32_16x16x32_bf16 %s, %s, %s, %s" % (acc, t4(ab), t4(WO + 4 * (5 * r4 + cb)), "0" if r4 == 0 else acc))
    a("s_mov_b32 exec_hi, 0")
    for cb in range(5):
        a("ds_write_b128 v18, %s offset:%d" % (t4(YA + 4 * cb), L_YP + 512 * cb))
    a("s_mov_b64 exec, -1")
if A.pf == 3:
    a("buffer_load_dword v24, v23, s[52:55], 0 offen %s" % A.pfmod)
fine()
a("s_lshl_b32 s84, s76, 12")
a("s_waitcnt lgkmcnt(0)")
fine()
if A.fine: a("s_waitcnt lgkmcnt(0)")
a("s_barrier")
fine()
if A.fine: a("s_waitcnt lgkmcnt(0)")
YS = 148
for w in range(8):
    a("ds_read_b64 v[%d:%d], v19 offset:%d" % (YS + 2 * w, YS + 2 * w + 1, L_YP + YSTR * w))
for s_ in (4, 2, 1):
    for w in range(s_):
        if s_ == 4: a("s_waitcnt lgkmcnt(%d)" % (3 - w))
        a("v_pk_add_f32 v[%d:%d], v[%d:%d], v[%d:%d]" % (YS + 2 * w, YS + 2 * w + 1, YS + 2 * w, YS + 2 * w + 1, YS + 2 * (w + s_), YS + 2 * (w + s_) + 1))
a("v_cndmask_b32 v10, v%d, 1.0, s[86:87]" % YS)
a("v_cndmask_b32 v11, v%d, 1.0, s[86:87]" % (YS + 1))
a("buffer_atomic_add_f32 v10, v20, s[48:51], s84 offen")
a("buffer_atomic_add_f32 v11, v20, s[48:51], s84 offen offset:2048")
if A.pf == 4:
    a("buffer_load_dword v24, v23, s[52:55], 0 offen %s" % A.pfmod)
fine()
stamp()
if A.fine:
    for k, sl in enumerate((93, 94, 95, 98, 99, 100)):
        a("s_sub_u32 s%d, s%d, s%d" % (sl, FINE[k + 1], FINE[k]))
    a("s_mov_b32 s27, 99\ns_branch L_fin")
a("s_mov_b32 s27, 99")
if A.tk2:
    a("s_cmp_lg_u32 s26, %d" % A.tkwave)
    a("s_cbranch_scc1 L_notk2")
    a("s_waitcnt vmcnt(%d)" % (3 if A.pf in (1, 2, 3, 4) else 2))
    a("s_mov_b64 exec, 1")
    a("ds_write_b32 v21, v22 offset:%d" % L_TK)
    a("s_mov_b64 exec, -1")
    a("s_waitcnt lgkmcnt(0)")
    a("L_notk2:")
    a("s_barrier")
    a("ds_read_b32 v12, v21 offset:%d" % L_TK)
    a("s_waitcnt lgkmcnt(0)")
    a("v_readfirstlane_b32 s79, v12")
    a("s_cmp_ge_u32 s79, 9")
    a("s_cbranch_scc1 L_fin")
else:
    a("s_cmp_ge_u32 s79, 9")
    a("s_cbranch_scc1 L_fin")
    a("s_barrier")
a("s_mov_b32 s54, 2211840\ns_mov_b32 s55, 0x20000")
a("s_mov_b32 s85, 0x42000000")
a("s_mov_b32 s88, 0")
a("v_and_b32 v10, 7, v0")
a("s_mul_i32 s27, s77, 5\ns_add_u32 s27, s27, s79")
a("s_cmp_lt_u32 s79, 5")
a("s_cbranch_scc1 L_ffn2")
a("s_lshl_b32 s27, s79, 3\ns_add_u32 s27, s27, s77")
a("s_cmp_ge_u32 s27, %d" % (FFN2_N + FFN1_N))
a("s_cbranch_scc1 L_fin")

AF = 48; BF = 128; XF = 208; GR = 220
a("s_sub_u32 s79, s27, %d" % FFN2_N)
a("s_mov_b32 s52, s16\ns_mov_b32 s53, s17")
a("s_lshl_b32 s13, s79, 7")
if not A.edma:
    dma(10, ["v25", "v26"], 27648)
a("v_mul_u32_u24 v23, 20, v1")
a("v_mul_u32_u24 v21, 1280, v44")
a("v_add_u32 v21, v21, v23")
XR = 248
a("buffer_load_dwordx4 v[%d:%d], v21, s[44:47], 0 offen" % (XR, XR + 3))
a("buffer_load_dword v%d, v21, s[44:47], 0 offen offset:16" % (XR + 4))
a("v_lshlrev_b32 v22, 12, v44")
a("v_lshl_add_u32 v22, v1, 4, v22")
def poll1_issue():
    for m in range(4):
        a("buffer_load_dwordx4 %s, v22, s[48:51], 0 offen offset:%d %s" % (t4(GR + 4 * m), 1024 * m, A.pmod))
if not A.nopre: poll1_issue()
a("v_mul_u32_u24 v11, %d, v44" % HN_STRIDE)
a("v_add_u32 v23, v23, v11")
a("v_add_u32 v35, %d, v23" % L_HN)
a("v_mul_u32_u24 v29, %d, v10" % HN_STRIDE)
a("v_lshl_add_u32 v29, v45, 4, v29")
a("v_lshlrev_b32 v30, 4, v10")
if A.pair2:
    a("v_and_b32 v11, 1, v44")
    a("v_lshl_add_u32 v30, v11, 9, v30")
    a("v_bfe_u32 v11, v44, 1, 1")
    a("v_lshl_add_u32 v30, v11, 7, v30")
    a("v_lshrrev_b32 v11, 1, v45")
    a("v_lshl_add_u32 v30, v11, 8, v30")
else:
    a("v_lshl_add_u32 v30, v44, 8, v30")
    a("v_lshrrev_b32 v11, 1, v45")
    a("v_lshl_add_u32 v30, v11, 7, v30")
a("v_and_b32 v11, 1, v45")
a("v_lshl_add_u32 v30, v11, 3, v30")
a("v_lshrrev_b32 v12, 2, v46")
a("v_lshl_add_u32 v12, v45, 3, v12")
a("v_lshlrev_b32 v12, 7, v12")
a("v_lshrrev_b32 v13, 3, v46")
a("v_lshl_add_u32 v13, v11, 1, v13")
a("v_and_b32 v11, 3, v44")
a("v_xor_b32 v11, v11, v13")
a("v_lshl_add_u32 v12, v11, 5, v12")
a("v_lshl_add_u32 v12, v17, 3, v12")
a("v_add_u32 v12, %d, v12" % L_W)
a("v_add_u32 v13, 40960, v12")
if A.warm1:
    a("s_mov_b32 s78, 0")
    a("s_branch L_f1_body")
    a("L_f1_resume:")
a("s_waitcnt vmcnt(%d)" % ((0 if A.nopre else 4) + (4 if A.edma else 0)))
if A.stamp and A.st8 == "dma":
    a("s_memrealtime s[90:91]\ns_waitcnt lgkmcnt(0)\ns_mov_b32 s100, s90")
a("s_barrier")
a("s_cmp_ge_u32 s26, 4")
a("s_cbranch_scc1 L_notr")
for ks in range(20):
    base, off = ("v12", ks * 4096) if ks < 10 else ("v13", (ks - 10) * 4096)
    a("ds_read_b64_tr_b16 v[%d:%d], %s offset:%d" % (AF + 4 * ks, AF + 4 * ks + 1, base, off))
    a("ds_read_b64_tr_b16 v[%d:%d], %s offset:%d" % (AF + 4 * ks + 2, AF + 4 * ks + 3, base, off + 512))
a("L_notr:")
if A.nopre and not A.light: poll1_issue()
if A.light: a("v_mov_b32 v%d, 0" % (GR + 3))
if A.edma: a("s_waitcnt vmcnt(4)")
for k in range(5):
    a("v_lshlrev_b32 v%d, 16, v%d" % (XF + 2 * k, XR + k))
    a("v_and_b32 v%d, 0xffff0000, v%d" % (XF + 2 * k + 1, XR + k))
if A.light:
    import struct as _st
    a("s_mov_b32 s84, 0x%08x" % _st.unpack("<I", _st.pack("<f", float(A.light)))[0])
    a("s_waitcnt vmcnt(0)")
    a("s_mov_b32 s78, 1")
    a("s_mov_b64 exec, 1")
    a("L_light:")
    a("v_cmp_gt_f32 vcc, s84, v%d" % (GR + 3))
    a("s_add_u32 s88, s88, 1")
    a("s_cmp_gt_u32 s88, %d" % SPIN_MAX)
    a("s_cbranch_scc1 L_light_done")
    a("s_cbranch_vccz L_light_done")
    if A.sleep: a("s_sleep %d" % A.sleep)
    a("buffer_load_dword v%d, v22, s[48:51], 0 offen offset:12 %s" % (GR + 3, A.pmod))
    a("s_waitcnt vmcnt(0)")
    a("s_branch L_light")
    a("L_light_done:")
    a("s_mov_b64 exec, -1")
elif A.warm:
    a("s_mov_b32 s78, 0")
    a("s_waitcnt vmcnt(0)")
    a("s_branch L_f1_body")
else:
    a("s_mov_b32 s78, 1")
    a("s_branch L_poll1_chk")
if A.D1:
    sets = [GR] + [BF + 16 * k for k in range(A.D1 - 1)]
    def p1(g):
        for m in range(4):
            a("buffer_load_dwordx4 %s, v22, s[48:51], 0 offen offset:%d %s" % (t4(g + 4 * m), 1024 * m, A.pmod))
    a("L_poll1_chk:")
    for g in sets[1:]:
        if A.pace: a("s_sleep %d" % A.pace)
        p1(g)
    a("L_poll1:")
    for k, g in enumerate(sets):
        a("s_waitcnt vmcnt(%d)" % (4 * (A.D1 - 1)))
        a("v_min_f32 v31, v%d, v%d" % (g + 3, g + 7))
        a("v_min3_f32 v31, v31, v%d, v%d" % (g + 11, g + 15))
        a("v_cmp_ne_u32 vcc, s85, v31")
        a("s_cbranch_vccz L_p1x%d" % k)
        if A.pace: a("s_sleep %d" % A.pace)
        p1(g)
    a("s_add_u32 s88, s88, 1")
    a("s_cmp_gt_u32 s88, %d" % SPIN_MAX)
    a("s_cbranch_scc0 L_poll1")
    for k, g in reversed(list(enumerate(sets))):
        a("L_p1x%d:" % k)
        for q, (x, y) in enumerate([(0, 8), (1, 9), (2, 10), (4, 12), (5, 13)]):
            a("v_cvt_pk_bf16_f32 v%d, v%d, v%d" % (24 + q, g + x, g + y))
        if k: a("s_branch L_p1done")
    a("L_p1done:")
    stamp()
    XH = 238
    GR = 10
else:
    a("L_poll1:")
    poll1_issue()
    a("L_poll1_chk:")
    a("s_add_u32 s88, s88, 1")
    a("s_waitcnt vmcnt(0)")
    a("v_min_f32 v31, v%d, v%d" % (GR + 3, GR + 7))
    a("v_min3_f32 v31, v31, v%d, v%d" % (GR + 11, GR + 15))
    a("v_cmp_ne_u32 vcc, s85, v31")
    a("s_cmp_gt_u32 s88, %d" % SPIN_MAX)
    a("s_cbranch_scc1 L_poll1_done")
    a("s_cbranch_vccnz L_poll1")
    a("L_poll1_done:")
    stamp()
    a("L_f1_body:")
    XH = 238
    pairs = [(GR + 0, GR + 8), (GR + 1, GR + 9), (GR + 2, GR + 10), (GR + 4, GR + 12), (GR + 5, GR + 13)]
    for k in range(5):
        a("v_cvt_pk_bf16_f32 v%d, v%d, v%d" % (24 + k, pairs[k][0], pairs[k][1]))
if A.ln1:
    def pk(op, d, x, y, extra=""):
        a("%s v[%d:%d], v[%d:%d], v[%d:%d]%s" % (op, d, d + 1, x, x + 1, y, y + 1, extra))
    def unpack(d, src):
        a("v_lshlrev_b32 v%d, 16, v%d" % (d, src)); a("v_and_b32 v%d, 0xffff0000, v%d" % (d + 1, src))
    for k in range(5): unpack(GR + 2 * k, 24 + k)
    for k in range(5): pk("v_pk_add_f32", GR + 2 * k, GR + 2 * k, XF + 2 * k)
    for k in range(5): a("v_cvt_pk_bf16_f32 v%d, v%d, v%d" % (24 + k, GR + 2 * k, GR + 2 * k + 1))
    a("s_mov_b32 s12, 0x3f803f80")
    for k in range(5):
        a("v_dot2_f32_bf16 v32, v%d, s12, %s" % (24 + k, "0" if k == 0 else "v32"))
        a("v_dot2_f32_bf16 v33, v%d, v%d, %s" % (24 + k, 24 + k, "0" if k == 0 else "v33"))
    fill = [("v_lshlrev_b32 v%d, 16, v%d" % (XH + 2 * k, 24 + k), "v_and_b32 v%d, 0xffff0000, v%d" % (XH + 2 * k + 1, 24 + k)) for k in range(5)]
    fill = [x for pr in fill for x in pr]
    a(fill.pop(0)); a(fill.pop(0)); a(fill.pop(0))
    for m in ("quad_perm:[1,0,3,2] row_mask:0xf", "quad_perm:[2,3,0,1] row_mask:0xf", "row_half_mirror row_mask:0xf",
              "row_mirror row_mask:0xf", "row_bcast:15 row_mask:0xa", "row_bcast:31 row_mask:0xc"):
        a("v_add_f32_dpp v32, v32, v32 %s bank_mask:0xf" % m)
        a("v_add_f32_dpp v33, v33, v33 %s bank_mask:0xf" % m)
        a(fill.pop(0))
    a("v_readlane_b32 s84, v32, 63")
    a("v_readlane_b32 s12, v33, 63")
    a(fill.pop(0))
    a("v_mov_b32 v33, 0x3acccccd")
    a("v_mul_f32 v38, s84, v33")
    a("v_mul_f32 v32, s12, v33")
    a("v_fma_f32 v32, -v38, v38, v32")
    a("v_max_f32 v32, 0, v32")
    a("v_cvt_pk_bf16_f32 v32, v32, v38")
    a("v_and_b32 v38, 0xffff0000, v32")
    a("v_lshlrev_b32 v32, 16, v32")
    a("v_add_f32 v32, 0x3727c5ac, v32")
    a("v_mov_b32 v39, v38")
    a("v_cvt_pk_bf16_f32 v32, v32, v32")
    for k in range(2): pk("v_pk_add_f32", XH + 2 * k, XH + 2 * k, 38, " neg_lo:[0,1] neg_hi:[0,1]")
    a("v_lshlrev_b32 v32, 16, v32")
    a("v_sqrt_f32 v32, v32")
    for k in range(2, 5): pk("v_pk_add_f32", XH + 2 * k, XH + 2 * k, 38, " neg_lo:[0,1] neg_hi:[0,1]")
    a("v_cvt_pk_bf16_f32 v32, v32, v32")
    for k in range(5): a("v_cvt_pk_bf16_f32 v%d, v%d, v%d" % (24 + k, XH + 2 * k, XH + 2 * k + 1))
    a("v_lshlrev_b32 v32, 16, v32")
    a("v_rcp_f32 v36, v32")
    for k in range(5): unpack(XH + 2 * k, 24 + k)
    a("v_mov_b32 v37, v36")
    for k in range(5): pk("v_pk_mul_f32", XH + 2 * k, XH + 2 * k, 36)
    for k in range(5): a("v_cvt_pk_bf16_f32 v%d, v%d, v%d" % (24 + k, XH + 2 * k, XH + 2 * k + 1))
    a("v_add_u32 v23, %d, v23" % L_HN) if False else None
    a("ds_write2_b32 v35, v24, v25 offset0:0 offset1:1")
    a("ds_write2_b32 v35, v26, v27 offset0:2 offset1:3")
    a("ds_write_b32 v35, v28 offset:16")
else:
    for k in range(5):
        a("v_lshlrev_b32 v%d, 16, v%d" % (GR + 2 * k, 24 + k))
        a("v_and_b32 v%d, 0xffff0000, v%d" % (GR + 2 * k + 1, 24 + k))
    for k in range(10):
        a("v_add_f32 v%d, v%d, v%d" % (GR + k, GR + k, XF + k))
    for k in range(5):
        a("v_cvt_pk_bf16_f32 v%d, v%d, v%d" % (24 + k, GR + 2 * k, GR + 2 * k + 1))
    for k in range(5):
        a("v_lshlrev_b32 v%d, 16, v%d" % (XH + 2 * k, 24 + k))
        a("v_and_b32 v%d, 0xffff0000, v%d" % (XH + 2 * k + 1, 24 + k))
    ln_stats(["v%d" % (XH + k) for k in range(10)], ["v31", "v32", "v33"], "v38", "v39")
    for k in range(10):
        a("v_sub_f32 v%d, v%d, v38" % (XH + k, XH + k))
    for k in range(5):
        a("v_cvt_pk_bf16_f32 v%d, v%d, v%d" % (24 + k, XH + 2 * k, XH + 2 * k + 1))
    for k in range(5):
        a("v_lshlrev_b32 v%d, 16, v%d" % (XH + 2 * k, 24 + k))
        a("v_and_b32 v%d, 0xffff0000, v%d" % (XH + 2 * k + 1, 24 + k))
    for k in range(10):
        a("v_mul_f32 v%d, v%d, v39" % (XH + k, XH + k))
    for k in range(5):
        a("v_cvt_pk_bf16_f32 v%d, v%d, v%d" % (24 + k, XH + 2 * k, XH + 2 * k + 1))
        a("ds_write_b32 v23, v%d offset:%d" % (24 + k, L_HN + 4 * k))
a("s_waitcnt lgkmcnt(0)")
a("s_barrier")
if A.stamp and A.st8 == "hn":
    a("s_memrealtime s[90:91]\ns_waitcnt lgkmcnt(0)\ns_mov_b32 s100, s90")
a("s_cmp_ge_u32 s26, 4")
a("s_cbranch_scc1 L_f1_skip")
if A.D1: a("s_waitcnt vmcnt(0)")
GR = 220
for ks in range(20):
    a("ds_read_b128 %s, v29 offset:%d" % (t4(BF + 4 * ks), L_HN + 64 * ks))
for ks in range(20):
    a("s_waitcnt lgkmcnt(%d)" % min(15, 19 - ks))
    a("v_mfma_f32_16x16x32_bf16 v[40:43], %s, %s, %s" % (t4(AF + 4 * ks), t4(BF + 4 * ks), "0" if ks == 0 else "v[40:43]"))
a("s_lshl_b32 s84, s79, 10")
if not A.st4:
    a("s_mov_b32 exec_lo, 0x00ff00ff\ns_mov_b32 exec_hi, 0x00ff00ff")
for r in range(4):
    a("v_max_f32 v%d, 0, v%d" % (40 + r, 40 + r))
if A.st4:
    a("v_cvt_pk_bf16_f32 v36, v40, v41")
    a("v_cvt_pk_bf16_f32 v38, v40, v41")
    a("v_cvt_pk_bf16_f32 v37, v42, v43")
    a("v_cvt_pk_bf16_f32 v39, v42, v43")
    a("v_permlane16_swap_b32 v36, v38")
    a("v_permlane16_swap_b32 v37, v39")
    a("s_mov_b32 exec_lo, 0xff\ns_mov_b32 exec_hi, 0xff")
else:
    a("v_cvt_pk_bf16_f32 v40, v40, v41")
    a("v_cvt_pk_bf16_f32 v41, v42, v43")
W1 = A.warm or A.warm1
if W1:
    a("s_cmp_eq_u32 s78, 0")
    a("s_cbranch_scc1 L_f1_nost")
if A.st4:
    a("buffer_store_dwordx4 v[36:39], v30, s[60:63], s84 offen %s" % A.pmod)
else:
    a("buffer_store_dwordx2 v[40:41], v30, s[60:63], s84 offen %s" % A.pmod)
a("L_f1_nost:")
a("s_mov_b64 exec, -1")
stamp()
a("L_f1_skip:")
if W1:
    a("s_cmp_eq_u32 s78, 0")
    a("s_cbranch_scc0 L_fin")
if not W1:
    a("s_branch L_fin" if A.stamp else "s_endpgm")
elif A.warm1:
    a("s_branch L_f1_resume")
else:
    a("s_mov_b32 s78, 1")
    a("s_barrier")
    a("s_branch L_poll1")

if A.stamp: stamp_idx[0] = 6
a("L_ffn2:")
a("s_mov_b32 s52, s18\ns_mov_b32 s53, s19")
a("s_lshl_b32 s13, s27, 5")
a("s_mov_b32 s79, s13")
if A.pair2:
    a("v_lshrrev_b32 v5, 1, v1")
    a("v_lshl_add_u32 v5, v44, 6, v5")
else:
    a("v_lshrrev_b32 v5, 1, v0")
a("v_mul_u32_u24 v5, 1280, v5")
a("v_and_b32 v11, 1, v0")
a("v_lshl_add_u32 v5, v11, 4, v5")
NF2 = 8 if A.pair2 else 7
if A.pair2:
    for t in range(8):
        a("s_mov_b32 m0, s3")
        a("buffer_load_dwordx4 v5, s[52:55], s13 offen %s lds" % A.dmod)
        if t < 7:
            a("s_add_u32 s3, s3, 1024")
            a("s_add_u32 s13, s13, %d" % (40960 if t % 2 == 0 else 655360 - 40960))
else:
    dma(7 - A.late2, ["v5"], 327680)
a("v_mul_u32_u24 v21, 1280, v10")
a("v_lshl_add_u32 v21, v45, 3, v21")
a("buffer_load_dwordx2 v[24:25], v21, s[44:47], s79 offen")
a("v_mul_u32_u24 v12, 10240, v44")
a("v_lshl_add_u32 v12, v45, 8, v12")
a("v_lshl_add_u32 v12, v46, 3, v12")
a("v_add_u32 v12, %d, v12" % L_W)
if A.pair2:
    a("v_lshlrev_b32 v22, 4, v0")
else:
    a("v_lshlrev_b32 v22, 9, v44")
    a("v_lshl_add_u32 v22, v45, 7, v22")
    a("v_lshl_add_u32 v22, v10, 4, v22")
a("v_lshlrev_b32 v16, 4, v0")
a("v_lshlrev_b32 v17, 4, v1")
if A.fin2:
    a("v_bfe_u32 v11, v0, 3, 1")
    a("v_mul_u32_u24 v11, %d, v11" % (4096 - 128))
    a("v_add_u32 v17, v17, v11")
a("s_mov_b32 s78, 1")
if A.warm or A.warm2:
    a("s_mov_b32 s78, 0")
    a("s_branch L_f2_body")
    a("L_f2_real:")
    a("s_mov_b32 s78, 1")
a("s_cmp_lg_u32 s26, 0")
a("s_cbranch_scc1 L_ffn2_noh")
a("s_lshl_b32 s84, s27, 4")
a("v_lshlrev_b32 v11, 2, v45")
a("v_add_u32 v11, s84, v11")
for r in range(4):
    a("v_add_u32 v13, %d, v11" % r)
    a("v_mul_u32_u24 v29, 205, v13")
    a("v_lshrrev_b32 v29, 11, v29")
    a("v_mul_u32_u24 v30, 10, v29")
    a("v_sub_u32 v13, v13, v30")
    a("v_and_b32 v30, 1, v13")
    a("v_lshrrev_b32 v13, 1, v13")
    a("v_mul_u32_u24 v31, 11, v13")
    a("v_lshrrev_b32 v31, 5, v31")
    a("v_lshl_add_u32 v30, v30, 1, v31")
    a("v_mul_u32_u24 v31, 3, v31")
    a("v_sub_u32 v%d, v13, v31" % (XF + 4 + r))
    a("v_lshl_add_u32 v29, v30, 6, v29")
    a("v_lshlrev_b32 v29, 4, v29")
    a("v_lshl_add_u32 v%d, v10, 12, v29" % (XF + r))
if A.light or A.light2:
    a("v_lshlrev_b32 v29, 12, v10")
    a("s_mov_b32 s84, 0x42000000")
    a("s_mov_b64 exec, 0xff")
    a("L_light2:")
    a("buffer_load_dword v30, v29, s[48:51], 0 offen offset:12 %s" % A.pmod)
    a("s_add_u32 s88, s88, 1")
    a("s_waitcnt vmcnt(0)")
    a("v_cmp_gt_f32 vcc, s84, v30")
    a("s_cmp_gt_u32 s88, %d" % SPIN_MAX)
    a("s_cbranch_scc1 L_light2_done")
    a("s_cbranch_vccnz L_light2")
    a("L_light2_done:")
    a("s_mov_b64 exec, -1")
a("L_poll2h:")
if A.sleep: a("s_sleep %d" % A.sleep)
for r in range(4):
    a("buffer_load_dwordx4 %s, v%d, s[48:51], 0 offen %s" % (t4(GR + 4 * r), XF + r, A.pmod))
a("s_add_u32 s88, s88, 1")
a("s_waitcnt vmcnt(0)")
a("v_min_f32 v31, v%d, v%d" % (GR + 3, GR + 7))
a("v_min3_f32 v31, v31, v%d, v%d" % (GR + 11, GR + 15))
a("v_cmp_ne_u32 vcc, s85, v31")
a("s_cmp_gt_u32 s88, %d" % SPIN_MAX)
a("s_cbranch_scc1 L_poll2h_done")
a("s_cbranch_vccnz L_poll2h")
a("L_poll2h_done:")
for r in range(4):
    a("v_cmp_eq_u32 vcc, 1, v%d" % (XF + 4 + r))
    a("v_cndmask_b32 v%d, v%d, v%d, vcc" % (GR + 4 * r, GR + 4 * r, GR + 4 * r + 1))
    a("v_cmp_eq_u32 vcc, 2, v%d" % (XF + 4 + r))
    a("v_cndmask_b32 v%d, v%d, v%d, vcc" % (GR + 4 * r, GR + 4 * r, GR + 4 * r + 2))
for k in range(2):
    a("v_cvt_pk_bf16_f32 v31, v%d, v%d" % (GR + 8 * k, GR + 8 * k + 4))
    a("v_lshlrev_b32 v32, 16, v31")
    a("v_and_b32 v33, 0xffff0000, v31")
    a("v_lshlrev_b32 v34, 16, v%d" % (24 + k))
    a("v_and_b32 v35, 0xffff0000, v%d" % (24 + k))
    a("v_add_f32 v32, v32, v34")
    a("v_add_f32 v33, v33, v35")
    a("v_cvt_pk_bf16_f32 v31, v32, v33")
    a("v_lshlrev_b32 v%d, 16, v31" % (XF + 2 * k))
    a("v_and_b32 v%d, 0xffff0000, v31" % (XF + 1 + 2 * k))
a("L_ffn2_noh:")
a("s_waitcnt vmcnt(0)")
def f2_frags(rng=None):
    for t in (rng if rng is not None else range(NF2 - A.late2)):
        a("ds_read_b64_tr_b16 v[%d:%d], v12 offset:%d" % (AF + 4 * t, AF + 4 * t + 1, 1024 * t))
        a("ds_read_b64_tr_b16 v[%d:%d], v12 offset:%d" % (AF + 4 * t + 2, AF + 4 * t + 3, 1024 * t + 128))
if not A.defer2: f2_frags()
stamp()
if A.f2bar:
    a("s_barrier")
if A.late2:
    a("s_add_u32 s3, s3, 1024\ns_add_u32 s13, s13, 327680")
    dma(A.late2, ["v5"], 327680)
if A.defer2:
    f2_frags()
    a("s_waitcnt lgkmcnt(0)")
a("s_mov_b32 s88, 0")
if A.pair2:
    a("L_poll2:")
    for t in range(4):
        a("buffer_load_dwordx4 %s, v22, s[60:63], %s offen %s" % (t4(BF + 4 * t), soff(8192 * t)[0], A.pmod))
    a("s_add_u32 s88, s88, 1")
    a("s_waitcnt lgkmcnt(0)")
    for t in range(4):
        a("s_waitcnt vmcnt(%d)" % (3 - t))
        a("v_mfma_f32_16x16x32_bf16 v[36:39], %s, %s, %s" % (t4(AF + 8 * t + 4), t4(BF + 4 * t), "0" if t == 0 else "v[36:39]"))
        a("v_mfma_f32_16x16x32_bf16 v[40:43], %s, %s, %s" % (t4(AF + 8 * t), t4(BF + 4 * t), "0" if t == 0 else "v[40:43]"))
        if t == 0: a("v_max3_u32 v31, v%d, v%d, v%d\nv_mov_b32 v32, v%d" % (BF, BF + 1, BF + 2, BF + 3))
        else: a("v_max3_u32 v31, v31, v%d, v%d\nv_max3_u32 v32, v32, v%d, v%d" % (BF + 4 * t, BF + 4 * t + 1, BF + 4 * t + 2, BF + 4 * t + 3))
    a("v_max_u32 v31, v31, v32")
    a("v_cmp_eq_u32 vcc, -1, v31")
    a("s_cmp_gt_u32 s88, %d" % SPIN_MAX)
    a("s_cselect_b64 vcc, 0, vcc")
    a("s_cbranch_vccnz L_poll2")
    stamp()
    for r in range(4):
        a("v_add_f32_dpp v%d, v%d, v%d row_ror:8 row_mask:0xf bank_mask:0xf" % (40 + r, 36 + r, 40 + r))
elif A.D2:
    sets = [80 + 28 * k for k in range(A.D2)]
    assert sets[-1] + 28 <= XF
    def p2(g):
        for t in range(7):
            a("buffer_load_dwordx4 %s, v22, s[60:63], %s offen %s" % (t4(g + 4 * t), soff(4096 * t)[0], A.pmod))
    if A.m2:
        a("s_mov_b32 exec_lo, 0x00ff00ff\ns_mov_b32 exec_hi, 0x00ff00ff")
    for k, g in enumerate(sets):
        if A.pace and k: a("s_sleep %d" % A.pace)
        p2(g)
    a("s_waitcnt lgkmcnt(0)")
    a("L_poll2:")
    for k, g in enumerate(sets):
        a("s_waitcnt vmcnt(%d)" % (7 * (A.D2 - 1)))
        a("v_max3_u32 v31, v%d, v%d, v%d" % (g, g + 1, g + 2))
        a("v_max3_u32 v32, v%d, v%d, v%d" % (g + 3, g + 4, g + 5))
        for q in range(6, 26, 4):
            a("v_max3_u32 v31, v31, v%d, v%d" % (g + q, g + q + 1))
            a("v_max3_u32 v32, v32, v%d, v%d" % (g + q + 2, g + q + 3))
        a("v_max3_u32 v31, v31, v%d, v%d" % (g + 26, g + 27))
        a("v_max_u32 v31, v31, v32")
        a("v_cmp_eq_u32 vcc, -1, v31")
        a("s_cbranch_vccz L_p2x%d" % k)
        if A.pace: a("s_sleep %d" % A.pace)
        p2(g)
    a("s_add_u32 s88, s88, 1")
    a("s_cmp_gt_u32 s88, %d" % SPIN_MAX)
    a("s_cbranch_scc0 L_poll2")
    for k, g in reversed(list(enumerate(sets))):
        a("L_p2x%d:" % k)
        if A.m2: a("s_mov_b64 exec, -1")
        for t in range(7):
            a("v_mfma_f32_16x16x32_bf16 v[40:43], %s, %s, %s" % (t4(AF + 4 * t), t4(g + 4 * t), "0" if t == 0 else "v[40:43]"))
        if k: a("s_branch L_p2done")
    a("L_p2done:")
    a("s_nop 7")
    stamp()
else:
    if A.m2:
        for q in range(28): a("v_mov_b32 v%d, 0" % (BF + q))
        a("s_mov_b32 exec_lo, 0x00ff00ff\ns_mov_b32 exec_hi, 0x00ff00ff")
    if A.first2: a("s_sleep %d" % A.first2)
    a("L_poll2:")
    if A.bo2: a("s_sleep %d" % A.bo2)
    for t in range(7):
        a("buffer_load_dwordx4 %s, v22, s[60:63], %s offen %s" % (t4(BF + 4 * t), soff(4096 * t)[0], A.pmod))
    a("s_add_u32 s88, s88, 1")
    a("s_waitcnt lgkmcnt(0)" if A.fin2 else "s_waitcnt vmcnt(0) lgkmcnt(0)")
    if A.fin2:
        a("s_mov_b64 exec, -1")
        for t in range(7):
            a("s_waitcnt vmcnt(%d)" % (6 - t))
            a("v_mfma_f32_16x16x32_bf16 v[40:43], %s, %s, %s" % (t4(AF + 4 * t), t4(BF + 4 * t), "0" if t == 0 else "v[40:43]"))
            if t == 0: a("v_max3_u32 v31, v%d, v%d, v%d\nv_mov_b32 v32, v%d" % (BF, BF + 1, BF + 2, BF + 3))
            else: a("v_max3_u32 v31, v31, v%d, v%d\nv_max3_u32 v32, v32, v%d, v%d" % (BF + 4 * t, BF + 4 * t + 1, BF + 4 * t + 2, BF + 4 * t + 3))
        a("v_max_u32 v31, v31, v32")
        a("v_cmp_eq_u32 vcc, -1, v31")
        a("s_mov_b32 exec_lo, 0x00ff00ff\ns_mov_b32 exec_hi, 0x00ff00ff")
        a("s_cmp_gt_u32 s88, %d" % SPIN_MAX)
        a("s_cbranch_scc1 L_poll2_done")
        a("s_cbranch_vccnz L_poll2")
        a("L_poll2_done:")
        a("s_mov_b64 exec, -1")
        stamp()
        a("L_f2_body:")
    else:
        a("v_max_u32 v31, v%d, v%d" % (BF, BF + 1))
        a("v_max_u32 v32, v%d, v%d" % (BF + 2, BF + 3))
        for k in range(4, 28, 4):
            a("v_max3_u32 v31, v31, v%d, v%d" % (BF + k, BF + k + 1))
            a("v_max3_u32 v32, v32, v%d, v%d" % (BF + k + 2, BF + k + 3))
        a("v_max_u32 v31, v31, v32")
        a("v_cmp_eq_u32 vcc, -1, v31")
        a("s_cmp_gt_u32 s88, %d" % SPIN_MAX)
        a("s_cbranch_scc1 L_poll2_done")
        a("s_cbranch_vccnz L_poll2")
        a("L_poll2_done:")
        if A.m2: a("s_mov_b64 exec, -1")
        if A.late2:
            f2_frags(range(7 - A.late2, 7))
        stamp()
        a("L_f2_body:")
        for t in range(7):
            if A.late2 and t >= 7 - A.late2: a("s_waitcnt lgkmcnt(%d)" % (2 * (6 - t)))
            a("v_mfma_f32_16x16x32_bf16 v[40:43], %s, %s, %s" % (t4(AF + 4 * t), t4(BF + 4 * t), "0" if t == 0 else "v[40:43]"))
a("ds_write_b128 v16, v[40:43] offset:%d" % L_FP)
a("s_waitcnt lgkmcnt(0)")
a("s_barrier")
a("s_cmp_lg_u32 s26, 0")
a("s_cbranch_scc1 L_f2_skip")
if A.fin2:
    for w in range(4):
        a("ds_read_b128 %s, v17 offset:%d" % (t4(AF + 4 * w), L_FP + 1024 * w))
    for w in range(2):
        a("s_waitcnt lgkmcnt(%d)" % (2 - 2 * w))
        for r in (0, 2):
            a("v_pk_add_f32 v[%d:%d], v[%d:%d], v[%d:%d]" % (AF + 8 * w + r, AF + 8 * w + r + 1, AF + 8 * w + r, AF + 8 * w + r + 1, AF + 8 * w + 4 + r, AF + 8 * w + 4 + r + 1))
    for r in (0, 2):
        a("v_pk_add_f32 v[%d:%d], v[%d:%d], v[%d:%d]" % (AF + r, AF + r + 1, AF + r, AF + r + 1, AF + 8 + r, AF + 8 + r + 1))
    for r in range(4):
        a("v_add_f32_dpp v%d, v%d, v%d row_ror:8 row_mask:0xf bank_mask:0xf" % (AF + r, AF + r, AF + r))
else:
    for w in range(8):
        a("ds_read_b128 %s, v17 offset:%d" % (t4(AF + 4 * w), L_FP + 1024 * w))
    a("s_waitcnt lgkmcnt(0)")
    for s_ in (4, 2, 1):
        for w in range(s_):
            for r in range(0, 4, 2):
                a("v_pk_add_f32 v[%d:%d], v[%d:%d], v[%d:%d]" % (AF + 4 * w + r, AF + 4 * w + r + 1, AF + 4 * w + r, AF + 4 * w + r + 1, AF + 4 * (w + s_) + r, AF + 4 * (w + s_) + r + 1))
a("s_mov_b32 exec_lo, 0x00ff00ff\ns_mov_b32 exec_hi, 0x00ff00ff")
for k in range(2):
    a("v_cvt_pk_bf16_f32 v31, v%d, v%d" % (AF + 2 * k, AF + 2 * k + 1))
    a("v_lshlrev_b32 v32, 16, v31")
    a("v_and_b32 v33, 0xffff0000, v31")
    a("v_add_f32 v32, v32, v%d" % (XF + 2 * k))
    a("v_add_f32 v33, v33, v%d" % (XF + 1 + 2 * k))
    a("v_cvt_pk_bf16_f32 v%d, v32, v33" % (40 + k))
if A.warm or A.warm2:
    a("s_cmp_eq_u32 s78, 0")
    a("s_cbranch_scc1 L_f2_nost")
a("buffer_store_dwordx2 v[40:41], v21, s[56:59], s79 offen %s" % A.outmod)
a("L_f2_nost:")
a("s_mov_b64 exec, -1")
a("L_f2_skip:")
if A.warm or A.warm2:
    a("s_cmp_eq_u32 s78, 0")
    a("s_cbranch_scc1 L_f2_real")
if A.diagnum:
    a("v_mov_b32 v26, 0")
    a("buffer_load_dword v27, v26, s[64:67], 0 offen offset:32 sc0 sc1\ns_waitcnt vmcnt(0)")
    a("v_readfirstlane_b32 s84, v27\ns_bcnt1_i32_b32 s84, s84\ns_cmp_eq_u32 s84, 1\ns_cbranch_scc1 L_fin")
    a("s_memrealtime s[90:91]\ns_waitcnt lgkmcnt(0)\ns_add_u32 s85, s90, 10000")
    a("L_dly:\ns_memrealtime s[90:91]\ns_waitcnt lgkmcnt(0)\ns_sub_u32 s84, s85, s90\ns_cmp_lt_i32 s84, 0\ns_cbranch_scc0 L_dly")
if A.diags >= 0:
    a("s_and_b32 s84, s2, 7\ns_cmp_lg_u32 s84, %d\ns_cbranch_scc1 L_fin" % A.diags)
    a("v_mov_b32 v26, 0\nbuffer_load_dword v27, v26, s[64:67], 0 offen offset:192 sc0 sc1\ns_waitcnt vmcnt(0)\nv_readfirstlane_b32 s84, v27")
    a("s_sub_u32 s85, s92, s84\ns_add_u32 s85, s85, 200\ns_min_u32 s85, s85, 1000\ns_lshl_b32 s85, s85, 4")
    a("s_memrealtime s[90:91]\ns_waitcnt lgkmcnt(0)\ns_add_u32 s85, s85, s90")
    a("L_dly4:\ns_memrealtime s[90:91]\ns_waitcnt lgkmcnt(0)\ns_sub_u32 s84, s85, s90\ns_cmp_lt_i32 s84, 0\ns_cbranch_scc0 L_dly4")
if A.diagd:
    a("s_getreg_b32 s84, hwreg(HW_REG_XCC_ID)\ns_sub_u32 s84, s84, s2\ns_and_b32 s84, s84, 7\ns_mul_i32 s85, s84, 2000")
    a("s_memrealtime s[90:91]\ns_waitcnt lgkmcnt(0)\ns_add_u32 s85, s85, s90")
    a("L_dly3:\ns_memrealtime s[90:91]\ns_waitcnt lgkmcnt(0)\ns_sub_u32 s84, s85, s90\ns_cmp_lt_i32 s84, 0\ns_cbranch_scc0 L_dly3")
if A.amp >= 0:
    a("s_cmp_lg_u32 s26, 0\ns_cbranch_scc1 L_fin")
    a("s_memrealtime s[90:91]\ns_waitcnt lgkmcnt(0)\ns_mov_b32 s101, s90")
    if A.ampA:
        a("s_load_dword s93, s[24:25], %d\ns_waitcnt lgkmcnt(0)\ns_mov_b32 s94, s92\ns_mov_b32 s92, s93" % (WS_STAMP - 64))
    a("s_sub_u32 s85, s%d, s92\ns_lshl_b32 s85, s85, %d\ns_add_u32 s85, s85, s90" % (92 + A.amp, A.ampsh))
    a("L_dly2:\ns_memrealtime s[90:91]\ns_waitcnt lgkmcnt(0)\ns_sub_u32 s84, s85, s90\ns_cmp_lt_i32 s84, 0\ns_cbranch_scc0 L_dly2")
a("L_fin:")
if A.stamp and A.amp < 0:
    a("s_waitcnt vmcnt(0)")
    a("s_memrealtime s[90:91]\ns_waitcnt lgkmcnt(0)\ns_mov_b32 s101, s90")
    a("s_add_u32 s48, s24, %d\ns_addc_u32 s49, s25, 0\ns_mov_b32 s50, 131072" % WS_STAMP)
    a("s_lshl_b32 s84, s2, 3\ns_add_u32 s84, s84, s26\ns_lshl_b32 s84, s84, 6")
    a("s_getreg_b32 s85, hwreg(HW_REG_XCC_ID)")
    a("v_mov_b32 v1, 0")
    a("s_mov_b64 exec, 1")
    for k in range(10):
        a("v_mov_b32 v2, s%d" % (92 + k))
        a("buffer_store_dword v2, v1, s[48:51], s84 offen offset:%d" % (4 * k))
    a("v_mov_b32 v2, s85")
    a("buffer_store_dword v2, v1, s[48:51], s84 offen offset:40")
    a("v_mov_b32 v2, s88")
    a("buffer_store_dword v2, v1, s[48:51], s84 offen offset:44")
    a("v_mov_b32 v2, s27")
    a("buffer_store_dword v2, v1, s[48:51], s84 offen offset:48")
    if A.dbgstamp:
        a("s_cmp_ge_u32 s27, 40\ns_cbranch_scc1 L_end\ns_cmp_lg_u32 s26, 0\ns_cbranch_scc1 L_end")
        a("s_not_b32 s86, s92")
        a("v_mov_b32 v2, s86")
        a("buffer_atomic_umax v2, v1, s[64:67], 0 offen offset:4 sc1")
        for k in (4, 5, 6, 7, 9):
            a("v_mov_b32 v2, s%d" % (92 + k))
            a("buffer_atomic_umax v2, v1, s[64:67], 0 offen offset:%d sc1" % (8 + 4 * k))
a("L_end:")
a("s_endpgm")
a("L_initslow:")
a("s_mov_b32 s88, 0")
a("L_initpoll:")
a("buffer_load_dword v12, v21, s[64:67], 0 offen sc0 sc1")
a("s_waitcnt vmcnt(0)")
a("v_readfirstlane_b32 s89, v12")
a("s_add_u32 s88, s88, 1")
a("s_cmp_gt_u32 s88, %d" % SPIN_MAX)
a("s_cbranch_scc1 L_initok")
a("s_cmp_ge_u32 s89, 8")
a("s_cbranch_scc0 L_initpoll")
a("s_branch L_initok")

DESC = '; ---------------------------------------------------------------------------------------------\n; ---------------------------------------------------------------------------------------------\n'
body = a.render()
txt = HEADER + "; @launch grid=(256,1,1) block=(512,1,1) lds=%d\n" % (A.lds or LDS_BYTES)
txt += DESC + """.amdgcn_target "amdgcn-amd-amdhsa--gfx950"
.text
.globl {n}_kernel
{al}.p2align 8
.type {n}_kernel,@function
{n}_kernel:
{body}.section .rodata,"a"
.p2align 6
.amdhsa_kernel {n}_kernel
  .amdhsa_next_free_vgpr 256
  .amdhsa_next_free_sgpr 102
  .amdhsa_accum_offset 256
  .amdhsa_group_segment_fixed_size 0
  .amdhsa_kernarg_size 88
  .amdhsa_user_sgpr_count 2
  .amdhsa_user_sgpr_kernarg_segment_ptr 1
  .amdhsa_system_sgpr_workgroup_id_x 1
  .amdhsa_float_denorm_mode_32 3
.end_amdhsa_kernel
""".format(n=NAME, body=body, al=(".p2align 12\n" + (".fill %d, 4, 0xbf810000   ; never executed: places the entry so that no latency-critical segment crosses a 4 KiB line\n" % (64 * A.align12) if A.align12 else "")) if A.align12 >= 0 else "")
open(A.o, "w").write(txt)
print("wrote", A.o, len(txt), "bytes,", body.count("\\n"), "lines")
```

```python
import sys, argparse
sys.path.insert(0, "work")
from asmlib import Asm

NAME = "sequential_preLN__sliding_block_cached__dense_activation_relu__decode"
HEADER = open("cdna_kernels/%s.s.ref" % NAME).read().split("; Override launch geometry")[0]

ap = argparse.ArgumentParser()
ap.add_argument("-o", default="cdna_kernels/%s.s" % NAME)
ap.add_argument("--stamp", action="store_true")
ap.add_argument("--dbgstamp", action="store_true")
ap.add_argument("--kvmod", default="nt")
ap.add_argument("--wmod", default="nt")
ap.add_argument("--dmod", default="nt")
ap.add_argument("--pmod", default="sc0 sc1")
ap.add_argument("--L", type=int, default=12)
ap.add_argument("--pat", type=int, default=1)
ap.add_argument("--qk", type=int, default=2)
ap.add_argument("--wo_start", type=int, default=12)
ap.add_argument("--wo_every", type=int, default=2)
ap.add_argument("--codepf", action="store_true")
ap.add_argument("--adapt", type=int, default=0)
ap.add_argument("--f1first", action="store_true")
ap.add_argument("--spread", action="store_true")
ap.add_argument("--sl2", type=int, default=0)
ap.add_argument("--sl1", type=int, default=0)
ap.add_argument("--f1pre", type=int, default=20)
ap.add_argument("--pivot", action="store_true")
ap.add_argument("--slown", type=int, default=20)
ap.add_argument("--slow", type=int, default=0)
ap.add_argument("--diags", type=int, default=-1)
ap.add_argument("--diagd", action="store_true")
ap.add_argument("--pair2", action="store_true")
ap.add_argument("--st4", action="store_true")
ap.add_argument("--touch2", action="store_true")
ap.add_argument("--op4", type=int, default=0)
ap.add_argument("--lin", action="store_true")
ap.add_argument("--op3", action="store_true")
ap.add_argument("--ampA", action="store_true")
ap.add_argument("--fin2", action="store_true")
ap.add_argument("--late2", type=int, default=0)
ap.add_argument("--align12", type=int, default=-1)
ap.add_argument("--warm1", action="store_true")
ap.add_argument("--warm2", action="store_true")
ap.add_argument("--pad", type=int, default=0)
ap.add_argument("--sthr", type=int, nargs=2, default=None)
ap.add_argument("--tk2", action="store_true")
ap.add_argument("--static", action="store_true")
ap.add_argument("--tkwave", type=int, default=0)
ap.add_argument("--thr", type=int, default=0)
ap.add_argument("--thrT", type=int, default=1)
ap.add_argument("--thr0", type=int, default=256)
ap.add_argument("--qpf", action="store_true")
ap.add_argument("--qstart", type=int, default=0)
ap.add_argument("--krot", type=int, default=0)
ap.add_argument("--light2", action="store_true")
ap.add_argument("--defer2", type=int, default=0)
ap.add_argument("--bo2", type=int, default=0)
ap.add_argument("--first2", type=int, default=0)
ap.add_argument("--ampsh", type=int, default=2)
ap.add_argument("--qspan", type=int, default=0)
ap.add_argument("--ospan", type=int, nargs=2, default=None)
ap.add_argument("--fine", action="store_true")
ap.add_argument("--op2", action="store_true")
ap.add_argument("--ln1", action="store_true")
ap.add_argument("--qrow", type=int, default=0)
ap.add_argument("--rot", type=int, default=0)
ap.add_argument("--outmod", default="")
ap.add_argument("--lds", type=int, default=0)
ap.add_argument("--edma", action="store_true")
ap.add_argument("--nopre", action="store_true")
ap.add_argument("--st8", default="hn")
ap.add_argument("--minrate", type=int, default=0)
ap.add_argument("--m2", action="store_true")
ap.add_argument("--D1", type=int, default=0)
ap.add_argument("--D2", type=int, default=0)
ap.add_argument("--pace", type=int, default=0)
ap.add_argument("--warm", action="store_true")
ap.add_argument("--tkpos", type=int, default=8)
ap.add_argument("--map", type=int, default=0)
ap.add_argument("--touch", action="store_true")
ap.add_argument("--qhead", type=int, default=0)
ap.add_argument("--codepf2", action="store_true")
ap.add_argument("--oobq", action="store_true")
ap.add_argument("--oobo", action="store_true")
ap.add_argument("--f2bar", action="store_true")
ap.add_argument("--light", type=int, default=0)
ap.add_argument("--sleep", type=int, default=0)
ap.add_argument("--amp", type=int, default=-1)
ap.add_argument("--diagnum", action="store_true")
ap.add_argument("--LV", type=int, default=0)
ap.add_argument("--dma", default="stream")
ap.add_argument("--pf", type=int, default=0)
ap.add_argument("--pfmod", default="")
A = ap.parse_args()

L_PART = 0
L_QD = 4096
L_ST = 6144
L_YP = 6400
L_HN = 27136
HN_STRIDE = 1312
L_FP = 37888
L_W = 46080
LDS_BYTES = L_W + 81920
WS_H1 = 32768
WS_STAMP = 1 << 20
FFN1_N, FFN2_N = 27, 40
L_TK = 6208
SPIN_MAX = 400000

RING = 48; NRING = 32
YSTR = 2560
WO = 176
def t4(r): return "v[%d:%d]" % (r, r + 3)
def soff(byte):
    hi, lo = byte // 4096, byte % 4096
    return ("0" if hi == 0 else "s%d" % (67 + hi)), lo

a = Asm()
stamp_idx = [0]
def stamp():
    if not A.stamp: return
    a("s_memrealtime s[90:91]\ns_waitcnt lgkmcnt(0)\ns_mov_b32 s%d, s90" % (92 + stamp_idx[0]))
    stamp_idx[0] += 1
    assert stamp_idx[0] <= 9

FINE = [4, 6, 8, 10, 14, 36, 38]
fine_i = [0]
def fine():
    if not A.fine: return
    r = FINE[fine_i[0]]; fine_i[0] += 1
    a("s_memtime s[%d:%d]" % (r, r + 1))

def wave_reduce(v, op, sdst):
    for m in ("quad_perm:[1,0,3,2] row_mask:0xf", "quad_perm:[2,3,0,1] row_mask:0xf", "row_half_mirror row_mask:0xf",
              "row_mirror row_mask:0xf", "row_bcast:15 row_mask:0xa", "row_bcast:31 row_mask:0xc"):
        a("%s_dpp %s, %s, %s %s bank_mask:0xf" % (op, v, v, v, m))
    a("v_readlane_b32 %s, %s, 63" % (sdst, v))

def ln_stats(vals, tmp, vmean_bf, vrinv):
    t0, t1, t2 = tmp
    a("v_add_f32 %s, %s, %s" % (t0, vals[0], vals[1]))
    a("v_add_f32 %s, %s, %s" % (t1, vals[2], vals[3]))
    for k in range(4, 10, 2):
        a("v_add_f32 %s, %s, %s" % (t0, t0, vals[k]))
        a("v_add_f32 %s, %s, %s" % (t1, t1, vals[k + 1]))
    a("v_add_f32 %s, %s, %s" % (t0, t0, t1))
    wave_reduce(t0, "v_add_f32", "s84")
    a("v_mov_b32 %s, 0x3acccccd" % t2)
    a("v_mul_f32 %s, s84, %s" % (vmean_bf, t2))
    a("v_sub_f32 %s, %s, %s" % (t1, vals[0], vmean_bf))
    a("v_mul_f32 %s, %s, %s" % (t0, t1, t1))
    for k in range(1, 10):
        a("v_sub_f32 %s, %s, %s" % (t1, vals[k], vmean_bf))
        a("v_fmac_f32 %s, %s, %s" % (t0, t1, t1))
    wave_reduce(t0, "v_add_f32", "s84")
    a("v_mul_f32 %s, s84, %s" % (t0, t2))
    a("v_cvt_pk_bf16_f32 %s, %s, %s" % (t0, t0, vmean_bf))
    a("v_and_b32 %s, 0xffff0000, %s" % (vmean_bf, t0))
    a("v_lshlrev_b32 %s, 16, %s" % (t0, t0))
    a("v_add_f32 %s, 0x3727c5ac, %s" % (t0, t0))
    a("v_cvt_pk_bf16_f32 %s, %s, %s" % (t0, t0, t0))
    a("v_lshlrev_b32 %s, 16, %s" % (t0, t0))
    a("v_sqrt_f32 %s, %s" % (t0, t0))
    a("v_cvt_pk_bf16_f32 %s, %s, %s" % (t0, t0, t0))
    a("v_lshlrev_b32 %s, 16, %s" % (t0, t0))
    a("v_rcp_f32 %s, %s" % (vrinv, t0))

def selector(abuf, src, lane):
    for r in range(4):
        a("v_and_b32_dpp v%d, %s, v%d row_newbcast:%d row_mask:0xf bank_mask:0xf" % (abuf + r, src, 6 + r, lane))

def srd(d, plo, nbytes):
    a("s_mov_b32 s%d, s%d\ns_mov_b32 s%d, s%d\ns_mov_b32 s%d, %s\ns_mov_b32 s%d, 0x20000" % (d, plo, d + 1, plo + 1, d + 2, nbytes, d + 3))

S = []
kv = [("k", n) for n in range(32)] + [("v", n) for n in range(32)]
if A.qspan:
    oa, ob = A.ospan
    qpos = [A.qstart + (t * (A.qspan - A.qstart)) // 20 for t in range(20)]
    opos = [oa + (t * (ob - oa)) // 20 for t in range(20)]
    for ki in range(64):
        S += [("q", t) for t in range(20) if qpos[t] == ki]
        S += [("o", t) for t in range(20) if opos[t] == ki]
        S.append(kv[ki])
else:
    qi = 0; ki = 0
    while qi < A.qhead:
        S.append(("q", qi)); qi += 1
    while qi < 20:
        for _ in range(A.qk):
            if qi < 20: S.append(("q", qi)); qi += 1
        S.append(kv[ki]); ki += 1
    oi = 0
    while ki < 64:
        S.append(kv[ki]); ki += 1
        if ki >= A.wo_start and (ki - A.wo_start) % A.wo_every == 0 and oi < 20:
            S.append(("o", oi)); oi += 1
    assert oi == 20
if A.tk2: S.append(("t", 0))
POS = {e: p for p, e in enumerate(S)}
free = list(range(NRING))
slot = {}
lend = list(range(32, 52))
st = {"issued": 0, "maxpos": -1, "gate": len(S)}
def reg_of(e):
    if e[0] == "o": return WO + 4 * e[1]
    return RING + 4 * slot[e]
def issue(e):
    kind, n = e
    if kind in "qkv":
        if free: slot[e] = free.pop(0)
        elif lend and kind != "v": slot[e] = lend.pop()
        else: return False
    if kind == "o":
        if (32 + n) not in lend: return False
        lend.remove(32 + n)
    if kind == "q":
        so = "0"
        if n: a("s_mov_b32 s78, %d" % (n * 8192 * (1, 4, 32)[A.qrow] if not (A.oobq and n >= 3) else 0x7f000000)); so = "s78"
        masked = A.slow and ((n + 1) * A.slown) // 20 != (n * A.slown) // 20
        a("buffer_load_dwordx4 %s, %s, s[36:39], %s offen %s" % (t4(reg_of(e)), "v21" if masked else "v3", so, A.wmod))
    elif kind in "kv":
        sr = "s[28:31]" if kind == "k" else "s[32:35]"
        if A.pat == 0:
            so, im = soff(n * 1024)
        elif A.krot:
            sr_ = "s14" if kind == "k" else "s15"
            so, im = sr_, 0
            if n: a("s_add_u32 %s, %s, %s\ns_and_b32 %s, %s, 0x3ffff" % (sr_, sr_, "s27" if A.krot >= 9 else "8192", sr_, sr_))
        elif A.pat == 3:
            so, im = "0", (n & 1) * 1024
            if n >> 1: a("s_mov_b32 s78, %d" % ((n >> 1) * 8192)); so = "s78"
        elif A.pat == 4:
            so, im = "0", (n & 3) * 1024
            if n >> 2: a("s_mov_b32 s78, %d" % ((n >> 2) * 16384)); so = "s78"
        else:
            so, im = "0", 0
            if n: a("s_mov_b32 s78, %d" % (n * (8192 if A.pat == 1 else 4096))); so = "s78"
        a("buffer_load_dwordx4 %s, v2, %s, %s offen offset:%d %s" % (t4(reg_of(e)), sr, so, im, A.kvmod))
    elif kind == "t":
        a("s_mov_b64 exec, 1")
        a("buffer_atomic_add v22, v21, s[48:51], s11 offen sc0 sc1")
        a("s_mov_b64 exec, -1")
    elif kind == "o":
        so, im = soff(n * 256)
        if A.oobo and n >= 3:
            a("s_mov_b32 s78, 0x7f000000"); so = "s78"
        a("buffer_load_dwordx4 %s, v4, s[40:43], %s offen offset:%d %s" % (t4(reg_of(e)), so, im, A.wmod))
    return True
def pump(upto):
    upto = min(upto, len(S) - 1, st["gate"] - 1)
    while st["issued"] <= upto:
        if not issue(S[st["issued"]]): break
        st["issued"] += 1
def ready(e):
    p = POS[e]
    st["maxpos"] = max(st["maxpos"], p)
    before = st["issued"]
    pump(st["maxpos"] + A.L)
    if st["issued"] == before:
        st["idle"] = st.get("idle", 0) + 1
        if A.minrate and st["idle"] >= A.minrate:
            pump(st["issued"]); st["idle"] = 0
    else:
        st["idle"] = 0
    assert st["issued"] > p, (e, st)
    n = st["issued"] - 1 - p
    assert n <= 63
    a("s_waitcnt vmcnt(%d)" % n)
def done(e):
    sl = slot.pop(e)
    if sl >= 32:
        lend.append(sl); lend.sort()
    else:
        free.append(sl)

def SLOW0():
    pass
a("s_cmp_ge_u32 s2, 256")
a("s_cbranch_scc1 L_end")
a("s_load_dwordx16 s[4:19], s[0:1], 0")
a("s_load_dwordx4 s[20:23], s[0:1], 64")
a("s_load_dwordx2 s[24:25], s[0:1], 80")
if A.stamp:
    a("s_memrealtime s[90:91]")
a("v_and_b32 v1, 63, v0")
a("v_lshrrev_b32 v44, 6, v0")
a("v_lshrrev_b32 v45, 4, v1")
a("v_and_b32 v46, 15, v0")
a("v_readfirstlane_b32 s26, v44")
a("s_lshr_b32 s76, s2, 5")
if A.map == 0:
    a("s_and_b32 s77, s2, 31")
elif A.map == 1:
    a("s_and_b32 s77, s2, 7\ns_lshl_b32 s77, s77, 2\ns_bfe_u32 s84, s2, 0x20003\ns_or_b32 s77, s77, s84")
elif A.map >= 10:
    c = A.map - 10
    tab = list(range(8)); tab[5], tab[c] = tab[c], tab[5]
    a("s_and_b32 s84, s2, 7\ns_lshl_b32 s84, s84, 2\ns_lshr_b32 s84, 0x%08x, s84\ns_and_b32 s84, s84, 7" % sum(t << (4 * k) for k, t in enumerate(tab)))
    a("s_and_b32 s77, s2, 24\ns_or_b32 s77, s77, s84")
elif A.map == 2:
    a("s_and_b32 s77, s2, 7\ns_lshl_b32 s77, s77, 1\ns_bfe_u32 s84, s2, 0x10003\ns_or_b32 s77, s77, s84\ns_and_b32 s84, s2, 16\ns_or_b32 s77, s77, s84")
a("s_lshl_b32 s3, s76, 5\ns_or_b32 s3, s3, s77")
if A.pat == 0:
    a("v_lshlrev_b32 v2, 15, v44")
    a("v_lshl_add_u32 v2, v1, 4, v2")
elif A.pat == 1:
    a("v_lshlrev_b32 v2, 4, v0")
else:
    a("v_lshrrev_b32 v2, 8, v0\nv_lshlrev_b32 v2, 17, v2\nv_lshl_add_u32 v2, v1, 4, v2\nv_and_b32 v3, 3, v44")
    a("v_lshl_add_u32 v2, v3, %d, v2" % {2: 10, 3: 11, 4: 12}[A.pat])
a("v_lshl_add_u32 v47, v44, 2, v45")
if A.rot:
    a("s_lshl_b32 s84, s76, 2")
    a("v_add_u32 v5, s84, v47")
    a("v_and_b32 v5, 31, v5")
a("v_mul_u32_u24 v4, 5120, %s" % ("v5" if A.rot >= 2 else "v47"))
if A.rot: a("v_mov_b32 v47, v5")
if A.qrow == 0:
    a("v_mul_u32_u24 v47, 20, v47")
elif A.qrow == 1:
    a("v_lshrrev_b32 v47, 2, v47\nv_mul_u32_u24 v47, 80, v47\nv_add_u32 v47, v47, v45")
a("v_lshlrev_b32 v3, 13, v47")
a("v_lshl_add_u32 v3, v46, 4, v3")
a("v_lshl_add_u32 v4, v46, 4, v4")
a("v_mul_u32_u24 v32, 20, v1")
QS = (0, 2, 5)[A.qrow]
a("v_lshlrev_b32 v33, %d, v46" % QS)
a("v_add_lshl_u32 v33, v47, v33, 1")
a("v_and_b32 v34, 3, v0")
a("v_lshlrev_b32 v34, %d, v34" % QS)
a("v_add_lshl_u32 v34, v47, v34, 1")
a("s_mul_i32 s84, s76, 1280")
a("s_lshl_b32 s85, s77, 8")
a("s_lshl_b32 s86, s3, 20")
a("s_add_u32 s86, s86, 786432")
a("s_mov_b32 s46, 10240\ns_mov_b32 s47, 0x20000")
a("s_sub_u32 s38, 5242880, s85\ns_mov_b32 s39, 0x20000")
a("s_mov_b32 s30, 262144\ns_mov_b32 s31, 0x20000")
for k in range(1, 8):
    a("s_movk_i32 s%d, %d" % (67 + k, 4096 * k))
a("s_waitcnt lgkmcnt(0)")
if A.stamp:
    a("s_mov_b32 s92, s90"); stamp_idx[0] = 1
    if A.st8 == "karg":
        a("s_memrealtime s[90:91]\ns_waitcnt lgkmcnt(0)\ns_mov_b32 s100, s90")
if A.krot == 1:
    a("s_mul_i32 s14, s2, 0x9e3779b1\ns_lshr_b32 s14, s14, 27\ns_lshl_b32 s14, s14, 13\ns_mov_b32 s15, s14")
elif A.krot == 2:
    a("s_and_b32 s14, s2, 31\ns_lshl_b32 s14, s14, 13\ns_mov_b32 s15, s14")
elif A.krot == 3:
    a("s_lshr_b32 s14, s2, 3\ns_lshl_b32 s14, s14, 13\ns_mov_b32 s15, s14")
if A.krot == 9:
    a("s_mul_i32 s27, s2, 0x9e3779b1\ns_lshr_b32 s14, s27, 27\ns_lshl_b32 s14, s14, 13\ns_mov_b32 s15, s14")
    a("s_bfe_u32 s27, s27, 0x40010\ns_lshl_b32 s27, s27, 14\ns_or_b32 s27, s27, 8192")
if A.krot == 10:
    a("s_mul_i32 s27, s2, 0x9e3779b1\ns_mov_b32 s14, 0\ns_mov_b32 s15, 0")
    a("s_lshr_b32 s27, s27, 28\ns_lshl_b32 s27, s27, 14\ns_or_b32 s27, s27, 8192")
if A.krot == 4:
    a("s_and_b32 s14, s2, 1\ns_lshl_b32 s14, s14, 17\ns_mov_b32 s15, s14")
elif A.krot == 5:
    a("s_lshr_b32 s14, s2, 5\ns_lshl_b32 s14, s14, 15\ns_mov_b32 s15, s14")
elif A.krot == 6:
    a("s_and_b32 s14, s2, 7\ns_lshl_b32 s14, s14, 15\ns_mov_b32 s15, s14")
elif A.krot == 7:
    a("s_brev_b32 s14, s2\ns_lshr_b32 s14, s14, 27\ns_lshl_b32 s14, s14, 13\ns_mov_b32 s15, s14")
elif A.krot == 8:
    a("s_lshr_b32 s14, s2, 5\ns_lshl_b32 s14, s14, 13\ns_mov_b32 s15, s14")
a("s_mov_b32 s44, s4\ns_mov_b32 s45, s5")
a("s_add_u32 s36, s10, s85\ns_addc_u32 s37, s11, 0")
a("s_add_u32 s28, s6, s86\ns_addc_u32 s29, s7, 0")
if A.touch:
    a("s_load_dword s89, s[28:29], 0")
    a("s_add_u32 s32, s8, s86\ns_addc_u32 s33, s9, 0")
    a("s_load_dword s88, s[32:33], 0")
a("s_cmp_ge_u32 s2, 8")
a("s_cbranch_scc1 L_noinit")
srd(48, 24, "66560")
a("s_lshl_b32 s87, s2, 12")
a("v_lshlrev_b32 v35, 3, v0")
a("v_mov_b32 v36, 0\nv_mov_b32 v37, 0\nv_mov_b32 v38, -1\nv_mov_b32 v39, -1")
a("buffer_store_dwordx2 v[36:37], v35, s[48:51], s87 offen sc0 sc1")
a("s_add_u32 s87, s87, %d" % WS_H1)
a("buffer_store_dwordx2 v[38:39], v35, s[48:51], s87 offen sc0 sc1")
if not A.static:
    a("s_lshl_b32 s87, s2, 7\ns_add_u32 s87, s87, 65536")
    a("v_and_b32 v35, 0x78, v35")
    a("buffer_store_dwordx2 v[36:37], v35, s[48:51], s87 offen sc0 sc1")
a("L_noinit:")
if A.slow:
    a("s_bfe_u32 s87, s36, 0x30007\ns_cmp_eq_u32 s87, 2\ns_cselect_b32 s27, 1, 0")
    a("s_bfe_u32 s87, s36, 0x60007\ns_cmp_eq_u32 s87, 62\ns_cselect_b32 s27, 1, s27")
    a("v_mov_b32 v21, v3")
    a("s_cmp_eq_u32 s27, 0")
    a("s_cbranch_scc1 L_fast0")
    a("s_mov_b32 exec_lo, 0xff00ff00\ns_mov_b32 exec_hi, 0xff00ff00")
    a("v_mov_b32 v21, 0x7ff00000")
    a("s_mov_b64 exec, -1")
    SLOW0()
    a("L_fast0:")
a("buffer_load_dwordx4 v[16:19], v32, s[44:47], s84 offen")
a("buffer_load_dword v20, v32, s[44:47], s84 offen offset:16")
a("buffer_load_ushort v22, v33, s[44:47], s84 offen")
a("buffer_load_ushort v23, v34, s[44:47], s84 offen offset:%d" % (32 << QS))
if A.qpf:
    srd(52, 10, "5242880")
    a("s_lshr_b32 s87, s2, 3\ns_mul_i32 s87, s87, %d" % (20 * 8192))
    a("s_and_b32 s88, s2, 7")
    a("v_lshrrev_b32 v35, 4, v0\nv_lshlrev_b32 v35, 13, v35")
    if A.map == 1:
        a("s_lshl_b32 s88, s88, 10\ns_add_u32 s87, s87, s88")
        a("v_lshl_add_u32 v35, v46, 6, v35")
    else:
        a("s_lshl_b32 s88, s88, 8\ns_add_u32 s87, s87, s88")
        a("v_and_b32 v36, 3, v0\nv_lshl_add_u32 v35, v36, 6, v35\nv_bfe_u32 v36, v0, 2, 2\nv_lshl_add_u32 v35, v36, 11, v35")
    a("s_cmp_ge_u32 s26, 4")
    a("s_cbranch_scc1 L_noqpf")
    a("buffer_load_dword v21, v35, s[52:55], s87 offen")
    a("s_cmp_lg_u32 s26, 0")
    a("s_cbranch_scc1 L_noqpf")
    a("s_add_u32 s87, s87, %d" % (16 * 8192))
    a("buffer_load_dword v21, v35, s[52:55], s87 offen")
    a("L_noqpf:")
st["gate"] = POS[("o", 0)]
pump(A.L)
n_first = st["issued"]
if A.codepf:
    a("s_getpc_b64 s[84:85]")
    a("L_pc:")
    a("s_sub_u32 s84, s84, L_pc-%s_kernel" % NAME)
    a("s_subb_u32 s85, s85, 0")
    a("v_lshlrev_b32 v35, 5, v0")
    a("v_min_u32 v35, L_end-%s_kernel, v35" % NAME)
    a("global_load_dword v5, v35, s[84:85]")
a("s_add_u32 s32, s8, s86\ns_addc_u32 s33, s9, 0\ns_mov_b32 s34, 262144\ns_mov_b32 s35, 0x20000")
a("s_mul_i32 s85, s77, 163840")
a("s_add_u32 s40, s12, s85\ns_addc_u32 s41, s13, 0\ns_mov_b32 s42, 163840\ns_mov_b32 s43, 0x20000")
if A.touch2:
    a("s_lshl_b32 s84, s26, 15")
    a("s_load_dword s88, s[28:29], s84")
    a("s_load_dword s89, s[32:33], s84")
    a("s_mul_i32 s84, s26, 20480")
    a("s_load_dword s87, s[40:41], s84")
srd(48, 24, "66560")
srd(56, 20, "10240")
a("s_add_u32 s60, s24, %d\ns_addc_u32 s61, s25, 0\ns_mov_b32 s62, 27648\ns_mov_b32 s63, 0x20000" % WS_H1)
srd(64, 22, "256")
a("s_mov_b32 s80, 0xcccccccc\ns_mov_b32 s81, 0xcccccccc\ns_mov_b32 s82, 0xaaaaaaaa\ns_mov_b32 s83, 0xaaaaaaaa")
a("v_and_b32 v35, 1, v0")
a("v_lshlrev_b32 v35, 4, v35")
a("v_mov_b32 v38, 0xffff")
a("v_lshlrev_b32 v38, v35, v38")
a("v_lshrrev_b32 v37, 1, v46")
for r in range(4):
    a("v_cmp_eq_u32 vcc, %d, v37" % r)
    a("v_cndmask_b32 v%d, 0, v38, vcc" % (6 + r))
a("v_lshlrev_b32 v47, 9, v44")
a("v_lshl_add_u32 v47, v46, 5, v47")
a("v_lshl_add_u32 v47, v45, 4, v47")
st["gate"] = len(S)

a("s_waitcnt vmcnt(%d)" % (n_first + (1 if A.codepf else 0)))
if A.stamp and A.st8 == "x":
    a("s_memrealtime s[90:91]\ns_waitcnt lgkmcnt(0)\ns_mov_b32 s100, s90")
for k in range(5):
    a("v_lshlrev_b32 v%d, 16, v%d" % (24 + 2 * k, 16 + k))
    a("v_and_b32 v%d, 0xffff0000, v%d" % (25 + 2 * k, 16 + k))
ln_stats(["v%d" % (24 + k) for k in range(10)], ["v34", "v35", "v37"], "v38", "v39")
for r in (22, 23):
    a("v_lshlrev_b32 v%d, 16, v%d" % (r, r))
    a("v_sub_f32 v%d, v%d, v38" % (r, r))
    a("v_cvt_pk_bf16_f32 v%d, v%d, v%d" % (r, r, r))
    a("v_lshlrev_b32 v%d, 16, v%d" % (r, r))
    a("v_mul_f32 v%d, v%d, v39" % (r, r))
    a("v_cvt_pk_bf16_f32 v%d, v%d, v%d" % (r, r, r))
for t in range(20):
    ab = 24 + 4 * (t & 1)
    selector(ab, "v22" if t < 16 else "v23", t & 15)
    e = ("q", t)
    ready(e)
    if A.stamp and A.st8 == "q%d" % t:
        a("s_memrealtime s[90:91]\ns_waitcnt lgkmcnt(0)\ns_mov_b32 s100, s90")
    a("v_mfma_f32_16x16x32_bf16 v[40:43], %s, %s, %s" % (t4(ab), t4(reg_of(e)), "0" if t == 0 else "v[40:43]"))
    done(e)
a("s_mov_b32 exec_hi, 0")
a("ds_write_b128 v47, v[40:43] offset:%d" % L_PART)
a("s_mov_b64 exec, -1")
a("v_lshlrev_b32 v25, 3, v1")
a("s_waitcnt lgkmcnt(0)")
a("s_barrier")
a("s_cmp_ge_u32 s2, 8")
a("s_cbranch_scc1 L_nosig")
a("s_cmp_lg_u32 s26, 0")
a("s_cbranch_scc1 L_nosig")
a("v_mov_b32 v26, 0\nv_mov_b32 v27, 1")
a("s_mov_b64 exec, 1")
a("buffer_atomic_add v27, v26, s[64:67], 0 offen sc1")
a("s_mov_b64 exec, -1")
a("L_nosig:")
if A.diags >= 0:
    a("s_cmp_lg_u32 s2, 1\ns_cbranch_scc1 L_nods\ns_cmp_lg_u32 s26, 0\ns_cbranch_scc1 L_nods")
    a("v_mov_b32 v26, 0\nv_mov_b32 v27, s92\ns_mov_b64 exec, 1")
    a("buffer_store_dword v27, v26, s[64:67], 0 offen offset:192 sc0 sc1\ns_mov_b64 exec, -1")
    a("L_nods:")
if A.thr:
    a("s_cmp_lg_u32 s26, 0\ns_cbranch_scc1 L_norank")
    a("v_mov_b32 v26, 0\nv_mov_b32 v5, 1\ns_mov_b64 exec, 1")
    a("buffer_atomic_add v5, v26, s[64:67], 0 offen offset:128 sc0 sc1\ns_mov_b64 exec, -1")
    a("L_norank:")
    RANK_POS = st["issued"]
if A.diagnum:
    a("s_cmp_lg_u32 s26, 0\ns_cbranch_scc1 L_nodiag")
    a("s_getreg_b32 s84, hwreg(HW_REG_XCC_ID)\ns_sub_u32 s84, s84, s2\ns_and_b32 s84, s84, 7\ns_lshl_b32 s84, 1, s84")
    a("v_mov_b32 v26, 0\nv_mov_b32 v27, s84\ns_mov_b64 exec, 1")
    a("buffer_atomic_or v27, v26, s[64:67], 0 offen offset:32 sc1\ns_mov_b64 exec, -1")
    a("L_nodiag:")
for w in range(8):
    a("ds_read_b64 v[%d:%d], v25 offset:%d" % (28 + 2 * w, 29 + 2 * w, L_PART + 512 * w))
a("s_waitcnt lgkmcnt(0)")
for w in range(1, 8):
    a("v_add_f32 v28, v28, v%d" % (28 + 2 * w))
    a("v_add_f32 v29, v29, v%d" % (29 + 2 * w))
a("v_cvt_pk_bf16_f32 v28, v28, v29")
a("v_lshlrev_b32 v25, 2, v0")
a("ds_write_b32 v25, v28 offset:%d" % L_QD)
a("v_lshlrev_b32 v25, 8, v44")
a("v_lshl_add_u32 v25, v46, 4, v25")
a("s_waitcnt lgkmcnt(0)")
a("ds_read_b128 v[10:13], v25 offset:%d" % L_QD)
a("s_waitcnt lgkmcnt(0)")
stamp()

for _ in range(A.pad): a("s_nop 0")
def reduce_scatter(dst):
    for n in range(8):
        a("v_add_f32_dpp v%d, v%d, v%d row_mirror row_mask:0xf bank_mask:0x3" % (16 + n, 16 + n, 16 + n))
    for n in range(8):
        a("v_add_f32_dpp v%d, v%d, v%d row_mirror row_mask:0xf bank_mask:0xc" % (16 + n, 24 + n, 24 + n))
    for n in range(4):
        a("v_add_f32_dpp v%d, v%d, v%d row_half_mirror row_mask:0xf bank_mask:0x5" % (16 + n, 16 + n, 16 + n))
    for n in range(4):
        a("v_add_f32_dpp v%d, v%d, v%d row_half_mirror row_mask:0xf bank_mask:0xa" % (16 + n, 20 + n, 20 + n))
    for n in range(4):
        a("v_add_f32_dpp v%d, v%d, v%d quad_perm:[3,2,1,0] row_mask:0xf bank_mask:0xf" % (16 + n, 16 + n, 16 + n))
    a("v_cndmask_b32 v16, v16, v18, s[80:81]")
    a("v_cndmask_b32 v17, v17, v19, s[80:81]")
    a("v_add_f32_dpp v16, v16, v16 quad_perm:[1,0,3,2] row_mask:0xf bank_mask:0xf")
    a("v_add_f32_dpp v17, v17, v17 quad_perm:[1,0,3,2] row_mask:0xf bank_mask:0xf")
    a("v_cndmask_b32 %s, v16, v17, s[82:83]" % dst)

for n in range(32):
    e = ("k", n)
    ready(e)
    acc = 16 + (n & 15)
    for r in range(4):
        a("v_dot2_f32_bf16 v%d, v%d, v%d, %s" % (acc, reg_of(e) + r, 10 + r, "0" if r == 0 else "v%d" % acc))
    done(e)
    if n == 15: reduce_scatter("v14")
    if n == 31: reduce_scatter("v15")
stamp()

a("v_cvt_pk_bf16_f32 v16, v14, v15")
a("v_lshlrev_b32 v14, 16, v16")
a("v_and_b32 v15, 0xffff0000, v16")
a("v_mul_f32 v14, 0x3db504f3, v14")
a("v_mul_f32 v15, 0x3db504f3, v15")
a("v_cvt_pk_bf16_f32 v16, v14, v15")
a("v_lshlrev_b32 v14, 16, v16")
a("v_and_b32 v15, 0xffff0000, v16")
a("v_max_f32 v16, v14, v15")
wave_reduce("v16", "v_max_f32", "s84")
a("v_subrev_f32 v16, s84, v14")
a("v_subrev_f32 v17, s84, v15")
a("v_mul_f32 v16, 0x3fb8aa3b, v16")
a("v_mul_f32 v17, 0x3fb8aa3b, v17")
a("v_exp_f32 v16, v16")
a("v_exp_f32 v17, v17")
a("v_add_f32 v16, v16, v17")
wave_reduce("v16", "v_add_f32", "s85")
a("v_mov_b32 v16, s84")
a("v_mov_b32 v17, s85")
a("v_lshlrev_b32 v18, 3, v44")
a("s_mov_b64 exec, 1")
a("ds_write_b64 v18, v[16:17] offset:%d" % L_ST)
if A.thr:
    a("s_cmp_lg_u32 s26, 0\ns_cbranch_scc1 L_norank2")
    a("s_waitcnt vmcnt(%d)" % min(63, st["issued"] - RANK_POS))
    a("ds_write_b32 v18, v5 offset:%d" % (L_TK + 4))
    a("L_norank2:")
a("s_mov_b64 exec, -1")
a("v_and_b32 v18, 7, v0")
a("v_lshlrev_b32 v18, 3, v18")
a("s_waitcnt lgkmcnt(0)")
a("s_barrier")
a("ds_read_b64 v[16:17], v18 offset:%d" % L_ST)
if A.thr:
    a("v_mov_b32 v19, 0")
    a("ds_read_b32 v19, v19 offset:%d" % (L_TK + 4))
a("s_waitcnt lgkmcnt(0)")
if A.thr:
    a("v_readfirstlane_b32 s10, v19")
    a("s_min_u32 s10, s10, %d" % A.thr0)
    a("s_sub_u32 s10, %d, s10\ns_mul_i32 s10, s10, %d\ns_lshr_b32 s10, s10, 16" % (A.thr0, (A.thr << 16) // A.thr0))
a("v_mov_b32 v18, v16")
for m in ("quad_perm:[1,0,3,2]", "quad_perm:[2,3,0,1]", "row_half_mirror"):
    a("v_max_f32_dpp v18, v18, v18 %s row_mask:0xf bank_mask:0xf" % m)
a("v_sub_f32 v16, v16, v18")
a("v_mul_f32 v16, 0x3fb8aa3b, v16")
a("v_exp_f32 v16, v16")
a("v_mul_f32 v16, v16, v17")
for m in ("quad_perm:[1,0,3,2]", "quad_perm:[2,3,0,1]", "row_half_mirror"):
    a("v_add_f32_dpp v16, v16, v16 %s row_mask:0xf bank_mask:0xf" % m)
a("v_rcp_f32 v16, v16")
a("v_sub_f32 v14, v14, v18")
a("v_sub_f32 v15, v15, v18")
a("v_mul_f32 v14, 0x3fb8aa3b, v14")
a("v_mul_f32 v15, 0x3fb8aa3b, v15")
a("v_exp_f32 v14, v14")
a("v_exp_f32 v15, v15")
a("v_mul_f32 v14, v14, v16")
a("v_mul_f32 v15, v15, v16")
a("v_cvt_pk_bf16_f32 v14, v14, v14")
a("v_cvt_pk_bf16_f32 v15, v15, v15")
stamp()

def pv(n):
    ab = 32 + 4 * (n & 1)
    selector(ab, "v14" if n < 16 else "v15", n & 15)
    e = ("v", n)
    if A.sthr and A.sthr[0] <= n < A.sthr[1]:
        a("s_cmp_eq_u32 s10, 1\ns_cbranch_scc1 L_nt%d\ns_waitcnt vmcnt(%d)\nL_nt%d:" % (n, A.thrT, n))
    if A.thr and n < A.thr:
        a("s_cmp_le_u32 s10, %d\ns_cbranch_scc1 L_nt%d\ns_waitcnt vmcnt(%d)\nL_nt%d:" % (n, n, A.thrT, n))
    ready(e)
    a("v_mfma_f32_16x16x32_bf16 v[40:43], %s, %s, %s" % (t4(ab), t4(reg_of(e)), "0" if n == 0 else "v[40:43]"))
    done(e)

def dma(n, vregs, step):
    for t in range(n):
        a("s_mov_b32 m0, s3")
        a("buffer_load_dwordx4 %s, s[52:55], s13 offen %s lds" % (vregs[t % len(vregs)], A.dmod))
        if t < n - 1:
            a("s_add_u32 s3, s3, 1024")
            a("s_add_u32 s13, s13, %d" % step)

a("v_lshrrev_b32 v16, 2, v46")
a("v_lshlrev_b32 v16, 10, v16")
if A.rot >= 2:
    a("v_add_u32 v17, s76, v44")
    a("v_and_b32 v17, 7, v17")
    a("v_lshl_add_u32 v16, v17, 6, v16")
else:
    a("v_lshl_add_u32 v16, v44, 6, v16")
a("v_lshl_add_u32 v16, v45, 4, v16")
a("v_and_b32 v17, 3, v0")
a("v_lshl_add_u32 v16, v17, 2, v16")
a("v_mul_u32_u24 v18, 2560, v44")
a("v_lshl_add_u32 v18, v46, 5, v18")
a("v_lshl_add_u32 v18, v45, 4, v18")
a("v_bfe_u32 v19, v0, 2, 6")
a("v_mul_u32_u24 v19, 5, v19")
a("v_lshrrev_b32 v20, 8, v0")
a("v_mul_u32_u24 v20, 3, v20")
a("v_add3_u32 v19, v19, v20, v17")
a("v_lshlrev_b32 v19, 3, v19")
a("v_lshlrev_b32 v20, 2, v0")
a("v_mov_b32 v21, 0\nv_mov_b32 v22, 1")
a("s_and_b32 s77, s2, 7\ns_lshl_b32 s75, s77, 7\ns_add_u32 s75, s75, 65536")
a("s_mov_b32 s86, 0x88888888\ns_mov_b32 s87, 0x88888888")
if A.op2:
    for r in range(4):
        a("v_mov_b32_dpp v%d, v%d row_ror:8 row_mask:0xf bank_mask:0xf" % (27 + r, 6 + r))
    if A.lin:
        a("v_mul_u32_u24 v31, %d, v44" % YSTR)
        a("v_lshl_add_u32 v31, v1, 4, v31")
        a("v_and_b32 v11, 0xe0c, v19")
        a("v_bfe_u32 v10, v19, 4, 1")
        a("v_lshl_add_u32 v11, v10, 8, v11")
        a("v_bfe_u32 v10, v19, 5, 4")
        a("v_lshl_add_u32 v19, v10, 4, v11")
    else:
        a("v_mul_u32_u24 v31, 2560, v44")
        a("v_lshrrev_b32 v11, 1, v45")
        a("v_lshl_add_u32 v31, v11, 9, v31")
        a("v_lshl_add_u32 v31, v46, 5, v31")
        a("v_and_b32 v11, 1, v45")
        a("v_lshl_add_u32 v31, v11, 4, v31")
a("v_mul_u32_u24 v5, 80, v44")
a("v_lshrrev_b32 v11, 3, v1")
a("v_add_u32 v5, v5, v11")
a("v_mul_u32_u24 v5, 3456, v5")
a("v_and_b32 v11, 2, v11")
a("v_and_b32 v10, 7, v0")
a("v_xor_b32 v11, v10, v11")
a("v_lshl_add_u32 v25, v11, 4, v5")
a("v_xor_b32 v11, 4, v11")
a("v_lshl_add_u32 v26, v11, 4, v5")
a("s_mul_i32 s3, s26, 10240")
a("s_add_u32 s3, s3, %d" % L_W)
if A.pf:
    a("s_lshr_b32 s84, s2, 3")
    a("s_cmp_ge_u32 s26, 4")
    a("s_cselect_b32 s52, s18, s16\ns_cselect_b32 s53, s19, s17")
    a("s_mov_b32 s54, 2211840\ns_mov_b32 s55, 0x20000")
    a("v_mov_b32 v12, 0x7fffff00")
    a("s_cbranch_scc1 L_pf2")
    a("s_and_b32 s85, s84, 7\ns_mul_i32 s85, s85, 80")
    a("v_lshrrev_b32 v23, 1, v0")
    a("v_add_u32 v23, s85, v23")
    a("v_mul_u32_u24 v23, 3456, v23")
    a("v_and_b32 v13, 1, v0")
    a("v_lshl_add_u32 v23, v13, 6, v23")
    a("s_and_b32 s85, s84, 0x18\ns_add_u32 s85, s85, s77")
    a("s_cmp_lt_u32 s85, 27")
    a("s_cselect_b32 s84, 160, 0")
    a("s_lshl_b32 s85, s85, 7")
    a("v_add_u32 v23, s85, v23")
    a("v_cmp_gt_u32 vcc, s84, v0")
    a("v_cndmask_b32 v23, v12, v23, vcc")
    a("s_branch L_pfdone")
    a("L_pf2:")
    a("s_mul_i32 s84, s84, 54")
    a("v_bfe_u32 v23, v0, 2, 6")
    a("v_add_u32 v23, s84, v23")
    a("v_mul_u32_u24 v23, 1280, v23")
    a("v_lshl_add_u32 v23, v17, 6, v23")
    a("s_mul_i32 s85, s77, 160\ns_and_b32 s85, s85, 0xff80")
    a("v_add_u32 v23, s85, v23")
    a("v_cmp_gt_u32 vcc, %d, v0" % (256 + 216))
    a("v_cndmask_b32 v23, v12, v23, vcc")
    a("L_pfdone:")

if A.codepf2:
    a("s_getpc_b64 s[84:85]")
    a("L_pc2:")
    a("v_lshlrev_b32 v12, 4, v0")
    a("v_add_u32 v12, 1792, v12")
    a("v_min_u32 v12, L_end-L_pc2, v12")
    a("global_load_dword v13, v12, s[84:85]")
if A.sthr:
    a("s_bfe_u32 s10, s36, 0x20008")
if A.LV: A.L = A.LV
if A.tk2:
    st["gate"] = POS[("t", 0)]
    a("s_cmp_eq_u32 s26, %d\ns_cselect_b32 s11, s75, 0x7ffff000" % A.tkwave)
for n in range(32):
    pv(n)
    if A.pf >= 10 and n == A.pf - 10:
        a("buffer_load_dword v24, v23, s[52:55], 0 offen %s" % A.pfmod)
    if n == A.tkpos - 4: a("s_load_dword s89, s[22:23], 0")
    if n == A.tkpos:
        a("s_waitcnt lgkmcnt(0)")
        a("s_cmp_ge_u32 s89, 8")
        a("s_cbranch_scc0 L_initslow")
        a("L_initok:")
        if A.tk2:
            st["gate"] = len(S)
            continue
        if A.static:
            a("s_lshr_b32 s79, s2, 3\ns_xor_b32 s79, s79, 16")
            continue
        a("s_cmp_lg_u32 s26, %d" % A.tkwave)
        a("s_cbranch_scc1 L_notk")
        a("s_mov_b64 exec, 1")
        if A.static:
            a("s_lshr_b32 s84, s2, 3\ns_xor_b32 s84, s84, 16\nv_mov_b32 v22, s84")
        else:
            a("buffer_atomic_add v22, v21, s[48:51], s75 offen sc0 sc1")
        a("s_mov_b64 exec, -1")
        a("L_notk:")
assert st["issued"] == len(S)
stamp()
fine()
if A.pf == 2:
    a("buffer_load_dword v24, v23, s[52:55], 0 offen %s" % A.pfmod)
if A.pf == 5:
    a("s_cmp_ge_u32 s26, 4\ns_cbranch_scc1 L_pf5a")
    a("buffer_load_dword v24, v23, s[52:55], 0 offen %s" % A.pfmod)
    a("L_pf5a:")
a("s_mov_b32 exec_hi, 0")
a("ds_write_b128 v47, v[40:43] offset:%d" % L_PART)
if not (A.tk2 or A.static):
    a("s_cmp_lg_u32 s26, %d" % A.tkwave)
    a("s_cbranch_scc1 L_notk2")
    a("s_waitcnt vmcnt(0)")
    a("s_mov_b64 exec, 1")
    a("ds_write_b32 v21, v22 offset:%d" % L_TK)
    a("L_notk2:")
a("s_mov_b64 exec, -1")
a("s_waitcnt lgkmcnt(0)")
a("s_barrier")
fine()
a("ds_read2st64_b32 v[10:11], v16 offset0:%d offset1:%d" % (L_PART // 256, L_PART // 256 + 2))
if A.pf == 1:
    a("buffer_load_dword v24, v23, s[52:55], 0 offen %s" % A.pfmod)
if not (A.tk2 or A.static): a("ds_read_b32 v12, v21 offset:%d" % L_TK)
a("s_waitcnt lgkmcnt(0)")
a("v_add_f32 v10, v10, v11")
if not (A.tk2 or A.static): a("v_readfirstlane_b32 s79, v12")
if A.edma:
    a("s_lshl_b32 s84, s79, 3\ns_add_u32 s84, s84, s77\ns_sub_u32 s84, s84, %d" % FFN2_N)
    a("s_min_u32 s85, s79, 9\ns_cmp_lt_u32 s85, 9\ns_cselect_b32 s84, s84, 99")
    a("s_cmp_ge_u32 s84, %d" % FFN1_N)
    a("s_cbranch_scc1 L_noedma")
    a("s_mov_b32 s52, s16\ns_mov_b32 s53, s17\ns_mov_b32 s54, 2211840\ns_mov_b32 s55, 0x20000")
    a("s_lshl_b32 s13, s84, 7")
    dma(10, ["v25", "v26"], 27648)
    a("L_noedma:")
a("v_add_f32_dpp v10, v10, v10 row_ror:4 row_mask:0xf bank_mask:0xf")
a("v_add_f32_dpp v10, v10, v10 row_ror:8 row_mask:0xf bank_mask:0xf")
a("v_cvt_pk_bf16_f32 v10, v10, v10")
fine()
YA = 128
if A.op3:
    def wr3(cb):
        a("s_mov_b32 exec_hi, 0")
        a("ds_write_b128 v18, %s offset:%d" % (t4(YA + 4 * cb), L_YP + 512 * cb))
        a("s_mov_b32 exec_hi, -1")
    selector(48, "v10", 0)
    selector(52, "v10", 1)
    for cb in range(5):
        for r4 in range(4):
            acc = t4(YA + 4 * cb)
            a("v_mfma_f32_16x16x32_bf16 %s, %s, %s, %s" % (acc, t4(48 + 4 * r4), t4(WO + 4 * (5 * r4 + cb)), "0" if r4 == 0 else acc))
            if cb == 0 and r4 < 2: selector(56 + 4 * r4, "v10", r4 + 2)
        if cb >= 2: wr3(cb - 2)
    wr3(3); wr3(4)
elif A.op2:
    def sel2(r4, hi):
        for r in range(4):
            a("v_and_b32_dpp v%d, v10, v%d row_newbcast:%d row_mask:0xf bank_mask:0xf" % (48 + 8 * r4 + 4 * hi + r, (27 if hi else 6) + r, r4))
    def mm(acc, r4, hi, cb, first):
        a("v_mfma_f32_16x16x32_bf16 %s, %s, %s, %s" % (t4(acc), t4(48 + 8 * r4 + 4 * hi), t4(WO + 4 * (5 * r4 + cb)), "0" if first else t4(acc)))
    if A.op4:
        def and1(r4, hi, r):
            a("v_and_b32_dpp v%d, v10, v%d row_newbcast:%d row_mask:0xf bank_mask:0xf" % (48 + 8 * r4 + 4 * hi + r, (27 if hi else 6) + r, r4))
        if A.op4 == 2: a("s_setprio 1")
        sel2(0, 0); sel2(0, 1)
        for r4 in range(4):
            nxt = [(r4 + 1, hi, r) for hi in range(2) for r in range(4)] if r4 < 3 else []
            for k, (acc, hi, cb) in enumerate([(YA, 0, 0), (YA + 4, 0, 2), (YA + 8, 0, 4), (YA, 1, 1), (YA + 4, 1, 3)]):
                mm(acc, r4, hi, cb, r4 == 0 and hi == 0)
                for x in nxt[2 * k:2 * k + 2]: and1(*x)
        if A.op4 == 2: a("s_setprio 0")
        a("s_mov_b32 exec_hi, 0")
        a("ds_write_b128 v31, %s offset:%d" % (t4(YA + 8), L_YP + 2048))
        a("s_mov_b64 exec, -1")
        a("ds_write_b128 v31, %s offset:%d" % (t4(YA), L_YP))
        a("ds_write_b128 v31, %s offset:%d" % (t4(YA + 4), L_YP + 1024))
    else:
        sel2(0, 0); sel2(0, 1)
        for r4 in range(4):
            mm(YA, r4, 0, 0, r4 == 0)
            if r4 < 3: sel2(r4 + 1, 0)
            mm(YA, r4, 1, 1, False)
            if r4 < 3: sel2(r4 + 1, 1)
        for r4 in range(4):
            mm(YA + 4, r4, 0, 2, r4 == 0)
            mm(YA + 4, r4, 1, 3, False)
        a("ds_write_b128 v31, %s offset:%d" % (t4(YA), L_YP))
        for r4 in range(4):
            mm(YA + 8, r4, 0, 4, r4 == 0)
        a("ds_write_b128 v31, %s offset:%d" % (t4(YA + 4), L_YP + 1024))
    if not A.op4:
        a("s_mov_b32 exec_hi, 0")
        a("ds_write_b128 v31, %s offset:%d" % (t4(YA + 8), L_YP + 2048))
        a("s_mov_b64 exec, -1")
else:
    for r4 in range(4):
        ab = 32 + 4 * (r4 & 1)
        selector(ab, "v10", r4)
        for cb in range(5):
            acc = t4(YA + 4 * cb)
            a("v_mfma_f32_16x16x32_bf16 %s, %s, %s, %s" % (acc, t4(ab), t4(WO + 4 * (5 * r4 + cb)), "0" if r4 == 0 else acc))
    a("s_mov_b32 exec_hi, 0")
    for cb in range(5):
        a("ds_write_b128 v18, %s offset:%d" % (t4(YA + 4 * cb), L_YP + 512 * cb))
    a("s_mov_b64 exec, -1")
if A.pf == 3:
    a("buffer_load_dword v24, v23, s[52:55], 0 offen %s" % A.pfmod)
if A.pf == 5:
    a("s_cmp_lt_u32 s26, 4\ns_cbranch_scc1 L_pf5b")
    a("buffer_load_dword v24, v23, s[52:55], 0 offen %s" % A.pfmod)
    a("L_pf5b:")
fine()
a("s_lshl_b32 s84, s76, 12")
a("s_waitcnt lgkmcnt(0)")
fine()
if A.fine: a("s_waitcnt lgkmcnt(0)")
a("s_barrier")
fine()
if A.fine: a("s_waitcnt lgkmcnt(0)")
YS = 148
for w in range(8):
    a("ds_read_b64 v[%d:%d], v19 offset:%d" % (YS + 2 * w, YS + 2 * w + 1, L_YP + YSTR * w))
for s_ in (4, 2, 1):
    for w in range(s_):
        if s_ == 4: a("s_waitcnt lgkmcnt(%d)" % (3 - w))
        a("v_pk_add_f32 v[%d:%d], v[%d:%d], v[%d:%d]" % (YS + 2 * w, YS + 2 * w + 1, YS + 2 * w, YS + 2 * w + 1, YS + 2 * (w + s_), YS + 2 * (w + s_) + 1))
a("v_cndmask_b32 v10, v%d, 1.0, s[86:87]" % YS)
a("v_cndmask_b32 v11, v%d, 1.0, s[86:87]" % (YS + 1))
a("buffer_atomic_add_f32 v10, v20, s[48:51], s84 offen")
a("buffer_atomic_add_f32 v11, v20, s[48:51], s84 offen offset:2048")
if A.pf == 4:
    a("buffer_load_dword v24, v23, s[52:55], 0 offen %s" % A.pfmod)
fine()
stamp()
if A.fine:
    for k, sl in enumerate((93, 94, 95, 98, 99, 100)):
        a("s_sub_u32 s%d, s%d, s%d" % (sl, FINE[k + 1], FINE[k]))
    a("s_mov_b32 s27, 99\ns_branch L_fin")
a("s_mov_b32 s27, 99")
if A.tk2:
    a("s_waitcnt vmcnt(%d)" % (3 if A.pf in (1, 2, 3, 4, 5) else 2))
    a("s_cmp_lg_u32 s26, %d" % A.tkwave)
    a("s_cbranch_scc1 L_notk2")
    a("s_mov_b64 exec, 1")
    a("ds_write_b32 v21, v22 offset:%d" % L_TK)
    a("s_mov_b64 exec, -1")
    a("s_waitcnt lgkmcnt(0)")
    a("L_notk2:")
    a("s_barrier")
    a("ds_read_b32 v12, v21 offset:%d" % L_TK)
    a("s_waitcnt lgkmcnt(0)")
    a("v_readfirstlane_b32 s79, v12")
    a("s_cmp_ge_u32 s79, 9")
    a("s_cbranch_scc1 L_fin")
else:
    a("s_cmp_ge_u32 s79, 9")
    a("s_cbranch_scc1 L_fin")
    a("s_barrier")
a("s_mov_b32 s54, 2211840\ns_mov_b32 s55, 0x20000")
a("s_mov_b32 s85, 0x42000000")
a("s_mov_b32 s88, 0")
a("v_and_b32 v10, 7, v0")
if A.f1first:
    a("s_add_u32 s84, s79, 5\ns_sub_u32 s79, s79, 4\ns_cselect_b32 s79, s84, s79")
a("s_mul_i32 s27, s77, 5\ns_add_u32 s27, s27, s79")
a("s_cmp_lt_u32 s79, 5")
a("s_cbranch_scc1 L_ffn2")
a("s_lshl_b32 s27, s79, 3\ns_add_u32 s27, s27, s77")
a("s_cmp_ge_u32 s27, %d" % (FFN2_N + FFN1_N))
a("s_cbranch_scc1 L_fin")

AF = 48; BF = 128; XF = 208; GR = 220
a("s_sub_u32 s79, s27, %d" % FFN2_N)
a("s_mov_b32 s52, s16\ns_mov_b32 s53, s17")
a("s_lshl_b32 s13, s79, 7")
if not A.edma:
    dma(10, ["v25", "v26"], 27648)
a("v_mul_u32_u24 v23, 20, v1")
a("v_mul_u32_u24 v21, 1280, v44")
a("v_add_u32 v21, v21, v23")
XR = 248
a("buffer_load_dwordx4 v[%d:%d], v21, s[44:47], 0 offen" % (XR, XR + 3))
a("buffer_load_dword v%d, v21, s[44:47], 0 offen offset:16" % (XR + 4))
a("v_lshlrev_b32 v22, 12, v44")
a("v_lshl_add_u32 v22, v1, 4, v22")
def poll1_issue():
    for m in range(4):
        a("buffer_load_dwordx4 %s, v22, s[48:51], 0 offen offset:%d %s" % (t4(GR + 4 * m), 1024 * m, A.pmod))
if not A.nopre: poll1_issue()
a("v_mul_u32_u24 v11, %d, v44" % HN_STRIDE)
a("v_add_u32 v23, v23, v11")
a("v_add_u32 v35, %d, v23" % L_HN)
a("v_mul_u32_u24 v29, %d, v10" % HN_STRIDE)
a("v_lshl_add_u32 v29, v45, 4, v29")
a("v_lshlrev_b32 v30, 4, v10")
if A.pair2:
    a("v_and_b32 v11, 1, v44")
    a("v_lshl_add_u32 v30, v11, 9, v30")
    a("v_bfe_u32 v11, v44, 1, 1")
    a("v_lshl_add_u32 v30, v11, 7, v30")
    a("v_lshrrev_b32 v11, 1, v45")
    a("v_lshl_add_u32 v30, v11, 8, v30")
else:
    a("v_lshl_add_u32 v30, v44, 8, v30")
    a("v_lshrrev_b32 v11, 1, v45")
    a("v_lshl_add_u32 v30, v11, 7, v30")
a("v_and_b32 v11, 1, v45")
a("v_lshl_add_u32 v30, v11, 3, v30")
a("v_lshrrev_b32 v12, 2, v46")
a("v_lshl_add_u32 v12, v45, 3, v12")
a("v_lshlrev_b32 v12, 7, v12")
a("v_lshrrev_b32 v13, 3, v46")
a("v_lshl_add_u32 v13, v11, 1, v13")
a("v_and_b32 v11, 3, v44")
a("v_xor_b32 v11, v11, v13")
a("v_lshl_add_u32 v12, v11, 5, v12")
a("v_lshl_add_u32 v12, v17, 3, v12")
a("v_add_u32 v12, %d, v12" % L_W)
a("v_add_u32 v13, 40960, v12")
if A.warm1:
    a("s_mov_b32 s78, 0")
    a("s_branch L_f1_body")
    a("L_f1_resume:")
a("s_waitcnt vmcnt(%d)" % ((0 if A.nopre else 4) + (4 if A.edma else 0)))
if A.stamp and A.st8 == "dma":
    a("s_memrealtime s[90:91]\ns_waitcnt lgkmcnt(0)\ns_mov_b32 s100, s90")
a("s_barrier")
a("s_cmp_ge_u32 s26, 4")
a("s_cbranch_scc1 L_notr")
for ks in range(20):
    base, off = ("v12", ks * 4096) if ks < 10 else ("v13", (ks - 10) * 4096)
    a("ds_read_b64_tr_b16 v[%d:%d], %s offset:%d" % (AF + 4 * ks, AF + 4 * ks + 1, base, off))
    a("ds_read_b64_tr_b16 v[%d:%d], %s offset:%d" % (AF + 4 * ks + 2, AF + 4 * ks + 3, base, off + 512))
a("L_notr:")
if A.nopre and not A.light: poll1_issue()
if A.light: a("v_mov_b32 v%d, 0" % (GR + 3))
if A.edma: a("s_waitcnt vmcnt(4)")
for k in range(5):
    a("v_lshlrev_b32 v%d, 16, v%d" % (XF + 2 * k, XR + k))
    a("v_and_b32 v%d, 0xffff0000, v%d" % (XF + 2 * k + 1, XR + k))
if A.light:
    import struct as _st
    a("s_mov_b32 s84, 0x%08x" % _st.unpack("<I", _st.pack("<f", float(A.light)))[0])
    a("s_waitcnt vmcnt(0)")
    a("s_mov_b32 s78, 1")
    a("s_lshl_b32 s10, s79, 7")
    a("s_mov_b64 exec, 1")
    a("L_light:")
    a("v_cmp_gt_f32 vcc, s84, v%d" % (GR + 3))
    a("s_add_u32 s88, s88, 1")
    a("s_cmp_gt_u32 s88, %d" % SPIN_MAX)
    a("s_cbranch_scc1 L_light_done")
    a("s_cbranch_vccz L_light_done")
    if A.sleep: a("s_sleep %d" % A.sleep)
    a("buffer_load_dword v%d, v22, s[48:51], %s offen offset:12 %s" % (GR + 3, "s10" if A.spread else "0", A.pmod))
    a("s_waitcnt vmcnt(0)")
    a("s_branch L_light")
    a("L_light_done:")
    a("s_mov_b64 exec, -1")
elif A.warm:
    a("s_mov_b32 s78, 0")
    a("s_waitcnt vmcnt(0)")
    a("s_branch L_f1_body")
else:
    a("s_mov_b32 s78, 1")
    a("s_branch L_poll1_chk")
if A.D1:
    sets = [GR] + [BF + 16 * k for k in range(A.D1 - 1)]
    def p1(g):
        for m in range(4):
            a("buffer_load_dwordx4 %s, v22, s[48:51], 0 offen offset:%d %s" % (t4(g + 4 * m), 1024 * m, A.pmod))
    a("L_poll1_chk:")
    for g in sets[1:]:
        if A.pace: a("s_sleep %d" % A.pace)
        p1(g)
    a("L_poll1:")
    for k, g in enumerate(sets):
        a("s_waitcnt vmcnt(%d)" % (4 * (A.D1 - 1)))
        a("v_min_f32 v31, v%d, v%d" % (g + 3, g + 7))
        a("v_min3_f32 v31, v31, v%d, v%d" % (g + 11, g + 15))
        a("v_cmp_ne_u32 vcc, s85, v31")
        a("s_cbranch_vccz L_p1x%d" % k)
        if A.pace: a("s_sleep %d" % A.pace)
        p1(g)
    a("s_add_u32 s88, s88, 1")
    a("s_cmp_gt_u32 s88, %d" % SPIN_MAX)
    a("s_cbranch_scc0 L_poll1")
    for k, g in reversed(list(enumerate(sets))):
        a("L_p1x%d:" % k)
        for q, (x, y) in enumerate([(0, 8), (1, 9), (2, 10), (4, 12), (5, 13)]):
            a("v_cvt_pk_bf16_f32 v%d, v%d, v%d" % (24 + q, g + x, g + y))
        if k: a("s_branch L_p1done")
    a("L_p1done:")
    stamp()
    XH = 238
    GR = 10
else:
    a("L_poll1:")
    if A.sl1: a("s_sleep %d" % A.sl1)
    poll1_issue()
    a("L_poll1_chk:")
    a("s_add_u32 s88, s88, 1")
    a("s_waitcnt vmcnt(0)")
    a("v_min_f32 v31, v%d, v%d" % (GR + 3, GR + 7))
    a("v_min3_f32 v31, v31, v%d, v%d" % (GR + 11, GR + 15))
    a("v_cmp_ne_u32 vcc, s85, v31")
    a("s_cmp_gt_u32 s88, %d" % SPIN_MAX)
    a("s_cbranch_scc1 L_poll1_done")
    a("s_cbranch_vccnz %s" % ("L_adapt" if A.adapt else "L_poll1"))
    a("L_poll1_done:")
    stamp()
    a("L_f1_body:")
    XH = 238
    pairs = [(GR + 0, GR + 8), (GR + 1, GR + 9), (GR + 2, GR + 10), (GR + 4, GR + 12), (GR + 5, GR + 13)]
    for k in range(5):
        a("v_cvt_pk_bf16_f32 v%d, v%d, v%d" % (24 + k, pairs[k][0], pairs[k][1]))
if A.ln1:
    def pk(op, d, x, y, extra=""):
        a("%s v[%d:%d], v[%d:%d], v[%d:%d]%s" % (op, d, d + 1, x, x + 1, y, y + 1, extra))
    def unpack(d, src):
        a("v_lshlrev_b32 v%d, 16, v%d" % (d, src)); a("v_and_b32 v%d, 0xffff0000, v%d" % (d + 1, src))
    for k in range(5): unpack(GR + 2 * k, 24 + k)
    for k in range(5): pk("v_pk_add_f32", GR + 2 * k, GR + 2 * k, XF + 2 * k)
    for k in range(5): a("v_cvt_pk_bf16_f32 v%d, v%d, v%d" % (24 + k, GR + 2 * k, GR + 2 * k + 1))
    if A.pivot:
        unpack(XH, 24)
        unpack(XH + 2, 25)
        a("v_readfirstlane_b32 s10, v%d" % XH)
        for k in range(2, 5): unpack(XH + 2 * k, 24 + k)
        a("s_mov_b32 s11, s10")
        for k in range(5):
            a("v_pk_add_f32 v[%d:%d], v[%d:%d], s[10:11] neg_lo:[0,1] neg_hi:[0,1]" % (GR + 2 * k, GR + 2 * k + 1, XH + 2 * k, XH + 2 * k + 1))
        pk("v_pk_add_f32", 36, GR, GR + 2)
        pk("v_pk_mul_f32", 38, GR, GR)
        for k in range(1, 5):
            if k >= 2: pk("v_pk_add_f32", 36, 36, GR + 2 * k)
            a("v_pk_fma_f32 v[38:39], v[%d:%d], v[%d:%d], v[38:39]" % (GR + 2 * k, GR + 2 * k + 1, GR + 2 * k, GR + 2 * k + 1))
        a("v_add_f32 v32, v36, v37")
        a("v_add_f32 v33, v38, v39")
        for m in ("quad_perm:[1,0,3,2] row_mask:0xf", "quad_perm:[2,3,0,1] row_mask:0xf", "row_half_mirror row_mask:0xf",
                  "row_mirror row_mask:0xf", "row_bcast:15 row_mask:0xa", "row_bcast:31 row_mask:0xc"):
            a("v_add_f32_dpp v32, v32, v32 %s bank_mask:0xf" % m)
            a("v_add_f32_dpp v33, v33, v33 %s bank_mask:0xf" % m)
        a("v_mov_b32 v36, 0x3acccccd")
        a("v_readlane_b32 s84, v32, 63")
        a("v_readlane_b32 s12, v33, 63")
        a("v_mul_f32 v37, s84, v36")
        a("v_mul_f32 v32, s12, v36")
        a("v_add_f32 v38, s10, v37")
        a("v_fma_f32 v32, -v37, v37, v32")
    else:
        a("s_mov_b32 s12, 0x3f803f80")
        for k in range(5):
            a("v_dot2_f32_bf16 v32, v%d, s12, %s" % (24 + k, "0" if k == 0 else "v32"))
            a("v_dot2_f32_bf16 v33, v%d, v%d, %s" % (24 + k, 24 + k, "0" if k == 0 else "v33"))
        fill = [("v_lshlrev_b32 v%d, 16, v%d" % (XH + 2 * k, 24 + k), "v_and_b32 v%d, 0xffff0000, v%d" % (XH + 2 * k + 1, 24 + k)) for k in range(5)]
        fill = [x for pr in fill for x in pr]
        a(fill.pop(0)); a(fill.pop(0)); a(fill.pop(0))
        for m in ("quad_perm:[1,0,3,2] row_mask:0xf", "quad_perm:[2,3,0,1] row_mask:0xf", "row_half_mirror row_mask:0xf",
                  "row_mirror row_mask:0xf", "row_bcast:15 row_mask:0xa", "row_bcast:31 row_mask:0xc"):
            a("v_add_f32_dpp v32, v32, v32 %s bank_mask:0xf" % m)
            a("v_add_f32_dpp v33, v33, v33 %s bank_mask:0xf" % m)
            a(fill.pop(0))
        a("v_readlane_b32 s84, v32, 63")
        a("v_readlane_b32 s12, v33, 63")
        a(fill.pop(0))
        a("v_mov_b32 v33, 0x3acccccd")
        a("v_mul_f32 v38, s84, v33")
        a("v_mul_f32 v32, s12, v33")
        a("v_fma_f32 v32, -v38, v38, v32")
    a("v_max_f32 v32, 0, v32")
    a("v_cvt_pk_bf16_f32 v32, v32, v38")
    a("v_and_b32 v38, 0xffff0000, v32")
    a("v_lshlrev_b32 v32, 16, v32")
    a("v_add_f32 v32, 0x3727c5ac, v32")
    a("v_mov_b32 v39, v38")
    a("v_cvt_pk_bf16_f32 v32, v32, v32")
    for k in range(2): pk("v_pk_add_f32", XH + 2 * k, XH + 2 * k, 38, " neg_lo:[0,1] neg_hi:[0,1]")
    a("v_lshlrev_b32 v32, 16, v32")
    a("v_sqrt_f32 v32, v32")
    for k in range(2, 5): pk("v_pk_add_f32", XH + 2 * k, XH + 2 * k, 38, " neg_lo:[0,1] neg_hi:[0,1]")
    a("v_cvt_pk_bf16_f32 v32, v32, v32")
    for k in range(5): a("v_cvt_pk_bf16_f32 v%d, v%d, v%d" % (24 + k, XH + 2 * k, XH + 2 * k + 1))
    a("v_lshlrev_b32 v32, 16, v32")
    a("v_rcp_f32 v36, v32")
    for k in range(5): unpack(XH + 2 * k, 24 + k)
    a("v_mov_b32 v37, v36")
    for k in range(5): pk("v_pk_mul_f32", XH + 2 * k, XH + 2 * k, 36)
    for k in range(5): a("v_cvt_pk_bf16_f32 v%d, v%d, v%d" % (24 + k, XH + 2 * k, XH + 2 * k + 1))
    a("v_add_u32 v23, %d, v23" % L_HN) if False else None
    a("ds_write2_b32 v35, v24, v25 offset0:0 offset1:1")
    a("ds_write2_b32 v35, v26, v27 offset0:2 offset1:3")
    a("ds_write_b32 v35, v28 offset:16")
else:
    for k in range(5):
        a("v_lshlrev_b32 v%d, 16, v%d" % (GR + 2 * k, 24 + k))
        a("v_and_b32 v%d, 0xffff0000, v%d" % (GR + 2 * k + 1, 24 + k))
    for k in range(10):
        a("v_add_f32 v%d, v%d, v%d" % (GR + k, GR + k, XF + k))
    for k in range(5):
        a("v_cvt_pk_bf16_f32 v%d, v%d, v%d" % (24 + k, GR + 2 * k, GR + 2 * k + 1))
    for k in range(5):
        a("v_lshlrev_b32 v%d, 16, v%d" % (XH + 2 * k, 24 + k))
        a("v_and_b32 v%d, 0xffff0000, v%d" % (XH + 2 * k + 1, 24 + k))
    ln_stats(["v%d" % (XH + k) for k in range(10)], ["v31", "v32", "v33"], "v38", "v39")
    for k in range(10):
        a("v_sub_f32 v%d, v%d, v38" % (XH + k, XH + k))
    for k in range(5):
        a("v_cvt_pk_bf16_f32 v%d, v%d, v%d" % (24 + k, XH + 2 * k, XH + 2 * k + 1))
    for k in range(5):
        a("v_lshlrev_b32 v%d, 16, v%d" % (XH + 2 * k, 24 + k))
        a("v_and_b32 v%d, 0xffff0000, v%d" % (XH + 2 * k + 1, 24 + k))
    for k in range(10):
        a("v_mul_f32 v%d, v%d, v39" % (XH + k, XH + k))
    for k in range(5):
        a("v_cvt_pk_bf16_f32 v%d, v%d, v%d" % (24 + k, XH + 2 * k, XH + 2 * k + 1))
        a("ds_write_b32 v23, v%d offset:%d" % (24 + k, L_HN + 4 * k))
a("s_waitcnt lgkmcnt(0)")
a("s_barrier")
if A.stamp and A.st8 == "hn":
    a("s_memrealtime s[90:91]\ns_waitcnt lgkmcnt(0)\ns_mov_b32 s100, s90")
a("s_cmp_ge_u32 s26, 4")
a("s_cbranch_scc1 L_f1_skip")
if A.D1: a("s_waitcnt vmcnt(0)")
GR = 220
PRE = A.f1pre
for ks in range(PRE):
    a("ds_read_b128 %s, v29 offset:%d" % (t4(BF + 4 * ks), L_HN + 64 * ks))
for ks in range(20):
    a("s_waitcnt lgkmcnt(%d)" % min(15, min(19, ks + PRE - 1) - ks))
    a("v_mfma_f32_16x16x32_bf16 v[40:43], %s, %s, %s" % (t4(AF + 4 * ks), t4(BF + 4 * ks), "0" if ks == 0 else "v[40:43]"))
    if ks + PRE < 20:
        a("ds_read_b128 %s, v29 offset:%d" % (t4(BF + 4 * (ks + PRE)), L_HN + 64 * (ks + PRE)))
a("s_lshl_b32 s84, s79, 10")
if not A.st4:
    a("s_mov_b32 exec_lo, 0x00ff00ff\ns_mov_b32 exec_hi, 0x00ff00ff")
for r in range(4):
    a("v_max_f32 v%d, 0, v%d" % (40 + r, 40 + r))
if A.st4:
    a("v_cvt_pk_bf16_f32 v36, v40, v41")
    a("v_cvt_pk_bf16_f32 v38, v40, v41")
    a("v_cvt_pk_bf16_f32 v37, v42, v43")
    a("v_cvt_pk_bf16_f32 v39, v42, v43")
    a("v_permlane16_swap_b32 v36, v38")
    a("v_permlane16_swap_b32 v37, v39")
    a("s_mov_b32 exec_lo, 0xff\ns_mov_b32 exec_hi, 0xff")
else:
    a("v_cvt_pk_bf16_f32 v40, v40, v41")
    a("v_cvt_pk_bf16_f32 v41, v42, v43")
W1 = A.warm or A.warm1
if W1:
    a("s_cmp_eq_u32 s78, 0")
    a("s_cbranch_scc1 L_f1_nost")
if A.st4:
    a("buffer_store_dwordx4 v[36:39], v30, s[60:63], s84 offen %s" % A.pmod)
else:
    a("buffer_store_dwordx2 v[40:41], v30, s[60:63], s84 offen %s" % A.pmod)
a("L_f1_nost:")
a("s_mov_b64 exec, -1")
stamp()
a("L_f1_skip:")
if W1:
    a("s_cmp_eq_u32 s78, 0")
    a("s_cbranch_scc0 L_fin")
if not W1:
    a("s_branch L_fin" if A.stamp else "s_endpgm")
elif A.warm1:
    a("s_branch L_f1_resume")
else:
    a("s_mov_b32 s78, 1")
    a("s_barrier")
    a("s_branch L_poll1")

if A.stamp: stamp_idx[0] = 6
a("L_ffn2:")
a("s_mov_b32 s52, s18\ns_mov_b32 s53, s19")
a("s_lshl_b32 s13, s27, 5")
a("s_mov_b32 s79, s13")
if A.pair2:
    a("v_lshrrev_b32 v5, 1, v1")
    a("v_lshl_add_u32 v5, v44, 6, v5")
else:
    a("v_lshrrev_b32 v5, 1, v0")
a("v_mul_u32_u24 v5, 1280, v5")
a("v_and_b32 v11, 1, v0")
a("v_lshl_add_u32 v5, v11, 4, v5")
NF2 = 8 if A.pair2 else 7
if A.pair2:
    for t in range(8):
        a("s_mov_b32 m0, s3")
        a("buffer_load_dwordx4 v5, s[52:55], s13 offen %s lds" % A.dmod)
        if t < 7:
            a("s_add_u32 s3, s3, 1024")
            a("s_add_u32 s13, s13, %d" % (40960 if t % 2 == 0 else 655360 - 40960))
else:
    dma(7 - A.late2, ["v5"], 327680)
a("v_mul_u32_u24 v21, 1280, v10")
a("v_lshl_add_u32 v21, v45, 3, v21")
a("buffer_load_dwordx2 v[24:25], v21, s[44:47], s79 offen")
a("v_mul_u32_u24 v12, 10240, v44")
a("v_lshl_add_u32 v12, v45, 8, v12")
a("v_lshl_add_u32 v12, v46, 3, v12")
a("v_add_u32 v12, %d, v12" % L_W)
if A.pair2:
    a("v_lshlrev_b32 v22, 4, v0")
else:
    a("v_lshlrev_b32 v22, 9, v44")
    a("v_lshl_add_u32 v22, v45, 7, v22")
    a("v_lshl_add_u32 v22, v10, 4, v22")
a("v_lshlrev_b32 v16, 4, v0")
a("v_lshlrev_b32 v17, 4, v1")
if A.fin2:
    a("v_bfe_u32 v11, v0, 3, 1")
    a("v_mul_u32_u24 v11, %d, v11" % (4096 - 128))
    a("v_add_u32 v17, v17, v11")
a("s_mov_b32 s78, 1")
if A.warm or A.warm2:
    a("s_mov_b32 s78, 0")
    a("s_branch L_f2_body")
    a("L_f2_real:")
    a("s_mov_b32 s78, 1")
a("s_cmp_lg_u32 s26, 0")
a("s_cbranch_scc1 L_ffn2_noh")
a("s_lshl_b32 s84, s27, 4")
a("v_lshlrev_b32 v11, 2, v45")
a("v_add_u32 v11, s84, v11")
for r in range(4):
    a("v_add_u32 v13, %d, v11" % r)
    a("v_mul_u32_u24 v29, 205, v13")
    a("v_lshrrev_b32 v29, 11, v29")
    a("v_mul_u32_u24 v30, 10, v29")
    a("v_sub_u32 v13, v13, v30")
    a("v_and_b32 v30, 1, v13")
    a("v_lshrrev_b32 v13, 1, v13")
    a("v_mul_u32_u24 v31, 11, v13")
    a("v_lshrrev_b32 v31, 5, v31")
    a("v_lshl_add_u32 v30, v30, 1, v31")
    a("v_mul_u32_u24 v31, 3, v31")
    a("v_sub_u32 v%d, v13, v31" % (XF + 4 + r))
    a("v_lshl_add_u32 v29, v30, 6, v29")
    a("v_lshlrev_b32 v29, 4, v29")
    a("v_lshl_add_u32 v%d, v10, 12, v29" % (XF + r))
if A.light or A.light2:
    a("v_lshlrev_b32 v29, 12, v10")
    if A.spread:
        a("s_and_b32 s84, s27, 31\ns_lshl_b32 s84, s84, 7\nv_add_u32 v29, s84, v29")
    a("s_mov_b32 s84, 0x42000000")
    a("s_mov_b64 exec, 0xff")
    a("L_light2:")
    if A.sl2: a("s_sleep %d" % A.sl2)
    a("buffer_load_dword v30, v29, s[48:51], 0 offen offset:12 %s" % A.pmod)
    a("s_add_u32 s88, s88, 1")
    a("s_waitcnt vmcnt(0)")
    a("v_cmp_gt_f32 vcc, s84, v30")
    a("s_cmp_gt_u32 s88, %d" % SPIN_MAX)
    a("s_cbranch_scc1 L_light2_done")
    a("s_cbranch_vccnz L_light2")
    a("L_light2_done:")
    a("s_mov_b64 exec, -1")
a("L_poll2h:")
if A.sleep: a("s_sleep %d" % A.sleep)
for r in range(4):
    a("buffer_load_dwordx4 %s, v%d, s[48:51], 0 offen %s" % (t4(GR + 4 * r), XF + r, A.pmod))
a("s_add_u32 s88, s88, 1")
a("s_waitcnt vmcnt(0)")
a("v_min_f32 v31, v%d, v%d" % (GR + 3, GR + 7))
a("v_min3_f32 v31, v31, v%d, v%d" % (GR + 11, GR + 15))
a("v_cmp_ne_u32 vcc, s85, v31")
a("s_cmp_gt_u32 s88, %d" % SPIN_MAX)
a("s_cbranch_scc1 L_poll2h_done")
a("s_cbranch_vccnz L_poll2h")
a("L_poll2h_done:")
for r in range(4):
    a("v_cmp_eq_u32 vcc, 1, v%d" % (XF + 4 + r))
    a("v_cndmask_b32 v%d, v%d, v%d, vcc" % (GR + 4 * r, GR + 4 * r, GR + 4 * r + 1))
    a("v_cmp_eq_u32 vcc, 2, v%d" % (XF + 4 + r))
    a("v_cndmask_b32 v%d, v%d, v%d, vcc" % (GR + 4 * r, GR + 4 * r, GR + 4 * r + 2))
for k in range(2):
    a("v_cvt_pk_bf16_f32 v31, v%d, v%d" % (GR + 8 * k, GR + 8 * k + 4))
    a("v_lshlrev_b32 v32, 16, v31")
    a("v_and_b32 v33, 0xffff0000, v31")
    a("v_lshlrev_b32 v34, 16, v%d" % (24 + k))
    a("v_and_b32 v35, 0xffff0000, v%d" % (24 + k))
    a("v_add_f32 v32, v32, v34")
    a("v_add_f32 v33, v33, v35")
    a("v_cvt_pk_bf16_f32 v31, v32, v33")
    a("v_lshlrev_b32 v%d, 16, v31" % (XF + 2 * k))
    a("v_and_b32 v%d, 0xffff0000, v31" % (XF + 1 + 2 * k))
a("L_ffn2_noh:")
a("s_waitcnt vmcnt(0)")
def f2_frags(rng=None):
    for t in (rng if rng is not None else range(NF2 - A.late2)):
        a("ds_read_b64_tr_b16 v[%d:%d], v12 offset:%d" % (AF + 4 * t, AF + 4 * t + 1, 1024 * t))
        a("ds_read_b64_tr_b16 v[%d:%d], v12 offset:%d" % (AF + 4 * t + 2, AF + 4 * t + 3, 1024 * t + 128))
if not A.defer2: f2_frags()
stamp()
if A.f2bar:
    a("s_barrier")
if A.late2:
    a("s_add_u32 s3, s3, 1024\ns_add_u32 s13, s13, 327680")
    dma(A.late2, ["v5"], 327680)
if A.defer2:
    f2_frags()
    a("s_waitcnt lgkmcnt(0)")
a("s_mov_b32 s88, 0")
if A.pair2:
    a("L_poll2:")
    for t in range(4):
        a("buffer_load_dwordx4 %s, v22, s[60:63], %s offen %s" % (t4(BF + 4 * t), soff(8192 * t)[0], A.pmod))
    a("s_add_u32 s88, s88, 1")
    a("s_waitcnt lgkmcnt(0)")
    for t in range(4):
        a("s_waitcnt vmcnt(%d)" % (3 - t))
        a("v_mfma_f32_16x16x32_bf16 v[36:39], %s, %s, %s" % (t4(AF + 8 * t + 4), t4(BF + 4 * t), "0" if t == 0 else "v[36:39]"))
        a("v_mfma_f32_16x16x32_bf16 v[40:43], %s, %s, %s" % (t4(AF + 8 * t), t4(BF + 4 * t), "0" if t == 0 else "v[40:43]"))
        if t == 0: a("v_max3_u32 v31, v%d, v%d, v%d\nv_mov_b32 v32, v%d" % (BF, BF + 1, BF + 2, BF + 3))
        else: a("v_max3_u32 v31, v31, v%d, v%d\nv_max3_u32 v32, v32, v%d, v%d" % (BF + 4 * t, BF + 4 * t + 1, BF + 4 * t + 2, BF + 4 * t + 3))
    a("v_max_u32 v31, v31, v32")
    a("v_cmp_eq_u32 vcc, -1, v31")
    a("s_cmp_gt_u32 s88, %d" % SPIN_MAX)
    a("s_cselect_b64 vcc, 0, vcc")
    a("s_cbranch_vccnz L_poll2")
    stamp()
    for r in range(4):
        a("v_add_f32_dpp v%d, v%d, v%d row_ror:8 row_mask:0xf bank_mask:0xf" % (40 + r, 36 + r, 40 + r))
elif A.D2:
    sets = [80 + 28 * k for k in range(A.D2)]
    assert sets[-1] + 28 <= XF
    def p2(g):
        for t in range(7):
            a("buffer_load_dwordx4 %s, v22, s[60:63], %s offen %s" % (t4(g + 4 * t), soff(4096 * t)[0], A.pmod))
    if A.m2:
        a("s_mov_b32 exec_lo, 0x00ff00ff\ns_mov_b32 exec_hi, 0x00ff00ff")
    for k, g in enumerate(sets):
        if A.pace and k: a("s_sleep %d" % A.pace)
        p2(g)
    a("s_waitcnt lgkmcnt(0)")
    a("L_poll2:")
    for k, g in enumerate(sets):
        a("s_waitcnt vmcnt(%d)" % (7 * (A.D2 - 1)))
        a("v_max3_u32 v31, v%d, v%d, v%d" % (g, g + 1, g + 2))
        a("v_max3_u32 v32, v%d, v%d, v%d" % (g + 3, g + 4, g + 5))
        for q in range(6, 26, 4):
            a("v_max3_u32 v31, v31, v%d, v%d" % (g + q, g + q + 1))
            a("v_max3_u32 v32, v32, v%d, v%d" % (g + q + 2, g + q + 3))
        a("v_max3_u32 v31, v31, v%d, v%d" % (g + 26, g + 27))
        a("v_max_u32 v31, v31, v32")
        a("v_cmp_eq_u32 vcc, -1, v31")
        a("s_cbranch_vccz L_p2x%d" % k)
        if A.pace: a("s_sleep %d" % A.pace)
        p2(g)
    a("s_add_u32 s88, s88, 1")
    a("s_cmp_gt_u32 s88, %d" % SPIN_MAX)
    a("s_cbranch_scc0 L_poll2")
    for k, g in reversed(list(enumerate(sets))):
        a("L_p2x%d:" % k)
        if A.m2: a("s_mov_b64 exec, -1")
        for t in range(7):
            a("v_mfma_f32_16x16x32_bf16 v[40:43], %s, %s, %s" % (t4(AF + 4 * t), t4(g + 4 * t), "0" if t == 0 else "v[40:43]"))
        if k: a("s_branch L_p2done")
    a("L_p2done:")
    a("s_nop 7")
    stamp()
else:
    if A.m2:
        for q in range(28): a("v_mov_b32 v%d, 0" % (BF + q))
        a("s_mov_b32 exec_lo, 0x00ff00ff\ns_mov_b32 exec_hi, 0x00ff00ff")
    if A.first2: a("s_sleep %d" % A.first2)
    a("L_poll2:")
    if A.bo2: a("s_sleep %d" % A.bo2)
    for t in range(7):
        a("buffer_load_dwordx4 %s, v22, s[60:63], %s offen %s" % (t4(BF + 4 * t), soff(4096 * t)[0], A.pmod))
    a("s_add_u32 s88, s88, 1")
    a("s_waitcnt lgkmcnt(0)" if A.fin2 else "s_waitcnt vmcnt(0) lgkmcnt(0)")
    if A.fin2:
        a("s_mov_b64 exec, -1")
        for t in range(7):
            a("s_waitcnt vmcnt(%d)" % (6 - t))
            a("v_mfma_f32_16x16x32_bf16 v[40:43], %s, %s, %s" % (t4(AF + 4 * t), t4(BF + 4 * t), "0" if t == 0 else "v[40:43]"))
            if t == 0: a("v_max3_u32 v31, v%d, v%d, v%d\nv_mov_b32 v32, v%d" % (BF, BF + 1, BF + 2, BF + 3))
            else: a("v_max3_u32 v31, v31, v%d, v%d\nv_max3_u32 v32, v32, v%d, v%d" % (BF + 4 * t, BF + 4 * t + 1, BF + 4 * t + 2, BF + 4 * t + 3))
        a("v_max_u32 v31, v31, v32")
        a("v_cmp_eq_u32 vcc, -1, v31")
        a("s_mov_b32 exec_lo, 0x00ff00ff\ns_mov_b32 exec_hi, 0x00ff00ff")
        a("s_cmp_gt_u32 s88, %d" % SPIN_MAX)
        a("s_cbranch_scc1 L_poll2_done")
        a("s_cbranch_vccnz L_poll2")
        a("L_poll2_done:")
        a("s_mov_b64 exec, -1")
        stamp()
        a("L_f2_body:")
    else:
        a("v_max_u32 v31, v%d, v%d" % (BF, BF + 1))
        a("v_max_u32 v32, v%d, v%d" % (BF + 2, BF + 3))
        for k in range(4, 28, 4):
            a("v_max3_u32 v31, v31, v%d, v%d" % (BF + k, BF + k + 1))
            a("v_max3_u32 v32, v32, v%d, v%d" % (BF + k + 2, BF + k + 3))
        a("v_max_u32 v31, v31, v32")
        a("v_cmp_eq_u32 vcc, -1, v31")
        a("s_cmp_gt_u32 s88, %d" % SPIN_MAX)
        a("s_cbranch_scc1 L_poll2_done")
        a("s_cbranch_vccnz L_poll2")
        a("L_poll2_done:")
        if A.m2: a("s_mov_b64 exec, -1")
        if A.late2:
            f2_frags(range(7 - A.late2, 7))
        stamp()
        a("L_f2_body:")
        for t in range(7):
            if A.late2 and t >= 7 - A.late2: a("s_waitcnt lgkmcnt(%d)" % (2 * (6 - t)))
            a("v_mfma_f32_16x16x32_bf16 v[40:43], %s, %s, %s" % (t4(AF + 4 * t), t4(BF + 4 * t), "0" if t == 0 else "v[40:43]"))
a("ds_write_b128 v16, v[40:43] offset:%d" % L_FP)
a("s_waitcnt lgkmcnt(0)")
a("s_barrier")
a("s_cmp_lg_u32 s26, 0")
a("s_cbranch_scc1 L_f2_skip")
if A.fin2:
    for w in range(4):
        a("ds_read_b128 %s, v17 offset:%d" % (t4(AF + 4 * w), L_FP + 1024 * w))
    for w in range(2):
        a("s_waitcnt lgkmcnt(%d)" % (2 - 2 * w))
        for r in (0, 2):
            a("v_pk_add_f32 v[%d:%d], v[%d:%d], v[%d:%d]" % (AF + 8 * w + r, AF + 8 * w + r + 1, AF + 8 * w + r, AF + 8 * w + r + 1, AF + 8 * w + 4 + r, AF + 8 * w + 4 + r + 1))
    for r in (0, 2):
        a("v_pk_add_f32 v[%d:%d], v[%d:%d], v[%d:%d]" % (AF + r, AF + r + 1, AF + r, AF + r + 1, AF + 8 + r, AF + 8 + r + 1))
    for r in range(4):
        a("v_add_f32_dpp v%d, v%d, v%d row_ror:8 row_mask:0xf bank_mask:0xf" % (AF + r, AF + r, AF + r))
else:
    for w in range(8):
        a("ds_read_b128 %s, v17 offset:%d" % (t4(AF + 4 * w), L_FP + 1024 * w))
    a("s_waitcnt lgkmcnt(0)")
    for s_ in (4, 2, 1):
        for w in range(s_):
            for r in range(0, 4, 2):
                a("v_pk_add_f32 v[%d:%d], v[%d:%d], v[%d:%d]" % (AF + 4 * w + r, AF + 4 * w + r + 1, AF + 4 * w + r, AF + 4 * w + r + 1, AF + 4 * (w + s_) + r, AF + 4 * (w + s_) + r + 1))
a("s_mov_b32 exec_lo, 0x00ff00ff\ns_mov_b32 exec_hi, 0x00ff00ff")
for k in range(2):
    a("v_cvt_pk_bf16_f32 v31, v%d, v%d" % (AF + 2 * k, AF + 2 * k + 1))
    a("v_lshlrev_b32 v32, 16, v31")
    a("v_and_b32 v33, 0xffff0000, v31")
    a("v_add_f32 v32, v32, v%d" % (XF + 2 * k))
    a("v_add_f32 v33, v33, v%d" % (XF + 1 + 2 * k))
    a("v_cvt_pk_bf16_f32 v%d, v32, v33" % (40 + k))
if A.warm or A.warm2:
    a("s_cmp_eq_u32 s78, 0")
    a("s_cbranch_scc1 L_f2_nost")
a("buffer_store_dwordx2 v[40:41], v21, s[56:59], s79 offen %s" % A.outmod)
a("L_f2_nost:")
a("s_mov_b64 exec, -1")
a("L_f2_skip:")
if A.warm or A.warm2:
    a("s_cmp_eq_u32 s78, 0")
    a("s_cbranch_scc1 L_f2_real")
if A.diagnum:
    a("v_mov_b32 v26, 0")
    a("buffer_load_dword v27, v26, s[64:67], 0 offen offset:32 sc0 sc1\ns_waitcnt vmcnt(0)")
    a("v_readfirstlane_b32 s84, v27\ns_bcnt1_i32_b32 s84, s84\ns_cmp_eq_u32 s84, 1\ns_cbranch_scc1 L_fin")
    a("s_memrealtime s[90:91]\ns_waitcnt lgkmcnt(0)\ns_add_u32 s85, s90, 10000")
    a("L_dly:\ns_memrealtime s[90:91]\ns_waitcnt lgkmcnt(0)\ns_sub_u32 s84, s85, s90\ns_cmp_lt_i32 s84, 0\ns_cbranch_scc0 L_dly")
if A.diags >= 0:
    a("s_and_b32 s84, s2, 7\ns_cmp_lg_u32 s84, %d\ns_cbranch_scc1 L_fin" % A.diags)
    a("v_mov_b32 v26, 0\nbuffer_load_dword v27, v26, s[64:67], 0 offen offset:192 sc0 sc1\ns_waitcnt vmcnt(0)\nv_readfirstlane_b32 s84, v27")
    a("s_sub_u32 s85, s92, s84\ns_add_u32 s85, s85, 200\ns_min_u32 s85, s85, 1000\ns_lshl_b32 s85, s85, 4")
    a("s_memrealtime s[90:91]\ns_waitcnt lgkmcnt(0)\ns_add_u32 s85, s85, s90")
    a("L_dly4:\ns_memrealtime s[90:91]\ns_waitcnt lgkmcnt(0)\ns_sub_u32 s84, s85, s90\ns_cmp_lt_i32 s84, 0\ns_cbranch_scc0 L_dly4")
if A.diagd:
    a("s_getreg_b32 s84, hwreg(HW_REG_XCC_ID)\ns_sub_u32 s84, s84, s2\ns_and_b32 s84, s84, 7\ns_mul_i32 s85, s84, 2000")
    a("s_memrealtime s[90:91]\ns_waitcnt lgkmcnt(0)\ns_add_u32 s85, s85, s90")
    a("L_dly3:\ns_memrealtime s[90:91]\ns_waitcnt lgkmcnt(0)\ns_sub_u32 s84, s85, s90\ns_cmp_lt_i32 s84, 0\ns_cbranch_scc0 L_dly3")
if A.amp >= 0:
    a("s_cmp_lg_u32 s26, 0\ns_cbranch_scc1 L_fin")
    a("s_memrealtime s[90:91]\ns_waitcnt lgkmcnt(0)\ns_mov_b32 s101, s90")
    if A.ampA:
        a("s_load_dword s93, s[24:25], %d\ns_waitcnt lgkmcnt(0)\ns_mov_b32 s94, s92\ns_mov_b32 s92, s93" % (WS_STAMP - 64))
    a("s_sub_u32 s85, s%d, s92\ns_lshl_b32 s85, s85, %d\ns_add_u32 s85, s85, s90" % (92 + A.amp, A.ampsh))
    a("L_dly2:\ns_memrealtime s[90:91]\ns_waitcnt lgkmcnt(0)\ns_sub_u32 s84, s85, s90\ns_cmp_lt_i32 s84, 0\ns_cbranch_scc0 L_dly2")
a("L_fin:")
if A.stamp and A.amp < 0:
    a("s_waitcnt vmcnt(0)")
    a("s_memrealtime s[90:91]\ns_waitcnt lgkmcnt(0)\ns_mov_b32 s101, s90")
    a("s_add_u32 s48, s24, %d\ns_addc_u32 s49, s25, 0\ns_mov_b32 s50, 131072" % WS_STAMP)
    a("s_lshl_b32 s84, s2, 3\ns_add_u32 s84, s84, s26\ns_lshl_b32 s84, s84, 6")
    a("s_getreg_b32 s85, hwreg(HW_REG_XCC_ID)")
    a("v_mov_b32 v1, 0")
    a("s_mov_b64 exec, 1")
    for k in range(10):
        a("v_mov_b32 v2, s%d" % (92 + k))
        a("buffer_store_dword v2, v1, s[48:51], s84 offen offset:%d" % (4 * k))
    a("v_mov_b32 v2, s85")
    a("buffer_store_dword v2, v1, s[48:51], s84 offen offset:40")
    a("v_mov_b32 v2, s88")
    a("buffer_store_dword v2, v1, s[48:51], s84 offen offset:44")
    a("v_mov_b32 v2, s27")
    a("buffer_store_dword v2, v1, s[48:51], s84 offen offset:48")
    if A.dbgstamp:
        a("s_cmp_ge_u32 s27, 40\ns_cbranch_scc1 L_end\ns_cmp_lg_u32 s26, 0\ns_cbranch_scc1 L_end")
        a("s_not_b32 s86, s92")
        a("v_mov_b32 v2, s86")
        a("buffer_atomic_umax v2, v1, s[64:67], 0 offen offset:4 sc1")
        for k in (4, 5, 6, 7, 9):
            a("v_mov_b32 v2, s%d" % (92 + k))
            a("buffer_atomic_umax v2, v1, s[64:67], 0 offen offset:%d sc1" % (8 + 4 * k))
a("L_end:")
a("s_endpgm")
if A.adapt:
    import struct as _st2
    a("L_adapt:")
    a("s_mov_b32 s84, 0x%08x" % _st2.unpack("<I", _st2.pack("<f", float(A.adapt)))[0])
    a("s_lshl_b32 s10, s79, 7")
    a("s_mov_b64 exec, 1")
    a("L_adapt2:")
    a("v_cmp_gt_f32 vcc, s84, v31")
    a("s_add_u32 s88, s88, 1")
    a("s_cmp_gt_u32 s88, %d" % SPIN_MAX)
    a("s_cbranch_scc1 L_adapt3")
    a("s_cbranch_vccz L_adapt3")
    a("buffer_load_dword v31, v22, s[48:51], s10 offen offset:12 %s" % A.pmod)
    a("s_waitcnt vmcnt(0)")
    a("s_branch L_adapt2")
    a("L_adapt3:")
    a("s_mov_b64 exec, -1")
    a("s_branch L_poll1")
a("L_initslow:")
a("s_mov_b32 s88, 0")
a("L_initpoll:")
a("buffer_load_dword v12, v21, s[64:67], 0 offen sc0 sc1")
a("s_waitcnt vmcnt(0)")
a("v_readfirstlane_b32 s89, v12")
a("s_add_u32 s88, s88, 1")
a("s_cmp_gt_u32 s88, %d" % SPIN_MAX)
a("s_cbranch_scc1 L_initok")
a("s_cmp_ge_u32 s89, 8")
a("s_cbranch_scc0 L_initpoll")
a("s_branch L_initok")

DESC = '; ---------------------------------------------------------------------------------------------\n; ---------------------------------------------------------------------------------------------\n'
body = a.render()
txt = HEADER + "; @launch grid=(256,1,1) block=(512,1,1) lds=%d\n" % (A.lds or LDS_BYTES)
txt += DESC + """.amdgcn_target "amdgcn-amd-amdhsa--gfx950"
.text
.globl {n}_kernel
{al}.p2align 8
.type {n}_kernel,@function
{n}_kernel:
{body}.section .rodata,"a"
.p2align 6
.amdhsa_kernel {n}_kernel
  .amdhsa_next_free_vgpr 256
  .amdhsa_next_free_sgpr 102
  .amdhsa_accum_offset 256
  .amdhsa_group_segment_fixed_size 0
  .amdhsa_kernarg_size 88
  .amdhsa_user_sgpr_count 2
  .amdhsa_user_sgpr_kernarg_segment_ptr 1
  .amdhsa_system_sgpr_workgroup_id_x 1
  .amdhsa_float_denorm_mode_32 3
.end_amdhsa_kernel
""".format(n=NAME, body=body, al=(".p2align 12\n" + (".fill %d, 4, 0xbf810000   ; never executed: places the entry so that no latency-critical segment crosses a 4 KiB line\n" % (64 * A.align12) if A.align12 else "")) if A.align12 >= 0 else "")
open(A.o, "w").write(txt)
print("wrote", A.o, len(txt), "bytes,", body.count("\\n"), "lines")
```

```python
import sys, argparse
sys.path.insert(0, "work")
from asmlib import Asm

NAME = "sequential_preLN__sliding_block_cached__dense_activation_relu__decode"
HEADER = open("cdna_kernels/%s.s.ref" % NAME).read().split("; Override launch geometry")[0]

ap = argparse.ArgumentParser()
ap.add_argument("-o", default="cdna_kernels/%s.s" % NAME)
ap.add_argument("--stamp", action="store_true")
ap.add_argument("--dbgstamp", action="store_true")
ap.add_argument("--kvmod", default="nt")
ap.add_argument("--wmod", default="nt")
ap.add_argument("--dmod", default="nt")
ap.add_argument("--pmod", default="sc0 sc1")
ap.add_argument("--L", type=int, default=12)
ap.add_argument("--pat", type=int, default=1)
ap.add_argument("--qk", type=int, default=2)
ap.add_argument("--wo_start", type=int, default=12)
ap.add_argument("--wo_every", type=int, default=2)
ap.add_argument("--codepf", action="store_true")
ap.add_argument("--vearly", type=int, default=0)
ap.add_argument("--adapt", type=int, default=0)
ap.add_argument("--f1first", action="store_true")
ap.add_argument("--spread", action="store_true")
ap.add_argument("--sl2", type=int, default=0)
ap.add_argument("--sl1", type=int, default=0)
ap.add_argument("--f1pre", type=int, default=20)
ap.add_argument("--pivot", action="store_true")
ap.add_argument("--slown", type=int, default=20)
ap.add_argument("--slow", type=int, default=0)
ap.add_argument("--diags", type=int, default=-1)
ap.add_argument("--diagd", action="store_true")
ap.add_argument("--pair2", action="store_true")
ap.add_argument("--st4", action="store_true")
ap.add_argument("--touch2", action="store_true")
ap.add_argument("--op4", type=int, default=0)
ap.add_argument("--lin", action="store_true")
ap.add_argument("--op3", action="store_true")
ap.add_argument("--ampA", action="store_true")
ap.add_argument("--fin2", action="store_true")
ap.add_argument("--late2", type=int, default=0)
ap.add_argument("--align12", type=int, default=-1)
ap.add_argument("--warm1", action="store_true")
ap.add_argument("--warm2", action="store_true")
ap.add_argument("--pad", type=int, default=0)
ap.add_argument("--sthr", type=int, nargs=2, default=None)
ap.add_argument("--tk2", action="store_true")
ap.add_argument("--static", action="store_true")
ap.add_argument("--tkwave", type=int, default=0)
ap.add_argument("--thr", type=int, default=0)
ap.add_argument("--thrT", type=int, default=1)
ap.add_argument("--thr0", type=int, default=256)
ap.add_argument("--qpf", action="store_true")
ap.add_argument("--qstart", type=int, default=0)
ap.add_argument("--krot", type=int, default=0)
ap.add_argument("--light2", action="store_true")
ap.add_argument("--defer2", type=int, default=0)
ap.add_argument("--bo2", type=int, default=0)
ap.add_argument("--first2", type=int, default=0)
ap.add_argument("--ampsh", type=int, default=2)
ap.add_argument("--qspan", type=int, default=0)
ap.add_argument("--ospan", type=int, nargs=2, default=None)
ap.add_argument("--fine", action="store_true")
ap.add_argument("--op2", action="store_true")
ap.add_argument("--ln1", action="store_true")
ap.add_argument("--qrow", type=int, default=0)
ap.add_argument("--rot", type=int, default=0)
ap.add_argument("--outmod", default="")
ap.add_argument("--lds", type=int, default=0)
ap.add_argument("--edma", action="store_true")
ap.add_argument("--nopre", action="store_true")
ap.add_argument("--st8", default="hn")
ap.add_argument("--minrate", type=int, default=0)
ap.add_argument("--m2", action="store_true")
ap.add_argument("--D1", type=int, default=0)
ap.add_argument("--D2", type=int, default=0)
ap.add_argument("--pace", type=int, default=0)
ap.add_argument("--warm", action="store_true")
ap.add_argument("--tkpos", type=int, default=8)
ap.add_argument("--map", type=int, default=0)
ap.add_argument("--touch", action="store_true")
ap.add_argument("--qhead", type=int, default=0)
ap.add_argument("--codepf2", action="store_true")
ap.add_argument("--oobq", action="store_true")
ap.add_argument("--oobo", action="store_true")
ap.add_argument("--f2bar", action="store_true")
ap.add_argument("--light", type=int, default=0)
ap.add_argument("--sleep", type=int, default=0)
ap.add_argument("--amp", type=int, default=-1)
ap.add_argument("--diagnum", action="store_true")
ap.add_argument("--LV", type=int, default=0)
ap.add_argument("--dma", default="stream")
ap.add_argument("--pf", type=int, default=0)
ap.add_argument("--pfmod", default="")
A = ap.parse_args()

L_PART = 0
L_QD = 4096
L_ST = 6144
L_YP = 6400
L_HN = 27136
HN_STRIDE = 1312
L_FP = 37888
L_W = 46080
LDS_BYTES = L_W + 81920
WS_H1 = 32768
WS_STAMP = 1 << 20
FFN1_N, FFN2_N = 27, 40
L_TK = 6208
SPIN_MAX = 400000

RING = 48; NRING = 32
YSTR = 2560
WO = 176
def t4(r): return "v[%d:%d]" % (r, r + 3)
def soff(byte):
    hi, lo = byte // 4096, byte % 4096
    return ("0" if hi == 0 else "s%d" % (67 + hi)), lo

a = Asm()
stamp_idx = [0]
def stamp():
    if not A.stamp: return
    a("s_memrealtime s[90:91]\ns_waitcnt lgkmcnt(0)\ns_mov_b32 s%d, s90" % (92 + stamp_idx[0]))
    stamp_idx[0] += 1
    assert stamp_idx[0] <= 9

FINE = [4, 6, 8, 10, 14, 36, 38]
fine_i = [0]
def fine():
    if not A.fine: return
    r = FINE[fine_i[0]]; fine_i[0] += 1
    a("s_memtime s[%d:%d]" % (r, r + 1))

def wave_reduce(v, op, sdst):
    for m in ("quad_perm:[1,0,3,2] row_mask:0xf", "quad_perm:[2,3,0,1] row_mask:0xf", "row_half_mirror row_mask:0xf",
              "row_mirror row_mask:0xf", "row_bcast:15 row_mask:0xa", "row_bcast:31 row_mask:0xc"):
        a("%s_dpp %s, %s, %s %s bank_mask:0xf" % (op, v, v, v, m))
    a("v_readlane_b32 %s, %s, 63" % (sdst, v))

def ln_stats(vals, tmp, vmean_bf, vrinv):
    t0, t1, t2 = tmp
    a("v_add_f32 %s, %s, %s" % (t0, vals[0], vals[1]))
    a("v_add_f32 %s, %s, %s" % (t1, vals[2], vals[3]))
    for k in range(4, 10, 2):
        a("v_add_f32 %s, %s, %s" % (t0, t0, vals[k]))
        a("v_add_f32 %s, %s, %s" % (t1, t1, vals[k + 1]))
    a("v_add_f32 %s, %s, %s" % (t0, t0, t1))
    wave_reduce(t0, "v_add_f32", "s84")
    a("v_mov_b32 %s, 0x3acccccd" % t2)
    a("v_mul_f32 %s, s84, %s" % (vmean_bf, t2))
    a("v_sub_f32 %s, %s, %s" % (t1, vals[0], vmean_bf))
    a("v_mul_f32 %s, %s, %s" % (t0, t1, t1))
    for k in range(1, 10):
        a("v_sub_f32 %s, %s, %s" % (t1, vals[k], vmean_bf))
        a("v_fmac_f32 %s, %s, %s" % (t0, t1, t1))
    wave_reduce(t0, "v_add_f32", "s84")
    a("v_mul_f32 %s, s84, %s" % (t0, t2))
    a("v_cvt_pk_bf16_f32 %s, %s, %s" % (t0, t0, vmean_bf))
    a("v_and_b32 %s, 0xffff0000, %s" % (vmean_bf, t0))
    a("v_lshlrev_b32 %s, 16, %s" % (t0, t0))
    a("v_add_f32 %s, 0x3727c5ac, %s" % (t0, t0))
    a("v_cvt_pk_bf16_f32 %s, %s, %s" % (t0, t0, t0))
    a("v_lshlrev_b32 %s, 16, %s" % (t0, t0))
    a("v_sqrt_f32 %s, %s" % (t0, t0))
    a("v_cvt_pk_bf16_f32 %s, %s, %s" % (t0, t0, t0))
    a("v_lshlrev_b32 %s, 16, %s" % (t0, t0))
    a("v_rcp_f32 %s, %s" % (vrinv, t0))

def selector(abuf, src, lane):
    for r in range(4):
        a("v_and_b32_dpp v%d, %s, v%d row_newbcast:%d row_mask:0xf bank_mask:0xf" % (abuf + r, src, 6 + r, lane))

def srd(d, plo, nbytes):
    a("s_mov_b32 s%d, s%d\ns_mov_b32 s%d, s%d\ns_mov_b32 s%d, %s\ns_mov_b32 s%d, 0x20000" % (d, plo, d + 1, plo + 1, d + 2, nbytes, d + 3))

S = []
kv = [("k", n) for n in range(32)] + [("v", n) for n in range(32)]
if A.vearly:
    ks_ = [("k", n) for n in range(32)]; kv = []
    vi = 0
    for n in range(32):
        kv.append(ks_[n])
        if ((n + 1) * A.vearly) // 32 != (n * A.vearly) // 32:
            kv.append(("v", vi)); vi += 1
    kv += [("v", n) for n in range(vi, 32)]
if A.qspan:
    oa, ob = A.ospan
    qpos = [A.qstart + (t * (A.qspan - A.qstart)) // 20 for t in range(20)]
    opos = [oa + (t * (ob - oa)) // 20 for t in range(20)]
    for ki in range(64):
        S += [("q", t) for t in range(20) if qpos[t] == ki]
        S += [("o", t) for t in range(20) if opos[t] == ki]
        S.append(kv[ki])
else:
    qi = 0; ki = 0
    while qi < A.qhead:
        S.append(("q", qi)); qi += 1
    while qi < 20:
        for _ in range(A.qk):
            if qi < 20: S.append(("q", qi)); qi += 1
        S.append(kv[ki]); ki += 1
    oi = 0
    while ki < 64:
        S.append(kv[ki]); ki += 1
        if ki >= A.wo_start and (ki - A.wo_start) % A.wo_every == 0 and oi < 20:
            S.append(("o", oi)); oi += 1
    assert oi == 20
if A.tk2: S.append(("t", 0))
POS = {e: p for p, e in enumerate(S)}
free = list(range(NRING))
slot = {}
lend = list(range(32, 52))
st = {"issued": 0, "maxpos": -1, "gate": len(S)}
def reg_of(e):
    if e[0] == "o": return WO + 4 * e[1]
    return RING + 4 * slot[e]
def issue(e):
    kind, n = e
    if kind in "qkv":
        if A.vearly and kind != "v" and lend and len(free) <= A.vearly and st["issued"] < POS[("o", 0)] - 8: slot[e] = lend.pop()
        elif free: slot[e] = free.pop(0)
        elif lend and kind != "v": slot[e] = lend.pop()
        else: return False
    if kind == "o":
        if (32 + n) not in lend: return False
        lend.remove(32 + n)
    if kind == "q":
        so = "0"
        if n: a("s_mov_b32 s78, %d" % (n * 8192 * (1, 4, 32)[A.qrow] if not (A.oobq and n >= 3) else 0x7f000000)); so = "s78"
        masked = A.slow and ((n + 1) * A.slown) // 20 != (n * A.slown) // 20
        a("buffer_load_dwordx4 %s, %s, s[36:39], %s offen %s" % (t4(reg_of(e)), "v21" if masked else "v3", so, A.wmod))
    elif kind in "kv":
        sr = "s[28:31]" if kind == "k" else "s[32:35]"
        if A.pat == 0:
            so, im = soff(n * 1024)
        elif A.krot:
            sr_ = "s14" if kind == "k" else "s15"
            so, im = sr_, 0
            if n: a("s_add_u32 %s, %s, %s\ns_and_b32 %s, %s, 0x3ffff" % (sr_, sr_, "s27" if A.krot >= 9 else "8192", sr_, sr_))
        elif A.pat == 3:
            so, im = "0", (n & 1) * 1024
            if n >> 1: a("s_mov_b32 s78, %d" % ((n >> 1) * 8192)); so = "s78"
        elif A.pat == 4:
            so, im = "0", (n & 3) * 1024
            if n >> 2: a("s_mov_b32 s78, %d" % ((n >> 2) * 16384)); so = "s78"
        else:
            so, im = "0", 0
            if n: a("s_mov_b32 s78, %d" % (n * (8192 if A.pat == 1 else 4096))); so = "s78"
        a("buffer_load_dwordx4 %s, v2, %s, %s offen offset:%d %s" % (t4(reg_of(e)), sr, so, im, A.kvmod))
    elif kind == "t":
        a("s_mov_b64 exec, 1")
        a("buffer_atomic_add v22, v21, s[48:51], s11 offen sc0 sc1")
        a("s_mov_b64 exec, -1")
    elif kind == "o":
        so, im = soff(n * 256)
        if A.oobo and n >= 3:
            a("s_mov_b32 s78, 0x7f000000"); so = "s78"
        a("buffer_load_dwordx4 %s, v4, s[40:43], %s offen offset:%d %s" % (t4(reg_of(e)), so, im, A.wmod))
    return True
def pump(upto):
    upto = min(upto, len(S) - 1, st["gate"] - 1)
    while st["issued"] <= upto:
        if not issue(S[st["issued"]]): break
        st["issued"] += 1
def ready(e):
    p = POS[e]
    st["maxpos"] = max(st["maxpos"], p)
    before = st["issued"]
    pump(st["maxpos"] + A.L)
    if st["issued"] == before:
        st["idle"] = st.get("idle", 0) + 1
        if A.minrate and st["idle"] >= A.minrate:
            pump(st["issued"]); st["idle"] = 0
    else:
        st["idle"] = 0
    assert st["issued"] > p, (e, st)
    n = st["issued"] - 1 - p
    n = min(n, 63)
    a("s_waitcnt vmcnt(%d)" % n)
def done(e):
    sl = slot.pop(e)
    if sl >= 32:
        lend.append(sl); lend.sort()
    else:
        free.append(sl)

def SLOW0():
    pass
a("s_cmp_ge_u32 s2, 256")
a("s_cbranch_scc1 L_end")
a("s_load_dwordx16 s[4:19], s[0:1], 0")
a("s_load_dwordx4 s[20:23], s[0:1], 64")
a("s_load_dwordx2 s[24:25], s[0:1], 80")
if A.stamp:
    a("s_memrealtime s[90:91]")
a("v_and_b32 v1, 63, v0")
a("v_lshrrev_b32 v44, 6, v0")
a("v_lshrrev_b32 v45, 4, v1")
a("v_and_b32 v46, 15, v0")
a("v_readfirstlane_b32 s26, v44")
a("s_lshr_b32 s76, s2, 5")
if A.map == 0:
    a("s_and_b32 s77, s2, 31")
elif A.map == 1:
    a("s_and_b32 s77, s2, 7\ns_lshl_b32 s77, s77, 2\ns_bfe_u32 s84, s2, 0x20003\ns_or_b32 s77, s77, s84")
elif A.map >= 10:
    c = A.map - 10
    tab = list(range(8)); tab[5], tab[c] = tab[c], tab[5]
    a("s_and_b32 s84, s2, 7\ns_lshl_b32 s84, s84, 2\ns_lshr_b32 s84, 0x%08x, s84\ns_and_b32 s84, s84, 7" % sum(t << (4 * k) for k, t in enumerate(tab)))
    a("s_and_b32 s77, s2, 24\ns_or_b32 s77, s77, s84")
elif A.map == 2:
    a("s_and_b32 s77, s2, 7\ns_lshl_b32 s77, s77, 1\ns_bfe_u32 s84, s2, 0x10003\ns_or_b32 s77, s77, s84\ns_and_b32 s84, s2, 16\ns_or_b32 s77, s77, s84")
a("s_lshl_b32 s3, s76, 5\ns_or_b32 s3, s3, s77")
if A.pat == 0:
    a("v_lshlrev_b32 v2, 15, v44")
    a("v_lshl_add_u32 v2, v1, 4, v2")
elif A.pat == 1:
    a("v_lshlrev_b32 v2, 4, v0")
else:
    a("v_lshrrev_b32 v2, 8, v0\nv_lshlrev_b32 v2, 17, v2\nv_lshl_add_u32 v2, v1, 4, v2\nv_and_b32 v3, 3, v44")
    a("v_lshl_add_u32 v2, v3, %d, v2" % {2: 10, 3: 11, 4: 12}[A.pat])
a("v_lshl_add_u32 v47, v44, 2, v45")
if A.rot:
    a("s_lshl_b32 s84, s76, 2")
    a("v_add_u32 v5, s84, v47")
    a("v_and_b32 v5, 31, v5")
a("v_mul_u32_u24 v4, 5120, %s" % ("v5" if A.rot >= 2 else "v47"))
if A.rot: a("v_mov_b32 v47, v5")
if A.qrow == 0:
    a("v_mul_u32_u24 v47, 20, v47")
elif A.qrow == 1:
    a("v_lshrrev_b32 v47, 2, v47\nv_mul_u32_u24 v47, 80, v47\nv_add_u32 v47, v47, v45")
a("v_lshlrev_b32 v3, 13, v47")
a("v_lshl_add_u32 v3, v46, 4, v3")
a("v_lshl_add_u32 v4, v46, 4, v4")
a("v_mul_u32_u24 v32, 20, v1")
QS = (0, 2, 5)[A.qrow]
a("v_lshlrev_b32 v33, %d, v46" % QS)
a("v_add_lshl_u32 v33, v47, v33, 1")
a("v_and_b32 v34, 3, v0")
a("v_lshlrev_b32 v34, %d, v34" % QS)
a("v_add_lshl_u32 v34, v47, v34, 1")
a("s_mul_i32 s84, s76, 1280")
a("s_lshl_b32 s85, s77, 8")
a("s_lshl_b32 s86, s3, 20")
a("s_add_u32 s86, s86, 786432")
a("s_mov_b32 s46, 10240\ns_mov_b32 s47, 0x20000")
a("s_sub_u32 s38, 5242880, s85\ns_mov_b32 s39, 0x20000")
a("s_mov_b32 s30, 262144\ns_mov_b32 s31, 0x20000")
for k in range(1, 8):
    a("s_movk_i32 s%d, %d" % (67 + k, 4096 * k))
a("s_waitcnt lgkmcnt(0)")
if A.stamp:
    a("s_mov_b32 s92, s90"); stamp_idx[0] = 1
    if A.st8 == "karg":
        a("s_memrealtime s[90:91]\ns_waitcnt lgkmcnt(0)\ns_mov_b32 s100, s90")
if A.krot == 1:
    a("s_mul_i32 s14, s2, 0x9e3779b1\ns_lshr_b32 s14, s14, 27\ns_lshl_b32 s14, s14, 13\ns_mov_b32 s15, s14")
elif A.krot == 2:
    a("s_and_b32 s14, s2, 31\ns_lshl_b32 s14, s14, 13\ns_mov_b32 s15, s14")
elif A.krot == 3:
    a("s_lshr_b32 s14, s2, 3\ns_lshl_b32 s14, s14, 13\ns_mov_b32 s15, s14")
if A.krot == 9:
    a("s_mul_i32 s27, s2, 0x9e3779b1\ns_lshr_b32 s14, s27, 27\ns_lshl_b32 s14, s14, 13\ns_mov_b32 s15, s14")
    a("s_bfe_u32 s27, s27, 0x40010\ns_lshl_b32 s27, s27, 14\ns_or_b32 s27, s27, 8192")
if A.krot == 10:
    a("s_mul_i32 s27, s2, 0x9e3779b1\ns_mov_b32 s14, 0\ns_mov_b32 s15, 0")
    a("s_lshr_b32 s27, s27, 28\ns_lshl_b32 s27, s27, 14\ns_or_b32 s27, s27, 8192")
if A.krot == 4:
    a("s_and_b32 s14, s2, 1\ns_lshl_b32 s14, s14, 17\ns_mov_b32 s15, s14")
elif A.krot == 5:
    a("s_lshr_b32 s14, s2, 5\ns_lshl_b32 s14, s14, 15\ns_mov_b32 s15, s14")
elif A.krot == 6:
    a("s_and_b32 s14, s2, 7\ns_lshl_b32 s14, s14, 15\ns_mov_b32 s15, s14")
elif A.krot == 7:
    a("s_brev_b32 s14, s2\ns_lshr_b32 s14, s14, 27\ns_lshl_b32 s14, s14, 13\ns_mov_b32 s15, s14")
elif A.krot == 8:
    a("s_lshr_b32 s14, s2, 5\ns_lshl_b32 s14, s14, 13\ns_mov_b32 s15, s14")
a("s_mov_b32 s44, s4\ns_mov_b32 s45, s5")
a("s_add_u32 s36, s10, s85\ns_addc_u32 s37, s11, 0")
a("s_add_u32 s28, s6, s86\ns_addc_u32 s29, s7, 0")
if A.touch:
    a("s_load_dword s89, s[28:29], 0")
    a("s_add_u32 s32, s8, s86\ns_addc_u32 s33, s9, 0")
    a("s_load_dword s88, s[32:33], 0")
a("s_cmp_ge_u32 s2, 8")
a("s_cbranch_scc1 L_noinit")
srd(48, 24, "66560")
a("s_lshl_b32 s87, s2, 12")
a("v_lshlrev_b32 v35, 3, v0")
a("v_mov_b32 v36, 0\nv_mov_b32 v37, 0\nv_mov_b32 v38, -1\nv_mov_b32 v39, -1")
a("buffer_store_dwordx2 v[36:37], v35, s[48:51], s87 offen sc0 sc1")
a("s_add_u32 s87, s87, %d" % WS_H1)
a("buffer_store_dwordx2 v[38:39], v35, s[48:51], s87 offen sc0 sc1")
if not A.static:
    a("s_lshl_b32 s87, s2, 7\ns_add_u32 s87, s87, 65536")
    a("v_and_b32 v35, 0x78, v35")
    a("buffer_store_dwordx2 v[36:37], v35, s[48:51], s87 offen sc0 sc1")
a("L_noinit:")
if A.slow:
    a("s_bfe_u32 s87, s36, 0x30007\ns_cmp_eq_u32 s87, 2\ns_cselect_b32 s27, 1, 0")
    a("s_bfe_u32 s87, s36, 0x60007\ns_cmp_eq_u32 s87, 62\ns_cselect_b32 s27, 1, s27")
    a("v_mov_b32 v21, v3")
    a("s_cmp_eq_u32 s27, 0")
    a("s_cbranch_scc1 L_fast0")
    a("s_mov_b32 exec_lo, 0xff00ff00\ns_mov_b32 exec_hi, 0xff00ff00")
    a("v_mov_b32 v21, 0x7ff00000")
    a("s_mov_b64 exec, -1")
    SLOW0()
    a("L_fast0:")
a("buffer_load_dwordx4 v[16:19], v32, s[44:47], s84 offen")
a("buffer_load_dword v20, v32, s[44:47], s84 offen offset:16")
a("buffer_load_ushort v22, v33, s[44:47], s84 offen")
a("buffer_load_ushort v23, v34, s[44:47], s84 offen offset:%d" % (32 << QS))
if A.qpf:
    srd(52, 10, "5242880")
    a("s_lshr_b32 s87, s2, 3\ns_mul_i32 s87, s87, %d" % (20 * 8192))
    a("s_and_b32 s88, s2, 7")
    a("v_lshrrev_b32 v35, 4, v0\nv_lshlrev_b32 v35, 13, v35")
    if A.map == 1:
        a("s_lshl_b32 s88, s88, 10\ns_add_u32 s87, s87, s88")
        a("v_lshl_add_u32 v35, v46, 6, v35")
    else:
        a("s_lshl_b32 s88, s88, 8\ns_add_u32 s87, s87, s88")
        a("v_and_b32 v36, 3, v0\nv_lshl_add_u32 v35, v36, 6, v35\nv_bfe_u32 v36, v0, 2, 2\nv_lshl_add_u32 v35, v36, 11, v35")
    a("s_cmp_ge_u32 s26, 4")
    a("s_cbranch_scc1 L_noqpf")
    a("buffer_load_dword v21, v35, s[52:55], s87 offen")
    a("s_cmp_lg_u32 s26, 0")
    a("s_cbranch_scc1 L_noqpf")
    a("s_add_u32 s87, s87, %d" % (16 * 8192))
    a("buffer_load_dword v21, v35, s[52:55], s87 offen")
    a("L_noqpf:")
st["gate"] = min(POS[("o", 0)], POS[("v", 0)])
pump(A.L)
n_first = st["issued"]
if A.codepf:
    a("s_getpc_b64 s[84:85]")
    a("L_pc:")
    a("s_sub_u32 s84, s84, L_pc-%s_kernel" % NAME)
    a("s_subb_u32 s85, s85, 0")
    a("v_lshlrev_b32 v35, 5, v0")
    a("v_min_u32 v35, L_end-%s_kernel, v35" % NAME)
    a("global_load_dword v5, v35, s[84:85]")
a("s_add_u32 s32, s8, s86\ns_addc_u32 s33, s9, 0\ns_mov_b32 s34, 262144\ns_mov_b32 s35, 0x20000")
a("s_mul_i32 s85, s77, 163840")
a("s_add_u32 s40, s12, s85\ns_addc_u32 s41, s13, 0\ns_mov_b32 s42, 163840\ns_mov_b32 s43, 0x20000")
if A.touch2:
    a("s_lshl_b32 s84, s26, 15")
    a("s_load_dword s88, s[28:29], s84")
    a("s_load_dword s89, s[32:33], s84")
    a("s_mul_i32 s84, s26, 20480")
    a("s_load_dword s87, s[40:41], s84")
srd(48, 24, "66560")
srd(56, 20, "10240")
a("s_add_u32 s60, s24, %d\ns_addc_u32 s61, s25, 0\ns_mov_b32 s62, 27648\ns_mov_b32 s63, 0x20000" % WS_H1)
srd(64, 22, "256")
a("s_mov_b32 s80, 0xcccccccc\ns_mov_b32 s81, 0xcccccccc\ns_mov_b32 s82, 0xaaaaaaaa\ns_mov_b32 s83, 0xaaaaaaaa")
a("v_and_b32 v35, 1, v0")
a("v_lshlrev_b32 v35, 4, v35")
a("v_mov_b32 v38, 0xffff")
a("v_lshlrev_b32 v38, v35, v38")
a("v_lshrrev_b32 v37, 1, v46")
for r in range(4):
    a("v_cmp_eq_u32 vcc, %d, v37" % r)
    a("v_cndmask_b32 v%d, 0, v38, vcc" % (6 + r))
a("v_lshlrev_b32 v47, 9, v44")
a("v_lshl_add_u32 v47, v46, 5, v47")
a("v_lshl_add_u32 v47, v45, 4, v47")
st["gate"] = len(S)

a("s_waitcnt vmcnt(%d)" % (n_first + (1 if A.codepf else 0)))
if A.stamp and A.st8 == "x":
    a("s_memrealtime s[90:91]\ns_waitcnt lgkmcnt(0)\ns_mov_b32 s100, s90")
for k in range(5):
    a("v_lshlrev_b32 v%d, 16, v%d" % (24 + 2 * k, 16 + k))
    a("v_and_b32 v%d, 0xffff0000, v%d" % (25 + 2 * k, 16 + k))
ln_stats(["v%d" % (24 + k) for k in range(10)], ["v34", "v35", "v37"], "v38", "v39")
for r in (22, 23):
    a("v_lshlrev_b32 v%d, 16, v%d" % (r, r))
    a("v_sub_f32 v%d, v%d, v38" % (r, r))
    a("v_cvt_pk_bf16_f32 v%d, v%d, v%d" % (r, r, r))
    a("v_lshlrev_b32 v%d, 16, v%d" % (r, r))
    a("v_mul_f32 v%d, v%d, v39" % (r, r))
    a("v_cvt_pk_bf16_f32 v%d, v%d, v%d" % (r, r, r))
for t in range(20):
    ab = 24 + 4 * (t & 1)
    selector(ab, "v22" if t < 16 else "v23", t & 15)
    e = ("q", t)
    ready(e)
    if A.stamp and A.st8 == "q%d" % t:
        a("s_memrealtime s[90:91]\ns_waitcnt lgkmcnt(0)\ns_mov_b32 s100, s90")
    a("v_mfma_f32_16x16x32_bf16 v[40:43], %s, %s, %s" % (t4(ab), t4(reg_of(e)), "0" if t == 0 else "v[40:43]"))
    done(e)
a("s_mov_b32 exec_hi, 0")
a("ds_write_b128 v47, v[40:43] offset:%d" % L_PART)
a("s_mov_b64 exec, -1")
a("v_lshlrev_b32 v25, 3, v1")
a("s_waitcnt lgkmcnt(0)")
a("s_barrier")
a("s_cmp_ge_u32 s2, 8")
a("s_cbranch_scc1 L_nosig")
a("s_cmp_lg_u32 s26, 0")
a("s_cbranch_scc1 L_nosig")
a("v_mov_b32 v26, 0\nv_mov_b32 v27, 1")
a("s_mov_b64 exec, 1")
a("buffer_atomic_add v27, v26, s[64:67], 0 offen sc1")
a("s_mov_b64 exec, -1")
a("L_nosig:")
if A.diags >= 0:
    a("s_cmp_lg_u32 s2, 1\ns_cbranch_scc1 L_nods\ns_cmp_lg_u32 s26, 0\ns_cbranch_scc1 L_nods")
    a("v_mov_b32 v26, 0\nv_mov_b32 v27, s92\ns_mov_b64 exec, 1")
    a("buffer_store_dword v27, v26, s[64:67], 0 offen offset:192 sc0 sc1\ns_mov_b64 exec, -1")
    a("L_nods:")
if A.thr:
    a("s_cmp_lg_u32 s26, 0\ns_cbranch_scc1 L_norank")
    a("v_mov_b32 v26, 0\nv_mov_b32 v5, 1\ns_mov_b64 exec, 1")
    a("buffer_atomic_add v5, v26, s[64:67], 0 offen offset:128 sc0 sc1\ns_mov_b64 exec, -1")
    a("L_norank:")
    RANK_POS = st["issued"]
if A.diagnum:
    a("s_cmp_lg_u32 s26, 0\ns_cbranch_scc1 L_nodiag")
    a("s_getreg_b32 s84, hwreg(HW_REG_XCC_ID)\ns_sub_u32 s84, s84, s2\ns_and_b32 s84, s84, 7\ns_lshl_b32 s84, 1, s84")
    a("v_mov_b32 v26, 0\nv_mov_b32 v27, s84\ns_mov_b64 exec, 1")
    a("buffer_atomic_or v27, v26, s[64:67], 0 offen offset:32 sc1\ns_mov_b64 exec, -1")
    a("L_nodiag:")
for w in range(8):
    a("ds_read_b64 v[%d:%d], v25 offset:%d" % (28 + 2 * w, 29 + 2 * w, L_PART + 512 * w))
a("s_waitcnt lgkmcnt(0)")
for w in range(1, 8):
    a("v_add_f32 v28, v28, v%d" % (28 + 2 * w))
    a("v_add_f32 v29, v29, v%d" % (29 + 2 * w))
a("v_cvt_pk_bf16_f32 v28, v28, v29")
a("v_lshlrev_b32 v25, 2, v0")
a("ds_write_b32 v25, v28 offset:%d" % L_QD)
a("v_lshlrev_b32 v25, 8, v44")
a("v_lshl_add_u32 v25, v46, 4, v25")
a("s_waitcnt lgkmcnt(0)")
a("ds_read_b128 v[10:13], v25 offset:%d" % L_QD)
a("s_waitcnt lgkmcnt(0)")
stamp()

for _ in range(A.pad): a("s_nop 0")
def reduce_scatter(dst):
    for n in range(8):
        a("v_add_f32_dpp v%d, v%d, v%d row_mirror row_mask:0xf bank_mask:0x3" % (16 + n, 16 + n, 16 + n))
    for n in range(8):
        a("v_add_f32_dpp v%d, v%d, v%d row_mirror row_mask:0xf bank_mask:0xc" % (16 + n, 24 + n, 24 + n))
    for n in range(4):
        a("v_add_f32_dpp v%d, v%d, v%d row_half_mirror row_mask:0xf bank_mask:0x5" % (16 + n, 16 + n, 16 + n))
    for n in range(4):
        a("v_add_f32_dpp v%d, v%d, v%d row_half_mirror row_mask:0xf bank_mask:0xa" % (16 + n, 20 + n, 20 + n))
    for n in range(4):
        a("v_add_f32_dpp v%d, v%d, v%d quad_perm:[3,2,1,0] row_mask:0xf bank_mask:0xf" % (16 + n, 16 + n, 16 + n))
    a("v_cndmask_b32 v16, v16, v18, s[80:81]")
    a("v_cndmask_b32 v17, v17, v19, s[80:81]")
    a("v_add_f32_dpp v16, v16, v16 quad_perm:[1,0,3,2] row_mask:0xf bank_mask:0xf")
    a("v_add_f32_dpp v17, v17, v17 quad_perm:[1,0,3,2] row_mask:0xf bank_mask:0xf")
    a("v_cndmask_b32 %s, v16, v17, s[82:83]" % dst)

for n in range(32):
    e = ("k", n)
    ready(e)
    acc = 16 + (n & 15)
    for r in range(4):
        a("v_dot2_f32_bf16 v%d, v%d, v%d, %s" % (acc, reg_of(e) + r, 10 + r, "0" if r == 0 else "v%d" % acc))
    done(e)
    if n == 15: reduce_scatter("v14")
    if n == 31: reduce_scatter("v15")
stamp()

a("v_cvt_pk_bf16_f32 v16, v14, v15")
a("v_lshlrev_b32 v14, 16, v16")
a("v_and_b32 v15, 0xffff0000, v16")
a("v_mul_f32 v14, 0x3db504f3, v14")
a("v_mul_f32 v15, 0x3db504f3, v15")
a("v_cvt_pk_bf16_f32 v16, v14, v15")
a("v_lshlrev_b32 v14, 16, v16")
a("v_and_b32 v15, 0xffff0000, v16")
a("v_max_f32 v16, v14, v15")
wave_reduce("v16", "v_max_f32", "s84")
a("v_subrev_f32 v16, s84, v14")
a("v_subrev_f32 v17, s84, v15")
a("v_mul_f32 v16, 0x3fb8aa3b, v16")
a("v_mul_f32 v17, 0x3fb8aa3b, v17")
a("v_exp_f32 v16, v16")
a("v_exp_f32 v17, v17")
a("v_add_f32 v16, v16, v17")
wave_reduce("v16", "v_add_f32", "s85")
a("v_mov_b32 v16, s84")
a("v_mov_b32 v17, s85")
a("v_lshlrev_b32 v18, 3, v44")
a("s_mov_b64 exec, 1")
a("ds_write_b64 v18, v[16:17] offset:%d" % L_ST)
if A.thr:
    a("s_cmp_lg_u32 s26, 0\ns_cbranch_scc1 L_norank2")
    a("s_waitcnt vmcnt(%d)" % min(63, st["issued"] - RANK_POS))
    a("ds_write_b32 v18, v5 offset:%d" % (L_TK + 4))
    a("L_norank2:")
a("s_mov_b64 exec, -1")
a("v_and_b32 v18, 7, v0")
a("v_lshlrev_b32 v18, 3, v18")
a("s_waitcnt lgkmcnt(0)")
a("s_barrier")
a("ds_read_b64 v[16:17], v18 offset:%d" % L_ST)
if A.thr:
    a("v_mov_b32 v19, 0")
    a("ds_read_b32 v19, v19 offset:%d" % (L_TK + 4))
a("s_waitcnt lgkmcnt(0)")
if A.thr:
    a("v_readfirstlane_b32 s10, v19")
    a("s_min_u32 s10, s10, %d" % A.thr0)
    a("s_sub_u32 s10, %d, s10\ns_mul_i32 s10, s10, %d\ns_lshr_b32 s10, s10, 16" % (A.thr0, (A.thr << 16) // A.thr0))
a("v_mov_b32 v18, v16")
for m in ("quad_perm:[1,0,3,2]", "quad_perm:[2,3,0,1]", "row_half_mirror"):
    a("v_max_f32_dpp v18, v18, v18 %s row_mask:0xf bank_mask:0xf" % m)
a("v_sub_f32 v16, v16, v18")
a("v_mul_f32 v16, 0x3fb8aa3b, v16")
a("v_exp_f32 v16, v16")
a("v_mul_f32 v16, v16, v17")
for m in ("quad_perm:[1,0,3,2]", "quad_perm:[2,3,0,1]", "row_half_mirror"):
    a("v_add_f32_dpp v16, v16, v16 %s row_mask:0xf bank_mask:0xf" % m)
a("v_rcp_f32 v16, v16")
a("v_sub_f32 v14, v14, v18")
a("v_sub_f32 v15, v15, v18")
a("v_mul_f32 v14, 0x3fb8aa3b, v14")
a("v_mul_f32 v15, 0x3fb8aa3b, v15")
a("v_exp_f32 v14, v14")
a("v_exp_f32 v15, v15")
a("v_mul_f32 v14, v14, v16")
a("v_mul_f32 v15, v15, v16")
a("v_cvt_pk_bf16_f32 v14, v14, v14")
a("v_cvt_pk_bf16_f32 v15, v15, v15")
stamp()

def pv(n):
    ab = 32 + 4 * (n & 1)
    selector(ab, "v14" if n < 16 else "v15", n & 15)
    e = ("v", n)
    if A.sthr and A.sthr[0] <= n < A.sthr[1]:
        a("s_cmp_eq_u32 s10, 1\ns_cbranch_scc1 L_nt%d\ns_waitcnt vmcnt(%d)\nL_nt%d:" % (n, A.thrT, n))
    if A.thr and n < A.thr:
        a("s_cmp_le_u32 s10, %d\ns_cbranch_scc1 L_nt%d\ns_waitcnt vmcnt(%d)\nL_nt%d:" % (n, n, A.thrT, n))
    ready(e)
    a("v_mfma_f32_16x16x32_bf16 v[40:43], %s, %s, %s" % (t4(ab), t4(reg_of(e)), "0" if n == 0 else "v[40:43]"))
    done(e)

def dma(n, vregs, step):
    for t in range(n):
        a("s_mov_b32 m0, s3")
        a("buffer_load_dwordx4 %s, s[52:55], s13 offen %s lds" % (vregs[t % len(vregs)], A.dmod))
        if t < n - 1:
            a("s_add_u32 s3, s3, 1024")
            a("s_add_u32 s13, s13, %d" % step)

a("v_lshrrev_b32 v16, 2, v46")
a("v_lshlrev_b32 v16, 10, v16")
if A.rot >= 2:
    a("v_add_u32 v17, s76, v44")
    a("v_and_b32 v17, 7, v17")
    a("v_lshl_add_u32 v16, v17, 6, v16")
else:
    a("v_lshl_add_u32 v16, v44, 6, v16")
a("v_lshl_add_u32 v16, v45, 4, v16")
a("v_and_b32 v17, 3, v0")
a("v_lshl_add_u32 v16, v17, 2, v16")
a("v_mul_u32_u24 v18, 2560, v44")
a("v_lshl_add_u32 v18, v46, 5, v18")
a("v_lshl_add_u32 v18, v45, 4, v18")
a("v_bfe_u32 v19, v0, 2, 6")
a("v_mul_u32_u24 v19, 5, v19")
a("v_lshrrev_b32 v20, 8, v0")
a("v_mul_u32_u24 v20, 3, v20")
a("v_add3_u32 v19, v19, v20, v17")
a("v_lshlrev_b32 v19, 3, v19")
a("v_lshlrev_b32 v20, 2, v0")
a("v_mov_b32 v21, 0\nv_mov_b32 v22, 1")
a("s_and_b32 s77, s2, 7\ns_lshl_b32 s75, s77, 7\ns_add_u32 s75, s75, 65536")
a("s_mov_b32 s86, 0x88888888\ns_mov_b32 s87, 0x88888888")
if A.op2:
    for r in range(4):
        a("v_mov_b32_dpp v%d, v%d row_ror:8 row_mask:0xf bank_mask:0xf" % (27 + r, 6 + r))
    if A.lin:
        a("v_mul_u32_u24 v31, %d, v44" % YSTR)
        a("v_lshl_add_u32 v31, v1, 4, v31")
        a("v_and_b32 v11, 0xe0c, v19")
        a("v_bfe_u32 v10, v19, 4, 1")
        a("v_lshl_add_u32 v11, v10, 8, v11")
        a("v_bfe_u32 v10, v19, 5, 4")
        a("v_lshl_add_u32 v19, v10, 4, v11")
    else:
        a("v_mul_u32_u24 v31, 2560, v44")
        a("v_lshrrev_b32 v11, 1, v45")
        a("v_lshl_add_u32 v31, v11, 9, v31")
        a("v_lshl_add_u32 v31, v46, 5, v31")
        a("v_and_b32 v11, 1, v45")
        a("v_lshl_add_u32 v31, v11, 4, v31")
a("v_mul_u32_u24 v5, 80, v44")
a("v_lshrrev_b32 v11, 3, v1")
a("v_add_u32 v5, v5, v11")
a("v_mul_u32_u24 v5, 3456, v5")
a("v_and_b32 v11, 2, v11")
a("v_and_b32 v10, 7, v0")
a("v_xor_b32 v11, v10, v11")
a("v_lshl_add_u32 v25, v11, 4, v5")
a("v_xor_b32 v11, 4, v11")
a("v_lshl_add_u32 v26, v11, 4, v5")
a("s_mul_i32 s3, s26, 10240")
a("s_add_u32 s3, s3, %d" % L_W)
if A.pf:
    a("s_lshr_b32 s84, s2, 3")
    a("s_cmp_ge_u32 s26, 4")
    a("s_cselect_b32 s52, s18, s16\ns_cselect_b32 s53, s19, s17")
    a("s_mov_b32 s54, 2211840\ns_mov_b32 s55, 0x20000")
    a("v_mov_b32 v12, 0x7fffff00")
    a("s_cbranch_scc1 L_pf2")
    a("s_and_b32 s85, s84, 7\ns_mul_i32 s85, s85, 80")
    a("v_lshrrev_b32 v23, 1, v0")
    a("v_add_u32 v23, s85, v23")
    a("v_mul_u32_u24 v23, 3456, v23")
    a("v_and_b32 v13, 1, v0")
    a("v_lshl_add_u32 v23, v13, 6, v23")
    a("s_and_b32 s85, s84, 0x18\ns_add_u32 s85, s85, s77")
    a("s_cmp_lt_u32 s85, 27")
    a("s_cselect_b32 s84, 160, 0")
    a("s_lshl_b32 s85, s85, 7")
    a("v_add_u32 v23, s85, v23")
    a("v_cmp_gt_u32 vcc, s84, v0")
    a("v_cndmask_b32 v23, v12, v23, vcc")
    a("s_branch L_pfdone")
    a("L_pf2:")
    a("s_mul_i32 s84, s84, 54")
    a("v_bfe_u32 v23, v0, 2, 6")
    a("v_add_u32 v23, s84, v23")
    a("v_mul_u32_u24 v23, 1280, v23")
    a("v_lshl_add_u32 v23, v17, 6, v23")
    a("s_mul_i32 s85, s77, 160\ns_and_b32 s85, s85, 0xff80")
    a("v_add_u32 v23, s85, v23")
    a("v_cmp_gt_u32 vcc, %d, v0" % (256 + 216))
    a("v_cndmask_b32 v23, v12, v23, vcc")
    a("L_pfdone:")

if A.codepf2:
    a("s_getpc_b64 s[84:85]")
    a("L_pc2:")
    a("v_lshlrev_b32 v12, 4, v0")
    a("v_add_u32 v12, 1792, v12")
    a("v_min_u32 v12, L_end-L_pc2, v12")
    a("global_load_dword v13, v12, s[84:85]")
if A.sthr:
    a("s_bfe_u32 s10, s36, 0x20008")
if A.LV: A.L = A.LV
if A.tk2:
    st["gate"] = POS[("t", 0)]
    a("s_cmp_eq_u32 s26, %d\ns_cselect_b32 s11, s75, 0x7ffff000" % A.tkwave)
for n in range(32):
    pv(n)
    if A.pf >= 10 and n == A.pf - 10:
        a("buffer_load_dword v24, v23, s[52:55], 0 offen %s" % A.pfmod)
    if n == A.tkpos - 4: a("s_load_dword s89, s[22:23], 0")
    if n == A.tkpos:
        a("s_waitcnt lgkmcnt(0)")
        a("s_cmp_ge_u32 s89, 8")
        a("s_cbranch_scc0 L_initslow")
        a("L_initok:")
        if A.tk2:
            st["gate"] = len(S)
            continue
        if A.static:
            a("s_lshr_b32 s79, s2, 3\ns_xor_b32 s79, s79, 16")
            continue
        a("s_cmp_lg_u32 s26, %d" % A.tkwave)
        a("s_cbranch_scc1 L_notk")
        a("s_mov_b64 exec, 1")
        if A.static:
            a("s_lshr_b32 s84, s2, 3\ns_xor_b32 s84, s84, 16\nv_mov_b32 v22, s84")
        else:
            a("buffer_atomic_add v22, v21, s[48:51], s75 offen sc0 sc1")
        a("s_mov_b64 exec, -1")
        a("L_notk:")
assert st["issued"] == len(S)
stamp()
fine()
if A.pf == 2:
    a("buffer_load_dword v24, v23, s[52:55], 0 offen %s" % A.pfmod)
if A.pf == 5:
    a("s_cmp_ge_u32 s26, 4\ns_cbranch_scc1 L_pf5a")
    a("buffer_load_dword v24, v23, s[52:55], 0 offen %s" % A.pfmod)
    a("L_pf5a:")
a("s_mov_b32 exec_hi, 0")
a("ds_write_b128 v47, v[40:43] offset:%d" % L_PART)
if not (A.tk2 or A.static):
    a("s_cmp_lg_u32 s26, %d" % A.tkwave)
    a("s_cbranch_scc1 L_notk2")
    a("s_waitcnt vmcnt(0)")
    a("s_mov_b64 exec, 1")
    a("ds_write_b32 v21, v22 offset:%d" % L_TK)
    a("L_notk2:")
a("s_mov_b64 exec, -1")
a("s_waitcnt lgkmcnt(0)")
a("s_barrier")
fine()
a("ds_read2st64_b32 v[10:11], v16 offset0:%d offset1:%d" % (L_PART // 256, L_PART // 256 + 2))
if A.pf == 1:
    a("buffer_load_dword v24, v23, s[52:55], 0 offen %s" % A.pfmod)
if not (A.tk2 or A.static): a("ds_read_b32 v12, v21 offset:%d" % L_TK)
a("s_waitcnt lgkmcnt(0)")
a("v_add_f32 v10, v10, v11")
if not (A.tk2 or A.static): a("v_readfirstlane_b32 s79, v12")
if A.edma:
    a("s_lshl_b32 s84, s79, 3\ns_add_u32 s84, s84, s77\ns_sub_u32 s84, s84, %d" % FFN2_N)
    a("s_min_u32 s85, s79, 9\ns_cmp_lt_u32 s85, 9\ns_cselect_b32 s84, s84, 99")
    a("s_cmp_ge_u32 s84, %d" % FFN1_N)
    a("s_cbranch_scc1 L_noedma")
    a("s_mov_b32 s52, s16\ns_mov_b32 s53, s17\ns_mov_b32 s54, 2211840\ns_mov_b32 s55, 0x20000")
    a("s_lshl_b32 s13, s84, 7")
    dma(10, ["v25", "v26"], 27648)
    a("L_noedma:")
a("v_add_f32_dpp v10, v10, v10 row_ror:4 row_mask:0xf bank_mask:0xf")
a("v_add_f32_dpp v10, v10, v10 row_ror:8 row_mask:0xf bank_mask:0xf")
a("v_cvt_pk_bf16_f32 v10, v10, v10")
fine()
YA = 128
if A.op3:
    def wr3(cb):
        a("s_mov_b32 exec_hi, 0")
        a("ds_write_b128 v18, %s offset:%d" % (t4(YA + 4 * cb), L_YP + 512 * cb))
        a("s_mov_b32 exec_hi, -1")
    selector(48, "v10", 0)
    selector(52, "v10", 1)
    for cb in range(5):
        for r4 in range(4):
            acc = t4(YA + 4 * cb)
            a("v_mfma_f32_16x16x32_bf16 %s, %s, %s, %s" % (acc, t4(48 + 4 * r4), t4(WO + 4 * (5 * r4 + cb)), "0" if r4 == 0 else acc))
            if cb == 0 and r4 < 2: selector(56 + 4 * r4, "v10", r4 + 2)
        if cb >= 2: wr3(cb - 2)
    wr3(3); wr3(4)
elif A.op2:
    def sel2(r4, hi):
        for r in range(4):
            a("v_and_b32_dpp v%d, v10, v%d row_newbcast:%d row_mask:0xf bank_mask:0xf" % (48 + 8 * r4 + 4 * hi + r, (27 if hi else 6) + r, r4))
    def mm(acc, r4, hi, cb, first):
        a("v_mfma_f32_16x16x32_bf16 %s, %s, %s, %s" % (t4(acc), t4(48 + 8 * r4 + 4 * hi), t4(WO + 4 * (5 * r4 + cb)), "0" if first else t4(acc)))
    if A.op4:
        def and1(r4, hi, r):
            a("v_and_b32_dpp v%d, v10, v%d row_newbcast:%d row_mask:0xf bank_mask:0xf" % (48 + 8 * r4 + 4 * hi + r, (27 if hi else 6) + r, r4))
        if A.op4 == 2: a("s_setprio 1")
        sel2(0, 0); sel2(0, 1)
        for r4 in range(4):
            nxt = [(r4 + 1, hi, r) for hi in range(2) for r in range(4)] if r4 < 3 else []
            for k, (acc, hi, cb) in enumerate([(YA, 0, 0), (YA + 4, 0, 2), (YA + 8, 0, 4), (YA, 1, 1), (YA + 4, 1, 3)]):
                mm(acc, r4, hi, cb, r4 == 0 and hi == 0)
                for x in nxt[2 * k:2 * k + 2]: and1(*x)
        if A.op4 == 2: a("s_setprio 0")
        a("s_mov_b32 exec_hi, 0")
        a("ds_write_b128 v31, %s offset:%d" % (t4(YA + 8), L_YP + 2048))
        a("s_mov_b64 exec, -1")
        a("ds_write_b128 v31, %s offset:%d" % (t4(YA), L_YP))
        a("ds_write_b128 v31, %s offset:%d" % (t4(YA + 4), L_YP + 1024))
    else:
        sel2(0, 0); sel2(0, 1)
        for r4 in range(4):
            mm(YA, r4, 0, 0, r4 == 0)
            if r4 < 3: sel2(r4 + 1, 0)
            mm(YA, r4, 1, 1, False)
            if r4 < 3: sel2(r4 + 1, 1)
        for r4 in range(4):
            mm(YA + 4, r4, 0, 2, r4 == 0)
            mm(YA + 4, r4, 1, 3, False)
        a("ds_write_b128 v31, %s offset:%d" % (t4(YA), L_YP))
        for r4 in range(4):
            mm(YA + 8, r4, 0, 4, r4 == 0)
        a("ds_write_b128 v31, %s offset:%d" % (t4(YA + 4), L_YP + 1024))
    if not A.op4:
        a("s_mov_b32 exec_hi, 0")
        a("ds_write_b128 v31, %s offset:%d" % (t4(YA + 8), L_YP + 2048))
        a("s_mov_b64 exec, -1")
else:
    for r4 in range(4):
        ab = 32 + 4 * (r4 & 1)
        selector(ab, "v10", r4)
        for cb in range(5):
            acc = t4(YA + 4 * cb)
            a("v_mfma_f32_16x16x32_bf16 %s, %s, %s, %s" % (acc, t4(ab), t4(WO + 4 * (5 * r4 + cb)), "0" if r4 == 0 else acc))
    a("s_mov_b32 exec_hi, 0")
    for cb in range(5):
        a("ds_write_b128 v18, %s offset:%d" % (t4(YA + 4 * cb), L_YP + 512 * cb))
    a("s_mov_b64 exec, -1")
if A.pf == 3:
    a("buffer_load_dword v24, v23, s[52:55], 0 offen %s" % A.pfmod)
if A.pf == 5:
    a("s_cmp_lt_u32 s26, 4\ns_cbranch_scc1 L_pf5b")
    a("buffer_load_dword v24, v23, s[52:55], 0 offen %s" % A.pfmod)
    a("L_pf5b:")
fine()
a("s_lshl_b32 s84, s76, 12")
a("s_waitcnt lgkmcnt(0)")
fine()
if A.fine: a("s_waitcnt lgkmcnt(0)")
a("s_barrier")
fine()
if A.fine: a("s_waitcnt lgkmcnt(0)")
YS = 148
for w in range(8):
    a("ds_read_b64 v[%d:%d], v19 offset:%d" % (YS + 2 * w, YS + 2 * w + 1, L_YP + YSTR * w))
for s_ in (4, 2, 1):
    for w in range(s_):
        if s_ == 4: a("s_waitcnt lgkmcnt(%d)" % (3 - w))
        a("v_pk_add_f32 v[%d:%d], v[%d:%d], v[%d:%d]" % (YS + 2 * w, YS + 2 * w + 1, YS + 2 * w, YS + 2 * w + 1, YS + 2 * (w + s_), YS + 2 * (w + s_) + 1))
a("v_cndmask_b32 v10, v%d, 1.0, s[86:87]" % YS)
a("v_cndmask_b32 v11, v%d, 1.0, s[86:87]" % (YS + 1))
a("buffer_atomic_add_f32 v10, v20, s[48:51], s84 offen")
a("buffer_atomic_add_f32 v11, v20, s[48:51], s84 offen offset:2048")
if A.pf == 4:
    a("buffer_load_dword v24, v23, s[52:55], 0 offen %s" % A.pfmod)
fine()
stamp()
if A.fine:
    for k, sl in enumerate((93, 94, 95, 98, 99, 100)):
        a("s_sub_u32 s%d, s%d, s%d" % (sl, FINE[k + 1], FINE[k]))
    a("s_mov_b32 s27, 99\ns_branch L_fin")
a("s_mov_b32 s27, 99")
if A.tk2:
    a("s_waitcnt vmcnt(%d)" % (3 if A.pf in (1, 2, 3, 4, 5) else 2))
    a("s_cmp_lg_u32 s26, %d" % A.tkwave)
    a("s_cbranch_scc1 L_notk2")
    a("s_mov_b64 exec, 1")
    a("ds_write_b32 v21, v22 offset:%d" % L_TK)
    a("s_mov_b64 exec, -1")
    a("s_waitcnt lgkmcnt(0)")
    a("L_notk2:")
    a("s_barrier")
    a("ds_read_b32 v12, v21 offset:%d" % L_TK)
    a("s_waitcnt lgkmcnt(0)")
    a("v_readfirstlane_b32 s79, v12")
    a("s_cmp_ge_u32 s79, 9")
    a("s_cbranch_scc1 L_fin")
else:
    a("s_cmp_ge_u32 s79, 9")
    a("s_cbranch_scc1 L_fin")
    a("s_barrier")
a("s_mov_b32 s54, 2211840\ns_mov_b32 s55, 0x20000")
a("s_mov_b32 s85, 0x42000000")
a("s_mov_b32 s88, 0")
a("v_and_b32 v10, 7, v0")
if A.f1first:
    a("s_add_u32 s84, s79, 5\ns_sub_u32 s79, s79, 4\ns_cselect_b32 s79, s84, s79")
a("s_mul_i32 s27, s77, 5\ns_add_u32 s27, s27, s79")
a("s_cmp_lt_u32 s79, 5")
a("s_cbranch_scc1 L_ffn2")
a("s_lshl_b32 s27, s79, 3\ns_add_u32 s27, s27, s77")
a("s_cmp_ge_u32 s27, %d" % (FFN2_N + FFN1_N))
a("s_cbranch_scc1 L_fin")

AF = 48; BF = 128; XF = 208; GR = 220
a("s_sub_u32 s79, s27, %d" % FFN2_N)
a("s_mov_b32 s52, s16\ns_mov_b32 s53, s17")
a("s_lshl_b32 s13, s79, 7")
if not A.edma:
    dma(10, ["v25", "v26"], 27648)
a("v_mul_u32_u24 v23, 20, v1")
a("v_mul_u32_u24 v21, 1280, v44")
a("v_add_u32 v21, v21, v23")
XR = 248
a("buffer_load_dwordx4 v[%d:%d], v21, s[44:47], 0 offen" % (XR, XR + 3))
a("buffer_load_dword v%d, v21, s[44:47], 0 offen offset:16" % (XR + 4))
a("v_lshlrev_b32 v22, 12, v44")
a("v_lshl_add_u32 v22, v1, 4, v22")
def poll1_issue():
    for m in range(4):
        a("buffer_load_dwordx4 %s, v22, s[48:51], 0 offen offset:%d %s" % (t4(GR + 4 * m), 1024 * m, A.pmod))
if not A.nopre: poll1_issue()
a("v_mul_u32_u24 v11, %d, v44" % HN_STRIDE)
a("v_add_u32 v23, v23, v11")
a("v_add_u32 v35, %d, v23" % L_HN)
a("v_mul_u32_u24 v29, %d, v10" % HN_STRIDE)
a("v_lshl_add_u32 v29, v45, 4, v29")
a("v_lshlrev_b32 v30, 4, v10")
if A.pair2:
    a("v_and_b32 v11, 1, v44")
    a("v_lshl_add_u32 v30, v11, 9, v30")
    a("v_bfe_u32 v11, v44, 1, 1")
    a("v_lshl_add_u32 v30, v11, 7, v30")
    a("v_lshrrev_b32 v11, 1, v45")
    a("v_lshl_add_u32 v30, v11, 8, v30")
else:
    a("v_lshl_add_u32 v30, v44, 8, v30")
    a("v_lshrrev_b32 v11, 1, v45")
    a("v_lshl_add_u32 v30, v11, 7, v30")
a("v_and_b32 v11, 1, v45")
a("v_lshl_add_u32 v30, v11, 3, v30")
a("v_lshrrev_b32 v12, 2, v46")
a("v_lshl_add_u32 v12, v45, 3, v12")
a("v_lshlrev_b32 v12, 7, v12")
a("v_lshrrev_b32 v13, 3, v46")
a("v_lshl_add_u32 v13, v11, 1, v13")
a("v_and_b32 v11, 3, v44")
a("v_xor_b32 v11, v11, v13")
a("v_lshl_add_u32 v12, v11, 5, v12")
a("v_lshl_add_u32 v12, v17, 3, v12")
a("v_add_u32 v12, %d, v12" % L_W)
a("v_add_u32 v13, 40960, v12")
if A.warm1:
    a("s_mov_b32 s78, 0")
    a("s_branch L_f1_body")
    a("L_f1_resume:")
a("s_waitcnt vmcnt(%d)" % ((0 if A.nopre else 4) + (4 if A.edma else 0)))
if A.stamp and A.st8 == "dma":
    a("s_memrealtime s[90:91]\ns_waitcnt lgkmcnt(0)\ns_mov_b32 s100, s90")
a("s_barrier")
a("s_cmp_ge_u32 s26, 4")
a("s_cbranch_scc1 L_notr")
for ks in range(20):
    base, off = ("v12", ks * 4096) if ks < 10 else ("v13", (ks - 10) * 4096)
    a("ds_read_b64_tr_b16 v[%d:%d], %s offset:%d" % (AF + 4 * ks, AF + 4 * ks + 1, base, off))
    a("ds_read_b64_tr_b16 v[%d:%d], %s offset:%d" % (AF + 4 * ks + 2, AF + 4 * ks + 3, base, off + 512))
a("L_notr:")
if A.nopre and not A.light: poll1_issue()
if A.light: a("v_mov_b32 v%d, 0" % (GR + 3))
if A.edma: a("s_waitcnt vmcnt(4)")
for k in range(5):
    a("v_lshlrev_b32 v%d, 16, v%d" % (XF + 2 * k, XR + k))
    a("v_and_b32 v%d, 0xffff0000, v%d" % (XF + 2 * k + 1, XR + k))
if A.light:
    import struct as _st
    a("s_mov_b32 s84, 0x%08x" % _st.unpack("<I", _st.pack("<f", float(A.light)))[0])
    a("s_waitcnt vmcnt(0)")
    a("s_mov_b32 s78, 1")
    a("s_lshl_b32 s10, s79, 7")
    a("s_mov_b64 exec, 1")
    a("L_light:")
    a("v_cmp_gt_f32 vcc, s84, v%d" % (GR + 3))
    a("s_add_u32 s88, s88, 1")
    a("s_cmp_gt_u32 s88, %d" % SPIN_MAX)
    a("s_cbranch_scc1 L_light_done")
    a("s_cbranch_vccz L_light_done")
    if A.sleep: a("s_sleep %d" % A.sleep)
    a("buffer_load_dword v%d, v22, s[48:51], %s offen offset:12 %s" % (GR + 3, "s10" if A.spread else "0", A.pmod))
    a("s_waitcnt vmcnt(0)")
    a("s_branch L_light")
    a("L_light_done:")
    a("s_mov_b64 exec, -1")
elif A.warm:
    a("s_mov_b32 s78, 0")
    a("s_waitcnt vmcnt(0)")
    a("s_branch L_f1_body")
else:
    a("s_mov_b32 s78, 1")
    a("s_branch L_poll1_chk")
if A.D1:
    sets = [GR] + [BF + 16 * k for k in range(A.D1 - 1)]
    def p1(g):
        for m in range(4):
            a("buffer_load_dwordx4 %s, v22, s[48:51], 0 offen offset:%d %s" % (t4(g + 4 * m), 1024 * m, A.pmod))
    a("L_poll1_chk:")
    for g in sets[1:]:
        if A.pace: a("s_sleep %d" % A.pace)
        p1(g)
    a("L_poll1:")
    for k, g in enumerate(sets):
        a("s_waitcnt vmcnt(%d)" % (4 * (A.D1 - 1)))
        a("v_min_f32 v31, v%d, v%d" % (g + 3, g + 7))
        a("v_min3_f32 v31, v31, v%d, v%d" % (g + 11, g + 15))
        a("v_cmp_ne_u32 vcc, s85, v31")
        a("s_cbranch_vccz L_p1x%d" % k)
        if A.pace: a("s_sleep %d" % A.pace)
        p1(g)
    a("s_add_u32 s88, s88, 1")
    a("s_cmp_gt_u32 s88, %d" % SPIN_MAX)
    a("s_cbranch_scc0 L_poll1")
    for k, g in reversed(list(enumerate(sets))):
        a("L_p1x%d:" % k)
        for q, (x, y) in enumerate([(0, 8), (1, 9), (2, 10), (4, 12), (5, 13)]):
            a("v_cvt_pk_bf16_f32 v%d, v%d, v%d" % (24 + q, g + x, g + y))
        if k: a("s_branch L_p1done")
    a("L_p1done:")
    stamp()
    XH = 238
    GR = 10
else:
    a("L_poll1:")
    if A.sl1: a("s_sleep %d" % A.sl1)
    poll1_issue()
    a("L_poll1_chk:")
    a("s_add_u32 s88, s88, 1")
    a("s_waitcnt vmcnt(0)")
    a("v_min_f32 v31, v%d, v%d" % (GR + 3, GR + 7))
    a("v_min3_f32 v31, v31, v%d, v%d" % (GR + 11, GR + 15))
    a("v_cmp_ne_u32 vcc, s85, v31")
    a("s_cmp_gt_u32 s88, %d" % SPIN_MAX)
    a("s_cbranch_scc1 L_poll1_done")
    a("s_cbranch_vccnz %s" % ("L_adapt" if A.adapt else "L_poll1"))
    a("L_poll1_done:")
    stamp()
    a("L_f1_body:")
    XH = 238
    pairs = [(GR + 0, GR + 8), (GR + 1, GR + 9), (GR + 2, GR + 10), (GR + 4, GR + 12), (GR + 5, GR + 13)]
    for k in range(5):
        a("v_cvt_pk_bf16_f32 v%d, v%d, v%d" % (24 + k, pairs[k][0], pairs[k][1]))
if A.ln1:
    def pk(op, d, x, y, extra=""):
        a("%s v[%d:%d], v[%d:%d], v[%d:%d]%s" % (op, d, d + 1, x, x + 1, y, y + 1, extra))
    def unpack(d, src):
        a("v_lshlrev_b32 v%d, 16, v%d" % (d, src)); a("v_and_b32 v%d, 0xffff0000, v%d" % (d + 1, src))
    for k in range(5): unpack(GR + 2 * k, 24 + k)
    for k in range(5): pk("v_pk_add_f32", GR + 2 * k, GR + 2 * k, XF + 2 * k)
    for k in range(5): a("v_cvt_pk_bf16_f32 v%d, v%d, v%d" % (24 + k, GR + 2 * k, GR + 2 * k + 1))
    if A.pivot:
        unpack(XH, 24)
        unpack(XH + 2, 25)
        a("v_readfirstlane_b32 s10, v%d" % XH)
        for k in range(2, 5): unpack(XH + 2 * k, 24 + k)
        a("s_mov_b32 s11, s10")
        for k in range(5):
            a("v_pk_add_f32 v[%d:%d], v[%d:%d], s[10:11] neg_lo:[0,1] neg_hi:[0,1]" % (GR + 2 * k, GR + 2 * k + 1, XH + 2 * k, XH + 2 * k + 1))
        pk("v_pk_add_f32", 36, GR, GR + 2)
        pk("v_pk_mul_f32", 38, GR, GR)
        for k in range(1, 5):
            if k >= 2: pk("v_pk_add_f32", 36, 36, GR + 2 * k)
            a("v_pk_fma_f32 v[38:39], v[%d:%d], v[%d:%d], v[38:39]" % (GR + 2 * k, GR + 2 * k + 1, GR + 2 * k, GR + 2 * k + 1))
        a("v_add_f32 v32, v36, v37")
        a("v_add_f32 v33, v38, v39")
        for m in ("quad_perm:[1,0,3,2] row_mask:0xf", "quad_perm:[2,3,0,1] row_mask:0xf", "row_half_mirror row_mask:0xf",
                  "row_mirror row_mask:0xf", "row_bcast:15 row_mask:0xa", "row_bcast:31 row_mask:0xc"):
            a("v_add_f32_dpp v32, v32, v32 %s bank_mask:0xf" % m)
            a("v_add_f32_dpp v33, v33, v33 %s bank_mask:0xf" % m)
        a("v_mov_b32 v36, 0x3acccccd")
        a("v_readlane_b32 s84, v32, 63")
        a("v_readlane_b32 s12, v33, 63")
        a("v_mul_f32 v37, s84, v36")
        a("v_mul_f32 v32, s12, v36")
        a("v_add_f32 v38, s10, v37")
        a("v_fma_f32 v32, -v37, v37, v32")
    else:
        a("s_mov_b32 s12, 0x3f803f80")
        for k in range(5):
            a("v_dot2_f32_bf16 v32, v%d, s12, %s" % (24 + k, "0" if k == 0 else "v32"))
            a("v_dot2_f32_bf16 v33, v%d, v%d, %s" % (24 + k, 24 + k, "0" if k == 0 else "v33"))
        fill = [("v_lshlrev_b32 v%d, 16, v%d" % (XH + 2 * k, 24 + k), "v_and_b32 v%d, 0xffff0000, v%d" % (XH + 2 * k + 1, 24 + k)) for k in range(5)]
        fill = [x for pr in fill for x in pr]
        a(fill.pop(0)); a(fill.pop(0)); a(fill.pop(0))
        for m in ("quad_perm:[1,0,3,2] row_mask:0xf", "quad_perm:[2,3,0,1] row_mask:0xf", "row_half_mirror row_mask:0xf",
                  "row_mirror row_mask:0xf", "row_bcast:15 row_mask:0xa", "row_bcast:31 row_mask:0xc"):
            a("v_add_f32_dpp v32, v32, v32 %s bank_mask:0xf" % m)
            a("v_add_f32_dpp v33, v33, v33 %s bank_mask:0xf" % m)
            a(fill.pop(0))
        a("v_readlane_b32 s84, v32, 63")
        a("v_readlane_b32 s12, v33, 63")
        a(fill.pop(0))
        a("v_mov_b32 v33, 0x3acccccd")
        a("v_mul_f32 v38, s84, v33")
        a("v_mul_f32 v32, s12, v33")
        a("v_fma_f32 v32, -v38, v38, v32")
    a("v_max_f32 v32, 0, v32")
    a("v_cvt_pk_bf16_f32 v32, v32, v38")
    a("v_and_b32 v38, 0xffff0000, v32")
    a("v_lshlrev_b32 v32, 16, v32")
    a("v_add_f32 v32, 0x3727c5ac, v32")
    a("v_mov_b32 v39, v38")
    a("v_cvt_pk_bf16_f32 v32, v32, v32")
    for k in range(2): pk("v_pk_add_f32", XH + 2 * k, XH + 2 * k, 38, " neg_lo:[0,1] neg_hi:[0,1]")
    a("v_lshlrev_b32 v32, 16, v32")
    a("v_sqrt_f32 v32, v32")
    for k in range(2, 5): pk("v_pk_add_f32", XH + 2 * k, XH + 2 * k, 38, " neg_lo:[0,1] neg_hi:[0,1]")
    a("v_cvt_pk_bf16_f32 v32, v32, v32")
    for k in range(5): a("v_cvt_pk_bf16_f32 v%d, v%d, v%d" % (24 + k, XH + 2 * k, XH + 2 * k + 1))
    a("v_lshlrev_b32 v32, 16, v32")
    a("v_rcp_f32 v36, v32")
    for k in range(5): unpack(XH + 2 * k, 24 + k)
    a("v_mov_b32 v37, v36")
    for k in range(5): pk("v_pk_mul_f32", XH + 2 * k, XH + 2 * k, 36)
    for k in range(5): a("v_cvt_pk_bf16_f32 v%d, v%d, v%d" % (24 + k, XH + 2 * k, XH + 2 * k + 1))
    a("v_add_u32 v23, %d, v23" % L_HN) if False else None
    a("ds_write2_b32 v35, v24, v25 offset0:0 offset1:1")
    a("ds_write2_b32 v35, v26, v27 offset0:2 offset1:3")
    a("ds_write_b32 v35, v28 offset:16")
else:
    for k in range(5):
        a("v_lshlrev_b32 v%d, 16, v%d" % (GR + 2 * k, 24 + k))
        a("v_and_b32 v%d, 0xffff0000, v%d" % (GR + 2 * k + 1, 24 + k))
    for k in range(10):
        a("v_add_f32 v%d, v%d, v%d" % (GR + k, GR + k, XF + k))
    for k in range(5):
        a("v_cvt_pk_bf16_f32 v%d, v%d, v%d" % (24 + k, GR + 2 * k, GR + 2 * k + 1))
    for k in range(5):
        a("v_lshlrev_b32 v%d, 16, v%d" % (XH + 2 * k, 24 + k))
        a("v_and_b32 v%d, 0xffff0000, v%d" % (XH + 2 * k + 1, 24 + k))
    ln_stats(["v%d" % (XH + k) for k in range(10)], ["v31", "v32", "v33"], "v38", "v39")
    for k in range(10):
        a("v_sub_f32 v%d, v%d, v38" % (XH + k, XH + k))
    for k in range(5):
        a("v_cvt_pk_bf16_f32 v%d, v%d, v%d" % (24 + k, XH + 2 * k, XH + 2 * k + 1))
    for k in range(5):
        a("v_lshlrev_b32 v%d, 16, v%d" % (XH + 2 * k, 24 + k))
        a("v_and_b32 v%d, 0xffff0000, v%d" % (XH + 2 * k + 1, 24 + k))
    for k in range(10):
        a("v_mul_f32 v%d, v%d, v39" % (XH + k, XH + k))
    for k in range(5):
        a("v_cvt_pk_bf16_f32 v%d, v%d, v%d" % (24 + k, XH + 2 * k, XH + 2 * k + 1))
        a("ds_write_b32 v23, v%d offset:%d" % (24 + k, L_HN + 4 * k))
a("s_waitcnt lgkmcnt(0)")
a("s_barrier")
if A.stamp and A.st8 == "hn":
    a("s_memrealtime s[90:91]\ns_waitcnt lgkmcnt(0)\ns_mov_b32 s100, s90")
a("s_cmp_ge_u32 s26, 4")
a("s_cbranch_scc1 L_f1_skip")
if A.D1: a("s_waitcnt vmcnt(0)")
GR = 220
PRE = A.f1pre
for ks in range(PRE):
    a("ds_read_b128 %s, v29 offset:%d" % (t4(BF + 4 * ks), L_HN + 64 * ks))
for ks in range(20):
    a("s_waitcnt lgkmcnt(%d)" % min(15, min(19, ks + PRE - 1) - ks))
    a("v_mfma_f32_16x16x32_bf16 v[40:43], %s, %s, %s" % (t4(AF + 4 * ks), t4(BF + 4 * ks), "0" if ks == 0 else "v[40:43]"))
    if ks + PRE < 20:
        a("ds_read_b128 %s, v29 offset:%d" % (t4(BF + 4 * (ks + PRE)), L_HN + 64 * (ks + PRE)))
a("s_lshl_b32 s84, s79, 10")
if not A.st4:
    a("s_mov_b32 exec_lo, 0x00ff00ff\ns_mov_b32 exec_hi, 0x00ff00ff")
for r in range(4):
    a("v_max_f32 v%d, 0, v%d" % (40 + r, 40 + r))
if A.st4:
    a("v_cvt_pk_bf16_f32 v36, v40, v41")
    a("v_cvt_pk_bf16_f32 v38, v40, v41")
    a("v_cvt_pk_bf16_f32 v37, v42, v43")
    a("v_cvt_pk_bf16_f32 v39, v42, v43")
    a("v_permlane16_swap_b32 v36, v38")
    a("v_permlane16_swap_b32 v37, v39")
    a("s_mov_b32 exec_lo, 0xff\ns_mov_b32 exec_hi, 0xff")
else:
    a("v_cvt_pk_bf16_f32 v40, v40, v41")
    a("v_cvt_pk_bf16_f32 v41, v42, v43")
W1 = A.warm or A.warm1
if W1:
    a("s_cmp_eq_u32 s78, 0")
    a("s_cbranch_scc1 L_f1_nost")
if A.st4:
    a("buffer_store_dwordx4 v[36:39], v30, s[60:63], s84 offen %s" % A.pmod)
else:
    a("buffer_store_dwordx2 v[40:41], v30, s[60:63], s84 offen %s" % A.pmod)
a("L_f1_nost:")
a("s_mov_b64 exec, -1")
stamp()
a("L_f1_skip:")
if W1:
    a("s_cmp_eq_u32 s78, 0")
    a("s_cbranch_scc0 L_fin")
if not W1:
    a("s_branch L_fin" if A.stamp else "s_endpgm")
elif A.warm1:
    a("s_branch L_f1_resume")
else:
    a("s_mov_b32 s78, 1")
    a("s_barrier")
    a("s_branch L_poll1")

if A.stamp: stamp_idx[0] = 6
a("L_ffn2:")
a("s_mov_b32 s52, s18\ns_mov_b32 s53, s19")
a("s_lshl_b32 s13, s27, 5")
a("s_mov_b32 s79, s13")
if A.pair2:
    a("v_lshrrev_b32 v5, 1, v1")
    a("v_lshl_add_u32 v5, v44, 6, v5")
else:
    a("v_lshrrev_b32 v5, 1, v0")
a("v_mul_u32_u24 v5, 1280, v5")
a("v_and_b32 v11, 1, v0")
a("v_lshl_add_u32 v5, v11, 4, v5")
NF2 = 8 if A.pair2 else 7
if A.pair2:
    for t in range(8):
        a("s_mov_b32 m0, s3")
        a("buffer_load_dwordx4 v5, s[52:55], s13 offen %s lds" % A.dmod)
        if t < 7:
            a("s_add_u32 s3, s3, 1024")
            a("s_add_u32 s13, s13, %d" % (40960 if t % 2 == 0 else 655360 - 40960))
else:
    dma(7 - A.late2, ["v5"], 327680)
a("v_mul_u32_u24 v21, 1280, v10")
a("v_lshl_add_u32 v21, v45, 3, v21")
a("buffer_load_dwordx2 v[24:25], v21, s[44:47], s79 offen")
a("v_mul_u32_u24 v12, 10240, v44")
a("v_lshl_add_u32 v12, v45, 8, v12")
a("v_lshl_add_u32 v12, v46, 3, v12")
a("v_add_u32 v12, %d, v12" % L_W)
if A.pair2:
    a("v_lshlrev_b32 v22, 4, v0")
else:
    a("v_lshlrev_b32 v22, 9, v44")
    a("v_lshl_add_u32 v22, v45, 7, v22")
    a("v_lshl_add_u32 v22, v10, 4, v22")
a("v_lshlrev_b32 v16, 4, v0")
a("v_lshlrev_b32 v17, 4, v1")
if A.fin2:
    a("v_bfe_u32 v11, v0, 3, 1")
    a("v_mul_u32_u24 v11, %d, v11" % (4096 - 128))
    a("v_add_u32 v17, v17, v11")
a("s_mov_b32 s78, 1")
if A.warm or A.warm2:
    a("s_mov_b32 s78, 0")
    a("s_branch L_f2_body")
    a("L_f2_real:")
    a("s_mov_b32 s78, 1")
a("s_cmp_lg_u32 s26, 0")
a("s_cbranch_scc1 L_ffn2_noh")
a("s_lshl_b32 s84, s27, 4")
a("v_lshlrev_b32 v11, 2, v45")
a("v_add_u32 v11, s84, v11")
for r in range(4):
    a("v_add_u32 v13, %d, v11" % r)
    a("v_mul_u32_u24 v29, 205, v13")
    a("v_lshrrev_b32 v29, 11, v29")
    a("v_mul_u32_u24 v30, 10, v29")
    a("v_sub_u32 v13, v13, v30")
    a("v_and_b32 v30, 1, v13")
    a("v_lshrrev_b32 v13, 1, v13")
    a("v_mul_u32_u24 v31, 11, v13")
    a("v_lshrrev_b32 v31, 5, v31")
    a("v_lshl_add_u32 v30, v30, 1, v31")
    a("v_mul_u32_u24 v31, 3, v31")
    a("v_sub_u32 v%d, v13, v31" % (XF + 4 + r))
    a("v_lshl_add_u32 v29, v30, 6, v29")
    a("v_lshlrev_b32 v29, 4, v29")
    a("v_lshl_add_u32 v%d, v10, 12, v29" % (XF + r))
if A.light or A.light2:
    a("v_lshlrev_b32 v29, 12, v10")
    if A.spread:
        a("s_and_b32 s84, s27, 31\ns_lshl_b32 s84, s84, 7\nv_add_u32 v29, s84, v29")
    a("s_mov_b32 s84, 0x42000000")
    a("s_mov_b64 exec, 0xff")
    a("L_light2:")
    if A.sl2: a("s_sleep %d" % A.sl2)
    a("buffer_load_dword v30, v29, s[48:51], 0 offen offset:12 %s" % A.pmod)
    a("s_add_u32 s88, s88, 1")
    a("s_waitcnt vmcnt(0)")
    a("v_cmp_gt_f32 vcc, s84, v30")
    a("s_cmp_gt_u32 s88, %d" % SPIN_MAX)
    a("s_cbranch_scc1 L_light2_done")
    a("s_cbranch_vccnz L_light2")
    a("L_light2_done:")
    a("s_mov_b64 exec, -1")
a("L_poll2h:")
if A.sleep: a("s_sleep %d" % A.sleep)
for r in range(4):
    a("buffer_load_dwordx4 %s, v%d, s[48:51], 0 offen %s" % (t4(GR + 4 * r), XF + r, A.pmod))
a("s_add_u32 s88, s88, 1")
a("s_waitcnt vmcnt(0)")
a("v_min_f32 v31, v%d, v%d" % (GR + 3, GR + 7))
a("v_min3_f32 v31, v31, v%d, v%d" % (GR + 11, GR + 15))
a("v_cmp_ne_u32 vcc, s85, v31")
a("s_cmp_gt_u32 s88, %d" % SPIN_MAX)
a("s_cbranch_scc1 L_poll2h_done")
a("s_cbranch_vccnz L_poll2h")
a("L_poll2h_done:")
for r in range(4):
    a("v_cmp_eq_u32 vcc, 1, v%d" % (XF + 4 + r))
    a("v_cndmask_b32 v%d, v%d, v%d, vcc" % (GR + 4 * r, GR + 4 * r, GR + 4 * r + 1))
    a("v_cmp_eq_u32 vcc, 2, v%d" % (XF + 4 + r))
    a("v_cndmask_b32 v%d, v%d, v%d, vcc" % (GR + 4 * r, GR + 4 * r, GR + 4 * r + 2))
for k in range(2):
    a("v_cvt_pk_bf16_f32 v31, v%d, v%d" % (GR + 8 * k, GR + 8 * k + 4))
    a("v_lshlrev_b32 v32, 16, v31")
    a("v_and_b32 v33, 0xffff0000, v31")
    a("v_lshlrev_b32 v34, 16, v%d" % (24 + k))
    a("v_and_b32 v35, 0xffff0000, v%d" % (24 + k))
    a("v_add_f32 v32, v32, v34")
    a("v_add_f32 v33, v33, v35")
    a("v_cvt_pk_bf16_f32 v31, v32, v33")
    a("v_lshlrev_b32 v%d, 16, v31" % (XF + 2 * k))
    a("v_and_b32 v%d, 0xffff0000, v31" % (XF + 1 + 2 * k))
a("L_ffn2_noh:")
a("s_waitcnt vmcnt(0)")
def f2_frags(rng=None):
    for t in (rng if rng is not None else range(NF2 - A.late2)):
        a("ds_read_b64_tr_b16 v[%d:%d], v12 offset:%d" % (AF + 4 * t, AF + 4 * t + 1, 1024 * t))
        a("ds_read_b64_tr_b16 v[%d:%d], v12 offset:%d" % (AF + 4 * t + 2, AF + 4 * t + 3, 1024 * t + 128))
if not A.defer2: f2_frags()
stamp()
if A.f2bar:
    a("s_barrier")
if A.late2:
    a("s_add_u32 s3, s3, 1024\ns_add_u32 s13, s13, 327680")
    dma(A.late2, ["v5"], 327680)
if A.defer2:
    f2_frags()
    a("s_waitcnt lgkmcnt(0)")
a("s_mov_b32 s88, 0")
if A.pair2:
    a("L_poll2:")
    for t in range(4):
        a("buffer_load_dwordx4 %s, v22, s[60:63], %s offen %s" % (t4(BF + 4 * t), soff(8192 * t)[0], A.pmod))
    a("s_add_u32 s88, s88, 1")
    a("s_waitcnt lgkmcnt(0)")
    for t in range(4):
        a("s_waitcnt vmcnt(%d)" % (3 - t))
        a("v_mfma_f32_16x16x32_bf16 v[36:39], %s, %s, %s" % (t4(AF + 8 * t + 4), t4(BF + 4 * t), "0" if t == 0 else "v[36:39]"))
        a("v_mfma_f32_16x16x32_bf16 v[40:43], %s, %s, %s" % (t4(AF + 8 * t), t4(BF + 4 * t), "0" if t == 0 else "v[40:43]"))
        if t == 0: a("v_max3_u32 v31, v%d, v%d, v%d\nv_mov_b32 v32, v%d" % (BF, BF + 1, BF + 2, BF + 3))
        else: a("v_max3_u32 v31, v31, v%d, v%d\nv_max3_u32 v32, v32, v%d, v%d" % (BF + 4 * t, BF + 4 * t + 1, BF + 4 * t + 2, BF + 4 * t + 3))
    a("v_max_u32 v31, v31, v32")
    a("v_cmp_eq_u32 vcc, -1, v31")
    a("s_cmp_gt_u32 s88, %d" % SPIN_MAX)
    a("s_cselect_b64 vcc, 0, vcc")
    a("s_cbranch_vccnz L_poll2")
    stamp()
    for r in range(4):
        a("v_add_f32_dpp v%d, v%d, v%d row_ror:8 row_mask:0xf bank_mask:0xf" % (40 + r, 36 + r, 40 + r))
elif A.D2:
    sets = [80 + 28 * k for k in range(A.D2)]
    assert sets[-1] + 28 <= XF
    def p2(g):
        for t in range(7):
            a("buffer_load_dwordx4 %s, v22, s[60:63], %s offen %s" % (t4(g + 4 * t), soff(4096 * t)[0], A.pmod))
    if A.m2:
        a("s_mov_b32 exec_lo, 0x00ff00ff\ns_mov_b32 exec_hi, 0x00ff00ff")
    for k, g in enumerate(sets):
        if A.pace and k: a("s_sleep %d" % A.pace)
        p2(g)
    a("s_waitcnt lgkmcnt(0)")
    a("L_poll2:")
    for k, g in enumerate(sets):
        a("s_waitcnt vmcnt(%d)" % (7 * (A.D2 - 1)))
        a("v_max3_u32 v31, v%d, v%d, v%d" % (g, g + 1, g + 2))
        a("v_max3_u32 v32, v%d, v%d, v%d" % (g + 3, g + 4, g + 5))
        for q in range(6, 26, 4):
            a("v_max3_u32 v31, v31, v%d, v%d" % (g + q, g + q + 1))
            a("v_max3_u32 v32, v32, v%d, v%d" % (g + q + 2, g + q + 3))
        a("v_max3_u32 v31, v31, v%d, v%d" % (g + 26, g + 27))
        a("v_max_u32 v31, v31, v32")
        a("v_cmp_eq_u32 vcc, -1, v31")
        a("s_cbranch_vccz L_p2x%d" % k)
        if A.pace: a("s_sleep %d" % A.pace)
        p2(g)
    a("s_add_u32 s88, s88, 1")
    a("s_cmp_gt_u32 s88, %d" % SPIN_MAX)
    a("s_cbranch_scc0 L_poll2")
    for k, g in reversed(list(enumerate(sets))):
        a("L_p2x%d:" % k)
        if A.m2: a("s_mov_b64 exec, -1")
        for t in range(7):
            a("v_mfma_f32_16x16x32_bf16 v[40:43], %s, %s, %s" % (t4(AF + 4 * t), t4(g + 4 * t), "0" if t == 0 else "v[40:43]"))
        if k: a("s_branch L_p2done")
    a("L_p2done:")
    a("s_nop 7")
    stamp()
else:
    if A.m2:
        for q in range(28): a("v_mov_b32 v%d, 0" % (BF + q))
        a("s_mov_b32 exec_lo, 0x00ff00ff\ns_mov_b32 exec_hi, 0x00ff00ff")
    if A.first2: a("s_sleep %d" % A.first2)
    a("L_poll2:")
    if A.bo2: a("s_sleep %d" % A.bo2)
    for t in range(7):
        a("buffer_load_dwordx4 %s, v22, s[60:63], %s offen %s" % (t4(BF + 4 * t), soff(4096 * t)[0], A.pmod))
    a("s_add_u32 s88, s88, 1")
    a("s_waitcnt lgkmcnt(0)" if A.fin2 else "s_waitcnt vmcnt(0) lgkmcnt(0)")
    if A.fin2:
        a("s_mov_b64 exec, -1")
        for t in range(7):
            a("s_waitcnt vmcnt(%d)" % (6 - t))
            a("v_mfma_f32_16x16x32_bf16 v[40:43], %s, %s, %s" % (t4(AF + 4 * t), t4(BF + 4 * t), "0" if t == 0 else "v[40:43]"))
            if t == 0: a("v_max3_u32 v31, v%d, v%d, v%d\nv_mov_b32 v32, v%d" % (BF, BF + 1, BF + 2, BF + 3))
            else: a("v_max3_u32 v31, v31, v%d, v%d\nv_max3_u32 v32, v32, v%d, v%d" % (BF + 4 * t, BF + 4 * t + 1, BF + 4 * t + 2, BF + 4 * t + 3))
        a("v_max_u32 v31, v31, v32")
        a("v_cmp_eq_u32 vcc, -1, v31")
        a("s_mov_b32 exec_lo, 0x00ff00ff\ns_mov_b32 exec_hi, 0x00ff00ff")
        a("s_cmp_gt_u32 s88, %d" % SPIN_MAX)
        a("s_cbranch_scc1 L_poll2_done")
        a("s_cbranch_vccnz L_poll2")
        a("L_poll2_done:")
        a("s_mov_b64 exec, -1")
        stamp()
        a("L_f2_body:")
    else:
        a("v_max_u32 v31, v%d, v%d" % (BF, BF + 1))
        a("v_max_u32 v32, v%d, v%d" % (BF + 2, BF + 3))
        for k in range(4, 28, 4):
            a("v_max3_u32 v31, v31, v%d, v%d" % (BF + k, BF + k + 1))
            a("v_max3_u32 v32, v32, v%d, v%d" % (BF + k + 2, BF + k + 3))
        a("v_max_u32 v31, v31, v32")
        a("v_cmp_eq_u32 vcc, -1, v31")
        a("s_cmp_gt_u32 s88, %d" % SPIN_MAX)
        a("s_cbranch_scc1 L_poll2_done")
        a("s_cbranch_vccnz L_poll2")
        a("L_poll2_done:")
        if A.m2: a("s_mov_b64 exec, -1")
        if A.late2:
            f2_frags(range(7 - A.late2, 7))
        stamp()
        a("L_f2_body:")
        for t in range(7):
            if A.late2 and t >= 7 - A.late2: a("s_waitcnt lgkmcnt(%d)" % (2 * (6 - t)))
            a("v_mfma_f32_16x16x32_bf16 v[40:43], %s, %s, %s" % (t4(AF + 4 * t), t4(BF + 4 * t), "0" if t == 0 else "v[40:43]"))
a("ds_write_b128 v16, v[40:43] offset:%d" % L_FP)
a("s_waitcnt lgkmcnt(0)")
a("s_barrier")
a("s_cmp_lg_u32 s26, 0")
a("s_cbranch_scc1 L_f2_skip")
if A.fin2:
    for w in range(4):
        a("ds_read_b128 %s, v17 offset:%d" % (t4(AF + 4 * w), L_FP + 1024 * w))
    for w in range(2):
        a("s_waitcnt lgkmcnt(%d)" % (2 - 2 * w))
        for r in (0, 2):
            a("v_pk_add_f32 v[%d:%d], v[%d:%d], v[%d:%d]" % (AF + 8 * w + r, AF + 8 * w + r + 1, AF + 8 * w + r, AF + 8 * w + r + 1, AF + 8 * w + 4 + r, AF + 8 * w + 4 + r + 1))
    for r in (0, 2):
        a("v_pk_add_f32 v[%d:%d], v[%d:%d], v[%d:%d]" % (AF + r, AF + r + 1, AF + r, AF + r + 1, AF + 8 + r, AF + 8 + r + 1))
    for r in range(4):
        a("v_add_f32_dpp v%d, v%d, v%d row_ror:8 row_mask:0xf bank_mask:0xf" % (AF + r, AF + r, AF + r))
else:
    for w in range(8):
        a("ds_read_b128 %s, v17 offset:%d" % (t4(AF + 4 * w), L_FP + 1024 * w))
    a("s_waitcnt lgkmcnt(0)")
    for s_ in (4, 2, 1):
        for w in range(s_):
            for r in range(0, 4, 2):
                a("v_pk_add_f32 v[%d:%d], v[%d:%d], v[%d:%d]" % (AF + 4 * w + r, AF + 4 * w + r + 1, AF + 4 * w + r, AF + 4 * w + r + 1, AF + 4 * (w + s_) + r, AF + 4 * (w + s_) + r + 1))
a("s_mov_b32 exec_lo, 0x00ff00ff\ns_mov_b32 exec_hi, 0x00ff00ff")
for k in range(2):
    a("v_cvt_pk_bf16_f32 v31, v%d, v%d" % (AF + 2 * k, AF + 2 * k + 1))
    a("v_lshlrev_b32 v32, 16, v31")
    a("v_and_b32 v33, 0xffff0000, v31")
    a("v_add_f32 v32, v32, v%d" % (XF + 2 * k))
    a("v_add_f32 v33, v33, v%d" % (XF + 1 + 2 * k))
    a("v_cvt_pk_bf16_f32 v%d, v32, v33" % (40 + k))
if A.warm or A.warm2:
    a("s_cmp_eq_u32 s78, 0")
    a("s_cbranch_scc1 L_f2_nost")
a("buffer_store_dwordx2 v[40:41], v21, s[56:59], s79 offen %s" % A.outmod)
a("L_f2_nost:")
a("s_mov_b64 exec, -1")
a("L_f2_skip:")
if A.warm or A.warm2:
    a("s_cmp_eq_u32 s78, 0")
    a("s_cbranch_scc1 L_f2_real")
if A.diagnum:
    a("v_mov_b32 v26, 0")
    a("buffer_load_dword v27, v26, s[64:67], 0 offen offset:32 sc0 sc1\ns_waitcnt vmcnt(0)")
    a("v_readfirstlane_b32 s84, v27\ns_bcnt1_i32_b32 s84, s84\ns_cmp_eq_u32 s84, 1\ns_cbranch_scc1 L_fin")
    a("s_memrealtime s[90:91]\ns_waitcnt lgkmcnt(0)\ns_add_u32 s85, s90, 10000")
    a("L_dly:\ns_memrealtime s[90:91]\ns_waitcnt lgkmcnt(0)\ns_sub_u32 s84, s85, s90\ns_cmp_lt_i32 s84, 0\ns_cbranch_scc0 L_dly")
if A.diags >= 0:
    a("s_and_b32 s84, s2, 7\ns_cmp_lg_u32 s84, %d\ns_cbranch_scc1 L_fin" % A.diags)
    a("v_mov_b32 v26, 0\nbuffer_load_dword v27, v26, s[64:67], 0 offen offset:192 sc0 sc1\ns_waitcnt vmcnt(0)\nv_readfirstlane_b32 s84, v27")
    a("s_sub_u32 s85, s92, s84\ns_add_u32 s85, s85, 200\ns_min_u32 s85, s85, 1000\ns_lshl_b32 s85, s85, 4")
    a("s_memrealtime s[90:91]\ns_waitcnt lgkmcnt(0)\ns_add_u32 s85, s85, s90")
    a("L_dly4:\ns_memrealtime s[90:91]\ns_waitcnt lgkmcnt(0)\ns_sub_u32 s84, s85, s90\ns_cmp_lt_i32 s84, 0\ns_cbranch_scc0 L_dly4")
if A.diagd:
    a("s_getreg_b32 s84, hwreg(HW_REG_XCC_ID)\ns_sub_u32 s84, s84, s2\ns_and_b32 s84, s84, 7\ns_mul_i32 s85, s84, 2000")
    a("s_memrealtime s[90:91]\ns_waitcnt lgkmcnt(0)\ns_add_u32 s85, s85, s90")
    a("L_dly3:\ns_memrealtime s[90:91]\ns_waitcnt lgkmcnt(0)\ns_sub_u32 s84, s85, s90\ns_cmp_lt_i32 s84, 0\ns_cbranch_scc0 L_dly3")
if A.amp >= 0:
    a("s_cmp_lg_u32 s26, 0\ns_cbranch_scc1 L_fin")
    a("s_memrealtime s[90:91]\ns_waitcnt lgkmcnt(0)\ns_mov_b32 s101, s90")
    if A.ampA:
        a("s_load_dword s93, s[24:25], %d\ns_waitcnt lgkmcnt(0)\ns_mov_b32 s94, s92\ns_mov_b32 s92, s93" % (WS_STAMP - 64))
    a("s_sub_u32 s85, s%d, s92\ns_lshl_b32 s85, s85, %d\ns_add_u32 s85, s85, s90" % (92 + A.amp, A.ampsh))
    a("L_dly2:\ns_memrealtime s[90:91]\ns_waitcnt lgkmcnt(0)\ns_sub_u32 s84, s85, s90\ns_cmp_lt_i32 s84, 0\ns_cbranch_scc0 L_dly2")
a("L_fin:")
if A.stamp and A.amp < 0:
    a("s_waitcnt vmcnt(0)")
    a("s_memrealtime s[90:91]\ns_waitcnt lgkmcnt(0)\ns_mov_b32 s101, s90")
    a("s_add_u32 s48, s24, %d\ns_addc_u32 s49, s25, 0\ns_mov_b32 s50, 131072" % WS_STAMP)
    a("s_lshl_b32 s84, s2, 3\ns_add_u32 s84, s84, s26\ns_lshl_b32 s84, s84, 6")
    a("s_getreg_b32 s85, hwreg(HW_REG_XCC_ID)")
    a("v_mov_b32 v1, 0")
    a("s_mov_b64 exec, 1")
    for k in range(10):
        a("v_mov_b32 v2, s%d" % (92 + k))
        a("buffer_store_dword v2, v1, s[48:51], s84 offen offset:%d" % (4 * k))
    a("v_mov_b32 v2, s85")
    a("buffer_store_dword v2, v1, s[48:51], s84 offen offset:40")
    a("v_mov_b32 v2, s88")
    a("buffer_store_dword v2, v1, s[48:51], s84 offen offset:44")
    a("v_mov_b32 v2, s27")
    a("buffer_store_dword v2, v1, s[48:51], s84 offen offset:48")
    if A.dbgstamp:
        a("s_cmp_ge_u32 s27, 40\ns_cbranch_scc1 L_end\ns_cmp_lg_u32 s26, 0\ns_cbranch_scc1 L_end")
        a("s_not_b32 s86, s92")
        a("v_mov_b32 v2, s86")
        a("buffer_atomic_umax v2, v1, s[64:67], 0 offen offset:4 sc1")
        for k in (4, 5, 6, 7, 9):
            a("v_mov_b32 v2, s%d" % (92 + k))
            a("buffer_atomic_umax v2, v1, s[64:67], 0 offen offset:%d sc1" % (8 + 4 * k))
a("L_end:")
a("s_endpgm")
if A.adapt:
    import struct as _st2
    a("L_adapt:")
    a("s_mov_b32 s84, 0x%08x" % _st2.unpack("<I", _st2.pack("<f", float(A.adapt)))[0])
    a("s_lshl_b32 s10, s79, 7")
    a("s_mov_b64 exec, 1")
    a("L_adapt2:")
    a("v_cmp_gt_f32 vcc, s84, v31")
    a("s_add_u32 s88, s88, 1")
    a("s_cmp_gt_u32 s88, %d" % SPIN_MAX)
    a("s_cbranch_scc1 L_adapt3")
    a("s_cbranch_vccz L_adapt3")
    a("buffer_load_dword v31, v22, s[48:51], s10 offen offset:12 %s" % A.pmod)
    a("s_waitcnt vmcnt(0)")
    a("s_branch L_adapt2")
    a("L_adapt3:")
    a("s_mov_b64 exec, -1")
    a("s_branch L_poll1")
a("L_initslow:")
a("s_mov_b32 s88, 0")
a("L_initpoll:")
a("buffer_load_dword v12, v21, s[64:67], 0 offen sc0 sc1")
a("s_waitcnt vmcnt(0)")
a("v_readfirstlane_b32 s89, v12")
a("s_add_u32 s88, s88, 1")
a("s_cmp_gt_u32 s88, %d" % SPIN_MAX)
a("s_cbranch_scc1 L_initok")
a("s_cmp_ge_u32 s89, 8")
a("s_cbranch_scc0 L_initpoll")
a("s_branch L_initok")

DESC = '; ---------------------------------------------------------------------------------------------\n; ---------------------------------------------------------------------------------------------\n'
body = a.render()
txt = HEADER + "; @launch grid=(256,1,1) block=(512,1,1) lds=%d\n" % (A.lds or LDS_BYTES)
txt += DESC + """.amdgcn_target "amdgcn-amd-amdhsa--gfx950"
.text
.globl {n}_kernel
{al}.p2align 8
.type {n}_kernel,@function
{n}_kernel:
{body}.section .rodata,"a"
.p2align 6
.amdhsa_kernel {n}_kernel
  .amdhsa_next_free_vgpr 256
  .amdhsa_next_free_sgpr 102
  .amdhsa_accum_offset 256
  .amdhsa_group_segment_fixed_size 0
  .amdhsa_kernarg_size 88
  .amdhsa_user_sgpr_count 2
  .amdhsa_user_sgpr_kernarg_segment_ptr 1
  .amdhsa_system_sgpr_workgroup_id_x 1
  .amdhsa_float_denorm_mode_32 3
.end_amdhsa_kernel
""".format(n=NAME, body=body, al=(".p2align 12\n" + (".fill %d, 4, 0xbf810000   ; never executed: places the entry so that no latency-critical segment crosses a 4 KiB line\n" % (64 * A.align12) if A.align12 else "")) if A.align12 >= 0 else "")
open(A.o, "w").write(txt)
print("wrote", A.o, len(txt), "bytes,", body.count("\\n"), "lines")
```
